```python
import torch

def _softmax(x, axis=-1):
    return torch.softmax(x, dim=axis)
def _gelu(x):
    return torch.nn.functional.gelu(x, approximate="tanh")
def _silu(x):
    return torch.nn.functional.silu(x)
def _sigmoid(x):
    return torch.sigmoid(x)
def _layernorm(x, axis=-1, eps=1e-5):
    m = x.mean(dim=axis, keepdim=True)
    v = x.var(dim=axis, keepdim=True, unbiased=False)
    return (x - m) / torch.sqrt(v + eps)
def _scatter_add(tgt, idx, src, axis=0):
    return tgt.clone().index_add_(axis, idx, src)
def _segment_sum(src, seg, n):
    out = torch.zeros((n,) + src.shape[1:], dtype=src.dtype)
    return out.index_add_(0, seg, src)
def _pad(x, pw):
    flat = tuple(v for pair in reversed(pw) for v in pair)
    return torch.nn.functional.pad(x, flat)

kernel_name = 'gated_mix__mha_block__glu_gated_geglu__prompt'

def setup_inputs():

    _w = (lambda a: (lambda t: t.to(torch.bfloat16) if t.is_floating_point() else t)(torch.as_tensor(a)))
    def _A_setup():
        B, S, D, H = 1, 2048, 512, 32
        return {
            "x": _w((lambda *s: torch.randn(*s, dtype=torch.bfloat16) * 0.05)(B, S, D)),
            "wqkv": _w((lambda *s: torch.randn(*s, dtype=torch.bfloat16) * 0.8)(D, 3 * D)),
            "wo": _w((lambda *s: torch.randn(*s, dtype=torch.bfloat16) * 0.05)(D, D)),
        }
    _A_in = _A_setup()

    def _B_setup():
        B, S, Dm, Df = 1, 2048, 512, 1792
        return {
            "x": _w((lambda *s: torch.randn(*s, dtype=torch.bfloat16) * 0.05)(B, S, Dm)),
            "w_gate": _w((lambda *s: torch.randn(*s, dtype=torch.bfloat16) * 3.2)(Dm, Df) * (Dm ** -0.5)),
            "w_up": _w((lambda *s: torch.randn(*s, dtype=torch.bfloat16) * 3.2)(Dm, Df) * (Dm ** -0.5)),
            "w_down": _w((lambda *s: torch.randn(*s, dtype=torch.bfloat16) * 3.2)(Df, Dm) * (Df ** -0.5)),
        }
    _B_in = _B_setup()

    return {
        "A_x": _A_in["x"],
        "A_wqkv": _A_in["wqkv"],
        "A_wo": _A_in["wo"],
        "B_x": _B_in["x"],
        "B_w_gate": _B_in["w_gate"],
        "B_w_up": _B_in["w_up"],
        "B_w_down": _B_in["w_down"],
        "gate_w": _w((lambda *s: torch.randn(*s, dtype=torch.bfloat16) * 0.05)(512) * 16.0),
    }

def reference(A_x, A_wqkv, A_wo, B_x, B_w_gate, B_w_up, B_w_down, gate_w):
    def _A_ref(x, wqkv, wo):
        B, S, D = x.shape
        H = 32
        Dh = D // H
        qkv = (lambda x, *d: x.permute(*d))((x @ wqkv).reshape(B, S, 3, H, Dh), 2, 0, 3, 1, 4)
        q, k, v = qkv[0], qkv[1], qkv[2]
        scores = torch.einsum("bhqd,bhkd->bhqk", q, k) * (Dh ** -0.5)
        p = _softmax(scores, axis=-1)
        o = torch.einsum("bhqk,bhkd->bhqd", p, v)
        return (lambda x, *d: x.permute(*d))(o, 0, 2, 1, 3).reshape(B, S, D) @ wo

    def _B_ref(x, w_gate, w_up, w_down):
        g = torch.einsum("bsd,df->bsf", x, w_gate)
        u = torch.einsum("bsd,df->bsf", x, w_up)
        h = _gelu(g) * u
        return torch.einsum("bsf,fd->bsd", h, w_down)

    x = A_x
    g = _sigmoid((x * gate_w).sum(-1, keepdims=True))
    a = _A_ref(x, A_wqkv, A_wo)
    b = _B_ref(x, B_w_gate, B_w_up, B_w_down)
    return g * a + (1 - g) * b
```

```python
import re

TRANS = ("v_exp_f32", "v_log_f32", "v_rcp_f32", "v_rsq_f32", "v_sqrt_f32", "v_sin_f32", "v_cos_f32",
         "v_exp_f16", "v_rcp_f16", "v_rcp_iflag_f32")

def _regs(tok):
    tok = tok.strip()
    tok = re.sub(r"^-?(abs\()?|\)$", "", tok) if tok.startswith(("-", "abs(")) else tok
    tok = tok.strip("|")
    m = re.fullmatch(r"([vsa])\[(\d+):(\d+)\]", tok)
    if m:
        return {f"{m.group(1)}{i}" for i in range(int(m.group(2)), int(m.group(3)) + 1)}
    m = re.fullmatch(r"([vsa])(\d+)", tok)
    if m:
        return {tok}
    if tok in ("vcc", "vcc_lo", "vcc_hi"): return {"vcc"}
    if tok in ("exec", "exec_lo", "exec_hi"): return {"exec"}
    if tok == "m0": return {"m0"}
    return set()

class Ins:
    def __init__(self, text):
        self.text = text
        t = text.split(";")[0].strip()
        self.label = None
        self.kind = "other"
        self.dst = set(); self.src = set()
        self.srcA = set(); self.srcB = set(); self.srcC = set()
        self.states = 1
        self.target = None
        self.uncond = False
        self.op = ""
        self.sdata = set()
        self.wide = False
        self.lds_dma = False
        self.dpp = False
        if not t:
            self.kind = "empty"; self.states = 0; return
        if t.endswith(":"):
            self.label = t[:-1]; self.kind = "label"; self.states = 0; return
        if t.startswith("."):
            self.kind = "directive"; self.states = 0; return
        parts = t.split(None, 1)
        op = parts[0]; self.op = op
        rest = parts[1] if len(parts) > 1 else ""
        ops = []; depth = 0; cur = ""
        for ch in rest:
            if ch in "[(": depth += 1
            if ch in "])": depth -= 1
            if ch == "," and depth == 0:
                ops.append(cur.strip()); cur = ""
            else:
                cur += ch
        if cur.strip(): ops.append(cur.strip())
        mods = ""
        if ops:
            lp = ops[-1].split(None, 1)
            ops[-1] = lp[0]
            mods = lp[1] if len(lp) > 1 else ""
        self.ops = ops; self.mods = mods
        R = [_regs(o) for o in ops]
        if op == "s_nop":
            self.kind = "nop"; self.states = int(ops[0], 0) + 1; return
        if op in ("s_branch",) or op.startswith("s_cbranch"):
            self.kind = "branch"; self.target = ops[0]; self.uncond = op == "s_branch"
            if "vcc" in op: self.src = {"vcc"}
            if "exec" in op: self.src = {"exec"}
            return
        if op == "s_endpgm":
            self.kind = "end"; self.uncond = True; return
        if op in ("s_waitcnt", "s_barrier", "s_setprio", "s_sleep", "buffer_inv", "buffer_wbl2"):
            self.kind = "other"; return
        if op.startswith("v_mfma"):
            self.kind = "mfma"
            self.dst = R[0]; self.srcA = R[1]; self.srcB = R[2]; self.srcC = R[3]
            self.src = R[1] | R[2] | R[3]
            self.passes = 8 if "32x32x16" in op else 4
            return
        if op.startswith("v_"):
            base = re.sub(r"_(e32|e64|dpp|sdwa)$", "", op)
            self.kind = "trans" if base in TRANS else "valu"
            self.dpp = op.endswith("_dpp") or "row_" in mods or "quad_perm" in mods
            if base.startswith("v_cmp"):
                self.dst = R[0] | ({"exec"} if base.startswith("v_cmpx") else set())
                self.src = set().union(*R[1:])
            elif base in ("v_add_co_u32", "v_sub_co_u32", "v_addc_co_u32", "v_subb_co_u32", "v_div_scale_f32", "v_mad_u64_u32"):
                self.dst = R[0] | R[1]; self.src = set().union(*R[2:])
            elif base in ("v_permlane32_swap_b32", "v_permlane16_swap_b32", "v_swap_b32"):
                self.dst = R[0] | R[1]; self.src = R[0] | R[1]
            else:
                self.dst = R[0]; self.src = set().union(*R[1:]) if len(R) > 1 else set()
                if base in ("v_fmac_f32", "v_dot2c_f32_bf16", "v_writelane_b32", "v_pk_fmac_f16") or self.dpp or "UNUSED_PRESERVE" in mods:
                    self.src |= R[0]
                if base == "v_cndmask_b32" and len(ops) == 3: self.src |= {"vcc"}
            self.base = base
            return
        if op.startswith("s_load") or op in ("s_memtime", "s_memrealtime"):
            self.kind = "smem"; self.dst = R[0]; self.src = set().union(*R[1:]) if len(R) > 1 else set(); return
        if op.startswith("s_"):
            self.kind = "salu"
            if op.startswith("s_cmp") or op.startswith("s_bitcmp"):
                self.src = set().union(*R)
            else:
                self.dst = R[0]; self.src = set().union(*R[1:]) if len(R) > 1 else set()
                if "saveexec" in op: self.dst |= {"exec"}; self.src |= {"exec"}
                if op in ("s_addk_i32", "s_mulk_i32", "s_bitset0_b32", "s_bitset1_b32"): self.src |= R[0]
            return
        if op.startswith("ds_"):
            if op.startswith("ds_read") or op.startswith("ds_bpermute") or op.startswith("ds_permute") or op.startswith("ds_swizzle") or "_rtn" in op:
                self.kind = "ds_read"; self.dst = R[0]; self.src = set().union(*R[1:])
            else:
                self.kind = "ds_write"; self.src = set().union(*R); self.sdata = set().union(*R[1:])
            return
        if op.startswith("buffer_") or op.startswith("global_"):
            allm = mods
            is_lds = re.search(r"\blds\b", allm) is not None or "load_lds" in op
            if "load" in op:
                self.kind = "vmem_load"
                if is_lds:
                    self.lds_dma = True; self.src = set().union(*R) | {"m0"}
                else:
                    self.dst = R[0]; self.src = set().union(*R[1:])
                    if "d16" in op: self.src |= R[0]
            elif "atomic" in op:
                self.kind = "vmem_store"
                ret = re.search(r"\bsc0\b", allm) is not None
                if op.startswith("buffer_"):
                    self.src = set().union(*R); self.sdata = R[0]
                    if ret: self.dst = R[0]
                else:
                    if ret: self.dst = R[0]; self.src = set().union(*R[1:]); self.sdata = R[2]
                    else: self.src = set().union(*R); self.sdata = R[1]
            else:
                self.kind = "vmem_store"; self.src = set().union(*R)
                self.sdata = R[0] if op.startswith("buffer_") else R[1]
                self.wide = op.endswith("x3") or op.endswith("x4")
            return
        raise ValueError("unknown instruction: " + t)

def _isv(r): return r[0] in "va" and r not in ("vcc",)
def _iss(r): return r[0] == "s" or r == "vcc"

def need(p, c):
    n = 0
    pv = p.kind in ("valu", "trans")
    cv = c.kind in ("valu", "trans")
    cmem = c.kind in ("vmem_load", "vmem_store", "ds_read", "ds_write")
    if pv:
        vd = {r for r in p.dst if _isv(r)}
        sd = {r for r in p.dst if _iss(r)}
        if c.kind == "mfma" and vd & c.src: n = max(n, 2)
        if c.kind == "mfma" and "exec" in p.dst: n = max(n, 4)
        if c.kind in ("vmem_load", "vmem_store") and sd & c.src: n = max(n, 5)
        if cv:
            if sd & c.src:
                n = max(n, 4 if c.base in ("v_readlane_b32", "v_writelane_b32") else 2)
            if c.base in ("v_readlane_b32", "v_readfirstlane_b32") and vd & c.src: n = max(n, 1)
            if c.base.startswith("v_permlane") and vd & c.src: n = max(n, 2)
            if c.dpp and vd & c.src: n = max(n, 2)
            if p.kind == "trans" and c.kind != "trans" and vd & c.src: n = max(n, 1)
            if "exec" in p.dst:
                if c.dpp: n = max(n, 5)
                if c.base in ("v_readlane_b32", "v_readfirstlane_b32", "v_writelane_b32") or c.base.startswith("v_permlane"): n = max(n, 4)
            if ("sdwa" in p.op or "op_sel" in p.mods and not p.op.startswith("v_pk")) and vd & (c.src | c.dst): n = max(n, 1)
            if p.base.startswith("v_dot") and vd & (c.src | c.dst):
                if c.base == p.base and not (vd & (c.src - c.dst)): pass
                else: n = max(n, 3)
        if p.kind == "trans" and c.kind == "mfma" and vd & c.src: n = max(n, 2)
        if p.kind == "trans" and cmem and vd & c.src: n = max(n, 1)
        if c.kind == "branch" and sd & c.src: n = max(n, 1)
        if c.kind == "salu" and sd & c.src: n = max(n, 1)
    if p.kind == "mfma":
        P = p.passes
        tab_ab = {4: 8, 8: 12}[P]; tab_c = {4: 6, 8: 10}[P]; war = {4: 3, 8: 7}[P]
        if c.kind == "mfma":
            if p.dst & (c.srcA | c.srcB): n = max(n, tab_ab)
            if p.dst & c.srcC:
                if not (p.dst == c.srcC and c.passes == P): n = max(n, tab_c)
            if p.dst & c.dst and not (p.dst == c.dst and c.passes == P): n = max(n, tab_c)
        elif cv or cmem:
            if p.dst & (c.src | c.dst): n = max(n, tab_ab)
            if cv and p.srcC & c.dst: n = max(n, war)
            if cmem and p.srcC & c.dst: n = max(n, war)
    if p.kind == "salu" and "m0" in p.dst and (c.lds_dma or "addtid" in c.op): n = max(n, 1)
    if p.kind in ("vmem_store", "ds_write") and (p.wide or p.kind == "ds_write" and len(p.sdata) >= 3):
        if p.sdata & c.dst: n = max(n, 2 if (cv or c.kind == "mfma") else 1)
    return n

MAXD = 14

class Asm:
    def __init__(self):
        self.lines = []
    def __call__(self, text):
        for l in text.split("\n"):
            if l.strip(): self.lines.append(l.strip())
        return self
    def label(self, name): self.lines.append(name + ":")
    def fix(self, verbose=False):
        ins = [Ins(l) for l in self.lines]
        total = 0
        i = 0
        while True:
            labels = {x.label: k for k, x in enumerate(ins) if x.label}
            preds = [[] for _ in ins]
            for k, x in enumerate(ins):
                if k + 1 < len(ins) and not x.uncond: preds[k + 1].append(k)
                if x.kind == "branch": preds[labels[x.target]].append(k)
            changed = False
            for k, c in enumerate(ins):
                if c.states == 0 or c.kind in ("nop", "other", "end"): continue
                worst = 0; who = None
                stack = [(p, 0) for p in preds[k]]
                seen = {}
                while stack:
                    j, d = stack.pop()
                    if d >= MAXD: continue
                    if seen.get(j, 99) <= d: continue
                    seen[j] = d
                    p = ins[j]
                    if p.states:
                        nd = need(p, c) - d
                        if nd > worst: worst = nd; who = p
                    for q in preds[j]: stack.append((q, d + p.states))
                if worst > 0:
                    if verbose: print(f"nop {worst}: [{who.text}] -> [{c.text}]")
                    ins.insert(k, Ins(f"s_nop {worst-1}"))
                    total += worst
                    changed = True
                    break
            if not changed: break
        self.lines = [x.text for x in ins]
        return total
    def text(self):
        out = []
        for l in self.lines:
            if l.endswith(":") or l.startswith("."): out.append(l)
            else: out.append("    " + l)
        return "\n".join(out) + "\n"
```

```python
import math, struct
from asm import Asm

NAME = "gated_mix__mha_block__glu_gated_geglu__prompt"
WS_QK = 0x0
WS_V  = 0x400000
WS_AF = 0x600000
WS_WF = 0x1000000
WS_G  = 0x1400000
WS_B  = 0x1500000
WS_SIZE = 0x2000000
OOB = 0x7ff00000

def f32(x):
    return "0x%08x" % struct.unpack("<I", struct.pack("<f", x))[0]

LOG2E = 1.4426950408889634
QSCALE = 0.25 * LOG2E
GK1 = 2.0 * math.sqrt(2.0 / math.pi) * LOG2E

def srd(a, d, lo, hi, size):
    a(f"s_mov_b32 s{d}, s{lo}")
    a(f"s_mov_b32 s{d+1}, s{hi}")
    a(f"s_mov_b32 s{d+2}, {size:#x}")
    a(f"s_mov_b32 s{d+3}, 0x00020000")

def vr(b, n=4): return f"v[{b}:{b+n-1}]"

def kd(name, vgpr=256, sgpr=102, acc=None):
    acc = acc if acc is not None else (vgpr + 3) // 4 * 4
    return f""".p2align 6
.amdhsa_kernel {name}
  .amdhsa_next_free_vgpr {vgpr}
  .amdhsa_next_free_sgpr {sgpr}
  .amdhsa_accum_offset {acc}
  .amdhsa_group_segment_fixed_size 0
  .amdhsa_kernarg_size 88
  .amdhsa_user_sgpr_count 2
  .amdhsa_user_sgpr_kernarg_segment_ptr 1
  .amdhsa_system_sgpr_workgroup_id_x 1
.end_amdhsa_kernel
"""
VPERM = {0:1,1:2,2:3,3:4,12:5,13:6,14:7,15:8, 4:0,5:9,6:10,7:11,8:12,9:13,10:14,11:15}

import os
STAMP = bool(os.environ.get("STAMP"))
WS_STAMP = 0x1c00000
def stamp(a, i, v=15, real=False):
    if not STAMP: return
    a(("s_memrealtime" if real else "s_memtime") + " s[100:101]")
    if not real: a("s_memrealtime s[96:97]")
    a("s_waitcnt lgkmcnt(0)")
    a(f"v_writelane_b32 v{v}, s100, {i}")
    if not real: a(f"v_writelane_b32 v{v}, s96, {32+i}")
def stamp_out(a, kidx, srdn, v=15, t=14):
    if not STAMP: return
    stamp(a, 14, v); stamp(a, 15, v, real=True)
    a("s_getreg_b32 s100, hwreg(HW_REG_HW_ID)")
    a(f"v_writelane_b32 v{v}, s100, 12")
    a("s_getreg_b32 s100, hwreg(HW_REG_XCC_ID)")
    a(f"v_writelane_b32 v{v}, s100, 13")
    a(f"v_lshlrev_b32 v{t}, 2, v0")
    a("s_lshl_b32 s100, s2, 11")
    a(f"s_add_u32 s100, s100, {WS_STAMP + kidx*0x80000}")
    a(f"buffer_store_dword v{v}, v{t}, s[{srdn}:{srdn+3}], s100 offen")
```

```python
import os, sys
from common import *

MF = "v_mfma_f32_32x32x16_bf16"
ST = " sc1"
ENV = os.environ.get
WS_F1 = 0x1480000
WS_F2 = 0x1490000
SPIN = 1 << 20

S_DBG, S_WS, S_X, S_G, S_U, S_WA, S_WB, S_WC = 24, 28, 32, 36, 40, 44, 48, 52
S_R1, S_R2, S_GW = 80, 84, 88
S_OUT = 32
sWAVE, sMB, sNB, sVC = 3, 60, 61, 62
sHEAD, sQB = 63, 64
WSR = f"s[{S_WS}:{S_WS+3}]"
def SR(n): return f"s[{n}:{n+3}]"
VS = 1

LX, LW, WSLOT, XSLOT = 0, 49152, 20480, 16384
LR = LW + 5 * WSLOT
LDS_BYTES = 163840
LCNT = LDS_BYTES - 16
def acc(tt, ct): return 96 + (tt * 4 + ct) * 16 if ct < 4 else 224 + tt * 16
HP = 224
WFR = 16; XA = 36; XB = 44; VXA = 52; VW = 56
ONE_ROW = not ENV("ALLONES")
VST, VROT = 1072, 14
LK, LV = 0, 65536
LQ = LV + 64 * VST
QA, QB, CC, OA, OB, SA, SB, KF, V0A, V0B, V1 = 8, 12, 16, 32, 48, 64, 80, 96, 100, 104, 108
VK, VV0, VV1, VG = 4, 5, 6, 7
GACC, GFR, WO = 112, 144, 192

class Lgkm:
    def __init__(s, a): s.a = a; s.q = []
    def rd(s, tag, text): s.a(text); s.q.append(tag)
    def need(s, *tags):
        idx = [i for i, t in enumerate(s.q) if t in tags]
        if not idx: return
        n = len(s.q) - 1 - max(idx)
        assert n <= 15
        s.a(f"s_waitcnt lgkmcnt({n})")
        s.q = s.q[max(idx) + 1:]
    def all(s, extra=""):
        s.a("s_waitcnt " + extra + "lgkmcnt(0)")
        s.q = []

def poll(a, name, load, cmp, wait=True):
    a(f"s_mov_b32 s98, {SPIN}")
    a.label(name)
    load()
    if wait: a("s_waitcnt vmcnt(0)")
    cmp()
    a(f"s_cbranch_vccz {name}_ok")
    a(f"s_sleep {int(ENV('SLEEP', '4'))}")
    a("s_sub_u32 s98, s98, 1")
    a("s_cmp_lg_u32 s98, 0")
    a(f"s_cbranch_scc1 {name}")
    a.label(f"{name}_ok")

def rowmax(a, S, dst, acc=False):
    if acc: a(f"v_max3_f32 v{dst}, v{S}, v{S+1}, v{dst}")
    else: a(f"v_max_f32 v{dst}, v{S}, v{S+1}")
    for k in range(2, 16, 2): a(f"v_max3_f32 v{dst}, v{S+k}, v{S+k+1}, v{dst}")
def halfmax(a, dst, tmp):
    a(f"v_mov_b32 v{tmp}, v{dst}")
    a(f"v_permlane32_swap_b32 v{tmp}, v{dst}")
    a(f"v_max_f32 v{dst}, v{tmp}, v{dst}")
def zero(a, b, n):
    for r in range(0, n, 2): a(f"v_pk_mul_f32 {vr(b+r,2)}, 0, 0")
def one_lane(a, text, mask=1):
    a(f"s_mov_b64 exec, {mask}"); a(text); a("s_mov_b64 exec, -1")

def head(a):
    a("s_cmp_ge_u32 s2, 256")
    a("s_cbranch_scc1 L_exit")
    a("s_load_dwordx16 s[4:19], s[0:1], 0")
    a("s_load_dwordx4 s[20:23], s[0:1], 64")
    a(f"s_load_dwordx2 s[{S_WS}:{S_WS+1}], s[0:1], 80")
    if STAMP: a(f"v_mov_b32 v{VS}, 0")
    stamp(a, 0, VS); stamp(a, 1, VS, real=True)
    a("v_lshrrev_b32 v3, 6, v0")
    a("v_and_b32 v2, 63, v0")
    a(f"v_readfirstlane_b32 s{sWAVE}, v3")
    a("s_and_b32 s65, s2, 7")
    a("s_lshr_b32 s66, s2, 3")
    a("s_and_b32 s67, s65, 1")
    a("s_lshl_b32 s67, s67, 3")
    a("s_and_b32 s68, s66, 7")
    a(f"s_add_u32 s{sMB}, s67, s68")
    a("s_lshr_b32 s67, s65, 1")
    a("s_lshl_b32 s67, s67, 2")
    a("s_lshr_b32 s68, s66, 3")
    a(f"s_add_u32 s{sNB}, s67, s68")
    a("s_cmp_eq_u32 s68, 3")
    a(f"s_cselect_b32 s{sVC}, 1, 0")
    a("s_lshl_b32 s67, s65, 2")
    a("s_and_b32 s68, s66, 3")
    a(f"s_add_u32 s{sHEAD}, s67, s68")
    a(f"s_lshr_b32 s{sQB}, s66, 2")
    a("v_lshlrev_b32 v3, 4, v2")
    a(f"s_mov_b32 s{S_WS+2}, {WS_SIZE:#x}")
    a(f"s_mov_b32 s{S_WS+3}, 0x00020000")
    a(f"s_lshl_b32 s59, s{sNB}, 1")
    a(f"s_lshr_b32 s67, s{sNB}, 2")
    a("s_sub_u32 s59, s59, s67")
    a("v_lshrrev_b32 v8, 3, v2")
    a("v_and_b32 v4, 7, v2")
    a("v_bfe_u32 v5, v2, 4, 1")
    a("v_lshlrev_b32 v5, 2, v5")
    a("v_xor_b32 v5, v5, v4")
    a("v_lshlrev_b32 v9, 4, v5")
    a(f"s_cmp_ge_u32 s{sWAVE}, 4")
    a("s_waitcnt lgkmcnt(0)")
    srd(a, S_X, 4, 5, 2048 * 1024)
    a("s_cbranch_scc1 L_loader")

def p1_compute(a):
    a(f"s_and_b32 s65, s{sWAVE}, 1")
    a(f"s_lshr_b32 s66, s{sWAVE}, 1")
    a(f"s_lshl_b32 s82, s{sNB}, 11")
    a(f"s_lshl_b32 s67, s{sMB}, 7")
    a("s_add_u32 s82, s82, s67")
    a(f"s_add_u32 s82, s82, {WS_F1}")
    a("v_and_b32 v8, 31, v2")
    a("v_lshrrev_b32 v4, 5, v2")
    a("v_bfe_u32 v5, v2, 1, 3")
    a("v_xor_b32 v5, v5, v4")
    a("s_lshl_b32 s67, s65, 13")
    a("v_lshl_add_u32 v6, v8, 7, s67")
    for ks in range(4):
        a(f"v_xor_b32 v7, {2*ks}, v5")
        a(f"v_lshl_add_u32 v{VXA+ks}, v7, 4, v6")
    a("v_bfe_u32 v5, v2, 2, 2")
    a("v_and_b32 v6, 3, v2")
    a("v_bfe_u32 v7, v2, 4, 1")
    a("v_lshlrev_b32 v6, 3, v6")
    a("v_lshl_or_b32 v6, v7, 5, v6")
    a("v_lshrrev_b32 v7, 1, v5")
    a("v_lshl_or_b32 v6, v7, 6, v6")
    a("v_lshl_or_b32 v6, v5, 7, v6")
    a("v_lshl_or_b32 v6, v4, 10, v6")
    a("s_lshl_b32 s67, s66, 12")
    a(f"s_add_u32 s67, s67, {LW}")
    a(f"v_add_u32 v{VW}, s67, v6")
    a(f"v_xor_b32 v{VW+1}, 64, v{VW}")
    a("s_lshl_b32 s67, s66, 6")
    a("v_xor_b32 v6, s67, v6")
    a(f"v_add_u32 v{VW+2}, {LW + 4*4096}, v6")
    zero(a, 96, 160)
    a(f"v_mov_b32 v5, {LCNT}")
    a("ds_write_b32 v5, v96")
    a(f"s_mov_b32 s78, {(-4*WSLOT) & 0xffffffff:#x}")
    a(f"s_mov_b32 s79, {(-2*XSLOT) & 0xffffffff:#x}")
    a("s_mov_b32 s73, 0")
    a("s_mov_b32 s74, 0")
    a("s_mov_b32 s75, 8")
    a("s_waitcnt lgkmcnt(0)")
    lg = Lgkm(a)
    def rdX(buf, ks, t): lg.rd(("X", buf, t), f"ds_read_b128 {vr(buf+4*t)}, v{VXA+ks} offset:{t*4096}")
    def rdW(ct, kk, j):
        reg = [VW, VW+1, VW, VW+1, VW+2][ct]
        off = [0, 0, 8192, 8192, 0][ct] + kk * 2048 + j * 512
        lg.rd(("W", ct, j), f"ds_read_b64_tr_b16 {vr(WFR+4*ct+2*j, 2)}, v{reg} offset:{off}")
    def tail_reads(mm, nxt, ksn):
        mm(2, 0); rdX(nxt, ksn, 0); rdW(0, 0, 0); rdW(0, 0, 1)
        mm(2, 1); rdX(nxt, ksn, 1); rdW(1, 0, 0); rdW(1, 0, 1)
        mm(3, 0); rdW(2, 0, 0); rdW(2, 0, 1)
        mm(3, 1); rdW(3, 0, 0); rdW(3, 0, 1)
        mm(4, 0)
        mm(4, 1); rdW(4, 0, 0); rdW(4, 0, 1)
    stamp(a, 2, VS)
    a("s_barrier")
    stamp(a, 3, VS)
    tail_reads(lambda ct, t: None, XA, 0)
    entry_q = list(lg.q)
    a(f"s_and_b32 s67, s{sVC}, s66")
    a("s_cbranch_scc1 L_p1loopB")
    for typ in "AB":
        lg.q = list(entry_q)
        a.label(f"L_p1loop{typ}")
        for ks in range(4):
            kk = ks & 1
            cur, nxt = (XA, XB) if kk == 0 else (XB, XA)
            def mm(ct, t):
                lg.need(("W", ct, 0), ("W", ct, 1), ("X", cur, t))
                d = vr(acc(t, ct), 16)
                w, x = vr(WFR + 4*ct), vr(cur + 4*t)
                if typ == "B" and ct < 4: a(f"{MF} {d}, {x}, {w}, {d}")
                else: a(f"{MF} {d}, {w}, {x}, {d}")
            if kk == 0:
                for ct in range(5):
                    mm(ct, 0)
                    if ct < 2: rdX(nxt, ks + 1, ct)
                    mm(ct, 1)
                    rdW(ct, 1, 0); rdW(ct, 1, 1)
            else:
                mm(0, 0)
                a("s_add_u32 s73, s73, 1")
                a("s_cmp_eq_u32 s73, 5")
                a(f"s_cselect_b32 s76, s78, {WSLOT}")
                a("s_cselect_b32 s73, 0, s73")
                mm(0, 1)
                for i in range(3): a(f"v_add_u32 v{VW+i}, s76, v{VW+i}")
                if ks == 3:
                    a("s_add_u32 s74, s74, 1")
                    a("s_cmp_eq_u32 s74, 3")
                mm(1, 0)
                if ks == 3:
                    a(f"s_cselect_b32 s77, s79, {XSLOT}")
                    a("s_cselect_b32 s74, 0, s74")
                    for i in range(3): a(f"v_add_u32 v{VXA+i}, s77, v{VXA+i}")
                mm(1, 1)
                if ks == 3:
                    a(f"v_add_u32 v{VXA+3}, s77, v{VXA+3}")
                    a("s_sub_u32 s75, s75, 1")
                    a("s_cmp_lg_u32 s75, 0")
                lg.all()
                a("s_barrier")
                tail_reads(mm, nxt, (ks + 1) & 3)
        assert lg.q == entry_q, (lg.q, entry_q)
        a(f"s_cbranch_scc1 L_p1loop{typ}")
        stamp(a, 4, VS)
        a(f"s_cmp_lt_u32 s{sNB}, 8")
        a(f"s_cselect_b32 s80, {f32(QSCALE)}, 1.0")
        a("s_mov_b32 s81, s80")
        a(f"s_lshl_b32 s67, s{sNB}, 2")
        a("s_lshl_b32 s68, s66, 1")
        a("s_add_u32 s67, s67, s68")
        a("s_lshl_b32 s67, s67, 16")
        a(f"s_lshl_b32 s68, s{sMB}, 2")
        a("s_lshl_b32 s69, s65, 1")
        a("s_add_u32 s69, s68, s69")
        a("s_lshl_b32 s68, s69, 10")
        a("s_add_u32 s67, s67, s68")
        a(f"s_add_u32 s67, s67, {WS_QK}")
        a("s_add_u32 s68, s67, 0x10000")
        a("v_mov_b32 v14, 1")
        a(f"v_mov_b32 v15, {LCNT}")
        def flag1a(n):
            a(f"s_waitcnt vmcnt({n})")
            one_lane(a, "ds_add_rtn_u32 v15, v15, v14")
        def flag1b():
            a("s_waitcnt lgkmcnt(0)")
            a("v_readfirstlane_b32 s83, v15")
            a("v_mov_b32 v15, 0")
            a("s_cmp_eq_u32 s83, 3")
            a(f"s_cselect_b32 s82, s82, {OOB:#x}")
            one_lane(a, f"buffer_store_dword v14, v15, {WSR}, s82 offen{ST}")
        def qk():
            for t in range(2):
                b = acc(t, 4)
                for i in range(8): a(f"v_pk_mul_f32 {vr(b+2*i,2)}, {vr(b+2*i,2)}, s[80:81]")
                for hh in range(2):
                    o = 60 + (t*2+hh)*4
                    for i in range(4): a(f"v_cvt_pk_bf16_f32 v{o+i}, v{b+8*hh+2*i}, v{b+8*hh+2*i+1}")
                    a(f"buffer_store_dwordx4 {vr(o)}, v3, {WSR}, s{67+hh} offen offset:{t*1024}{ST}")
        if typ == "A":
            qk()
            a("s_waitcnt lgkmcnt(0)")
            a(f"s_mul_i32 s67, s69, {144*1024}")
            a("s_add_u32 s68, s59, s66")
            a("s_lshl_b32 s68, s68, 12")
            a("s_add_u32 s67, s67, s68")
            a(f"s_add_u32 s67, s67, {WS_AF + 32*1024}")
            a(f"s_add_u32 s68, s67, {144*1024}")
            a(f"v_mov_b32 v10, {f32(-GK1*0.044715)}")
            a(f"v_mov_b32 v11, {f32(-GK1*0.044715)}")
            a(f"v_mov_b32 v12, {f32(-GK1)}")
            a(f"v_mov_b32 v13, {f32(-GK1)}")
            n = 0
            FL = int(ENV("FLAG1AT", "3"))
            for t in range(2):
                for i in range(2):
                    g, u = acc(t, i), acc(t, 2 + i)
                    for hh in range(2):
                        T = 16 + (n & 1) * 8
                        o = HP + n * 4
                        G, U = g + 8*hh, u + 8*hh
                        for p in range(4): a(f"v_pk_mul_f32 {vr(T+2*p,2)}, {vr(G+2*p,2)}, {vr(G+2*p,2)}")
                        for p in range(4): a(f"v_pk_fma_f32 {vr(T+2*p,2)}, {vr(T+2*p,2)}, v[10:11], v[12:13]")
                        for p in range(4): a(f"v_pk_mul_f32 {vr(T+2*p,2)}, {vr(T+2*p,2)}, {vr(G+2*p,2)}")
                        for p in range(8): a(f"v_exp_f32 v{T+p}, v{T+p}")
                        for p in range(4): a(f"v_pk_mul_f32 {vr(U+2*p,2)}, {vr(U+2*p,2)}, {vr(G+2*p,2)}")
                        for p in range(4): a(f"v_pk_add_f32 {vr(T+2*p,2)}, {vr(T+2*p,2)}, 1.0 op_sel_hi:[1,0]")
                        if n == FL: flag1a(0)
                        for p in range(8): a(f"v_rcp_f32 v{T+p}, v{T+p}")
                        if n == FL: flag1b()
                        for p in range(4): a(f"v_pk_mul_f32 {vr(U+2*p,2)}, {vr(U+2*p,2)}, {vr(T+2*p,2)}")
                        for p in range(4): a(f"v_cvt_pk_bf16_f32 v{o+p}, v{U+2*p}, v{U+2*p+1}")
                        n += 1
            for n in range(8):
                a(f"buffer_store_dwordx4 {vr(HP+4*n)}, v3, {WSR}, s{67+(n>>2)} offen offset:{(n&3)*1024}{ST}")
        else:
            a(f"v_add_u32 v9, {VROT}, v2")
            a("v_and_b32 v9, 15, v9")
            a("v_lshl_or_b32 v9, v4, 4, v9")
            a("v_lshlrev_b32 v9, 4, v9")
            a("v_bfe_u32 v10, v2, 4, 1")
            a("v_lshl_or_b32 v9, v10, 16, v9")
            a(f"s_lshr_b32 s70, s{sNB}, 2")
            a("s_lshl_b32 s70, s70, 19")
            a("s_lshl_b32 s71, s69, 10")
            a("s_add_u32 s70, s70, s71")
            a(f"s_add_u32 s70, s70, {WS_V}")
            n = 0
            for j in range(4):
                a(f"s_add_u32 s71, s70, {2*j*65536}")
                for t in range(2):
                    b = acc(t, j)
                    for hh in range(2):
                        o = 76 + (n & 3) * 4; n += 1
                        for i in range(4): a(f"v_cvt_pk_bf16_f32 v{o+i}, v{b+8*hh+2*i}, v{b+8*hh+2*i+1}")
                        a(f"buffer_store_dwordx4 {vr(o)}, v9, {WSR}, s71 offen offset:{t*1024 + hh*512}{ST}")
            qk()
            flag1a(0); flag1b()
        stamp(a, 5, VS)
        a("s_branch L_attn")

def p1_loader(a):
    a.label("L_loader")
    a(f"s_sub_u32 s65, s{sWAVE}, 4")
    a("s_lshl_b32 s66, s65, 3")
    a("v_add_u32 v8, s66, v8")
    a("v_lshrrev_b32 v5, 4, v2")
    a("s_and_b32 s66, s65, 1")
    a("s_lshl_b32 s66, s66, 2")
    a("v_add_u32 v5, s66, v5")
    a("v_xor_b32 v5, v5, v4")
    a("v_lshlrev_b32 v5, 4, v5")
    a("v_lshl_add_u32 v12, v8, 10, v5")
    a(f"s_lshl_b32 s74, s{sMB}, 17")
    a("s_lshl_b32 s75, s65, 10")
    issued = []
    def dma(voff, srdn, soff, m0val, pre):
        a(f"s_add_u32 m0, s75, {m0val}")
        a(pre)
        a(f"buffer_load_dwordx4 v{voff}, {SR(srdn)}, s{soff} offen lds")
    def itemsW(s):
        base = LW + (s % 5) * WSLOT
        def f(u):
            def g():
                if u == 0: dma(10, S_G, 70, base, f"s_add_u32 s72, s72, {32*3072}")
                if u == 1: dma(10, S_U, 70, base + 8192, "s_add_u32 s71, s71, s73")
                if u == 2: dma(13, S_WA, 71, base + 4096, "s_add_u32 s69, s69, s73")
                if u == 3: dma(13, S_WB, 69, base + 12288, f"s_add_u32 s70, s70, {32*3584}")
                if u == 4: dma(11, S_WC, 72, base + 16384, "s_nop 0")
                issued.append(("W", s))
            return g
        return [(s - 5, f(u)) for u in range(5)]
    def itemsX(j):
        base = LX + (j % 3) * XSLOT
        def f(m):
            def g():
                dma(12, S_X, 76, base + m*4096, f"s_add_u32 s76, s74, {m*32768 + j*128}")
                issued.append(("X", j))
            return g
        return [(2*(j-3) + 1, f(m)) for m in range(4)]
    queue = []
    for j in range(8): queue += itemsX(j) + itemsW(2*j) + itemsW(2*j+1)
    def issue(nmax, bar):
        n = 0
        while queue and n < nmax and queue[0][0] <= bar:
            queue.pop(0)[1](); n += 1
    def wait_stage(s):
        assert sum(e == ("W", s) for e in issued) == 5 and sum(e == ("X", s // 2) for e in issued) == 4, s
        last = max(k for k, e in enumerate(issued) if e == ("W", s) or e == ("X", s // 2))
        n = len(issued) - 1 - last
        assert n <= 63
        a(f"s_waitcnt vmcnt({n})")
    issue(4, -1)
    srd(a, S_G, 12, 13, 512 * 3584)
    srd(a, S_U, 14, 15, 512 * 3584)
    srd(a, S_WC, 6, 7, 512 * 3072)
    a(f"s_cmp_eq_u32 s{sVC}, 1")
    a(f"s_cselect_b32 s{S_WA}, s6, s12")
    a(f"s_cselect_b32 s{S_WA+1}, s7, s13")
    a(f"s_cselect_b32 s{S_WA+2}, s{S_WC+2}, s{S_G+2}")
    a(f"s_mov_b32 s{S_WA+3}, 0x00020000")
    a(f"s_cselect_b32 s{S_WB}, s6, s14")
    a(f"s_cselect_b32 s{S_WB+1}, s7, s15")
    a(f"s_mov_b32 s{S_WB+2}, s{S_WA+2}")
    a(f"s_mov_b32 s{S_WB+3}, 0x00020000")
    a("s_movk_i32 s66, 3072")
    a("s_cselect_b32 s66, s66, 3584")
    a("v_mul_u32_u24 v6, 3584, v8")
    a("v_add_u32 v10, v6, v9")
    a("v_mul_u32_u24 v6, 3072, v8")
    a("v_add_u32 v11, v6, v9")
    a("v_mul_u32_u24 v6, s66, v8")
    a("v_add_u32 v13, v6, v9")
    a("s_lshl_b32 s73, s66, 5")
    a("s_lshl_b32 s70, s59, 7")
    a("s_add_u32 s67, s70, 128")
    a(f"s_lshr_b32 s68, s{sNB}, 2")
    a("s_lshl_b32 s68, s68, 8")
    a("s_add_u32 s68, s68, 2048")
    a("s_add_u32 s69, s68, 128")
    a(f"s_cmp_eq_u32 s{sVC}, 1")
    a("s_cselect_b32 s71, s68, s67")
    a("s_cselect_b32 s69, s69, s67")
    a("s_sub_u32 s71, s71, s73")
    a("s_sub_u32 s69, s69, s73")
    a(f"s_lshl_b32 s72, s{sNB}, 7")
    a(f"s_sub_u32 s72, s72, {32*3072}")
    issue(5 + int(ENV("BURST", "9")), -1)
    srd(a, S_DBG, 22, 23, 256)
    a("s_cmp_eq_u32 s65, 0")
    a(f"s_cselect_b32 s77, 0, {OOB:#x}")
    stamp(a, 2, VS)
    wait_stage(0)
    stamp(a, 3, VS)
    a("s_barrier")
    PER = int(ENV("PERSTAGE", "9"))
    SIDE1, SIDE2, CNT_AT = [int(x) for x in ENV("SIDE", "2,6,9").split(",")]
    def wait_tag(tag):
        n = len(issued) - 1 - max(k for k, e in enumerate(issued) if e == tag)
        assert n <= 63
        a(f"s_waitcnt vmcnt({n})")
    def side1():
        a("s_lshl_b32 s67, s2, 2")
        a("s_add_u32 s67, s67, s65")
        a("s_cmp_lt_u32 s67, 256")
        a(f"s_cselect_b32 s{S_R1}, s8, s16")
        a(f"s_cselect_b32 s{S_R1+1}, s9, s17")
        a(f"s_mov_b32 s{S_R1+2}, {1792*1024}")
        a(f"s_cselect_b32 s{S_R1+2}, {512*1024}, s{S_R1+2}")
        a(f"s_mov_b32 s{S_R1+3}, 0x00020000")
        a("s_cselect_b32 s68, 0, 32")
        a("s_lshr_b32 s66, s67, 3")
        a("s_and_b32 s67, s67, 7")
        a("s_sub_u32 s68, s66, s68")
        a("s_lshl_b32 s68, s68, 14")
        a("s_lshl_b32 s76, s67, 7")
        a("s_add_u32 s68, s68, s76")
        a("v_and_b32 v14, 7, v8")
        a("v_lshl_add_u32 v14, v14, 10, v9")
        a("s_lshl_b32 s78, s65, 11")
        a(f"s_add_u32 s78, s78, {LR}")
        a("s_mov_b32 m0, s78")
        a("s_add_u32 s76, s68, 8192")
        a(f"buffer_load_dwordx4 v14, {SR(S_R1)}, s68 offen lds")
        a("s_add_u32 m0, s78, 1024")
        srd(a, S_R2, 16, 17, 1792 * 1024)
        a(f"buffer_load_dwordx4 v14, {SR(S_R1)}, s76 offen lds")
        a(f"s_mul_i32 s92, s67, {2*144*1024}")
        a("s_lshl_b32 s66, s66, 10")
        a("s_add_u32 s92, s92, s66")
        a(f"s_add_u32 s92, s92, {WS_WF}")
        a(f"s_add_u32 s93, s92, {144*1024}")
        a("s_lshl_b32 s79, s65, 8")
        a("s_add_u32 s79, s79, s2")
        a("s_cmp_lt_u32 s79, 128")
        a("s_cbranch_scc0 L_no5")
        a("s_lshr_b32 s66, s2, 3")
        a("s_and_b32 s67, s2, 7")
        a("s_add_u32 s68, s66, 96")
        a("s_lshl_b32 s68, s68, 14")
        a("s_lshl_b32 s76, s67, 7")
        a("s_add_u32 s68, s68, s76")
        a(f"s_mov_b32 m0, {LR + 8192}")
        a("s_add_u32 s76, s68, 8192")
        a(f"buffer_load_dwordx4 v14, {SR(S_R2)}, s68 offen lds")
        a(f"s_mov_b32 m0, {LR + 8192 + 1024}")
        a(f"s_mul_i32 s94, s67, {2*144*1024}")
        a(f"buffer_load_dwordx4 v14, {SR(S_R2)}, s76 offen lds")
        a("s_lshl_b32 s66, s66, 10")
        a("s_add_u32 s94, s94, s66")
        a(f"s_add_u32 s94, s94, {WS_WF + 128*1024}")
        a(f"s_add_u32 s95, s94, {144*1024}")
        a.label("L_no5")
        srd(a, S_GW, 18, 19, 1024)
        a(f"s_lshl_b32 s58, s{sMB}, 7")
        a(f"s_lshl_b32 s66, s{sNB}, 3")
        a("s_add_u32 s58, s58, s66")
        a("s_lshl_b32 s66, s65, 1")
        a("s_add_u32 s58, s58, s66")
        a("s_lshl_b32 s66, s58, 10")
        a(f"buffer_load_dwordx4 v[20:23], v3, {SR(S_X)}, s66 offen")
        a(f"buffer_load_dwordx4 v[24:27], v3, {SR(S_X)}, s66 offen offset:1024")
        a(f"buffer_load_dwordx4 v[28:31], v3, {SR(S_GW)}, 0 offen")
        issued.extend([("S", 0)] * 5)
        a(f"s_lshl_b32 s66, s{sNB}, 11")
        a(f"s_lshl_b32 s67, s{sMB}, 7")
        a("s_add_u32 s66, s66, s67")
        a(f"s_add_u32 s66, s66, {WS_F1}")
        a(f"s_lshl_b32 s67, s{sMB}, 11")
        a(f"s_lshl_b32 s68, s{sNB}, 7")
        a("s_add_u32 s67, s67, s68")
        a(f"s_add_u32 s67, s67, {WS_F2}")
        a("v_mov_b32 v15, s66")
        a("v_mov_b32 v16, s67")
        a("v_cmp_eq_u32 vcc, 0, v2")
        zero(a, 60, 4)
        a("v_cndmask_b32 v15, v16, v15, vcc")
        for i in range(4): a(f"v_mov_b32 v{64+i}, -1")
        one_lane(a, f"buffer_store_dwordx4 v[60:63], v15, {WSR}, s77 offen{ST}", 3)
        a(f"s_lshl_b32 s67, s{sQB}, 3")
        a("s_lshl_b32 s68, s65, 1")
        a("s_add_u32 s67, s67, s68")
        a(f"s_mul_i32 s67, s67, {144*1024}")
        a(f"s_lshl_b32 s68, s{sHEAD}, 10")
        a("s_add_u32 s67, s67, s68")
        a(f"s_add_u32 s67, s67, {WS_AF}")
        a(f"s_add_u32 s68, s67, {144*1024}")
        a(f"buffer_store_dwordx4 v[64:67], v3, {WSR}, s67 offen{ST}")
        a(f"buffer_store_dwordx4 v[64:67], v3, {WSR}, s68 offen{ST}")
        issued.extend([("S", 1)] * 3)
        a("v_bfe_u32 v5, v2, 2, 2")
        a("v_and_b32 v6, 3, v2")
        a("v_bfe_u32 v7, v2, 4, 1")
        a("v_lshlrev_b32 v6, 3, v6")
        a("v_lshl_or_b32 v6, v7, 5, v6")
        a("v_lshrrev_b32 v7, 1, v5")
        a("v_lshl_or_b32 v6, v7, 6, v6")
        a("v_lshl_or_b32 v6, v5, 7, v6")
        a("v_lshrrev_b32 v7, 5, v2")
        a("v_lshl_or_b32 v6, v7, 9, v6")
        a("v_add_u32 v32, s78, v6")
        a("v_xor_b32 v33, 64, v32")
    def side2():
        wait_tag(("S", 0))
        for nl in range(2):
            for j in range(2): a(f"ds_read_b64_tr_b16 {vr(68+4*nl+2*j,2)}, v{32+nl} offset:{j*1024}")
        a("s_cmp_lt_u32 s79, 128")
        a("s_cbranch_scc0 L_no5b")
        for nl in range(2):
            for j in range(2): a(f"ds_read_b64_tr_b16 {vr(76+4*nl+2*j,2)}, v{32+nl} offset:{8192 + j*1024}")
        a("s_waitcnt lgkmcnt(0)")
        a(f"buffer_store_dwordx4 v[76:79], v3, {WSR}, s94 offen{ST}")
        a(f"buffer_store_dwordx4 v[80:83], v3, {WSR}, s95 offen{ST}")
        a.label("L_no5b")
        a("v_mov_b32 v16, 0")
        a("v_mov_b32 v17, 0")
        for i in range(4):
            a(f"v_dot2_f32_bf16 v16, v{20+i}, v{28+i}, v16")
            a(f"v_dot2_f32_bf16 v17, v{24+i}, v{28+i}, v17")
        a("s_waitcnt lgkmcnt(0)")
        a(f"buffer_store_dwordx4 v[68:71], v3, {WSR}, s92 offen{ST}")
        a(f"buffer_store_dwordx4 v[72:75], v3, {WSR}, s93 offen{ST}")
        for mod in ("quad_perm:[1,0,3,2]", "quad_perm:[2,3,0,1]", "row_half_mirror", "row_mirror"):
            for r in (16, 17): a(f"v_add_f32_dpp v{r}, v{r}, v{r} {mod} row_mask:0xf bank_mask:0xf")
        for r, sb in ((16, 92), (17, 88)):
            for q in range(4): a(f"v_readlane_b32 s{sb+q}, v{r}, {16*q}")
        a("v_mov_b32 v18, s92")
        a("v_mov_b32 v19, s88")
        for q in range(1, 4):
            a(f"v_add_f32 v18, s{92+q}, v18")
            a(f"v_add_f32 v19, s{88+q}, v19")
        a("v_cndmask_b32 v18, v19, v18, vcc")
        a(f"v_mul_f32 v18, {f32(-LOG2E)}, v18")
        a("v_exp_f32 v18, v18")
        a("v_lshlrev_b32 v60, 2, v2")
        a("v_add_f32 v18, 1.0, v18")
        a("v_rcp_f32 v61, v18")
        a("s_lshl_b32 s58, s58, 2")
        a(f"s_add_u32 s58, s58, {WS_G}")
        one_lane(a, f"buffer_store_dword v61, v60, {WSR}, s58 offen{ST}", 3)
        issued.extend([("S", 1)] * 3)
    issue(PER, -1)
    for s in range(16):
        if s in (2, 6, 10, 14): stamp(a, {2: 4, 6: 5, 10: 6, 14: 7}[s], VS)
        if s + 1 <= 15: wait_stage(s + 1)
        if s == CNT_AT: wait_tag(("S", 1))
        a("s_barrier")
        if s == CNT_AT:
            a("v_mov_b32 v6, 1")
            a("v_mov_b32 v5, 0")
            one_lane(a, f"buffer_atomic_add v6, v5, {SR(S_DBG)}, s77 offen{ST}")
            issued.append(("S", 2))
        issue(PER, s)
        if s == SIDE1: side1()
        if s == SIDE2: side2()
        if s == 14:
            a("s_cmp_lg_u32 s65, 0")
            a("s_cbranch_scc1 L_pz_ok")
            a("v_mov_b32 v5, 0")
            poll(a, "L_pz", lambda: a(f"buffer_load_dword v8, v5, {SR(S_DBG)}, 0 offen{ST}"),
                 lambda: a("v_cmp_ne_u32 vcc, 0x100, v8"))
    assert not queue
    a("v_and_b32 v4, 255, v0")
    a("v_lshrrev_b32 v5, 2, v4")
    a(f"v_mul_u32_u24 v5, {VST}, v5")
    a("v_and_b32 v4, 3, v4")
    a("v_min_u32 v4, 2, v4")
    a("v_lshl_add_u32 v5, v4, 4, v5")
    a(f"v_add_u32 v5, {LV + 1024}, v5")
    a("v_mov_b32 v16, 0x3f803f80")
    if ONE_ROW:
        a("v_cmp_eq_u32 vcc, 0, v4")
        a("v_cndmask_b32 v16, 0, v16, vcc")
    for i in range(1, 4): a(f"v_mov_b32 v{16+i}, v16")
    a("ds_write_b128 v5, v[16:19]")
    a("s_cmp_lg_u32 s65, 0")
    a("s_cbranch_scc1 L_attn")
    a(f"s_lshr_b32 s66, s{sHEAD}, 2")
    a("s_lshl_b32 s67, s66, 11")
    a(f"s_lshl_b32 s68, s{sQB}, 8")
    a("s_add_u32 s68, s68, s67")
    a(f"s_add_u32 s67, s67, {8*2048}")
    a(f"s_lshr_b32 s66, s{sHEAD}, 3")
    a("s_lshl_b32 s66, s66, 13")
    a(f"s_add_u32 s66, s66, {2*2048}")
    a("v_lshl_add_u32 v4, v2, 7, s67")
    a("v_lshl_add_u32 v5, v2, 7, s66")
    a("v_and_b32 v6, 1, v2")
    a("v_lshl_add_u32 v6, v6, 7, s68")
    a("v_cmp_gt_u32 vcc, 32, v2")
    a("v_cndmask_b32 v5, v6, v5, vcc")
    a("v_cmp_gt_u32 vcc, 16, v2")
    a("v_cndmask_b32 v4, v5, v4, vcc")
    a(f"s_mov_b32 s66, {WS_F1}")
    stamp(a, 8, VS)
    poll(a, "L_ps1", lambda: a(f"buffer_load_dword v8, v4, {WSR}, s66 offen{ST}"), lambda: a("v_cmp_ne_u32 vcc, 1, v8"))
    stamp(a, 9, VS)
    a(f"s_lshl_b32 s66, s{sHEAD}, 16")
    a(f"s_lshl_b32 s67, s{sQB}, 13")
    a("s_add_u32 s67, s67, s66")
    a(f"s_add_u32 s67, s67, {WS_QK}")
    for hq in range(2):
        a(f"s_mov_b32 m0, {LQ + hq*4096}")
        if hq: a("s_add_u32 s67, s67, 4096")
        for i in range(4): a(f"buffer_load_dwordx4 v3, {WSR}, s67 offen offset:{i*1024}{ST} lds")
    for t0 in (0, 32, 4, 36):
        a(f"s_mov_b32 m0, {LK + t0*1024}")
        a(f"s_add_u32 s67, s66, {WS_QK + 32*65536 + t0*1024}")
        for i in range(4): a(f"buffer_load_dwordx4 v3, {WSR}, s67 offen offset:{i*1024}{ST} lds")
        a(f"s_add_u32 s67, s66, {WS_V + t0*1024}")
        for i in range(4):
            a(f"s_mov_b32 m0, {LV + (t0+i)*VST - i*1024}")
            a(f"buffer_load_dwordx4 v3, {WSR}, s67 offen offset:{i*1024}{ST} lds")

def attn(a):
    a.label("L_attn")
    a(f"s_and_b32 s65, s{sWAVE}, 3")
    a(f"s_lshr_b32 s66, s{sWAVE}, 2")
    a("s_lshl_b32 s67, s66, 15")
    a(f"v_add_u32 v{VK}, s67, v3")
    a(f"v_add_u32 v8, {VROT}, v2")
    a("v_and_b32 v8, 15, v8")
    a("v_lshrrev_b32 v9, 5, v2")
    a("v_lshl_or_b32 v8, v9, 4, v8")
    a("v_lshlrev_b32 v8, 4, v8")
    a("v_add_u32 v9, 512, v8")
    a("v_and_b32 v10, 31, v2")
    a("v_subrev_u32 v11, 20, v10")
    a("v_cmp_gt_u32 vcc, 8, v11")
    a("v_mov_b32 v11, 1040")
    a("v_mov_b32 v12, 1056")
    a("v_cndmask_b32 v11, v11, v12, vcc")
    a("v_cmp_eq_u32 vcc, 16, v10")
    a("v_mov_b32 v12, 1024")
    a("v_cndmask_b32 v11, v11, v12, vcc")
    a("v_cmp_gt_u32 vcc, 16, v10")
    a("v_cndmask_b32 v8, v11, v8, vcc")
    a("v_cndmask_b32 v9, v11, v9, vcc")
    a(f"s_mul_i32 s67, s66, {32*VST}")
    a(f"s_add_u32 s67, s67, {LV}")
    a(f"v_add_u32 v{VV0}, s67, v8")
    a(f"v_add_u32 v{VV1}, s67, v9")
    a("s_lshl_b32 s67, s65, 11")
    a(f"s_add_u32 s67, s67, {LQ}")
    a("v_add_u32 v20, s67, v3")
    zero(a, OA, 32); zero(a, V1, 4); zero(a, GACC, 32); zero(a, GFR, 12)
    a(f"s_lshl_b32 s70, s{sHEAD}, 16")
    a(f"s_lshl_b32 s71, s{sWAVE}, 10")
    a("s_add_u32 s70, s70, s71")
    a(f"s_mul_i32 s72, s{sWAVE}, {VST}")
    a(f"s_lshl_b32 s73, s{sMB}, 11")
    a(f"s_lshl_b32 s74, s{sNB}, 7")
    a("s_add_u32 s73, s73, s74")
    a(f"s_lshl_b32 s74, s{sWAVE}, 2")
    a("s_add_u32 s73, s73, s74")
    a(f"s_add_u32 s73, s73, {WS_F2}")
    a(f"s_cmp_lt_u32 s{sWAVE}, 4")
    a(f"s_cselect_b32 s73, s73, {OOB:#x}")
    a(f"s_lshr_b32 s74, s{sHEAD}, 1")
    a("s_lshl_b32 s74, s74, 11")
    a(f"s_add_u32 s74, s74, {WS_F2}")
    a(f"s_and_b32 s68, s{sWAVE}, 1")
    a(f"s_lshr_b32 s69, s{sWAVE}, 1")
    a(f"s_lshl_b32 s84, s{sHEAD}, 1")
    a("s_add_u32 s84, s84, s68")
    a(f"s_mul_i32 s85, s84, {144*1024}")
    a(f"s_add_u32 s85, s85, {WS_AF}")
    a(f"s_mul_i32 s86, s{sQB}, {2*144*1024}")
    a(f"s_add_u32 s86, s86, {WS_WF}")
    a(f"s_mul_i32 s75, s69, {28*1024}")
    a(f"s_add_u32 s75, s75, {32*1024}")
    a("s_add_u32 s76, s85, s75")
    a("s_add_u32 s77, s86, s75")
    a(f"s_add_u32 s78, s77, {144*1024}")
    a("s_lshl_b32 s75, s69, 13")
    a("s_add_u32 s85, s85, s75")
    a("s_add_u32 s86, s86, s75")
    a(f"v_mov_b32 v{VG}, v3")
    for i in range(16):
        if i % 4 == 0: a(f"s_add_u32 s67, s86, {(i>>3)*144*1024 + (i&7)*1024}")
        a(f"buffer_load_dwordx4 {vr(WO + 4*i)}, v3, {WSR}, s67 offen offset:{(i&3)*1024}{ST}")
    a(f"s_cmp_lt_u32 s{sWAVE}, 4")
    a("s_cbranch_scc1 L_x1")
    a("s_waitcnt vmcnt(16) lgkmcnt(0)")
    a.label("L_x1")
    a("s_barrier")
    stamp(a, 10, VS)
    a(f"ds_read_b128 {vr(QA)}, v20")
    a(f"ds_read_b128 {vr(QB)}, v20 offset:1024")
    a(f"ds_read_b128 {vr(V0B)}, v3")
    a(f"ds_read_b128 {vr(KF)}, v{VK}")
    a(f"ds_read_b128 {vr(V0A)}, v{VV0}")
    a("s_waitcnt lgkmcnt(2)")
    a(f"{MF} {vr(SA,16)}, {vr(V0B)}, {vr(QA)}, 0")
    a(f"{MF} {vr(SB,16)}, {vr(V0B)}, {vr(QB)}, 0")
    rest = [(t + 8*i) for i in range(3) for t in (8, 40)]
    dmas = []
    for t in rest:
        dmas.append([f"s_add_u32 m0, s71, {LK + t*1024}", f"s_add_u32 s67, s70, {WS_QK + 32*65536 + t*1024}", f"buffer_load_dwordx4 v3, {WSR}, s67 offen{ST} lds"])
        dmas.append([f"s_add_u32 m0, s72, {LV + t*VST}", f"s_add_u32 s67, s70, {WS_V + t*1024}", f"buffer_load_dwordx4 v3, {WSR}, s67 offen{ST} lds"])
    for k in range(4):
        for l in dmas.pop(0): a(l)
    T0 = GFR + 12
    rowmax(a, SA, T0)
    rowmax(a, SB, T0, acc=True)
    halfmax(a, T0, T0 + 1)
    for i in range(16): a(f"v_sub_f32 v{CC+i}, 0, v{T0}")
    a("s_waitcnt lgkmcnt(0)")
    a(f"{MF} {vr(SA,16)}, {vr(KF)}, {vr(QA)}, {vr(CC,16)}")
    zero(a, SB + 8, 4)
    for k in range(2):
        for l in dmas.pop(0): a(l)
    a("s_nop 4")

    def tile(n, which, extra):
        S, T, O, OT, QT = (SA, SB, OA, OB, QB) if which == 0 else (SB, SA, OB, OA, QA)
        v0 = V0A if n % 2 == 0 else V0B
        v0n = V0B if n % 2 == 0 else V0A
        e = lambda i: a(f"v_exp_f32 v{S+i}, v{S+i}")
        c = lambda i: a(f"v_cvt_pk_bf16_f32 v{S + (i>>2)*8 + (i&3)}, v{S+2*i}, v{S+2*i+1}")
        e(0); e(1)
        if which == 1: a("s_waitcnt lgkmcnt(0)")
        a(f"{MF} {vr(OT,16)}, {vr(V1)}, {vr(T+8)}, {vr(OT,16)}")
        if which == 0:
            a(f"ds_read_b128 {vr(V1)}, v{VV1} offset:{n*VST}")
            a(f"ds_read_b128 {vr(v0n)}, v{VV0} offset:{(n+1)*VST}")
        e(2); e(3); e(4); e(5)
        a(f"{MF} {vr(T,16)}, {vr(KF)}, {vr(QT)}, {vr(CC,16)}")
        if which == 0: a(f"ds_read_b128 {vr(KF)}, v{VK} offset:{(n+1)*1024}")
        e(6); e(7); e(8)
        for i in range(4): c(i)
        e(9); e(10)
        a(f"{MF} {vr(O,16)}, {vr(v0)}, {vr(S)}, {vr(O,16)}")
        e(11); e(12); e(13); e(14)
        extra()
        e(15)
        for i in range(4, 8): c(i)
    def bump():
        a(f"v_add_u32 v{VK}, {4*1024}, v{VK}")
        a(f"v_add_u32 v{VV0}, {4*VST}, v{VV0}")
        a(f"v_add_u32 v{VV1}, {4*VST}, v{VV1}")
    for k in range(8):
        def extra():
            if k < 3:
                for _ in range(2):
                    for l in dmas.pop(0): a(l)
            if k == int(ENV("FLAG2AT", "4")):
                a("s_waitcnt vmcnt(12)")
                a(f"v_mov_b32 v{T0}, 1")
                a(f"v_mov_b32 v{T0+1}, 0")
                one_lane(a, f"buffer_store_dword v{T0}, v{T0+1}, {WSR}, s73 offen{ST}")
        tile(k >> 1, k & 1, extra)
    assert not dmas
    bump()
    def cmp4():
        g = T0 + 4
        a(f"v_and_b32 v{g}, v{g}, v{g+1}")
        a(f"v_and_b32 v{g+2}, v{g+2}, v{g+3}")
        a(f"v_and_b32 v{g}, v{g}, v{g+2}")
        a(f"v_cmp_ne_u32 vcc, 1, v{g}")
    stamp(a, 11, VS)
    a(f"s_cmp_lg_u32 s{sWAVE}, 0")
    a("s_cbranch_scc1 L_ps2_ok")
    a(f"v_and_b32 v{T0+2}, 15, v2")
    a(f"v_lshlrev_b32 v{T0+2}, 7, v{T0+2}")
    poll(a, "L_ps2", lambda: a(f"buffer_load_dwordx4 {vr(T0+4)}, v{T0+2}, {WSR}, s74 offen{ST}"), cmp4)
    a("s_waitcnt vmcnt(0)")
    a("s_barrier")
    stamp(a, 16, VS)
    def gld(buf, q, off): a(f"buffer_load_dwordx4 {vr(GFR + 12*buf + 4*q)}, v{VG}, {WSR}, s{76+q} offen offset:{off}{ST}")
    def gm(buf, j):
        d = vr(GACC + 16*j, 16)
        a(f"{MF} {d}, {vr(GFR + 12*buf + 4 + 4*j)}, {vr(GFR + 12*buf)}, {d}")
    for i in range(3):
        for q in (1, 0, 2): gld(i + 1, q, i * 1024)
    a(f"v_add_u32 v{VG}, 3072, v{VG}")
    a("s_mov_b32 s80, 7")
    PRIO = ENV("PRIO", "1") == "1"
    if PRIO: a("s_setprio 3")
    a.label("L_aloop")
    for k in range(8):
        g, j = k >> 1, k & 1
        def extra():
            if j == 0: a("s_waitcnt vmcnt(9)")
            gm(g, j)
            if j == 0: gld(g, 1, g * 1024)
            else: gld(g, 0, g * 1024); gld(g, 2, g * 1024)
            if k == 6: a("s_sub_u32 s80, s80, 1")
        tile(k >> 1, k & 1, extra)
    bump()
    a(f"v_add_u32 v{VG}, 4096, v{VG}")
    if PRIO:
        a("s_cmp_gt_u32 s80, 4")
        a("s_cbranch_scc1 L_aloop")
        a("s_setprio 2")
        a("s_cmp_gt_u32 s80, 2")
        a("s_cbranch_scc1 L_aloop")
        a("s_setprio 1")
        a("s_cmp_gt_u32 s80, 1")
        a("s_cbranch_scc1 L_aloop")
        a("s_setprio 0")
    a("s_cmp_lg_u32 s80, 0")
    a("s_cbranch_scc1 L_aloop")
    a(f"{MF} {vr(OB,16)}, {vr(V1)}, {vr(SB+8)}, {vr(OB,16)}")
    stamp(a, 17, VS)
    a(f"s_mul_i32 s79, s{sWAVE}, 2304")
    a(f"s_add_u32 s79, s79, {LQ}")
    a(f"s_xor_b32 s80, s{sWAVE}, 4")
    a("s_mul_i32 s80, s80, 2304")
    a(f"s_add_u32 s80, s80, {LQ}")
    a(f"v_add_u32 v{KF}, s79, v3")
    a(f"v_add_u32 v{KF+1}, s80, v3")
    a(f"v_lshl_add_u32 v{KF+2}, v2, 2, s79")
    a(f"v_lshl_add_u32 v{KF+3}, v2, 2, s80")
    a(f"v_and_b32 v{V0A}, 31, v2")
    a(f"v_lshlrev_b32 v{V0A}, 2, v{V0A}")
    a("s_lshl_b32 s79, s84, 7")
    a(f"s_add_u32 s79, s79, {WS_G}")
    a(f"buffer_load_dword v{VG}, v{V0A}, {WSR}, s79 offen{ST}")
    a("s_cmp_eq_u32 s66, 0")
    a("s_cbranch_scc1 L_keepA")
    a(f"ds_write_b128 v{KF}, {vr(OA)}")
    a(f"ds_write_b128 v{KF}, {vr(OA+4)} offset:1024")
    a(f"ds_write_b32 v{KF+2}, v{OA+8} offset:2048")
    for i in range(9): a(f"v_mov_b32 v{OA+i}, v{OB+i}")
    for i in range(4): a(f"v_mov_b32 v{QA+i}, v{QB+i}")
    a("s_branch L_sent")
    a.label("L_keepA")
    a(f"ds_write_b128 v{KF}, {vr(OB)}")
    a(f"ds_write_b128 v{KF}, {vr(OB+4)} offset:1024")
    a(f"ds_write_b32 v{KF+2}, v{OB+8} offset:2048")
    a.label("L_sent")
    a(f"s_lshl_b32 s79, s{sQB}, 3")
    a("s_lshl_b32 s80, s65, 1")
    a("s_add_u32 s79, s79, s80")
    a("s_add_u32 s79, s79, s66")
    a(f"s_mul_i32 s81, s79, {144*1024}")
    a(f"s_lshl_b32 s80, s{sHEAD}, 10")
    a("s_add_u32 s81, s81, s80")
    a(f"s_add_u32 s81, s81, {WS_AF}")
    a("s_waitcnt lgkmcnt(0)")
    a("s_barrier")
    a(f"ds_read_b128 {vr(OB)}, v{KF+1}")
    a(f"ds_read_b128 {vr(OB+4)}, v{KF+1} offset:1024")
    a(f"ds_read_b32 v{OB+8}, v{KF+3} offset:2048")
    a("s_waitcnt lgkmcnt(0)")
    for i in range(9): a(f"v_add_f32 v{OA+i}, v{OA+i}, v{OB+i}")
    def lbcast():
        if ONE_ROW:
            a(f"v_mov_b32 v{OB}, v{OA+8}")
            a(f"v_permlane32_swap_b32 v{OA+8}, v{OB}")
    lbcast()
    a(f"v_cmp_nge_f32 vcc, {f32(2.0**60)}, v{OA+8}")
    a("s_mov_b64 s[82:83], vcc")
    a(f"v_cmp_nle_f32 vcc, {f32(2.0**-60)}, v{OA+8}")
    a("s_or_b64 vcc, vcc, s[82:83]")
    a("s_cbranch_vccnz L_redo")
    a.label("L_aok")
    a(f"v_rcp_f32 v12, v{OA+8}")
    for i in range(8): a(f"v_mul_f32 v{OA+i}, v12, v{OA+i}")
    for i in range(4): a(f"v_cvt_pk_bf16_f32 v{SA+i}, v{OA+2*i}, v{OA+2*i+1}")
    for i in range(4): a(f"v_min_u32 v{SA+i}, -2, v{SA+i}")
    a(f"buffer_store_dwordx4 {vr(SA)}, v3, {WSR}, s81 offen{ST}")
    stamp(a, 18, VS)
    a("s_waitcnt vmcnt(11)")
    gm(0, 0); gm(0, 1)
    srd(a, S_OUT, 20, 21, 2048 * 1024)
    a("s_lshl_b32 s79, s68, 15")
    a("s_lshl_b32 s80, s69, 11")
    a("s_add_u32 s80, s80, s79")
    a("v_add_u32 v14, s80, v3")
    a("s_lshl_b32 s80, s69, 13")
    a("s_add_u32 s80, s80, s79")
    a("v_add_u32 v15, s80, v3")
    a("v_and_b32 v12, 31, v2")
    a("v_lshlrev_b32 v12, 10, v12")
    a("v_lshrrev_b32 v13, 5, v2")
    a("v_lshl_or_b32 v11, v13, 4, v12")
    a("s_lshl_b32 s79, s84, 15")
    a(f"s_lshl_b32 s80, s{sQB}, 7")
    a("s_add_u32 s79, s79, s80")
    a("s_lshl_b32 s80, s69, 5")
    a("s_add_u32 s79, s79, s80")
    a("s_add_u32 s87, s85, 4096")
    a("s_waitcnt vmcnt(0)")
    a(f"v_sub_f32 v10, 1.0, v{VG}")
    stamp(a, 19, VS)
    OF, A2 = 16, 64
    def ldO():
        for i in range(8): a(f"buffer_load_dwordx4 {vr(OF+4*i)}, v3, {WSR}, s{85 if i < 4 else 87} offen offset:{(i&3)*1024}{ST}")
    def cmpO():
        for i in range(8):
            a(f"s_waitcnt vmcnt({7-i})")
            for j in range(2):
                d = vr(A2 + 16*j, 16)
                a(f"{MF} {d}, {vr(WO + 32*j + 4*i)}, {vr(OF+4*i)}, {'0' if i == 0 else d}")
            r = OF + 4*i
            if i == 0: a(f"v_max_u32 v12, v{r}, v{r+1}")
            else: a(f"v_max3_u32 v12, v{r}, v{r+1}, v12")
            a(f"v_max3_u32 v12, v{r+2}, v{r+3}, v12")
        a("v_cmp_eq_u32 vcc, -1, v12")
    for r in range(32): a(f"v_mul_f32 v{GACC+r}, v10, v{GACC+r}")
    poll(a, "L_ps3", ldO, cmpO, wait=False)
    stamp(a, 20, VS)
    a("s_barrier")
    for r in range(32): a(f"v_fmac_f32 v{GACC+r}, v{VG}, v{A2+r}")
    for s in range(4):
        for k in range(2): a(f"ds_write_b128 v14, {vr(GACC + 8*s + 4*k)} offset:{s*8192 + k*1024}")
    a("s_waitcnt lgkmcnt(0)")
    a("s_barrier")
    for q in range(4):
        for k in range(2): a(f"ds_read_b128 {vr(OF + 8*q + 4*k)}, v15 offset:{q*2048 + k*1024}")
    a("s_waitcnt lgkmcnt(4)")
    for r in range(0, 8, 2): a(f"v_pk_add_f32 {vr(OF+r,2)}, {vr(OF+r,2)}, {vr(OF+8+r,2)}")
    a("s_waitcnt lgkmcnt(0)")
    for r in range(0, 8, 2): a(f"v_pk_add_f32 {vr(OF+16+r,2)}, {vr(OF+16+r,2)}, {vr(OF+24+r,2)}")
    for r in range(0, 8, 2): a(f"v_pk_add_f32 {vr(OF+r,2)}, {vr(OF+r,2)}, {vr(OF+16+r,2)}")
    for i in range(4): a(f"v_cvt_pk_bf16_f32 v{48+i}, v{OF+2*i}, v{OF+2*i+1}")
    a("v_permlane32_swap_b32 v48, v50")
    a("v_permlane32_swap_b32 v49, v51")
    a(f"buffer_store_dwordx4 v[48:51], v11, {SR(S_OUT)}, s79 offen")
    if STAMP: a("s_waitcnt vmcnt(0)")
    stamp_out(a, 0, S_WS, VS, 14)
    a("s_endpgm")
    a.label("L_redo")
    a(f"s_mul_i32 s79, s66, {32*VST}")
    a(f"s_add_u32 s79, s79, {32*VST}")
    a(f"v_subrev_u32 v{VV0}, s79, v{VV0}")
    a(f"v_subrev_u32 v{VV1}, s79, v{VV1}")
    a(f"v_mov_b32 v{VK}, v3")
    a("v_mov_b32 v12, 0xff800000")
    a("s_mov_b32 s80, 0")
    a.label("L_fmax")
    a(f"ds_read_b128 {vr(KF)}, v{VK}")
    a("s_waitcnt lgkmcnt(0)")
    a(f"{MF} {vr(SA,16)}, {vr(KF)}, {vr(QA)}, 0")
    a(f"v_add_u32 v{VK}, 1024, v{VK}")
    rowmax(a, SA, 12, acc=True)
    a("s_add_u32 s80, s80, 1")
    a("s_cmp_lt_u32 s80, 64")
    a("s_cbranch_scc1 L_fmax")
    halfmax(a, 12, 13)
    for i in range(16): a(f"v_sub_f32 v{CC+i}, 0, v12")
    zero(a, OA, 16)
    a(f"v_mov_b32 v{VK}, v3")
    a("s_mov_b32 s80, 0")
    a.label("L_fslow")
    a(f"ds_read_b128 {vr(KF)}, v{VK}")
    a(f"ds_read_b128 {vr(V0A)}, v{VV0}")
    a(f"ds_read_b128 {vr(V1)}, v{VV1}")
    a("s_waitcnt lgkmcnt(0)")
    a(f"{MF} {vr(SA,16)}, {vr(KF)}, {vr(QA)}, {vr(CC,16)}")
    a(f"v_add_u32 v{VK}, 1024, v{VK}")
    a(f"v_add_u32 v{VV0}, {VST}, v{VV0}")
    a(f"v_add_u32 v{VV1}, {VST}, v{VV1}")
    for i in range(16): a(f"v_exp_f32 v{SA+i}, v{SA+i}")
    for i in range(8): a(f"v_cvt_pk_bf16_f32 v{SB+i}, v{SA+2*i}, v{SA+2*i+1}")
    a(f"{MF} {vr(OA,16)}, {vr(V0A)}, {vr(SB)}, {vr(OA,16)}")
    a(f"{MF} {vr(OA,16)}, {vr(V1)}, {vr(SB+4)}, {vr(OA,16)}")
    a("s_add_u32 s80, s80, 1")
    a("s_cmp_lt_u32 s80, 64")
    a("s_cbranch_scc1 L_fslow")
    a("s_nop 9")
    lbcast()
    a("s_branch L_aok")

def build():
    a = Asm()
    head(a)
    p1_compute(a)
    p1_loader(a)
    attn(a)
    a.label("L_exit")
    a("s_endpgm")
    n = a.fix(verbose="-v" in sys.argv)
    print("instructions:", len(a.lines), "nop states inserted:", n, "lds", LDS_BYTES, file=sys.stderr)
    name = NAME + "_kernel"
    hdr = open("cdna_kernels/" + NAME + ".s.ref").read().split("; Override launch")[0]
    out = hdr + f"; @launch grid=(256,1,1) block=(512,1,1) lds={LDS_BYTES}\n"
    out += '.amdgcn_target "amdgcn-amd-amdhsa--gfx950"\n.text\n'
    out += f".globl {name}\n.p2align 8\n.type {name},@function\n{name}:\n" + a.text()
    out += '.section .rodata,"a"\n' + kd(name)
    dst = sys.argv[1] if len(sys.argv) > 1 and not sys.argv[1].startswith("-") else "cdna_kernels/" + NAME + ".s"
    open(dst, "w").write(out)
if __name__ == "__main__": build()
```

```python
import os, sys
from common import *

MF = "v_mfma_f32_32x32x16_bf16"
ST = " sc1"
ENV = os.environ.get
WS_F1 = 0x1480000
WS_F2 = 0x1490000
WS_F3 = 0x1498000
WS_TAG = 0x14a0000
SPIN = 1 << 17

S_DBG, S_WS, S_X, S_G, S_U, S_WA, S_WB, S_WC = 24, 28, 32, 36, 40, 44, 48, 52
S_RO, S_RD, S_GW = 56, 44, 48
S_OUT = 32
sWAVE, sMB, sNB, sVC = 3, 60, 61, 62
sHEAD, sQB = 63, 64
WSR = f"s[{S_WS}:{S_WS+3}]"
def SR(n): return f"s[{n}:{n+3}]"
VS = 1

NXS, NWS = 4, 7
LX, XSLOT = 0, 16384
LW, WSLOT = NXS * XSLOT, 12288
LR = LW + NWS * WSLOT
LDS_BYTES = 163840
LCNT = LDS_BYTES - 16
assert LR + 10240 <= LCNT
def acc(tt, ct): return 96 + (tt * 4 + ct) * 16 if ct < 4 else 224 + tt * 16
HP = 224
FR0, FR1 = 16, 36
VXA, VW = 56, 60
ONE_ROW = not ENV("ALLONES")
VST, VROT = 1072, 14
LK, LV = 0, 65536
LQ = LV + 64 * VST
QA, QB, CC, OA, OB, SA, SB, KF, V0A, V0B, V1 = 8, 12, 16, 32, 48, 64, 80, 96, 100, 104, 108
VK, VV0, VV1, VG = 4, 5, 6, 7
GACC, GFR, WO = 112, 144, 192

class Lgkm:
    def __init__(s, a): s.a = a; s.q = []
    def rd(s, tag, text): s.a(text); s.q.append(tag)
    def need(s, *tags):
        idx = [i for i, t in enumerate(s.q) if t in tags]
        if not idx: return
        n = len(s.q) - 1 - max(idx)
        assert n <= 15
        s.a(f"s_waitcnt lgkmcnt({n})")
        s.q = s.q[max(idx) + 1:]
    def all(s, extra=""):
        s.a("s_waitcnt " + extra + "lgkmcnt(0)")
        s.q = []

def poll(a, name, load, cmp, wait=True):
    a(f"s_mov_b32 s98, {SPIN}")
    a.label(name)
    load()
    if wait: a("s_waitcnt vmcnt(0)")
    cmp()
    a(f"s_cbranch_vccz {name}_ok")
    a(f"s_sleep {int(ENV('SLEEP', '4'))}")
    a("s_sub_u32 s98, s98, 1")
    a("s_cmp_lg_u32 s98, 0")
    a(f"s_cbranch_scc1 {name}")
    a.label(f"{name}_ok")

def rowmax(a, S, dst, acc=False):
    if acc: a(f"v_max3_f32 v{dst}, v{S}, v{S+1}, v{dst}")
    else: a(f"v_max_f32 v{dst}, v{S}, v{S+1}")
    for k in range(2, 16, 2): a(f"v_max3_f32 v{dst}, v{S+k}, v{S+k+1}, v{dst}")
def halfmax(a, dst, tmp):
    a(f"v_mov_b32 v{tmp}, v{dst}")
    a(f"v_permlane32_swap_b32 v{tmp}, v{dst}")
    a(f"v_max_f32 v{dst}, v{tmp}, v{dst}")
def zero(a, b, n):
    for r in range(0, n, 2): a(f"v_pk_mul_f32 {vr(b+r,2)}, 0, 0")
def one_lane(a, text, mask=1):
    a(f"s_mov_b64 exec, {mask}"); a(text); a("s_mov_b64 exec, -1")

def head(a):
    a("s_cmp_ge_u32 s2, 256")
    a("s_cbranch_scc1 L_exit")
    a("s_load_dwordx16 s[4:19], s[0:1], 0")
    a("s_load_dwordx4 s[20:23], s[0:1], 64")
    a(f"s_load_dwordx2 s[{S_WS}:{S_WS+1}], s[0:1], 80")
    if STAMP: a(f"v_mov_b32 v{VS}, 0")
    stamp(a, 0, VS); stamp(a, 1, VS, real=True)
    a("v_lshrrev_b32 v3, 6, v0")
    a("v_and_b32 v2, 63, v0")
    a(f"v_readfirstlane_b32 s{sWAVE}, v3")
    a("s_and_b32 s65, s2, 7")
    a("s_lshr_b32 s66, s2, 3")
    a("s_and_b32 s67, s65, 1")
    a("s_lshl_b32 s67, s67, 3")
    a("s_and_b32 s68, s66, 7")
    a(f"s_add_u32 s{sMB}, s67, s68")
    a("s_lshr_b32 s67, s65, 1")
    a("s_lshl_b32 s67, s67, 2")
    a("s_lshr_b32 s68, s66, 3")
    a(f"s_add_u32 s{sNB}, s67, s68")
    a("s_cmp_eq_u32 s68, 3")
    a(f"s_cselect_b32 s{sVC}, 1, 0")
    a("s_lshl_b32 s67, s65, 2")
    a("s_and_b32 s68, s66, 3")
    a(f"s_add_u32 s{sHEAD}, s67, s68")
    a(f"s_lshr_b32 s{sQB}, s66, 2")
    a("v_lshlrev_b32 v3, 4, v2")
    a(f"s_mov_b32 s{S_WS+2}, {WS_SIZE:#x}")
    a(f"s_mov_b32 s{S_WS+3}, 0x00020000")
    a(f"s_lshr_b32 s67, s{sNB}, 2")
    a(f"s_sub_u32 s81, s{sNB}, s67")
    a("s_add_u32 s81, s81, 16")
    a(f"s_lshl_b32 s82, s{sNB}, 11")
    a(f"s_lshl_b32 s67, s{sMB}, 7")
    a("s_add_u32 s82, s82, s67")
    a(f"s_add_u32 s82, s82, {WS_F1}")
    a("v_lshrrev_b32 v8, 3, v2")
    a("v_and_b32 v4, 7, v2")
    a("v_bfe_u32 v5, v2, 4, 1")
    a("v_lshlrev_b32 v5, 2, v5")
    a("v_xor_b32 v5, v5, v4")
    a("v_lshlrev_b32 v9, 4, v5")
    a(f"s_cmp_ge_u32 s{sWAVE}, 4")
    a("s_waitcnt lgkmcnt(0)")
    srd(a, S_X, 4, 5, 2048 * 1024)
    srd(a, S_DBG, 22, 23, 256)
    a("s_cbranch_scc1 L_loader")

def p1_compute(a):
    a(f"s_and_b32 s65, s{sWAVE}, 1")
    a(f"s_lshr_b32 s66, s{sWAVE}, 1")
    if ENV("CODEPF", "1") == "1":
        a("s_getpc_b64 s[84:85]")
        a.label("L_pc")
        a("v_lshlrev_b32 v11, 7, v0")
        a("v_min_u32 v11, L_exit-L_pc, v11")
        a("global_load_dword v61, v11, s[84:85]")
        a("v_lshlrev_b32 v11, 19, v2")
        a(f"s_cmp_eq_u32 s{sWAVE}, 0")
        a(f"s_cselect_b32 s67, 0, {OOB:#x}")
        a(f"buffer_load_dword v62, v11, {WSR}, s67 offen")
    a("v_and_b32 v8, 31, v2")
    a("v_lshrrev_b32 v4, 5, v2")
    a("v_bfe_u32 v5, v2, 1, 3")
    a("v_xor_b32 v5, v5, v4")
    a("s_lshl_b32 s67, s65, 13")
    a("v_lshl_add_u32 v6, v8, 7, s67")
    for ks in range(4):
        a(f"v_xor_b32 v7, {2*ks}, v5")
        a(f"v_lshl_add_u32 v{VXA+ks}, v7, 4, v6")
    a("v_bfe_u32 v5, v2, 2, 2")
    a("v_and_b32 v6, 3, v2")
    a("v_bfe_u32 v7, v2, 4, 1")
    a("v_lshlrev_b32 v6, 3, v6")
    a("v_lshl_or_b32 v6, v7, 5, v6")
    a("v_lshrrev_b32 v7, 1, v5")
    a("v_lshl_or_b32 v6, v7, 6, v6")
    a("v_lshl_or_b32 v6, v5, 7, v6")
    a("v_lshl_or_b32 v6, v4, 10, v6")
    a("s_lshl_b32 s67, s66, 6")
    a("v_xor_b32 v6, s67, v6")
    a(f"v_add_u32 v{VW}, {LW}, v6")
    zero(a, 96, 160)
    a(f"v_mov_b32 v5, {LCNT}")
    a("ds_write_b32 v5, v96")
    a(f"s_mov_b32 s78, {(-(NWS-1)*WSLOT) & 0xffffffff:#x}")
    a(f"s_mov_b32 s79, {(-(NXS-1)*XSLOT) & 0xffffffff:#x}")
    a("s_mov_b32 s73, 0")
    a("s_mov_b32 s74, 0")
    a("s_mov_b32 s75, 8")
    a("s_waitcnt lgkmcnt(0)")
    def reads(fs, ks, nu):
        kk = ks & 1
        X = lambda t: f"ds_read_b128 {vr(fs+4*t)}, v{VXA+ks} offset:{t*4096}"
        W = lambda u, j: f"ds_read_b64_tr_b16 {vr(fs+8+4*u+2*j, 2)}, v{VW} offset:{u*4096 + kk*2048 + j*512}"
        l = [X(0), W(0,0), W(0,1), X(1)]
        for u in range(1, nu): l += [W(u,0), W(u,1)]
        return l
    def loop(name, cts, swap, nu_next_last, hook=None):
        nu = len(cts)
        a.label(name)
        for ks in range(4):
            kk = ks & 1
            cur, nxt = (FR0, FR1) if kk == 0 else (FR1, FR0)
            mms = []
            for u, ct in enumerate(cts):
                for t in range(2):
                    d = vr(acc(t, ct), 16); w = vr(cur + 8 + 4*u); x = vr(cur + 4*t)
                    mms.append(f"{MF} {d}, {x}, {w}, {d}" if (swap and ct < 4) else f"{MF} {d}, {w}, {x}, {d}")
            rd = reads(nxt, (ks + 1) & 3, nu)
            post = []
            if kk == 0:
                post += ["s_add_u32 s73, s73, 1", f"s_cmp_eq_u32 s73, {NWS}", f"s_cselect_b32 s76, s78, {WSLOT}", "s_cselect_b32 s73, 0, s73", f"v_add_u32 v{VW}, s76, v{VW}"]
                if ks == 2:
                    post += ["s_add_u32 s74, s74, 1", f"s_cmp_eq_u32 s74, {NXS}", f"s_cselect_b32 s77, s79, {XSLOT}", "s_cselect_b32 s74, 0, s74", f"v_add_u32 v{VXA}, s77, v{VXA}"]
            elif ks == 3:
                post += [f"v_add_u32 v{VXA+i}, s77, v{VXA+i}" for i in range(1, 4)] + ["s_sub_u32 s75, s75, 1", "s_cmp_lg_u32 s75, 0"]
            if ks == 3 and hook: hook()
            a("s_waitcnt lgkmcnt(0)")
            if kk == 1:
                a(mms.pop(0))
                a("s_barrier")
            other = rd + post
            per = 3
            while mms:
                if kk == 0 or len(mms) < 2*nu - 1 or True:
                    pass
                if kk == 0: a(mms.pop(0))
                for _ in range(per):
                    if other: a(other.pop(0))
                if kk == 1: a(mms.pop(0))
            for o in other: a(o)
        a(f"s_cbranch_scc1 {name}")
    stamp(a, 2, VS)
    a("s_barrier")
    stamp(a, 3, VS)
    for l in reads(FR0, 0, 3): a(l)
    a(f"s_lshl_b32 s68, s{sMB}, 2")
    a("s_lshl_b32 s69, s65, 1")
    a("s_add_u32 s69, s68, s69")
    a(f"s_cmp_eq_u32 s{sVC}, 1")
    a("s_cbranch_scc1 L_p1loopV")
    loop("L_p1loopA", (0, 2, 4), False, 2)
    a("s_branch L_p1pub")
    loop("L_p1loopV", (0, 2, 4), True, 2)
    a(f"v_add_u32 v9, {VROT}, v2")
    a("v_and_b32 v9, 15, v9")
    a("v_lshl_or_b32 v9, v4, 4, v9")
    a("v_lshlrev_b32 v9, 4, v9")
    a("v_bfe_u32 v10, v2, 4, 1")
    a("v_lshl_or_b32 v9, v10, 16, v9")
    a(f"s_lshr_b32 s70, s{sNB}, 2")
    a("s_lshl_b32 s70, s70, 19")
    a("s_lshl_b32 s71, s66, 17")
    a("s_add_u32 s70, s70, s71")
    a("s_lshl_b32 s71, s69, 10")
    a("s_add_u32 s70, s70, s71")
    a(f"s_add_u32 s70, s70, {WS_V}")
    a(f"s_add_u32 s71, s70, {4*65536}")
    for j in range(2):
        for t in range(2):
            b = acc(t, 2*j)
            for hh in range(2):
                for i in range(4): a(f"v_cvt_pk_bf16_f32 v{b+8*hh+i}, v{b+8*hh+2*i}, v{b+8*hh+2*i+1}")
                a(f"buffer_store_dwordx4 {vr(b+8*hh)}, v9, {WSR}, s{70+j} offen offset:{t*1024 + hh*512}{ST}")
    a.label("L_p1pub")
    stamp(a, 4, VS)
    a(f"s_cmp_lt_u32 s{sNB}, 8")
    a(f"s_cselect_b32 s84, {f32(QSCALE)}, 1.0")
    a("s_mov_b32 s85, s84")
    a(f"s_lshl_b32 s67, s{sNB}, 2")
    a("s_lshl_b32 s68, s66, 1")
    a("s_add_u32 s67, s67, s68")
    a("s_lshl_b32 s67, s67, 16")
    a("s_lshl_b32 s68, s69, 10")
    a("s_add_u32 s67, s67, s68")
    a(f"s_add_u32 s67, s67, {WS_QK}")
    a("s_add_u32 s68, s67, 0x10000")
    for t in range(2):
        b = acc(t, 4)
        for i in range(8): a(f"v_pk_mul_f32 {vr(b+2*i,2)}, {vr(b+2*i,2)}, s[84:85]")
        for hh in range(2):
            for i in range(4): a(f"v_cvt_pk_bf16_f32 v{b+8*hh+i}, v{b+8*hh+2*i}, v{b+8*hh+2*i+1}")
            a(f"buffer_store_dwordx4 {vr(b+8*hh)}, v3, {WSR}, s{67+hh} offen offset:{t*1024}{ST}")
    a("s_mov_b32 s75, 8")
    stamp(a, 5, VS)
    def hook():
        a(f"s_cmp_lg_u32 s75, {8 - PUB_IT}")
        a("s_cbranch_scc1 L_nodrain")
        a("s_waitcnt vmcnt(0)")
        a.label("L_nodrain")
    loop("L_p2loop", (1, 3), False, 2, hook)
    stamp(a, 6, VS)
    a(f"s_mul_i32 s67, s69, {144*1024}")
    a("s_lshl_b32 s68, s66, 11")
    a("s_add_u32 s67, s67, s68")
    a(f"s_add_u32 s67, s67, {WS_AF + 32*1024}")
    a(f"v_mov_b32 v10, {f32(-GK1*0.044715)}")
    a(f"v_mov_b32 v11, {f32(-GK1*0.044715)}")
    a(f"v_mov_b32 v12, {f32(-GK1)}")
    a(f"v_mov_b32 v13, {f32(-GK1)}")
    a("s_waitcnt lgkmcnt(0)")
    for i in (1, 0):
        if i == 0:
            a(f"s_cmp_eq_u32 s{sVC}, 1")
            a("s_cbranch_scc1 L_p1done")
        a(f"s_lshl_b32 s68, s{sNB if i else 81}, 12")
        a("s_add_u32 s70, s67, s68")
        a(f"s_add_u32 s71, s70, {144*1024}")
        n = 0
        for t in range(2):
            g, u = acc(t, i), acc(t, 2 + i)
            for hh in range(2):
                T = 16 + (n & 1) * 8; n += 1
                G, U = g + 8*hh, u + 8*hh
                for p in range(4): a(f"v_pk_mul_f32 {vr(T+2*p,2)}, {vr(G+2*p,2)}, {vr(G+2*p,2)}")
                for p in range(4): a(f"v_pk_fma_f32 {vr(T+2*p,2)}, {vr(T+2*p,2)}, v[10:11], v[12:13]")
                for p in range(4): a(f"v_pk_mul_f32 {vr(T+2*p,2)}, {vr(T+2*p,2)}, {vr(G+2*p,2)}")
                for p in range(8): a(f"v_exp_f32 v{T+p}, v{T+p}")
                for p in range(4): a(f"v_pk_mul_f32 {vr(U+2*p,2)}, {vr(U+2*p,2)}, {vr(G+2*p,2)}")
                for p in range(4): a(f"v_pk_add_f32 {vr(T+2*p,2)}, {vr(T+2*p,2)}, 1.0 op_sel_hi:[1,0]")
                for p in range(8): a(f"v_rcp_f32 v{T+p}, v{T+p}")
                for p in range(4): a(f"v_pk_mul_f32 {vr(U+2*p,2)}, {vr(U+2*p,2)}, {vr(T+2*p,2)}")
                o = HP + ((1-i)*4 + t*2 + hh) * 4
                for p in range(4): a(f"v_cvt_pk_bf16_f32 v{o+p}, v{U+2*p}, v{U+2*p+1}")
                a(f"buffer_store_dwordx4 {vr(o)}, v3, {WSR}, s{70+t} offen offset:{hh*1024}{ST}")
    a.label("L_p1done")
    stamp(a, 7, VS)
    a("s_branch L_attn")

PUB_IT = int(ENV("PUB_IT", "2"))

def p1_loader(a):
    a.label("L_loader")
    a(f"s_sub_u32 s65, s{sWAVE}, 4")
    a("s_lshl_b32 s66, s65, 3")
    a("v_add_u32 v8, s66, v8")
    a("v_lshrrev_b32 v5, 4, v2")
    a("s_and_b32 s66, s65, 1")
    a("s_lshl_b32 s66, s66, 2")
    a("v_add_u32 v5, s66, v5")
    a("v_xor_b32 v5, v5, v4")
    a("v_lshlrev_b32 v5, 4, v5")
    a("v_lshl_add_u32 v12, v8, 10, v5")
    a(f"s_lshl_b32 s74, s{sMB}, 17")
    a("s_lshl_b32 s75, s65, 10")
    issued = []
    def dma(voff, srdn, soff, m0val, pre):
        a(f"s_add_u32 m0, s75, {m0val}")
        a(pre)
        a(f"buffer_load_dwordx4 v{voff}, {SR(srdn)}, s{soff} offen lds")
    def itemsW(s):
        base = LW + (s % NWS) * WSLOT
        def f(u):
            def g():
                if s < 16:
                    if u == 0: dma(13, S_WA, 71, base, "s_add_u32 s71, s71, s73")
                    if u == 1: dma(13, S_WB, 69, base + 4096, "s_add_u32 s69, s69, s73")
                    if u == 2: dma(11, S_WC, 72, base + 8192, f"s_add_u32 s72, s72, {32*3072}")
                else:
                    if u == 0: dma(10, S_G, 70, base, f"s_add_u32 s70, s70, {32*3584}")
                    if u == 1: dma(10, S_U, 70, base + 4096, "s_nop 0")
                issued.append(("W", s))
            return g
        return [(s - NWS, f(u)) for u in range(3 if s < 16 else 2)]
    def itemsX(j):
        base = LX + (j % NXS) * XSLOT
        def f(m):
            def g():
                dma(12, S_X, 76, base + m*4096, f"s_add_u32 s76, s74, {m*32768 + (j&7)*128}")
                issued.append(("X", j))
            return g
        return [(2*(j-NXS) + 1, f(m)) for m in range(4)]
    queue = []
    for j in range(16): queue += itemsX(j) + itemsW(2*j) + itemsW(2*j+1)
    def issue(nmax, bar):
        n = 0
        while queue and n < nmax and queue[0][0] <= bar:
            queue.pop(0)[1](); n += 1
    def wait_stage(s):
        assert sum(e == ("W", s) for e in issued) == (3 if s < 16 else 2) and sum(e == ("X", s // 2) for e in issued) == 4, s
        last = max(k for k, e in enumerate(issued) if e == ("W", s) or e == ("X", s // 2))
        n = len(issued) - 1 - last
        assert n <= 63
        a(f"s_waitcnt vmcnt({n})")
    def wait_tag(tag):
        n = len(issued) - 1 - max(k for k, e in enumerate(issued) if e == tag)
        assert n <= 63
        a(f"s_waitcnt vmcnt({n})")
    issue(4, -1)
    a("s_lshl_b32 s66, s65, 8")
    a("s_or_b32 s66, s66, s2")
    a(f"s_cselect_b32 s83, {OOB:#x}, 0")
    a(f"s_add_u32 s84, s83, {WS_TAG}")
    a("v_mov_b32 v5, 0")
    a(f"buffer_load_dword v14, v5, {WSR}, s84 offen{ST}")
    issued.append(("T", 0))
    srd(a, S_G, 12, 13, 512 * 3584)
    srd(a, S_U, 14, 15, 512 * 3584)
    srd(a, S_WC, 6, 7, 512 * 3072)
    a(f"s_cmp_eq_u32 s{sVC}, 1")
    a(f"s_cselect_b32 s{S_WA}, s6, s12")
    a(f"s_cselect_b32 s{S_WA+1}, s7, s13")
    a(f"s_cselect_b32 s{S_WA+2}, s{S_WC+2}, s{S_G+2}")
    a(f"s_mov_b32 s{S_WA+3}, 0x00020000")
    a(f"s_cselect_b32 s{S_WB}, s6, s14")
    a(f"s_cselect_b32 s{S_WB+1}, s7, s15")
    a(f"s_mov_b32 s{S_WB+2}, s{S_WA+2}")
    a(f"s_mov_b32 s{S_WB+3}, 0x00020000")
    a("s_movk_i32 s66, 3072")
    a("s_cselect_b32 s66, s66, 3584")
    a("v_mul_u32_u24 v6, 3584, v8")
    a("v_add_u32 v10, v6, v9")
    a("v_mul_u32_u24 v6, 3072, v8")
    a("v_add_u32 v11, v6, v9")
    a("v_mul_u32_u24 v6, s66, v8")
    a("v_add_u32 v13, v6, v9")
    a("s_lshl_b32 s73, s66, 5")
    a("s_lshl_b32 s67, s81, 7")
    a(f"s_lshr_b32 s68, s{sNB}, 2")
    a("s_lshl_b32 s68, s68, 8")
    a("s_add_u32 s68, s68, 2048")
    a("s_add_u32 s69, s68, 128")
    a(f"s_cmp_eq_u32 s{sVC}, 1")
    a("s_cselect_b32 s71, s68, s67")
    a("s_cselect_b32 s69, s69, s67")
    a("s_mov_b32 s94, s71")
    a("s_mov_b32 s95, s69")
    a("s_sub_u32 s71, s71, s73")
    a("s_sub_u32 s69, s69, s73")
    a(f"s_lshl_b32 s72, s{sNB}, 7")
    a(f"s_sub_u32 s70, s72, {32*3584}")
    a(f"s_sub_u32 s72, s72, {32*3072}")
    PFK = ENV("PF", "4") == "4"
    if PFK:
        issue(3, -1)
        a("s_lshr_b32 s66, s2, 1")
        a("s_and_b32 s67, s2, 1")
        a("s_mul_i32 s68, s66, 3072")
        a("s_mul_i32 s76, s67, 1536")
        a("s_add_u32 s68, s68, s76")
        a("s_mul_i32 s66, s66, 3584")
        a("s_mul_i32 s67, s67, 768")
        a("s_add_u32 s66, s66, s67")
        a("s_add_u32 s66, s66, 2048")
        a("s_lshl_b32 s67, s2, 13")
        a("s_cmp_eq_u32 s65, 1")
        a("s_cselect_b32 s66, s68, s66")
        a("s_cselect_b32 s76, 11, 5")
        a(f"s_mov_b32 s77, {128*3584}")
        a(f"s_cselect_b32 s77, {128*3072}, s77")
        a("s_cselect_b32 s94, s6, s12")
        a("s_cselect_b32 s95, s7, s13")
        a("s_cmp_eq_u32 s65, 3")
        a("s_cselect_b32 s94, s14, s94")
        a("s_cselect_b32 s95, s15, s95")
        a("v_min_u32 v28, s76, v2")
        a("v_lshl_add_u32 v28, v28, 7, s66")
        a("v_bfe_u32 v29, v2, 1, 3")
        a("v_lshl_add_u32 v29, v29, 10, s67")
        a("v_and_b32 v27, 1, v2")
        a("v_lshl_add_u32 v29, v27, 7, v29")
        a("s_cmp_eq_u32 s65, 0")
        a("s_cselect_b32 s94, s4, s94")
        a("s_cselect_b32 s95, s5, s95")
        a("s_cselect_b32 s77, 256, s77")
        a("s_cselect_b64 vcc, -1, 0")
        a("v_cndmask_b32 v28, v28, v29, vcc")
        for n in [int(x) for x in ENV("PFPOS", "0,3,7,3").split(",")]:
            issue(n, -1)
            a("s_mov_b64 exec, 0xffff")
            a("global_load_dword v30, v28, s[94:95]")
            a("s_mov_b64 exec, -1")
            a("v_add_u32 v28, s77, v28")
            issued.append(("P", 0))
    else:
        issue(int(ENV("FIRST", "6")), -1)
    def prefetch(kinds):
        a("s_mov_b32 s94, s4"); a("s_mov_b32 s95, s5")
        for r in (66, 67, 68, 76): a(f"s_mov_b32 s{r}, 0")
        a("s_mov_b32 s77, 0")
        for lw, k in enumerate(kinds):
            if k is None: continue
            p, per, first, n, T, J = k
            a(f"s_cmp_eq_u32 s65, {lw}")
            a(f"s_cselect_b32 s94, s{p}, s94")
            a(f"s_cselect_b32 s95, s{p+1}, s95")
            a(f"s_cselect_b32 s66, {per}, s66")
            a(f"s_cselect_b32 s67, {first}, s67")
            a(f"s_cselect_b32 s68, {n-1}, s68")
            a(f"s_cselect_b32 s76, {T}, s76")
            a(f"s_cselect_b32 s77, {J}, s77")
        a("s_mul_i32 s66, s66, s2")
        a("s_add_u32 s66, s66, s67")
        a("v_min_u32 v28, s68, v2")
        a("v_mov_b32 v29, s77")
        a("v_cmp_le_u32 vcc, s76, v28")
        a("v_lshl_add_u32 v28, v28, 7, s66")
        a("v_cndmask_b32 v29, 0, v29, vcc")
        a("v_add_u32 v28, v28, v29")
        a("global_load_dword v30, v28, s[94:95]")
        issued.append(("P", 0))
    PF = ENV("PF", "4") in ("1", "3")
    PFX = ENV("PF", "4") in ("2", "3")
    def prefetch_x1():
        a("s_lshr_b32 s66, s2, 3")
        a("s_and_b32 s67, s2, 1")
        a("s_lshl_b32 s67, s67, 20")
        a("s_lshl_b32 s68, s66, 15")
        a("s_add_u32 s67, s67, s68")
        a("s_lshl_b32 s68, s65, 13")
        a("s_add_u32 s67, s67, s68")
        a("v_lshlrev_b32 v28, 7, v2")
        a("s_and_b32 s66, s66, 7")
        a("s_lshl_b32 s66, s66, 6")
        a("v_add_u32 v27, s66, v2")
        a("s_lshr_b32 s68, s73, 5")
        a("v_mul_u32_u24 v29, s68, v27")
        a("v_mul_u32_u24 v26, 3072, v27")
        a("s_cmp_eq_u32 s65, 0")
        a(f"s_cselect_b32 s66, s94, {OOB:#x}")
        a(f"buffer_load_dword v30, v29, {SR(S_WA)}, s66 offen")
        a("s_cmp_eq_u32 s65, 1")
        a(f"s_cselect_b32 s66, s95, {OOB:#x}")
        a(f"buffer_load_dword v30, v29, {SR(S_WB)}, s66 offen")
        a(f"s_lshl_b32 s66, s{sNB}, 7")
        a("s_cmp_eq_u32 s65, 2")
        a(f"s_cselect_b32 s66, s66, {OOB:#x}")
        a(f"buffer_load_dword v30, v26, {SR(S_WC)}, s66 offen")
        a(f"buffer_load_dword v30, v28, {SR(S_X)}, s67 offen")
        issued.extend([("P", 0)] * 4)
    def prefetch_x2():
        a("v_mul_u32_u24 v29, 3584, v27")
        a(f"s_lshl_b32 s67, s{sNB}, 7")
        a("s_cmp_eq_u32 s65, 1")
        a(f"s_cselect_b32 s66, s67, {OOB:#x}")
        a(f"buffer_load_dword v30, v29, {SR(S_G)}, s66 offen")
        a("s_cmp_eq_u32 s65, 2")
        a(f"s_cselect_b32 s66, s67, {OOB:#x}")
        a(f"buffer_load_dword v30, v29, {SR(S_U)}, s66 offen")
        issued.extend([("P", 0)] * 2)
    if PFX and not PF: prefetch_x1()
    if PF: prefetch([(4, 8192, 0, 64, 0, 0), (6, 6144, 0, 48, 0, 0), (12, 7168, 2048, 24, 12, 2048), (14, 7168, 2048, 24, 12, 2048)])
    srd(a, S_RO, 8, 9, 512 * 1024)
    a("v_and_b32 v15, 7, v8")
    a("v_lshl_add_u32 v15, v15, 10, v9")
    a("s_lshl_b32 s78, s65, 11")
    a(f"s_add_u32 s78, s78, {LR}")
    a("s_lshr_b32 s66, s2, 3")
    a("s_and_b32 s67, s2, 7")
    a("s_lshl_b32 s66, s66, 14")
    a("s_lshl_b32 s67, s67, 7")
    a("s_add_u32 s66, s66, s67")
    a("s_cmp_eq_u32 s65, 0")
    a(f"s_cselect_b32 s66, s66, {OOB:#x}")
    a(f"s_cselect_b32 s67, {LR + 8192}, s78")
    a("s_mov_b32 m0, s67")
    a("s_add_u32 s68, s66, 8192")
    a(f"buffer_load_dwordx4 v15, {SR(S_RO)}, s66 offen lds")
    a("s_add_u32 m0, s67, 1024")
    a("s_nop 0")
    a(f"buffer_load_dwordx4 v15, {SR(S_RO)}, s68 offen lds")
    issued.extend([("P", 1)] * 2)
    issue(int(ENV("BURST", "0")), -1)
    a("v_bfe_u32 v18, v2, 2, 2")
    a("v_and_b32 v31, 3, v2")
    a("v_bfe_u32 v19, v2, 4, 1")
    a("v_lshlrev_b32 v31, 3, v31")
    a("v_lshl_or_b32 v31, v19, 5, v31")
    a("v_lshrrev_b32 v19, 1, v18")
    a("v_lshl_or_b32 v31, v19, 6, v31")
    a("v_lshl_or_b32 v31, v18, 7, v31")
    a("v_lshrrev_b32 v19, 5, v2")
    a("v_lshl_or_b32 v31, v19, 9, v31")
    a("v_add_u32 v18, s78, v31")
    a("v_xor_b32 v19, 64, v18")
    a("s_cmp_eq_u32 s65, 0")
    a(f"s_cselect_b32 s82, s82, {OOB:#x}")
    a(f"s_cselect_b32 s85, 0, {OOB:#x}")
    a("v_mov_b32 v6, 1")
    a("v_lshlrev_b32 v4, 7, v2")
    for i in range(4): a(f"s_add_u32 s{86+i}, s85, {WS_F1 + i*8192}")
    stamp(a, 2, VS)
    wait_stage(0)
    stamp(a, 3, VS)
    a("s_barrier")
    a("v_add_u32 v14, 1, v14")
    a("v_max_u32 v14, 1, v14")
    one_lane(a, f"buffer_store_dword v14, v5, {WSR}, s84 offen{ST}")
    issued.append(("T", 1))
    def ld1():
        for i in range(4): a(f"buffer_load_dwordx2 {vr(20+2*i,2)}, v4, {WSR}, s{86+i} offen{ST}")
    PER1, PER2, PSW = [int(x) for x in ENV("PER", "5,4,12").split(",")]
    issue(int(ENV("PER0", "5")), -1)
    SIDE1, SIDE2 = [int(x) for x in ENV("SIDE", "18,28").split(",")]
    def side_out():
        wait_tag(("S", 0))
        for nl in range(2):
            for j in range(2): a(f"ds_read_b64_tr_b16 {vr(36+4*nl+2*j,2)}, v{18+nl} offset:{j*1024}")
        a("v_mov_b32 v64, 0")
        a("v_mov_b32 v65, 0")
        for i in range(4):
            a(f"v_dot2_f32_bf16 v64, v{48+i}, v{56+i}, v64")
            a(f"v_dot2_f32_bf16 v65, v{52+i}, v{56+i}, v65")
        a("v_cmp_eq_u32 vcc, 0, v2")
        a("s_waitcnt lgkmcnt(0)")
        a(f"buffer_store_dwordx4 v[36:39], v3, {WSR}, s79 offen{ST}")
        a(f"buffer_store_dwordx4 v[40:43], v3, {WSR}, s80 offen{ST}")
        for mod in ("quad_perm:[1,0,3,2]", "quad_perm:[2,3,0,1]", "row_half_mirror", "row_mirror"):
            for r in (64, 65): a(f"v_add_f32_dpp v{r}, v{r}, v{r} {mod} row_mask:0xf bank_mask:0xf")
        for r, sb in ((64, 66), (65, 56)):
            for q in range(4): a(f"v_readlane_b32 s{sb+q}, v{r}, {16*q}")
        a("v_mov_b32 v66, s66")
        a("v_mov_b32 v67, s56")
        for q in range(1, 4):
            a(f"v_add_f32 v66, s{66+q}, v66")
            a(f"v_add_f32 v67, s{56+q}, v67")
        a("v_cndmask_b32 v66, v67, v66, vcc")
        a(f"v_mul_f32 v66, {f32(-LOG2E)}, v66")
        a("v_exp_f32 v66, v66")
        a("v_lshlrev_b32 v68, 2, v2")
        a("v_add_f32 v66, 1.0, v66")
        a("v_rcp_f32 v66, v66")
        a("s_lshl_b32 s93, s93, 2")
        a(f"s_add_u32 s93, s93, {WS_G}")
        one_lane(a, f"buffer_store_dword v66, v68, {WSR}, s93 offen{ST}", 3)
        issued.extend([("S", 1)] * 3)
    for s in range(32):
        E0 = int(ENV("EARLY", "-100"))
        if s in (4, 10, 16, 24) and E0 < 0: stamp(a, {4: 4, 10: 5, 16: 6, 24: 7}[s], VS)
        if 0 <= s - E0 < 6: stamp(a, [4, 7, 24, 27, 21, 30][s - E0], VS)
        if s + 1 <= 31: wait_stage(s + 1)
        if 0 <= s - E0 < 6: stamp(a, [5, 8, 25, 28, 22, 31][s - E0], VS)
        a("s_barrier")
        if 0 <= s - E0 < 5: stamp(a, [6, 9, 26, 29, 23][s - E0], VS)
        issue(PER1 if s < PSW else PER2, s)
        if s == 3:
            wait_tag(("T", 1))
            one_lane(a, f"buffer_store_dword v14, v5, {SR(S_DBG)}, s83 offen{ST}")
            issued.append(("T", 2))
        if s == int(ENV("PFB", "5")) and (PF or PFK):
            prefetch([(16, 7168, 0, 56, 0, 0), None, (12, 7168, 0, 32, 16, 1536), (14, 7168, 0, 32, 16, 1536)])
        if s == int(ENV("PFB", "5")) and PFX: prefetch_x2()
        if s == 9:
            a("s_cmp_lg_u32 s65, 0")
            a("s_cbranch_scc1 L_nowo2")
            for nl in range(2):
                for j in range(2): a(f"ds_read_b64_tr_b16 {vr(36+4*nl+2*j,2)}, v{18+nl} offset:{8192 + j*1024}")
            a("s_lshr_b32 s66, s2, 3")
            a("s_and_b32 s67, s2, 7")
            a(f"s_mul_i32 s67, s67, {2*144*1024}")
            a("s_lshl_b32 s66, s66, 10")
            a("s_add_u32 s66, s66, s67")
            a(f"s_add_u32 s66, s66, {WS_WF}")
            a(f"s_add_u32 s67, s66, {144*1024}")
            a(f"s_lshl_b32 s68, s{sMB}, 11")
            a(f"s_lshl_b32 s76, s{sNB}, 7")
            a("s_add_u32 s68, s68, s76")
            a(f"s_add_u32 s68, s68, {WS_F2}")
            a(f"s_lshl_b32 s76, s{sQB}, 12")
            a(f"s_lshl_b32 s77, s{sHEAD}, 7")
            a("s_add_u32 s76, s76, s77")
            a(f"s_add_u32 s76, s76, {WS_F3}")
            zero(a, 44, 4)
            a("s_waitcnt lgkmcnt(0)")
            a(f"buffer_store_dwordx4 v[36:39], v3, {WSR}, s66 offen{ST}")
            a(f"buffer_store_dwordx4 v[40:43], v3, {WSR}, s67 offen{ST}")
            a("s_mov_b64 exec, 1")
            a(f"buffer_store_dwordx4 v[44:47], v3, {WSR}, s68 offen{ST}")
            a(f"buffer_store_dword v44, v3, {WSR}, s76 offen{ST}")
            a("s_mov_b64 exec, -1")
            a.label("L_nowo2")
        if s == SIDE1:
            srd(a, S_RD, 16, 17, 1792 * 1024)
            srd(a, S_GW, 18, 19, 1024)
            a(f"s_mul_i32 s66, s{sHEAD}, 3")
            a("s_add_u32 s66, s66, s65")
            a(f"s_add_u32 s67, s{sHEAD}, 96")
            a("s_cmp_eq_u32 s65, 3")
            a("s_cselect_b32 s66, s67, s66")
            a("s_lshl_b32 s69, s66, 14")
            a(f"s_lshl_b32 s68, s{sQB}, 7")
            a("s_mov_b32 m0, s78")
            a("s_add_u32 s69, s69, s68")
            a(f"buffer_load_dwordx4 v15, {SR(S_RD)}, s69 offen lds")
            a("s_add_u32 m0, s78, 1024")
            a("s_add_u32 s69, s69, 8192")
            a(f"buffer_load_dwordx4 v15, {SR(S_RD)}, s69 offen lds")
            a(f"s_mul_i32 s79, s{sQB}, {2*144*1024}")
            a("s_lshl_b32 s67, s66, 10")
            a("s_add_u32 s79, s79, s67")
            a(f"s_add_u32 s79, s79, {WS_WF + 32*1024}")
            a("s_cmp_lt_u32 s66, 112")
            a(f"s_cselect_b32 s79, s79, {OOB:#x}")
            a(f"s_add_u32 s80, s79, {144*1024}")
            a(f"s_lshl_b32 s93, s{sMB}, 7")
            a(f"s_lshl_b32 s67, s{sNB}, 3")
            a("s_add_u32 s93, s93, s67")
            a("s_lshl_b32 s67, s65, 1")
            a("s_add_u32 s93, s93, s67")
            a("s_lshl_b32 s67, s93, 10")
            a(f"buffer_load_dwordx4 v[48:51], v3, {SR(S_X)}, s67 offen")
            a(f"buffer_load_dwordx4 v[52:55], v3, {SR(S_X)}, s67 offen offset:1024")
            a(f"buffer_load_dwordx4 v[56:59], v3, {SR(S_GW)}, 0 offen")
            issued.extend([("S", 0)] * 5)
        if s == SIDE2:
            side_out()
            for i in range(4): a(f"v_mov_b32 v{60+i}, -1")
            a(f"s_lshl_b32 s67, s{sQB}, 3")
            a("s_lshl_b32 s68, s65, 1")
            a("s_add_u32 s67, s67, s68")
            a(f"s_mul_i32 s67, s67, {144*1024}")
            a(f"s_lshl_b32 s68, s{sHEAD}, 10")
            a("s_add_u32 s67, s67, s68")
            a(f"s_add_u32 s67, s67, {WS_AF}")
            a(f"s_add_u32 s68, s67, {144*1024}")
            a(f"buffer_store_dwordx4 v[60:63], v3, {WSR}, s67 offen{ST}")
            a(f"buffer_store_dwordx4 v[60:63], v3, {WSR}, s68 offen{ST}")
            issued.extend([("S", 1)] * 2)
        if s == 14:
            a(f"buffer_load_dword v16, v5, {SR(S_DBG)}, s85 offen{ST}")
            issued.append(("T", 3))
        if s == 16 + 2*PUB_IT + 1:
            a("s_cmp_lg_u32 s65, 0")
            a("s_cbranch_scc1 L_f1done")
            wait_tag(("T", 3))
            a("v_cmp_eq_u32 vcc, 0, v16")
            a("s_cbranch_vccz L_pt_ok")
            poll(a, "L_pt", lambda: a(f"buffer_load_dword v16, v5, {SR(S_DBG)}, 0 offen{ST}"), lambda: a("v_cmp_eq_u32 vcc, 0, v16"))
            a("v_not_b32 v17, v16")
            one_lane(a, f"buffer_store_dwordx2 v[16:17], v5, {WSR}, s82 offen{ST}")
            a.label("L_f1done")
        if s == 30: ld1()
    assert not queue
    a("v_and_b32 v8, 255, v0")
    a("v_lshrrev_b32 v9, 2, v8")
    a(f"v_mul_u32_u24 v9, {VST}, v9")
    a("v_and_b32 v8, 3, v8")
    a("v_min_u32 v8, 2, v8")
    a("v_lshl_add_u32 v9, v8, 4, v9")
    a(f"v_add_u32 v9, {LV + 1024}, v9")
    a("v_mov_b32 v32, 0x3f803f80")
    if ONE_ROW:
        a("v_cmp_eq_u32 vcc, 0, v8")
        a("v_cndmask_b32 v32, 0, v32, vcc")
    for i in range(1, 4): a(f"v_mov_b32 v{32+i}, v32")
    a("ds_write_b128 v9, v[32:35]")
    a(f"v_mov_b32 v7, {LCNT}")
    if E0 < 0: stamp(a, 8, VS)
    a("s_cmp_lg_u32 s65, 0")
    a("s_cbranch_scc1 L_wl")
    def cmp1():
        for i in range(4):
            a(f"v_xor_b32 v{20+2*i}, v{20+2*i}, v16")
            a(f"v_xor_b32 v{21+2*i}, v{21+2*i}, v17")
        a("v_or3_b32 v20, v20, v21, v22")
        a("v_or3_b32 v23, v23, v24, v25")
        a("v_or3_b32 v20, v20, v26, v27")
        a("v_or_b32 v20, v20, v23")
        a("v_cmp_ne_u32 vcc, 0, v20")
    a("s_waitcnt vmcnt(0)")
    cmp1()
    a("s_cbranch_vccz L_ps1_ok")
    poll(a, "L_ps1", ld1, cmp1)
    a("ds_write_b32 v7, v6")
    a("s_branch L_wl_ok")
    a.label("L_wl")
    a(f"s_mov_b32 s98, {SPIN*8}")
    a.label("L_wl2")
    a("ds_read_b32 v8, v7")
    a("s_waitcnt lgkmcnt(0)")
    a("v_cmp_ne_u32 vcc, 1, v8")
    a("s_cbranch_vccz L_wl_ok")
    a("s_sleep 1")
    a("s_sub_u32 s98, s98, 1")
    a("s_cmp_lg_u32 s98, 0")
    a("s_cbranch_scc1 L_wl2")
    a.label("L_wl_ok")
    if E0 < 0: stamp(a, 9, VS)
    a(f"s_lshl_b32 s66, s{sHEAD}, 16")
    a(f"s_lshl_b32 s67, s{sQB}, 13")
    a("s_add_u32 s67, s67, s66")
    a("s_lshl_b32 s68, s65, 11")
    a("s_add_u32 s67, s67, s68")
    a(f"s_add_u32 m0, s68, {LQ}")
    a(f"s_add_u32 s67, s67, {WS_QK}")
    for i in range(2): a(f"buffer_load_dwordx4 v3, {WSR}, s67 offen offset:{i*1024}{ST} lds")
    a("s_add_u32 s90, s66, s68")
    a("s_mov_b32 s91, s68")
    a(f"s_mul_i32 s92, s65, {2*VST}")
    for t0 in KV_GROUPS[:KV_PRE]: kv_group(a, t0)

KV_GROUPS = (0, 32, 8, 40, 16, 48, 24, 56)
KV_PRE = int(ENV("KV_PRE", "4"))
def kv_group(a, t0):
    a(f"s_add_u32 m0, s91, {LK + t0*1024}")
    a(f"s_add_u32 s67, s90, {WS_QK + 32*65536 + t0*1024}")
    for i in range(2): a(f"buffer_load_dwordx4 v3, {WSR}, s67 offen offset:{i*1024}{ST} lds")
    a(f"s_add_u32 s67, s90, {WS_V + t0*1024}")
    for i in range(2):
        a(f"s_add_u32 m0, s92, {LV + (t0+i)*VST - i*1024}")
        a(f"buffer_load_dwordx4 v3, {WSR}, s67 offen offset:{i*1024}{ST} lds")

def attn(a):
    a.label("L_attn")
    a(f"s_and_b32 s65, s{sWAVE}, 3")
    a(f"s_lshr_b32 s66, s{sWAVE}, 2")
    a("s_lshl_b32 s67, s66, 15")
    a(f"v_add_u32 v{VK}, s67, v3")
    a(f"v_add_u32 v8, {VROT}, v2")
    a("v_and_b32 v8, 15, v8")
    a("v_lshrrev_b32 v9, 5, v2")
    a("v_lshl_or_b32 v8, v9, 4, v8")
    a("v_lshlrev_b32 v8, 4, v8")
    a("v_add_u32 v9, 512, v8")
    a("v_and_b32 v10, 31, v2")
    a("v_subrev_u32 v11, 20, v10")
    a("v_cmp_gt_u32 vcc, 8, v11")
    a("v_mov_b32 v11, 1040")
    a("v_mov_b32 v12, 1056")
    a("v_cndmask_b32 v11, v11, v12, vcc")
    a("v_cmp_eq_u32 vcc, 16, v10")
    a("v_mov_b32 v12, 1024")
    a("v_cndmask_b32 v11, v11, v12, vcc")
    a("v_cmp_gt_u32 vcc, 16, v10")
    a("v_cndmask_b32 v8, v11, v8, vcc")
    a("v_cndmask_b32 v9, v11, v9, vcc")
    a(f"s_mul_i32 s67, s66, {32*VST}")
    a(f"s_add_u32 s67, s67, {LV}")
    a(f"v_add_u32 v{VV0}, s67, v8")
    a(f"v_add_u32 v{VV1}, s67, v9")
    a("s_lshl_b32 s67, s65, 11")
    a(f"s_add_u32 s67, s67, {LQ}")
    a("v_add_u32 v20, s67, v3")
    zero(a, OA, 32); zero(a, V1, 4); zero(a, GACC, 32); zero(a, GFR, 12)
    a(f"s_lshl_b32 s73, s{sMB}, 11")
    a(f"s_lshl_b32 s74, s{sNB}, 7")
    a("s_add_u32 s73, s73, s74")
    a(f"s_lshl_b32 s74, s{sWAVE}, 2")
    a("s_add_u32 s73, s73, s74")
    a(f"s_add_u32 s73, s73, {WS_F2}")
    a(f"s_cmp_lt_u32 s{sWAVE}, 4")
    a(f"s_cselect_b32 s73, s73, {OOB:#x}")
    a(f"s_lshr_b32 s74, s{sHEAD}, 1")
    a("s_lshl_b32 s74, s74, 11")
    a(f"s_add_u32 s74, s74, {WS_F2}")
    a(f"s_and_b32 s68, s{sWAVE}, 1")
    a(f"s_lshr_b32 s69, s{sWAVE}, 1")
    a(f"s_lshl_b32 s84, s{sHEAD}, 1")
    a("s_add_u32 s84, s84, s68")
    a(f"s_mul_i32 s85, s84, {144*1024}")
    a(f"s_add_u32 s85, s85, {WS_AF}")
    a(f"s_mul_i32 s86, s{sQB}, {2*144*1024}")
    a(f"s_add_u32 s86, s86, {WS_WF}")
    a(f"s_mul_i32 s75, s69, {28*1024}")
    a(f"s_add_u32 s75, s75, {32*1024}")
    a("s_add_u32 s76, s85, s75")
    a("s_add_u32 s77, s86, s75")
    a(f"s_add_u32 s78, s77, {144*1024}")
    a("s_lshl_b32 s75, s69, 13")
    a("s_add_u32 s85, s85, s75")
    a("s_add_u32 s86, s86, s75")
    a(f"v_mov_b32 v{VG}, v3")
    a(f"s_cmp_lt_u32 s{sWAVE}, 4")
    a("s_cbranch_scc1 L_x1")
    a(f"s_waitcnt vmcnt({4*(KV_PRE-2)}) lgkmcnt(0)")
    a.label("L_x1")
    a("s_barrier")
    stamp(a, 10, VS)
    a(f"ds_read_b128 {vr(QA)}, v20")
    a(f"ds_read_b128 {vr(QB)}, v20 offset:1024")
    a(f"ds_read_b128 {vr(V0B)}, v3")
    a(f"ds_read_b128 {vr(KF)}, v{VK}")
    a(f"ds_read_b128 {vr(V0A)}, v{VV0}")
    a("s_waitcnt lgkmcnt(2)")
    a(f"{MF} {vr(SA,16)}, {vr(V0B)}, {vr(QA)}, 0")
    a(f"{MF} {vr(SB,16)}, {vr(V0B)}, {vr(QB)}, 0")
    if KV_PRE < 8:
        a(f"s_cmp_lt_u32 s{sWAVE}, 4")
        a("s_cbranch_scc1 L_kvdone")
        a(f"s_lshl_b32 s67, s{sQB}, 12")
        a(f"s_lshl_b32 s70, s{sHEAD}, 7")
        a("s_add_u32 s67, s67, s70")
        a(f"s_add_u32 s67, s67, {WS_F3}")
        a(f"s_cmp_eq_u32 s{sWAVE}, 4")
        a(f"s_cselect_b32 s67, s67, {OOB:#x}")
        a(f"v_mov_b32 v{GFR+14}, 1")
        one_lane(a, f"buffer_store_dword v{GFR+14}, v3, {WSR}, s67 offen{ST}")
        for t0 in KV_GROUPS[KV_PRE:]: kv_group(a, t0)
        a.label("L_kvdone")
    T0 = GFR + 12
    rowmax(a, SA, T0)
    rowmax(a, SB, T0, acc=True)
    halfmax(a, T0, T0 + 1)
    for i in range(16): a(f"v_sub_f32 v{CC+i}, 0, v{T0}")
    a("s_waitcnt lgkmcnt(0)")
    a(f"{MF} {vr(SA,16)}, {vr(KF)}, {vr(QA)}, {vr(CC,16)}")
    zero(a, SB + 8, 4)
    a("s_nop 9")

    def tile(n, which, extra):
        S, T, O, OT, QT = (SA, SB, OA, OB, QB) if which == 0 else (SB, SA, OB, OA, QA)
        v0 = V0A if n % 2 == 0 else V0B
        v0n = V0B if n % 2 == 0 else V0A
        e = lambda i: a(f"v_exp_f32 v{S+i}, v{S+i}")
        c = lambda i: a(f"v_cvt_pk_bf16_f32 v{S + (i>>2)*8 + (i&3)}, v{S+2*i}, v{S+2*i+1}")
        e(0); e(1)
        if which == 1: a("s_waitcnt lgkmcnt(0)")
        a(f"{MF} {vr(OT,16)}, {vr(V1)}, {vr(T+8)}, {vr(OT,16)}")
        if which == 0:
            a(f"ds_read_b128 {vr(V1)}, v{VV1} offset:{n*VST}")
            a(f"ds_read_b128 {vr(v0n)}, v{VV0} offset:{(n+1)*VST}")
        e(2); e(3); e(4); e(5)
        a(f"{MF} {vr(T,16)}, {vr(KF)}, {vr(QT)}, {vr(CC,16)}")
        if which == 0: a(f"ds_read_b128 {vr(KF)}, v{VK} offset:{(n+1)*1024}")
        e(6); e(7); e(8)
        for i in range(4): c(i)
        e(9); e(10)
        a(f"{MF} {vr(O,16)}, {vr(v0)}, {vr(S)}, {vr(O,16)}")
        e(11); e(12); e(13); e(14)
        extra()
        e(15)
        for i in range(4, 8): c(i)
    def bump():
        a(f"v_add_u32 v{VK}, {4*1024}, v{VK}")
        a(f"v_add_u32 v{VV0}, {4*VST}, v{VV0}")
        a(f"v_add_u32 v{VV1}, {4*VST}, v{VV1}")
    for k in range(8):
        def extra():
            if k == int(ENV("FLAG2AT", "3")):
                a(f"s_waitcnt vmcnt({2*k})")
                a(f"v_mov_b32 v{T0}, 1")
                a(f"v_mov_b32 v{T0+1}, 0")
                one_lane(a, f"buffer_store_dword v{T0}, v{T0+1}, {WSR}, s73 offen{ST}")
            for i in (2*k, 2*k+1):
                if i % 4 == 0: a(f"s_add_u32 s67, s86, {(i>>3)*144*1024 + (i&7)*1024}")
                a(f"buffer_load_dwordx4 {vr(WO + 4*i)}, v3, {WSR}, s67 offen offset:{(i&3)*1024}{ST}")
        tile(k >> 1, k & 1, extra)
    bump()
    g = T0 + 4
    def ld2():
        a(f"buffer_load_dwordx4 {vr(g)}, v{T0+2}, {WSR}, s74 offen{ST}")
        a(f"buffer_load_dword v{g+4}, v{T0+3}, {WSR}, s88 offen{ST}")
    def cmp2():
        for r in (1, 3): a(f"v_bitop3_b32 v{g}, v{g}, v{g+r}, v{g+r+1} bitop3:0x80")
        a(f"v_cmp_ne_u32 vcc, 1, v{g}")
    stamp(a, 11, VS)
    a(f"s_cmp_lg_u32 s{sWAVE}, {int(ENV('S2WAVE', '0'))}")
    a("s_cbranch_scc1 L_ps2_ok")
    a(f"v_and_b32 v{T0+2}, 15, v2")
    a(f"v_lshlrev_b32 v{T0+2}, 7, v{T0+2}")
    a(f"s_lshl_b32 s88, s{sQB}, 12")
    a(f"s_lshr_b32 s89, s{sHEAD}, 2")
    a("s_lshl_b32 s89, s89, 12")
    a("s_sub_u32 s89, s89, 4096")
    a(f"v_mov_b32 v{g}, s88")
    a(f"v_mov_b32 v{g+1}, s89")
    a("v_cmp_gt_u32 vcc, 32, v2")
    a(f"v_cndmask_b32 v{g}, v{g+1}, v{g}, vcc")
    a(f"v_lshl_add_u32 v{T0+3}, v2, 7, v{g}")
    a(f"s_mov_b32 s88, {WS_F3}")
    poll(a, "L_ps2", ld2, cmp2)
    a("s_barrier")
    stamp(a, 16, VS)
    def gld(buf, q, off): a(f"buffer_load_dwordx4 {vr(GFR + 12*buf + 4*q)}, v{VG}, {WSR}, s{76+q} offen offset:{off}{ST}")
    def gm(buf, j):
        d = vr(GACC + 16*j, 16)
        a(f"{MF} {d}, {vr(GFR + 12*buf + 4 + 4*j)}, {vr(GFR + 12*buf)}, {d}")
    for i in range(3):
        for q in (1, 0, 2): gld(i + 1, q, i * 1024)
    a(f"v_add_u32 v{VG}, 3072, v{VG}")
    a("s_mov_b32 s80, 7")
    PRIO = ENV("PRIO", "1") == "1"
    if PRIO: a("s_setprio 3")
    a.label("L_aloop")
    for k in range(8):
        g, j = k >> 1, k & 1
        def extra():
            if j == 0: a("s_waitcnt vmcnt(9)")
            gm(g, j)
            if j == 0: gld(g, 1, g * 1024)
            else: gld(g, 0, g * 1024); gld(g, 2, g * 1024)
            if k == 6: a("s_sub_u32 s80, s80, 1")
        tile(k >> 1, k & 1, extra)
    bump()
    a(f"v_add_u32 v{VG}, 4096, v{VG}")
    if PRIO:
        a("s_cmp_gt_u32 s80, 4")
        a("s_cbranch_scc1 L_aloop")
        a("s_setprio 2")
        a("s_cmp_gt_u32 s80, 2")
        a("s_cbranch_scc1 L_aloop")
        a("s_setprio 1")
        a("s_cmp_gt_u32 s80, 1")
        a("s_cbranch_scc1 L_aloop")
        a("s_setprio 0")
    a("s_cmp_lg_u32 s80, 0")
    a("s_cbranch_scc1 L_aloop")
    a(f"{MF} {vr(OB,16)}, {vr(V1)}, {vr(SB+8)}, {vr(OB,16)}")
    stamp(a, 17, VS)
    a(f"s_mul_i32 s79, s{sWAVE}, 2304")
    a(f"s_add_u32 s79, s79, {LQ}")
    a(f"s_xor_b32 s80, s{sWAVE}, 4")
    a("s_mul_i32 s80, s80, 2304")
    a(f"s_add_u32 s80, s80, {LQ}")
    a(f"v_add_u32 v{KF}, s79, v3")
    a(f"v_add_u32 v{KF+1}, s80, v3")
    a(f"v_lshl_add_u32 v{KF+2}, v2, 2, s79")
    a(f"v_lshl_add_u32 v{KF+3}, v2, 2, s80")
    a(f"v_and_b32 v{V0A}, 31, v2")
    a(f"v_lshlrev_b32 v{V0A}, 2, v{V0A}")
    a("s_lshl_b32 s79, s84, 7")
    a(f"s_add_u32 s79, s79, {WS_G}")
    a(f"buffer_load_dword v{VG}, v{V0A}, {WSR}, s79 offen{ST}")
    a("s_cmp_eq_u32 s66, 0")
    a("s_cbranch_scc1 L_keepA")
    a(f"ds_write_b128 v{KF}, {vr(OA)}")
    a(f"ds_write_b128 v{KF}, {vr(OA+4)} offset:1024")
    a(f"ds_write_b32 v{KF+2}, v{OA+8} offset:2048")
    for i in range(9): a(f"v_mov_b32 v{OA+i}, v{OB+i}")
    for i in range(4): a(f"v_mov_b32 v{QA+i}, v{QB+i}")
    a("s_branch L_sent")
    a.label("L_keepA")
    a(f"ds_write_b128 v{KF}, {vr(OB)}")
    a(f"ds_write_b128 v{KF}, {vr(OB+4)} offset:1024")
    a(f"ds_write_b32 v{KF+2}, v{OB+8} offset:2048")
    a.label("L_sent")
    a(f"s_lshl_b32 s79, s{sQB}, 3")
    a("s_lshl_b32 s80, s65, 1")
    a("s_add_u32 s79, s79, s80")
    a("s_add_u32 s79, s79, s66")
    a(f"s_mul_i32 s81, s79, {144*1024}")
    a(f"s_lshl_b32 s80, s{sHEAD}, 10")
    a("s_add_u32 s81, s81, s80")
    a(f"s_add_u32 s81, s81, {WS_AF}")
    a("s_waitcnt lgkmcnt(0)")
    a("s_barrier")
    a(f"ds_read_b128 {vr(OB)}, v{KF+1}")
    a(f"ds_read_b128 {vr(OB+4)}, v{KF+1} offset:1024")
    a(f"ds_read_b32 v{OB+8}, v{KF+3} offset:2048")
    a("s_waitcnt lgkmcnt(0)")
    for i in range(9): a(f"v_add_f32 v{OA+i}, v{OA+i}, v{OB+i}")
    def lbcast():
        if ONE_ROW:
            a(f"v_mov_b32 v{OB}, v{OA+8}")
            a(f"v_permlane32_swap_b32 v{OA+8}, v{OB}")
    lbcast()
    a(f"v_cmp_nge_f32 vcc, {f32(2.0**60)}, v{OA+8}")
    a("s_mov_b64 s[82:83], vcc")
    a(f"v_cmp_nle_f32 vcc, {f32(2.0**-60)}, v{OA+8}")
    a("s_or_b64 vcc, vcc, s[82:83]")
    a("s_cbranch_vccnz L_redo")
    a.label("L_aok")
    a(f"v_rcp_f32 v12, v{OA+8}")
    for i in range(8): a(f"v_mul_f32 v{OA+i}, v12, v{OA+i}")
    for i in range(4): a(f"v_cvt_pk_bf16_f32 v{SA+i}, v{OA+2*i}, v{OA+2*i+1}")
    for i in range(4): a(f"v_min_u32 v{SA+i}, -2, v{SA+i}")
    a(f"buffer_store_dwordx4 {vr(SA)}, v3, {WSR}, s81 offen{ST}")
    stamp(a, 18, VS)
    a("s_waitcnt vmcnt(11)")
    gm(0, 0); gm(0, 1)
    srd(a, S_OUT, 20, 21, 2048 * 1024)
    a("s_lshl_b32 s79, s68, 15")
    a("s_lshl_b32 s80, s69, 11")
    a("s_add_u32 s80, s80, s79")
    a("v_add_u32 v14, s80, v3")
    a("s_lshl_b32 s80, s69, 13")
    a("s_add_u32 s80, s80, s79")
    a("v_add_u32 v15, s80, v3")
    a("v_and_b32 v12, 31, v2")
    a("v_lshlrev_b32 v12, 10, v12")
    a("v_lshrrev_b32 v13, 5, v2")
    a("v_lshl_or_b32 v11, v13, 4, v12")
    a("s_lshl_b32 s79, s84, 15")
    a(f"s_lshl_b32 s80, s{sQB}, 7")
    a("s_add_u32 s79, s79, s80")
    a("s_lshl_b32 s80, s69, 5")
    a("s_add_u32 s79, s79, s80")
    a("s_add_u32 s87, s85, 4096")
    a("s_waitcnt vmcnt(0)")
    a(f"v_sub_f32 v10, 1.0, v{VG}")
    stamp(a, 19, VS)
    OF, A2 = 16, 64
    def ldO():
        for i in range(8): a(f"buffer_load_dwordx4 {vr(OF+4*i)}, v3, {WSR}, s{85 if i < 4 else 87} offen offset:{(i&3)*1024}{ST}")
    def cmpO():
        for i in range(8):
            a(f"s_waitcnt vmcnt({7-i})")
            for j in range(2):
                d = vr(A2 + 16*j, 16)
                a(f"{MF} {d}, {vr(WO + 32*j + 4*i)}, {vr(OF+4*i)}, {'0' if i == 0 else d}")
            r = OF + 4*i
            if i == 0: a(f"v_max_u32 v12, v{r}, v{r+1}")
            else: a(f"v_max3_u32 v12, v{r}, v{r+1}, v12")
            a(f"v_max3_u32 v12, v{r+2}, v{r+3}, v12")
        a("v_cmp_eq_u32 vcc, -1, v12")
    for r in range(32): a(f"v_mul_f32 v{GACC+r}, v10, v{GACC+r}")
    poll(a, "L_ps3", ldO, cmpO, wait=False)
    stamp(a, 20, VS)
    a("s_barrier")
    for r in range(32): a(f"v_fmac_f32 v{GACC+r}, v{VG}, v{A2+r}")
    for s in range(4):
        for k in range(2): a(f"ds_write_b128 v14, {vr(GACC + 8*s + 4*k)} offset:{s*8192 + k*1024}")
    a("s_waitcnt lgkmcnt(0)")
    a("s_barrier")
    for q in range(4):
        for k in range(2): a(f"ds_read_b128 {vr(OF + 8*q + 4*k)}, v15 offset:{q*2048 + k*1024}")
    a("s_waitcnt lgkmcnt(4)")
    for r in range(0, 8, 2): a(f"v_pk_add_f32 {vr(OF+r,2)}, {vr(OF+r,2)}, {vr(OF+8+r,2)}")
    a("s_waitcnt lgkmcnt(0)")
    for r in range(0, 8, 2): a(f"v_pk_add_f32 {vr(OF+16+r,2)}, {vr(OF+16+r,2)}, {vr(OF+24+r,2)}")
    for r in range(0, 8, 2): a(f"v_pk_add_f32 {vr(OF+r,2)}, {vr(OF+r,2)}, {vr(OF+16+r,2)}")
    for i in range(4): a(f"v_cvt_pk_bf16_f32 v{48+i}, v{OF+2*i}, v{OF+2*i+1}")
    a("v_permlane32_swap_b32 v48, v50")
    a("v_permlane32_swap_b32 v49, v51")
    a(f"buffer_store_dwordx4 v[48:51], v11, {SR(S_OUT)}, s79 offen")
    if STAMP: a("s_waitcnt vmcnt(0)")
    stamp_out(a, 0, S_WS, VS, 14)
    if STAMP and ENV("DBGOUT"):
        a(f"s_lshl_b32 s66, s{sWAVE}, 8")
        a("s_or_b32 s66, s66, s2")
        a(f"s_cmp_lg_u32 s66, {int(ENV('DBGOUT'))}")
        a("s_cbranch_scc1 L_exit")
        a(f"v_readlane_b32 s67, v{VS}, 1")
        for k, idx in enumerate((3, 4, 5, 6, 7, 10, 11, 16, 17, 18, 19, 20, 14)):
            a(f"v_readlane_b32 s66, v{VS}, {32+idx}")
            a("s_sub_u32 s66, s66, s67")
            a(f"v_writelane_b32 v14, s66, {k}")
        a(f"v_readlane_b32 s66, v{VS}, 14")
        a(f"v_readlane_b32 s67, v{VS}, 0")
        a("s_sub_u32 s66, s66, s67")
        a("v_writelane_b32 v14, s66, 13")
        a("v_lshlrev_b32 v15, 2, v2")
        one_lane(a, f"buffer_store_dword v14, v15, {SR(S_DBG)}, 0 offen offset:4", "0x3fff")
    a("s_endpgm")
    a.label("L_redo")
    a(f"s_mul_i32 s79, s66, {32*VST}")
    a(f"s_add_u32 s79, s79, {32*VST}")
    a(f"v_subrev_u32 v{VV0}, s79, v{VV0}")
    a(f"v_subrev_u32 v{VV1}, s79, v{VV1}")
    a(f"v_mov_b32 v{VK}, v3")
    a("v_mov_b32 v12, 0xff800000")
    a("s_mov_b32 s80, 0")
    a.label("L_fmax")
    a(f"ds_read_b128 {vr(KF)}, v{VK}")
    a("s_waitcnt lgkmcnt(0)")
    a(f"{MF} {vr(SA,16)}, {vr(KF)}, {vr(QA)}, 0")
    a(f"v_add_u32 v{VK}, 1024, v{VK}")
    rowmax(a, SA, 12, acc=True)
    a("s_add_u32 s80, s80, 1")
    a("s_cmp_lt_u32 s80, 64")
    a("s_cbranch_scc1 L_fmax")
    halfmax(a, 12, 13)
    for i in range(16): a(f"v_sub_f32 v{CC+i}, 0, v12")
    zero(a, OA, 16)
    a(f"v_mov_b32 v{VK}, v3")
    a("s_mov_b32 s80, 0")
    a.label("L_fslow")
    a(f"ds_read_b128 {vr(KF)}, v{VK}")
    a(f"ds_read_b128 {vr(V0A)}, v{VV0}")
    a(f"ds_read_b128 {vr(V1)}, v{VV1}")
    a("s_waitcnt lgkmcnt(0)")
    a(f"{MF} {vr(SA,16)}, {vr(KF)}, {vr(QA)}, {vr(CC,16)}")
    a(f"v_add_u32 v{VK}, 1024, v{VK}")
    a(f"v_add_u32 v{VV0}, {VST}, v{VV0}")
    a(f"v_add_u32 v{VV1}, {VST}, v{VV1}")
    for i in range(16): a(f"v_exp_f32 v{SA+i}, v{SA+i}")
    for i in range(8): a(f"v_cvt_pk_bf16_f32 v{SB+i}, v{SA+2*i}, v{SA+2*i+1}")
    a(f"{MF} {vr(OA,16)}, {vr(V0A)}, {vr(SB)}, {vr(OA,16)}")
    a(f"{MF} {vr(OA,16)}, {vr(V1)}, {vr(SB+4)}, {vr(OA,16)}")
    a("s_add_u32 s80, s80, 1")
    a("s_cmp_lt_u32 s80, 64")
    a("s_cbranch_scc1 L_fslow")
    a("s_nop 9")
    lbcast()
    a("s_branch L_aok")

def build():
    a = Asm()
    head(a)
    p1_compute(a)
    p1_loader(a)
    attn(a)
    a.label("L_exit")
    a("s_endpgm")
    n = a.fix(verbose="-v" in sys.argv)
    print("instructions:", len(a.lines), "nop states inserted:", n, "lds", LDS_BYTES, file=sys.stderr)
    name = NAME + "_kernel"
    hdr = open("cdna_kernels/" + NAME + ".s.ref").read().split("; Override launch")[0]
    out = hdr + f"; @launch grid=(256,1,1) block=(512,1,1) lds={LDS_BYTES}\n"
    out += '.amdgcn_target "amdgcn-amd-amdhsa--gfx950"\n.text\n'
    out += f".globl {name}\n.p2align 8\n.type {name},@function\n{name}:\n" + a.text()
    out += '.section .rodata,"a"\n' + kd(name)
    dst = sys.argv[1] if len(sys.argv) > 1 and not sys.argv[1].startswith("-") else "cdna_kernels/" + NAME + ".s"
    open(dst, "w").write(out)
if __name__ == "__main__": build()
```

```python
import os, sys
from common import *

MF = "v_mfma_f32_32x32x16_bf16"
ST = " sc1"
STS = " sc1 nt" if os.environ.get("SNT") else " sc1"
ENV = os.environ.get
WS_F1 = 0x1480000
WS_F2 = 0x1490000
WS_F3 = 0x1498000
WS_TAG = 0x14a0000
SPIN = 1 << 17

S_DBG, S_WS, S_X, S_G, S_U, S_WA, S_WB, S_WC = 24, 28, 32, 36, 40, 44, 48, 52
S_RO, S_RD, S_GW = 56, 44, 48
S_OUT = 32
sWAVE, sMB, sNB, sVC = 3, 60, 61, 62
sHEAD, sQB = 63, 64
WSR = f"s[{S_WS}:{S_WS+3}]"
def SR(n): return f"s[{n}:{n+3}]"
VS = 1

NXS = 6
LX, XSLOT = 0, 16384
LW = NXS * XSLOT
NW1, WS1 = 5, 12288
NW2, WS2, LW2 = 6, 8192, LW + 12288
LRD = LW
LRO = LW + NW1 * WS1
LDS_BYTES = 163840
LCNT = LDS_BYTES - 16
LC2 = LDS_BYTES - 32
assert LRO + 2048 <= LCNT and (16 % NW1) * WS1 == LW2 - LW and LW2 + NW2 * WS2 <= LRO
KROT = 8 - NXS
def wslot(s): return (LW + (s % NW1) * WS1, WS1) if s < 16 else (LW2 + ((s - 16) % NW2) * WS2, WS2)
def acc(tt, ct): return 96 + (tt * 4 + ct) * 16 if ct < 4 else 224 + tt * 16
HP = 224
DT = 36
FR0, FR1 = 16, 36
VXA, VW = 56, 60
ONE_ROW = not ENV("ALLONES")
VST, VROT = 1072, 14
LK, LV = 0, 65536
LQ = LV + 64 * VST
QA, QB, CC, OA, OB, SA, SB, KF, V0A, V0B, V1 = 8, 12, 16, 32, 48, 64, 80, 96, 100, 104, 108
VK, VV0, VV1, VG = 4, 5, 6, 7
GACC, GFR, WO = 112, 144, 192

class Lgkm:
    def __init__(s, a): s.a = a; s.q = []
    def rd(s, tag, text): s.a(text); s.q.append(tag)
    def need(s, *tags):
        idx = [i for i, t in enumerate(s.q) if t in tags]
        if not idx: return
        n = len(s.q) - 1 - max(idx)
        assert n <= 15
        s.a(f"s_waitcnt lgkmcnt({n})")
        s.q = s.q[max(idx) + 1:]
    def all(s, extra=""):
        s.a("s_waitcnt " + extra + "lgkmcnt(0)")
        s.q = []

def poll(a, name, load, cmp, wait=True):
    a(f"s_mov_b32 s98, {SPIN}")
    a.label(name)
    load()
    if wait: a("s_waitcnt vmcnt(0)")
    cmp()
    a(f"s_cbranch_vccz {name}_ok")
    a(f"s_sleep {int(ENV('SLEEP', '4'))}")
    a("s_sub_u32 s98, s98, 1")
    a("s_cmp_lg_u32 s98, 0")
    a(f"s_cbranch_scc1 {name}")
    a.label(f"{name}_ok")

def rowmax(a, S, dst, acc=False):
    if acc: a(f"v_max3_f32 v{dst}, v{S}, v{S+1}, v{dst}")
    else: a(f"v_max_f32 v{dst}, v{S}, v{S+1}")
    for k in range(2, 16, 2): a(f"v_max3_f32 v{dst}, v{S+k}, v{S+k+1}, v{dst}")
def halfmax(a, dst, tmp):
    a(f"v_mov_b32 v{tmp}, v{dst}")
    a(f"v_permlane32_swap_b32 v{tmp}, v{dst}")
    a(f"v_max_f32 v{dst}, v{tmp}, v{dst}")
def zero(a, b, n):
    for r in range(0, n, 2): a(f"v_pk_mul_f32 {vr(b+r,2)}, 0, 0")
def one_lane(a, text, mask=1):
    a(f"s_mov_b64 exec, {mask}"); a(text); a("s_mov_b64 exec, -1")

def head(a):
    a("s_cmp_ge_u32 s2, 256")
    a("s_cbranch_scc1 L_exit")
    a("s_load_dwordx16 s[4:19], s[0:1], 0")
    a("s_load_dwordx4 s[20:23], s[0:1], 64")
    a(f"s_load_dwordx2 s[{S_WS}:{S_WS+1}], s[0:1], 80")
    if ENV("FIXT"):
        a("s_memrealtime s[96:97]")
    if STAMP: a(f"v_mov_b32 v{VS}, 0")
    stamp(a, 0, VS); stamp(a, 1, VS, real=True)
    a("v_lshrrev_b32 v3, 6, v0")
    a("v_and_b32 v2, 63, v0")
    a(f"v_readfirstlane_b32 s{sWAVE}, v3")
    a("s_and_b32 s65, s2, 7")
    a("s_lshr_b32 s66, s2, 3")
    a("s_and_b32 s67, s65, 1")
    a("s_lshl_b32 s67, s67, 3")
    a("s_and_b32 s68, s66, 7")
    a(f"s_add_u32 s{sMB}, s67, s68")
    a("s_lshr_b32 s67, s65, 1")
    a("s_lshl_b32 s67, s67, 2")
    a("s_lshr_b32 s68, s66, 3")
    a(f"s_add_u32 s{sNB}, s67, s68")
    a("s_cmp_eq_u32 s68, 3")
    a(f"s_cselect_b32 s{sVC}, 1, 0")
    a("s_lshl_b32 s67, s65, 2")
    a("s_and_b32 s68, s66, 3")
    a(f"s_add_u32 s{sHEAD}, s67, s68")
    a(f"s_lshr_b32 s{sQB}, s66, 2")
    a("v_lshlrev_b32 v3, 4, v2")
    a(f"s_mov_b32 s{S_WS+2}, {WS_SIZE:#x}")
    a(f"s_mov_b32 s{S_WS+3}, 0x00020000")
    a(f"s_lshr_b32 s67, s{sNB}, 2")
    a(f"s_sub_u32 s81, s{sNB}, s67")
    a("s_add_u32 s81, s81, 16")
    a(f"s_lshl_b32 s82, s{sNB}, 11")
    a(f"s_lshl_b32 s67, s{sMB}, 7")
    a("s_add_u32 s82, s82, s67")
    a(f"s_add_u32 s82, s82, {WS_F1}")
    a("v_lshrrev_b32 v8, 3, v2")
    a("v_and_b32 v4, 7, v2")
    a("v_bfe_u32 v5, v2, 4, 1")
    a("v_lshlrev_b32 v5, 2, v5")
    a("v_xor_b32 v5, v5, v4")
    a("v_lshlrev_b32 v9, 4, v5")
    a(f"s_cmp_lt_u32 s{sWAVE}, 4")
    a("s_waitcnt lgkmcnt(0)")
    srd(a, S_X, 4, 5, 2048 * 1024)
    srd(a, S_DBG, 22, 23, 256)
    a("s_cbranch_scc1 L_compute")

def p1_compute(a):
    a.label("L_compute")
    a(f"s_and_b32 s65, s{sWAVE}, 1")
    a(f"s_lshr_b32 s66, s{sWAVE}, 1")
    if ENV("CODEPF", "1") == "1":
        a("s_getpc_b64 s[84:85]")
        a.label("L_pc")
        a("s_sub_u32 s84, s84, L_pc-L_loader")
        a("s_subb_u32 s85, s85, 0")
        a("v_lshlrev_b32 v11, 7, v0")
        a("v_min_u32 v11, L_exit-L_loader, v11")
        a("global_load_dword v61, v11, s[84:85]")
        a("v_lshlrev_b32 v11, 19, v2")
        a(f"s_cmp_eq_u32 s{sWAVE}, 0")
        a(f"s_cselect_b32 s67, 0, {OOB:#x}")
        a(f"buffer_load_dword v62, v11, {WSR}, s67 offen")
    a("v_and_b32 v8, 31, v2")
    a("v_lshrrev_b32 v4, 5, v2")
    a("v_bfe_u32 v5, v2, 1, 3")
    a("v_xor_b32 v5, v5, v4")
    a("s_lshl_b32 s67, s65, 13")
    a("v_lshl_add_u32 v6, v8, 7, s67")
    for ks in range(4):
        a(f"v_xor_b32 v7, {2*ks}, v5")
        a(f"v_lshl_add_u32 v{VXA+ks}, v7, 4, v6")
    a("v_bfe_u32 v5, v2, 2, 2")
    a("v_and_b32 v6, 3, v2")
    a("v_bfe_u32 v7, v2, 4, 1")
    a("v_lshlrev_b32 v6, 3, v6")
    a("v_lshl_or_b32 v6, v7, 5, v6")
    a("v_lshrrev_b32 v7, 1, v5")
    a("v_lshl_or_b32 v6, v7, 6, v6")
    a("v_lshl_or_b32 v6, v5, 7, v6")
    a("v_lshl_or_b32 v6, v4, 10, v6")
    a("s_lshl_b32 s67, s66, 6")
    a("v_xor_b32 v6, s67, v6")
    a(f"v_add_u32 v{VW}, {LW}, v6")
    zero(a, 96, 160)
    a(f"v_mov_b32 v5, {LCNT}")
    a("ds_write_b128 v5, v[96:99]")

    a(f"s_mov_b32 s78, {(-(NW1-1)*WS1) & 0xffffffff:#x}")
    a(f"s_mov_b32 s79, {(-(NXS-1)*XSLOT) & 0xffffffff:#x}")
    a("s_mov_b32 s73, 0")
    a("s_mov_b32 s74, 0")
    a("s_mov_b32 s75, 8")
    a("s_waitcnt lgkmcnt(0)")
    def reads(fs, ks, nu):
        kk = ks & 1
        X = lambda t: f"ds_read_b128 {vr(fs+4*t)}, v{VXA+ks} offset:{t*4096}"
        W = lambda u, j: f"ds_read_b64_tr_b16 {vr(fs+8+4*u+2*j, 2)}, v{VW} offset:{u*4096 + kk*2048 + j*512}"
        l = [X(0), W(0,0), W(0,1), X(1)]
        for u in range(1, nu): l += [W(u,0), W(u,1)]
        return l
    def loop(name, cts, swap, nu_next_last, hook=None):
        nu = len(cts)
        NWS, WSLOT = (NW1, WS1) if nu == 3 else (NW2, WS2)
        a.label(name)
        for ks in range(4):
            kk = ks & 1
            cur, nxt = (FR0, FR1) if kk == 0 else (FR1, FR0)
            mms = []
            for u, ct in enumerate(cts):
                for t in range(2):
                    d = vr(acc(t, ct), 16); w = vr(cur + 8 + 4*u); x = vr(cur + 4*t)
                    mms.append(f"{MF} {d}, {x}, {w}, {d}" if (swap and ct < 4) else f"{MF} {d}, {w}, {x}, {d}")
            rd = reads(nxt, (ks + 1) & 3, nu)
            post = []
            if kk == 0:
                post += ["s_add_u32 s73, s73, 1", f"s_cmp_eq_u32 s73, {NWS}", f"s_cselect_b32 s76, s78, {WSLOT}", "s_cselect_b32 s73, 0, s73", f"v_add_u32 v{VW}, s76, v{VW}"]
                if ks == 2:
                    post += ["s_add_u32 s74, s74, 1", f"s_cmp_eq_u32 s74, {NXS}", f"s_cselect_b32 s77, s79, {XSLOT}", "s_cselect_b32 s74, 0, s74", f"v_add_u32 v{VXA}, s77, v{VXA}"]
            elif ks == 3:
                post += [f"v_add_u32 v{VXA+i}, s77, v{VXA+i}" for i in range(1, 4)] + ["s_sub_u32 s75, s75, 1", "s_cmp_lg_u32 s75, 0"]
            if ks == 3 and hook: hook()
            a("s_waitcnt lgkmcnt(0)")
            if kk == 1:
                a(mms.pop(0))
                a("s_barrier")
            other = rd + post
            per = 3
            while mms:
                if kk == 0 or len(mms) < 2*nu - 1 or True:
                    pass
                if kk == 0: a(mms.pop(0))
                for _ in range(per):
                    if other: a(other.pop(0))
                if kk == 1: a(mms.pop(0))
            for o in other: a(o)
        a(f"s_cbranch_scc1 {name}")
    stamp(a, 2, VS)
    a("s_barrier")
    stamp(a, 3, VS)
    for l in reads(FR0, 0, 3): a(l)
    a(f"s_lshl_b32 s68, s{sMB}, 2")
    a("s_lshl_b32 s69, s65, 1")
    a("s_add_u32 s69, s68, s69")
    a(f"s_cmp_eq_u32 s{sVC}, 1")
    a("s_cbranch_scc1 L_p1loopV")
    loop("L_p1loopA", (0, 2, 4), False, 2)
    a("s_branch L_p1pub")
    loop("L_p1loopV", (0, 2, 4), True, 2)
    a(f"v_add_u32 v9, {VROT}, v2")
    a("v_and_b32 v9, 15, v9")
    a("v_lshl_or_b32 v9, v4, 4, v9")
    a("v_lshlrev_b32 v9, 4, v9")
    a("v_bfe_u32 v10, v2, 4, 1")
    a("v_lshl_or_b32 v9, v10, 16, v9")
    a(f"s_lshr_b32 s70, s{sNB}, 2")
    a("s_lshl_b32 s70, s70, 19")
    a("s_lshl_b32 s71, s66, 17")
    a("s_add_u32 s70, s70, s71")
    a("s_lshl_b32 s71, s69, 10")
    a("s_add_u32 s70, s70, s71")
    a(f"s_add_u32 s70, s70, {WS_V}")
    a(f"s_add_u32 s71, s70, {4*65536}")
    for j in range(2):
        for t in range(2):
            b = acc(t, 2*j)
            for hh in range(2):
                for i in range(4): a(f"v_cvt_pk_bf16_f32 v{b+8*hh+i}, v{b+8*hh+2*i}, v{b+8*hh+2*i+1}")
                a(f"buffer_store_dwordx4 {vr(b+8*hh)}, v9, {WSR}, s{70+j} offen offset:{t*1024 + hh*512}{STS}")
    a.label("L_p1pub")
    stamp(a, 4, VS)
    a(f"s_cmp_lt_u32 s{sNB}, 8")
    a(f"s_cselect_b32 s84, {f32(QSCALE)}, 1.0")
    a("s_mov_b32 s85, s84")
    a(f"s_lshl_b32 s67, s{sNB}, 2")
    a("s_lshl_b32 s68, s66, 1")
    a("s_add_u32 s67, s67, s68")
    a("s_lshl_b32 s67, s67, 16")
    a("s_lshl_b32 s68, s69, 10")
    a("s_add_u32 s67, s67, s68")
    a(f"s_add_u32 s67, s67, {WS_QK}")
    a("s_add_u32 s68, s67, 0x10000")
    for t in range(2):
        b = acc(t, 4)
        for i in range(8): a(f"v_pk_mul_f32 {vr(b+2*i,2)}, {vr(b+2*i,2)}, s[84:85]")
        for hh in range(2):
            for i in range(4): a(f"v_cvt_pk_bf16_f32 v{b+8*hh+i}, v{b+8*hh+2*i}, v{b+8*hh+2*i+1}")
            a(f"buffer_store_dwordx4 {vr(b+8*hh)}, v3, {WSR}, s{67+hh} offen offset:{t*1024}{STS}")
    a("s_mov_b32 s75, 8")
    a("s_mov_b32 s73, 0")
    a(f"s_mov_b32 s78, {(-(NW2-1)*WS2) & 0xffffffff:#x}")
    stamp(a, 5, VS)
    def hook():
        a(f"s_cmp_lg_u32 s75, {8 - PUB_IT}")
        a("s_cbranch_scc1 L_nodrain")
        a("s_waitcnt vmcnt(0)")
        a.label("L_nodrain")
    loop("L_p2loop", (1, 3), False, 2, hook)
    stamp(a, 6, VS)
    a(f"s_mul_i32 s67, s69, {144*1024}")
    a("s_lshl_b32 s68, s66, 11")
    a("s_add_u32 s67, s67, s68")
    a(f"s_add_u32 s67, s67, {WS_AF + 32*1024}")
    a(f"v_mov_b32 v10, {f32(-GK1*0.044715)}")
    a(f"v_mov_b32 v11, {f32(-GK1*0.044715)}")
    a(f"v_mov_b32 v12, {f32(-GK1)}")
    a(f"v_mov_b32 v13, {f32(-GK1)}")
    a("s_waitcnt lgkmcnt(0)")
    for i in (1, 0):
        if i == 0:
            for n in range(4, 8): a(f"s_mov_b32 s{DT+n}, {OOB:#x}")
            a(f"s_cmp_eq_u32 s{sVC}, 1")
            a("s_cbranch_scc1 L_p1done")
        a(f"s_lshl_b32 s68, s{sNB if i else 81}, 12")
        a("s_add_u32 s70, s67, s68")
        for n in range(4): a(f"s_add_u32 s{DT + (1-i)*4 + n}, s70, {(n>>1)*144*1024 + (n&1)*1024}")
        n = 0
        for t in range(2):
            g, u = acc(t, i), acc(t, 2 + i)
            for hh in range(2):
                T = 16 + (n & 1) * 8; n += 1
                G, U = g + 8*hh, u + 8*hh
                for p in range(4): a(f"v_pk_mul_f32 {vr(T+2*p,2)}, {vr(G+2*p,2)}, {vr(G+2*p,2)}")
                for p in range(4): a(f"v_pk_fma_f32 {vr(T+2*p,2)}, {vr(T+2*p,2)}, v[10:11], v[12:13]")
                for p in range(4): a(f"v_pk_mul_f32 {vr(T+2*p,2)}, {vr(T+2*p,2)}, {vr(G+2*p,2)}")
                for p in range(8): a(f"v_exp_f32 v{T+p}, v{T+p}")
                for p in range(4): a(f"v_pk_mul_f32 {vr(U+2*p,2)}, {vr(U+2*p,2)}, {vr(G+2*p,2)}")
                for p in range(4): a(f"v_pk_add_f32 {vr(T+2*p,2)}, {vr(T+2*p,2)}, 1.0 op_sel_hi:[1,0]")
                for p in range(8): a(f"v_rcp_f32 v{T+p}, v{T+p}")
                for p in range(4): a(f"v_pk_mul_f32 {vr(U+2*p,2)}, {vr(U+2*p,2)}, {vr(T+2*p,2)}")
                o = HP + ((1-i)*4 + t*2 + hh) * 4
                for p in range(4): a(f"v_cvt_pk_bf16_f32 v{o+p}, v{U+2*p}, v{U+2*p+1}")
    a.label("L_p1done")
    stamp(a, 7, VS)

PUB_IT = int(ENV("PUB_IT", "2"))

def p1_loader(a):
    a.label("L_loader")
    a(f"s_sub_u32 s65, s{sWAVE}, 4")
    a("s_lshl_b32 s66, s65, 3")
    a("v_add_u32 v8, s66, v8")
    a("v_lshrrev_b32 v5, 4, v2")
    a("s_and_b32 s66, s65, 1")
    a("s_lshl_b32 s66, s66, 2")
    a("v_add_u32 v5, s66, v5")
    a("v_xor_b32 v5, v5, v4")
    a("v_lshlrev_b32 v5, 4, v5")
    a("v_lshl_add_u32 v12, v8, 10, v5")
    a(f"s_lshl_b32 s74, s{sMB}, 17")
    a("s_lshl_b32 s75, s65, 10")
    a(f"s_lshl_b32 s90, s{sNB}, 1")
    a(f"s_add_u32 s90, s90, s{sMB}")
    if ENV("ROT", "1") == "2":
        a(f"s_lshr_b32 s91, s{sNB}, 2")
        a("s_add_u32 s90, s90, s91")
    if ENV("ROT", "1") == "0": a("s_mov_b32 s90, 0")
    if ENV("ROT", "1") in ("3", "4"):
        a(f"s_add_u32 s90, s{sNB}, s{sMB}")
        a(f"s_lshl_b32 s90, s90, {1 if ENV('ROT') == '3' else 2}")
    a("s_lshl_b32 s91, s90, 1")
    issued = []
    DNT = " nt" if ENV("DNT") else ""
    PNT = " nt" if ENV("PNT") else ""
    def dma(voff, srdn, soff, m0val, pre):
        a(f"s_add_u32 m0, s75, {m0val}")
        a(pre)
        a(f"buffer_load_dwordx4 v{voff}, {SR(srdn)}, s{soff} offen{DNT} lds")
    def itemsW(s):
        base, size = wslot(s)
        free = max([-1] + [p for p in range(s) if wslot(p)[0] < base + size and base < wslot(p)[0] + wslot(p)[1]])
        def f(u):
            def g():
                if u == 0:
                    a(f"s_add_u32 s92, s91, {s if s < 16 else s + 2*KROT}")
                    a("s_and_b32 s92, s92, 15")
                    if s < 16:
                        a(f"s_mul_i32 s93, s92, {32*3072}")
                        a("s_mul_i32 s92, s92, s73")
                    else: a(f"s_mul_i32 s92, s92, {32*3584}")
                if s < 16:
                    if u == 0: dma(13, S_WA, 76, base, "s_add_u32 s76, s71, s92")
                    if u == 1: dma(13, S_WB, 76, base + 4096, "s_add_u32 s76, s69, s92")
                    if u == 2: dma(11, S_WC, 76, base + 8192, "s_add_u32 s76, s70, s93")
                else:
                    dma(10, (S_G, S_U)[u], 76, base + 4096*u, "s_add_u32 s76, s70, s92")
                issued.append(("W", s))
            return g
        return [(free, f(u)) for u in range(3 if s < 16 else 2)]
    def itemsX(j):
        base = LX + (j % NXS) * XSLOT
        def f(m):
            def g():
                if m == 0:
                    a(f"s_add_u32 s99, s90, {j if j < 8 else j + KROT}")
                    a("s_and_b32 s99, s99, 7")
                    a("s_lshl_b32 s99, s99, 7")
                    a("s_add_u32 s99, s99, s74")
                dma(12, S_X, 76, base + m*4096, f"s_add_u32 s76, s99, {m*32768}")
                issued.append(("X", j))
            return g
        if 8 <= j < 8 + NXS: return []
        return [(2*(j-NXS) + 1, f(m)) for m in range(4)]
    queue = []
    for j in range(16): queue += itemsX(j) + itemsW(2*j) + itemsW(2*j+1)
    def issue(nmax, bar):
        n = 0
        while queue and n < nmax and queue[0][0] <= bar:
            queue.pop(0)[1](); n += 1
    def wait_stage(s):
        assert sum(e == ("W", s) for e in issued) == (3 if s < 16 else 2) and sum(e == ("X", s // 2) for e in issued) == (0 if 8 <= s // 2 < 8 + NXS else 4), s
        last = max(k for k, e in enumerate(issued) if e == ("W", s) or e == ("X", s // 2))
        n = len(issued) - 1 - last
        assert n <= 63
        a(f"s_waitcnt vmcnt({n})")
    def wait_tag(tag):
        n = len(issued) - 1 - max(k for k, e in enumerate(issued) if e == tag)
        assert n <= 63
        a(f"s_waitcnt vmcnt({n})")
    issue(4, -1)
    a("s_lshl_b32 s66, s65, 8")
    a("s_or_b32 s66, s66, s2")
    a(f"s_cselect_b32 s83, {OOB:#x}, 0")
    a(f"s_add_u32 s84, s83, {WS_TAG}")
    a("v_mov_b32 v5, 0")
    a(f"buffer_load_dword v14, v5, {WSR}, s84 offen{ST}")
    issued.append(("T", 0))
    srd(a, S_G, 12, 13, 512 * 3584)
    srd(a, S_U, 14, 15, 512 * 3584)
    srd(a, S_WC, 6, 7, 512 * 3072)
    a(f"s_cmp_eq_u32 s{sVC}, 1")
    a(f"s_cselect_b32 s{S_WA}, s6, s12")
    a(f"s_cselect_b32 s{S_WA+1}, s7, s13")
    a(f"s_cselect_b32 s{S_WA+2}, s{S_WC+2}, s{S_G+2}")
    a(f"s_mov_b32 s{S_WA+3}, 0x00020000")
    a(f"s_cselect_b32 s{S_WB}, s6, s14")
    a(f"s_cselect_b32 s{S_WB+1}, s7, s15")
    a(f"s_mov_b32 s{S_WB+2}, s{S_WA+2}")
    a(f"s_mov_b32 s{S_WB+3}, 0x00020000")
    a("s_movk_i32 s66, 3072")
    a("s_cselect_b32 s66, s66, 3584")
    a("v_mul_u32_u24 v6, 3584, v8")
    a("v_add_u32 v10, v6, v9")
    a("v_mul_u32_u24 v6, 3072, v8")
    a("v_add_u32 v11, v6, v9")
    a("v_mul_u32_u24 v6, s66, v8")
    a("v_add_u32 v13, v6, v9")
    a("s_lshl_b32 s73, s66, 5")
    a("s_lshl_b32 s67, s81, 7")
    a(f"s_lshr_b32 s68, s{sNB}, 2")
    a("s_lshl_b32 s68, s68, 8")
    a("s_add_u32 s68, s68, 2048")
    a("s_add_u32 s69, s68, 128")
    a(f"s_cmp_eq_u32 s{sVC}, 1")
    a("s_cselect_b32 s71, s68, s67")
    a("s_cselect_b32 s69, s69, s67")
    a("s_mov_b32 s94, s71")
    a("s_mov_b32 s95, s69")
    a(f"s_lshl_b32 s70, s{sNB}, 7")
    PFK = ENV("PF", "0") == "4"
    if PFK:
        issue(3, -1)
        a("s_lshr_b32 s66, s2, 1")
        a("s_and_b32 s67, s2, 1")
        a("s_mul_i32 s68, s66, 3072")
        a("s_mul_i32 s76, s67, 1536")
        a("s_add_u32 s68, s68, s76")
        a("s_mul_i32 s66, s66, 3584")
        a("s_mul_i32 s67, s67, 768")
        a("s_add_u32 s66, s66, s67")
        a("s_add_u32 s66, s66, 2048")
        a("s_lshl_b32 s67, s2, 13")
        a("s_cmp_eq_u32 s65, 1")
        a("s_cselect_b32 s66, s68, s66")
        a("s_cselect_b32 s76, 11, 5")
        a(f"s_mov_b32 s77, {128*3584}")
        a(f"s_cselect_b32 s77, {128*3072}, s77")
        a("s_cselect_b32 s94, s6, s12")
        a("s_cselect_b32 s95, s7, s13")
        a("s_cmp_eq_u32 s65, 3")
        a("s_cselect_b32 s94, s14, s94")
        a("s_cselect_b32 s95, s15, s95")
        a("v_min_u32 v28, s76, v2")
        a("v_lshl_add_u32 v28, v28, 7, s66")
        a("v_bfe_u32 v29, v2, 1, 3")
        a("v_lshl_add_u32 v29, v29, 10, s67")
        a("v_and_b32 v27, 1, v2")
        a("v_lshl_add_u32 v29, v27, 7, v29")
        a("s_cmp_eq_u32 s65, 0")
        a("s_cselect_b32 s94, s4, s94")
        a("s_cselect_b32 s95, s5, s95")
        a("s_cselect_b32 s77, 256, s77")
        a("s_cselect_b64 vcc, -1, 0")
        a("v_cndmask_b32 v28, v28, v29, vcc")
        for n in [int(x) for x in ENV("PFPOS", "0,3,7,3").split(",")]:
            issue(n, -1)
            a("s_mov_b64 exec, 0xffff")
            a("global_load_dword v30, v28, s[94:95]")
            a("s_mov_b64 exec, -1")
            a("v_add_u32 v28, s77, v28")
            issued.append(("P", 0))
    else:
        issue(int(ENV("FIRST", "10")), -1)
    def prefetch(kinds):
        a("s_mov_b32 s94, s4"); a("s_mov_b32 s95, s5")
        for r in (66, 67, 68, 76): a(f"s_mov_b32 s{r}, 0")
        a("s_mov_b32 s77, 0")
        for lw, k in enumerate(kinds):
            if k is None: continue
            p, per, first, n, T, J = k
            a(f"s_cmp_eq_u32 s65, {lw}")
            a(f"s_cselect_b32 s94, s{p}, s94")
            a(f"s_cselect_b32 s95, s{p+1}, s95")
            a(f"s_cselect_b32 s66, {per}, s66")
            a(f"s_cselect_b32 s67, {first}, s67")
            a(f"s_cselect_b32 s68, {n-1}, s68")
            a(f"s_cselect_b32 s76, {T}, s76")
            a(f"s_cselect_b32 s77, {J}, s77")
        a("s_mul_i32 s66, s66, s2")
        a("s_add_u32 s66, s66, s67")
        a("v_min_u32 v28, s68, v2")
        a("v_mov_b32 v29, s77")
        a("v_cmp_le_u32 vcc, s76, v28")
        a("v_lshl_add_u32 v28, v28, 7, s66")
        a("v_cndmask_b32 v29, 0, v29, vcc")
        a("v_add_u32 v28, v28, v29")
        a("global_load_dword v30, v28, s[94:95]")
        issued.append(("P", 0))
    PF = ENV("PF", "0") in ("1", "3")
    PFX = ENV("PF", "0") in ("2", "3")
    def prefetch_x1():
        a("s_lshr_b32 s66, s2, 3")
        a("s_and_b32 s67, s2, 1")
        a("s_lshl_b32 s67, s67, 20")
        a("s_lshl_b32 s68, s66, 15")
        a("s_add_u32 s67, s67, s68")
        a("s_lshl_b32 s68, s65, 13")
        a("s_add_u32 s67, s67, s68")
        a("v_lshlrev_b32 v28, 7, v2")
        a("s_and_b32 s66, s66, 7")
        a("s_lshl_b32 s66, s66, 6")
        a("v_add_u32 v27, s66, v2")
        a("s_lshr_b32 s68, s73, 5")
        a("v_mul_u32_u24 v29, s68, v27")
        a("v_mul_u32_u24 v26, 3072, v27")
        a("s_cmp_eq_u32 s65, 0")
        a(f"s_cselect_b32 s66, s94, {OOB:#x}")
        a(f"buffer_load_dword v30, v29, {SR(S_WA)}, s66 offen{PNT}")
        a("s_cmp_eq_u32 s65, 1")
        a(f"s_cselect_b32 s66, s95, {OOB:#x}")
        a(f"buffer_load_dword v30, v29, {SR(S_WB)}, s66 offen{PNT}")
        a(f"s_lshl_b32 s66, s{sNB}, 7")
        a("s_cmp_eq_u32 s65, 2")
        a(f"s_cselect_b32 s66, s66, {OOB:#x}")
        a(f"buffer_load_dword v30, v26, {SR(S_WC)}, s66 offen{PNT}")
        a(f"buffer_load_dword v30, v28, {SR(S_X)}, s67 offen{PNT}")
        issued.extend([("P", 0)] * 4)
    def prefetch_x2():
        a("v_mul_u32_u24 v29, 3584, v27")
        a(f"s_lshl_b32 s67, s{sNB}, 7")
        a("s_cmp_eq_u32 s65, 1")
        a(f"s_cselect_b32 s66, s67, {OOB:#x}")
        a(f"buffer_load_dword v30, v29, {SR(S_G)}, s66 offen{PNT}")
        a("s_cmp_eq_u32 s65, 2")
        a(f"s_cselect_b32 s66, s67, {OOB:#x}")
        a(f"buffer_load_dword v30, v29, {SR(S_U)}, s66 offen{PNT}")
        issued.extend([("P", 0)] * 2)
    if PFX and not PF: prefetch_x1()
    if PF: prefetch([(4, 8192, 0, 64, 0, 0), (6, 6144, 0, 48, 0, 0), (12, 7168, 2048, 24, 12, 2048), (14, 7168, 2048, 24, 12, 2048)])
    srd(a, S_RO, 8, 9, 512 * 1024)
    a("v_and_b32 v15, 7, v8")
    a("v_lshl_add_u32 v15, v15, 10, v9")
    a("s_lshl_b32 s78, s65, 11")
    a(f"s_add_u32 s78, s78, {LRD}")
    a("s_lshr_b32 s66, s2, 3")
    a("s_and_b32 s67, s2, 7")
    a("s_lshl_b32 s66, s66, 14")
    a("s_lshl_b32 s67, s67, 7")
    a("s_add_u32 s66, s66, s67")
    a("s_and_b32 s67, s65, 1")
    a("s_lshl_b32 s68, s67, 13")
    a("s_lshl_b32 s67, s67, 10")
    a(f"s_add_u32 m0, s67, {LRO}")
    a("s_add_u32 s66, s66, s68")
    a(f"buffer_load_dwordx4 v15, {SR(S_RO)}, s66 offen{PNT} lds")
    issued.append(("P", 1))
    issue(int(ENV("BURST", "0")), -1)
    a("v_bfe_u32 v18, v2, 2, 2")
    a("v_and_b32 v31, 3, v2")
    a("v_bfe_u32 v19, v2, 4, 1")
    a("v_lshlrev_b32 v31, 3, v31")
    a("v_lshl_or_b32 v31, v19, 5, v31")
    a("v_lshrrev_b32 v19, 1, v18")
    a("v_lshl_or_b32 v31, v19, 6, v31")
    a("v_lshl_or_b32 v31, v18, 7, v31")
    a("v_lshrrev_b32 v19, 5, v2")
    a("v_lshl_or_b32 v31, v19, 9, v31")
    a("v_add_u32 v18, s78, v31")
    a("v_xor_b32 v19, 64, v18")
    a("s_cmp_eq_u32 s65, 0")
    a(f"s_cselect_b32 s82, s82, {OOB:#x}")
    a(f"s_cselect_b32 s85, 0, {OOB:#x}")
    a("v_mov_b32 v6, 1")
    a("v_lshlrev_b32 v4, 7, v2")
    for i in range(4): a(f"s_add_u32 s{86+i}, s85, {WS_F1 + i*8192}")
    stamp(a, 2, VS)
    wait_stage(0)
    stamp(a, 3, VS)
    a("s_barrier")
    a("v_add_u32 v14, 1, v14")
    a("v_max_u32 v14, 1, v14")
    one_lane(a, f"buffer_store_dword v14, v5, {WSR}, s84 offen{ST}")
    issued.append(("T", 1))
    def ld1():
        for i in range(4): a(f"buffer_load_dwordx2 {vr(20+2*i,2)}, v4, {WSR}, s{86+i} offen{ST}")
    PER1, PER2, PSW = [int(x) for x in ENV("PER", "6,4,12").split(",")]
    issue(int(ENV("PER0", "6")), -1)
    def cmp1():
        for i in range(4):
            a(f"v_xor_b32 v{20+2*i}, v{20+2*i}, v16")
            a(f"v_xor_b32 v{21+2*i}, v{21+2*i}, v17")
        a("v_or3_b32 v20, v20, v21, v22")
        a("v_or3_b32 v23, v23, v24, v25")
        a("v_or3_b32 v20, v20, v26, v27")
        a("v_or_b32 v20, v20, v23")
        a("v_cmp_ne_u32 vcc, 0, v20")
    def ltable(t, regs):
        for i in range(8): a(f"v_mov_b32 v{HP+8+i}, -1")
        r = regs[2]
        a(f"s_lshl_b32 s{r}, s{sQB}, 3")
        a(f"s_lshl_b32 s{t}, s65, 1")
        a(f"s_add_u32 s{r}, s{r}, s{t}")
        a(f"s_mul_i32 s{r}, s{r}, {144*1024}")
        a(f"s_lshl_b32 s{t}, s{sHEAD}, 10")
        a(f"s_add_u32 s{r}, s{r}, s{t}")
        a(f"s_add_u32 s{r}, s{r}, {WS_AF}")
        a(f"s_add_u32 s{regs[3]}, s{r}, {144*1024}")
    S1AT = int(ENV("S1AT", "28"))
    a(f"v_mov_b32 v7, {LCNT}")
    SIDE1, SIDE2 = [int(x) for x in ENV("SIDE", "17,26").split(",")]
    def side_out():
        wait_tag(("S", 0))
        for nl in range(2):
            for j in range(2): a(f"ds_read_b64_tr_b16 {vr(HP+4*nl+2*j,2)}, v{18+nl} offset:{j*1024}")
        a("v_mov_b32 v64, 0")
        a("v_mov_b32 v65, 0")
        for i in range(4):
            a(f"v_dot2_f32_bf16 v64, v{48+i}, v{56+i}, v64")
            a(f"v_dot2_f32_bf16 v65, v{52+i}, v{56+i}, v65")
        a("v_cmp_eq_u32 vcc, 0, v2")
        a("s_waitcnt lgkmcnt(0)")
        for mod in ("quad_perm:[1,0,3,2]", "quad_perm:[2,3,0,1]", "row_half_mirror", "row_mirror"):
            for r in (64, 65): a(f"v_add_f32_dpp v{r}, v{r}, v{r} {mod} row_mask:0xf bank_mask:0xf")
        for r, sb in ((64, 66), (65, 56)):
            for q in range(4): a(f"v_readlane_b32 s{sb+q}, v{r}, {16*q}")
        a("v_mov_b32 v66, s66")
        a("v_mov_b32 v67, s56")
        for q in range(1, 4):
            a(f"v_add_f32 v66, s{66+q}, v66")
            a(f"v_add_f32 v67, s{56+q}, v67")
        a("v_cndmask_b32 v66, v67, v66, vcc")
        a(f"v_mul_f32 v66, {f32(-LOG2E)}, v66")
        a("v_exp_f32 v66, v66")
        a("v_lshlrev_b32 v68, 2, v2")
        a("v_add_f32 v66, 1.0, v66")
        a("v_rcp_f32 v66, v66")
        a("s_lshl_b32 s71, s71, 2")
        a(f"s_add_u32 s71, s71, {WS_G}")
        one_lane(a, f"buffer_store_dword v66, v68, {WSR}, s71 offen{ST}", 3)
        issued.append(("S", 1))
    for s in range(32):
        E0 = int(ENV("EARLY", "-100"))
        if s in (4, 10, 16, 24) and E0 < 0: stamp(a, {4: 4, 10: 5, 16: 6, 24: 7}[s], VS)
        if 0 <= s - E0 < 6: stamp(a, [4, 7, 24, 27, 21, 30][s - E0], VS)
        if s + 1 <= 31: wait_stage(s + 1)
        if 0 <= s - E0 < 6: stamp(a, [5, 8, 25, 28, 22, 31][s - E0], VS)
        a("s_barrier")
        if 0 <= s - E0 < 5: stamp(a, [6, 9, 26, 29, 23][s - E0], VS)
        issue(PER1 if s < PSW else PER2, s)
        if s == 3:
            wait_tag(("T", 1))
            one_lane(a, f"buffer_store_dword v14, v5, {SR(S_DBG)}, s83 offen{ST}")
            issued.append(("T", 2))
        if s == int(ENV("PFB", "5")) and (PF or PFK):
            prefetch([(16, 7168, 0, 56, 0, 0), None, (12, 7168, 0, 32, 16, 1536), (14, 7168, 0, 32, 16, 1536)])
        if s == int(ENV("PFB", "5")) and PFX: prefetch_x2()
        if s == 9:
            a("s_cmp_lg_u32 s65, 0")
            a("s_cbranch_scc1 L_nowo2")
            for nl in range(2):
                for j in range(2): a(f"ds_read_b64_tr_b16 {vr(36+4*nl+2*j,2)}, v{18+nl} offset:{LRO - LRD + j*1024}")
            a("s_lshr_b32 s66, s2, 3")
            a("s_and_b32 s67, s2, 7")
            a(f"s_mul_i32 s67, s67, {2*144*1024}")
            a("s_lshl_b32 s66, s66, 10")
            a("s_add_u32 s66, s66, s67")
            a(f"s_add_u32 s66, s66, {WS_WF}")
            a(f"s_add_u32 s67, s66, {144*1024}")
            a(f"s_lshl_b32 s68, s{sMB}, 11")
            a(f"s_lshl_b32 s76, s{sNB}, 7")
            a("s_add_u32 s68, s68, s76")
            a(f"s_add_u32 s68, s68, {WS_F2}")
            a(f"s_lshl_b32 s76, s{sQB}, 12")
            a(f"s_lshl_b32 s77, s{sHEAD}, 7")
            a("s_add_u32 s76, s76, s77")
            a(f"s_add_u32 s76, s76, {WS_F3}")
            zero(a, 44, 4)
            a("s_waitcnt lgkmcnt(0)")
            a(f"buffer_store_dwordx4 v[36:39], v3, {WSR}, s66 offen{STS}")
            a(f"buffer_store_dwordx4 v[40:43], v3, {WSR}, s67 offen{STS}")
            a("s_mov_b64 exec, 1")
            a(f"buffer_store_dwordx4 v[44:47], v3, {WSR}, s68 offen{STS}")
            a(f"buffer_store_dword v44, v3, {WSR}, s76 offen{ST}")
            a("s_mov_b64 exec, -1")
            a.label("L_nowo2")
        if s == SIDE1:
            srd(a, S_RD, 16, 17, 1792 * 1024)
            srd(a, S_GW, 18, 19, 1024)
            a(f"s_mul_i32 s66, s{sHEAD}, 3")
            a("s_add_u32 s66, s66, s65")
            a(f"s_add_u32 s67, s{sHEAD}, 96")
            a("s_cmp_eq_u32 s65, 3")
            a("s_cselect_b32 s66, s67, s66")
            a("s_lshl_b32 s69, s66, 14")
            a(f"s_lshl_b32 s68, s{sQB}, 7")
            a("s_mov_b32 m0, s78")
            a("s_add_u32 s69, s69, s68")
            a(f"buffer_load_dwordx4 v15, {SR(S_RD)}, s69 offen{PNT} lds")
            a("s_add_u32 m0, s78, 1024")
            a("s_add_u32 s69, s69, 8192")
            a(f"buffer_load_dwordx4 v15, {SR(S_RD)}, s69 offen{PNT} lds")
            a(f"s_mul_i32 s79, s{sQB}, {2*144*1024}")
            a("s_lshl_b32 s67, s66, 10")
            a("s_add_u32 s79, s79, s67")
            a(f"s_add_u32 s79, s79, {WS_WF + 32*1024}")
            a("s_cmp_lt_u32 s66, 112")
            a(f"s_cselect_b32 s79, s79, {OOB:#x}")
            a(f"s_add_u32 s80, s79, {144*1024}")
            a(f"s_lshl_b32 s71, s{sMB}, 7")
            a(f"s_lshl_b32 s67, s{sNB}, 3")
            a("s_add_u32 s71, s71, s67")
            a("s_lshl_b32 s67, s65, 1")
            a("s_add_u32 s71, s71, s67")
            a("s_lshl_b32 s67, s71, 10")
            a(f"buffer_load_dwordx4 v[48:51], v3, {SR(S_X)}, s67 offen")
            a(f"buffer_load_dwordx4 v[52:55], v3, {SR(S_X)}, s67 offen offset:1024")
            a(f"buffer_load_dwordx4 v[56:59], v3, {SR(S_GW)}, 0 offen")
            issued.extend([("S", 0)] * 5)
        if s == SIDE2:
            side_out()
            if LEARLY:
                ltable(68, (79, 80, 66, 67))
                for n, r in enumerate((79, 80, 66, 67)): a(f"buffer_store_dwordx4 {vr(HP+4*n)}, v3, {WSR}, s{r} offen{STS}")
                issued.extend([("S", 1)] * 4)
        if s == 14:
            a(f"buffer_load_dword v16, v5, {SR(S_DBG)}, s85 offen{ST}")
            issued.append(("T", 3))
        if s == 16 + 2*PUB_IT + 1:
            a("s_cmp_lg_u32 s65, 0")
            a("s_cbranch_scc1 L_f1done")
            wait_tag(("T", 3))
            a("v_cmp_eq_u32 vcc, 0, v16")
            a("s_cbranch_vccz L_pt_ok")
            poll(a, "L_pt", lambda: a(f"buffer_load_dword v16, v5, {SR(S_DBG)}, 0 offen{ST}"), lambda: a("v_cmp_eq_u32 vcc, 0, v16"))
            a("v_not_b32 v17, v16")
            one_lane(a, f"buffer_store_dwordx2 v[16:17], v5, {WSR}, s82 offen{ST}")
            a.label("L_f1done")
        if s == S1AT:
            ld1(); issued.extend([("F", 0)] * 4)
        if s == S1AT + 2:
            a("s_mov_b32 s72, 0")
            a("s_cmp_lg_u32 s65, 0")
            a("s_cbranch_scc1 L_s1early")
            wait_tag(("F", 0))
            cmp1()
            a("s_cbranch_vccnz L_s1early")
            a("ds_write_b32 v7, v6")
            a("s_mov_b32 s72, 1")
            a.label("L_s1early")
    assert not queue
    a("v_and_b32 v8, 255, v0")
    a("v_lshrrev_b32 v9, 2, v8")
    a(f"v_mul_u32_u24 v9, {VST}, v9")
    a("v_and_b32 v8, 3, v8")
    a("v_min_u32 v8, 2, v8")
    a("v_lshl_add_u32 v9, v8, 4, v9")
    a(f"v_add_u32 v9, {LV + 1024}, v9")
    a("v_mov_b32 v32, 0x3f803f80")
    if ONE_ROW:
        a("v_cmp_eq_u32 vcc, 0, v8")
        a("v_cndmask_b32 v32, 0, v32, vcc")
    for i in range(1, 4): a(f"v_mov_b32 v{32+i}, v32")
    a("ds_write_b128 v9, v[32:35]")
    if E0 < 0: stamp(a, 8, VS)
    a("s_cmp_lg_u32 s65, 0")
    a("s_cbranch_scc1 L_wl")
    a("s_cmp_eq_u32 s72, 1")
    a("s_cbranch_scc1 L_wl_ok")
    poll(a, "L_ps1", ld1, cmp1)
    a("ds_write_b32 v7, v6")
    a("s_branch L_wl_ok")
    a.label("L_wl")
    a(f"s_mov_b32 s98, {SPIN*8}")
    a.label("L_wl2")
    a("ds_read_b32 v8, v7")
    a("s_waitcnt lgkmcnt(0)")
    a("v_cmp_ne_u32 vcc, 1, v8")
    a("s_cbranch_vccz L_wl_ok")
    a("s_sleep 1")
    a("s_sub_u32 s98, s98, 1")
    a("s_cmp_lg_u32 s98, 0")
    a("s_cbranch_scc1 L_wl2")
    a.label("L_wl_ok")
    if E0 < 0: stamp(a, 9, VS)
    a(f"s_lshl_b32 s66, s{sHEAD}, 16")
    a(f"s_lshl_b32 s67, s{sQB}, 13")
    a("s_add_u32 s67, s67, s66")
    a("s_lshl_b32 s68, s65, 11")
    a("s_add_u32 s67, s67, s68")
    a(f"s_add_u32 m0, s68, {LQ}")
    a(f"s_add_u32 s67, s67, {WS_QK}")
    for i in range(2): a(f"buffer_load_dwordx4 v3, {WSR}, s67 offen offset:{i*1024}{ST} lds")
    a("s_mov_b32 s90, s66")
    a("s_mov_b32 s91, s68")
    a(f"s_lshl_b32 s93, s{sQB}, 12")
    if ENV("ROT", "1") == "0": a("s_mov_b32 s93, 0")
    a("s_add_u32 s93, s93, s68")
    a(f"s_mul_i32 s92, s65, {2*VST}")
    for t0 in KV_GROUPS[:KV_PRE]: kv_group(a, t0)
    if not LEARLY:
        a(f"s_mov_b32 s{DT}, s79")
        a(f"s_mov_b32 s{DT+1}, s80")
        ltable(68, (DT, DT+1, DT+2, DT+3))
    a("s_branch L_attn")

LEARLY = ENV("LEARLY", "0") == "1"
KV_GROUPS = (0, 32, 8, 40, 16, 48, 24, 56)
KV_PRE = int(ENV("KV_PRE", "4"))
def kv_group(a, t0):
    a(f"s_add_u32 s94, s93, {(t0 & 31)*1024}")
    a("s_and_b32 s94, s94, 0x7fff")
    a("s_add_u32 s94, s94, s90")
    a(f"s_add_u32 m0, s91, {LK + t0*1024}")
    a(f"s_add_u32 s67, s94, {WS_QK + 32*65536 + (t0 & 32)*1024}")
    for i in range(2): a(f"buffer_load_dwordx4 v3, {WSR}, s67 offen offset:{i*1024}{ST} lds")
    a(f"s_add_u32 s67, s94, {WS_V + (t0 & 32)*1024}")
    for i in range(2):
        a(f"s_add_u32 m0, s92, {LV + (t0+i)*VST - i*1024}")
        a(f"buffer_load_dwordx4 v3, {WSR}, s67 offen offset:{i*1024}{ST} lds")

def attn(a):
    a.label("L_attn")
    a(f"s_and_b32 s65, s{sWAVE}, 3")
    a(f"s_lshr_b32 s66, s{sWAVE}, 2")
    a("s_lshl_b32 s67, s66, 15")
    a(f"v_add_u32 v{VK}, s67, v3")
    a(f"v_add_u32 v8, {VROT}, v2")
    a("v_and_b32 v8, 15, v8")
    a("v_lshrrev_b32 v9, 5, v2")
    a("v_lshl_or_b32 v8, v9, 4, v8")
    a("v_lshlrev_b32 v8, 4, v8")
    a("v_add_u32 v9, 512, v8")
    a("v_and_b32 v10, 31, v2")
    a("v_subrev_u32 v11, 20, v10")
    a("v_cmp_gt_u32 vcc, 8, v11")
    a("v_mov_b32 v11, 1040")
    a("v_mov_b32 v12, 1056")
    a("v_cndmask_b32 v11, v11, v12, vcc")
    a("v_cmp_eq_u32 vcc, 16, v10")
    a("v_mov_b32 v12, 1024")
    a("v_cndmask_b32 v11, v11, v12, vcc")
    a("v_cmp_gt_u32 vcc, 16, v10")
    a("v_cndmask_b32 v8, v11, v8, vcc")
    a("v_cndmask_b32 v9, v11, v9, vcc")
    a(f"s_mul_i32 s67, s66, {32*VST}")
    a(f"s_add_u32 s67, s67, {LV}")
    a(f"v_add_u32 v{VV0}, s67, v8")
    a(f"v_add_u32 v{VV1}, s67, v9")
    a("s_lshl_b32 s67, s65, 11")
    a(f"s_add_u32 s67, s67, {LQ}")
    a("v_add_u32 v20, s67, v3")
    zero(a, OA, 32); zero(a, V1, 4); zero(a, GACC, 32); zero(a, GFR, 36)
    T0 = GFR + 36
    a(f"s_lshl_b32 s73, s{sMB}, 11")
    a(f"s_lshl_b32 s74, s{sNB}, 7")
    a("s_add_u32 s73, s73, s74")
    a(f"s_add_u32 s73, s73, {WS_F2}")
    a(f"s_lshl_b32 s74, s{sQB}, 12")
    a(f"s_lshl_b32 s75, s{sHEAD}, 7")
    a("s_add_u32 s74, s74, s75")
    a(f"s_add_u32 s74, s74, {WS_F3}")
    a(f"v_mov_b32 v{T0+2}, s73")
    a(f"v_writelane_b32 v{T0+2}, s74, 1")
    a(f"v_mov_b32 v{T0+3}, 1")
    a(f"v_mov_b32 v{T0+4}, {LCNT+4}")
    g = T0 + 5
    a(f"v_and_b32 v{g+2}, 15, v2")
    a(f"v_lshlrev_b32 v{g+2}, 7, v{g+2}")
    a(f"s_lshr_b32 s74, s{sHEAD}, 1")
    a("s_lshl_b32 s74, s74, 11")
    a(f"s_add_u32 s74, s74, {WS_F2}")
    a(f"s_lshl_b32 s88, s{sQB}, 12")
    a(f"s_lshr_b32 s89, s{sHEAD}, 2")
    a("s_lshl_b32 s89, s89, 12")
    a("s_sub_u32 s89, s89, 4096")
    a(f"v_mov_b32 v{g}, s88")
    a(f"v_mov_b32 v{g+1}, s89")
    a("v_cmp_gt_u32 vcc, 32, v2")
    a(f"v_cndmask_b32 v{g}, v{g+1}, v{g}, vcc")
    a(f"v_lshl_add_u32 v{g+3}, v2, 7, v{g}")
    a(f"s_mov_b32 s88, {WS_F3}")
    a(f"s_and_b32 s68, s{sWAVE}, 1")
    a(f"s_lshr_b32 s69, s{sWAVE}, 1")
    a(f"s_lshl_b32 s84, s{sHEAD}, 1")
    a("s_add_u32 s84, s84, s68")
    a(f"s_mul_i32 s85, s84, {144*1024}")
    a(f"s_add_u32 s85, s85, {WS_AF}")
    a(f"s_mul_i32 s86, s{sQB}, {2*144*1024}")
    a(f"s_add_u32 s86, s86, {WS_WF}")
    a(f"s_mul_i32 s75, s69, {28*1024}")
    a(f"s_add_u32 s75, s75, {32*1024}")
    a("s_add_u32 s76, s85, s75")
    a("s_add_u32 s77, s86, s75")
    a(f"s_add_u32 s78, s77, {144*1024}")
    a("s_lshl_b32 s75, s69, 13")
    a("s_add_u32 s85, s85, s75")
    a("s_add_u32 s86, s86, s75")
    a(f"v_mov_b32 v{VG}, v3")
    a("s_movk_i32 s87, 4096")
    a(f"s_lshl_b32 s90, s{sHEAD}, 16")
    a(f"s_lshl_b32 s91, s{sWAVE}, 10")
    a(f"s_mul_i32 s92, s{sWAVE}, {VST}")
    a(f"s_lshl_b32 s93, s{sQB}, 12")
    if ENV("ROT", "1") == "0": a("s_mov_b32 s93, 0")
    a("s_add_u32 s93, s93, s91")
    a(f"s_lshr_b32 s95, s{sWAVE}, 2")
    a(f"s_or_b32 s95, s95, s{sVC}")
    a(f"s_cmp_lt_u32 s{sWAVE}, 4")
    a("s_cbranch_scc1 L_x1")
    a(f"s_waitcnt vmcnt({4*(KV_PRE-2)}) lgkmcnt(0)")
    a.label("L_x1")
    a("s_setprio 3")
    a("s_barrier")
    stamp(a, 10, VS)
    a(f"ds_read_b128 {vr(QA)}, v20")
    a(f"ds_read_b128 {vr(QB)}, v20 offset:1024")
    a(f"ds_read_b128 {vr(V0B)}, v3")
    a(f"ds_read_b128 {vr(KF)}, v{VK}")
    a(f"ds_read_b128 {vr(V0A)}, v{VV0}")
    for n in range(4): a(f"buffer_store_dwordx4 {vr(HP+4*n)}, v3, {WSR}, s{DT+n} offen{STS}")
    a("s_cmp_lg_u32 s95, 0")
    a("s_cbranch_scc1 L_st4")
    for n in range(4, 8): a(f"buffer_store_dwordx4 {vr(HP+4*n)}, v3, {WSR}, s{DT+n} offen{STS}")
    a.label("L_st4")
    stamp(a, 21, VS)
    a("s_waitcnt lgkmcnt(2)")
    a(f"{MF} {vr(SA,16)}, {vr(V0B)}, {vr(QA)}, 0")
    a(f"{MF} {vr(SB,16)}, {vr(V0B)}, {vr(QB)}, 0")
    rowmax(a, SA, T0)
    rowmax(a, SB, T0, acc=True)
    halfmax(a, T0, T0 + 1)
    for i in range(16): a(f"v_sub_f32 v{CC+i}, 0, v{T0}")
    a("s_waitcnt lgkmcnt(0)")
    a(f"{MF} {vr(SA,16)}, {vr(KF)}, {vr(QA)}, {vr(CC,16)}")
    zero(a, SB + 8, 4)
    a("s_nop 9")

    def tile(n, which, extra, extra0=lambda: None):
        S, T, O, OT, QT = (SA, SB, OA, OB, QB) if which == 0 else (SB, SA, OB, OA, QA)
        v0 = V0A if n % 2 == 0 else V0B
        v0n = V0B if n % 2 == 0 else V0A
        e = lambda i: a(f"v_exp_f32 v{S+i}, v{S+i}")
        c = lambda i: a(f"v_cvt_pk_bf16_f32 v{S + (i>>2)*8 + (i&3)}, v{S+2*i}, v{S+2*i+1}")
        e(0); e(1)
        if which == 1: a("s_waitcnt lgkmcnt(0)")
        a(f"{MF} {vr(OT,16)}, {vr(V1)}, {vr(T+8)}, {vr(OT,16)}")
        if which == 0:
            a(f"ds_read_b128 {vr(V1)}, v{VV1} offset:{n*VST}")
            a(f"ds_read_b128 {vr(v0n)}, v{VV0} offset:{(n+1)*VST}")
        e(2); e(3); e(4); e(5)
        a(f"{MF} {vr(T,16)}, {vr(KF)}, {vr(QT)}, {vr(CC,16)}")
        if which == 0: a(f"ds_read_b128 {vr(KF)}, v{VK} offset:{(n+1)*1024}")
        e(6); e(7); e(8)
        extra0()
        for i in range(4): c(i)
        e(9); e(10)
        a(f"{MF} {vr(O,16)}, {vr(v0)}, {vr(S)}, {vr(O,16)}")
        e(11); e(12); e(13); e(14)
        extra()
        e(15)
        for i in range(4, 8): c(i)
    def bump(n):
        a(f"v_add_u32 v{VK}, {n*1024}, v{VK}")
        a(f"v_add_u32 v{VV0}, {n*VST}, v{VV0}")
        a(f"v_add_u32 v{VV1}, {n*VST}, v{VV1}")
    PRIO = ENV("PRIO", "1") == "1"
    DPER, DRAIN = int(ENV("DPER", "1")), int(ENV("DRAIN", "10"))
    wo = list(range(16))
    g = T0 + 5
    def ld2():
        a(f"buffer_load_dword v{g}, v{g+2}, {WSR}, s74 offen{ST}")
        a(f"buffer_load_dword v{g+1}, v{g+3}, {WSR}, s88 offen{ST}")
    def cmp2():
        a(f"v_and_b32 v{g}, v{g}, v{g+1}")
        a(f"v_cmp_ne_u32 vcc, 1, v{g}")
    def ldswait(name, off, val):
        a(f"s_mov_b32 s98, {SPIN*8}")
        a.label(name)
        a(f"ds_read_b32 v{T0}, v{T0+1} offset:{off}")
        a("s_waitcnt lgkmcnt(0)")
        a(f"v_cmp_ne_u32 vcc, {val}, v{T0}")
        a(f"s_cbranch_vccz {name}_ok")
        a("s_sleep 1")
        a("s_sub_u32 s98, s98, 1")
        a("s_cmp_lg_u32 s98, 0")
        a(f"s_cbranch_scc1 {name}")
        a.label(f"{name}_ok")
    a(f"v_mov_b32 v{T0+1}, {LCNT}")
    S2W = int(ENV('S2WAVE', '0'))
    S2AT = int(ENV('S2AT', '14'))
    def ldwo(i):
        if i % 4 == 0: a(f"s_add_u32 s71, s86, {(i>>3)*144*1024 + (i&7)*1024}")
        a(f"buffer_load_dwordx4 {vr(WO + 4*i)}, v3, {WSR}, s71 offen offset:{(i&3)*1024}{ST}")
    PK = [int(x) for x in ENV("PK", "3,7,12").split(",")]
    ops = []
    for t0 in KV_GROUPS[KV_PRE:]:
        ops.append([f"s_add_u32 s94, s93, {(t0 & 31)*1024}", "s_and_b32 s94, s94, 0x7fff", "s_add_u32 s94, s94, s90",
                    f"s_add_u32 m0, s91, {LK + t0*1024}", f"s_add_u32 s67, s94, {WS_QK + 32*65536 + (t0 & 32)*1024}",
                    f"buffer_load_dwordx4 v3, {WSR}, s67 offen{ST} lds"])
        ops.append([f"s_add_u32 m0, s92, {LV + t0*VST}", f"s_add_u32 s67, s94, {WS_V + (t0 & 32)*1024}",
                    f"buffer_load_dwordx4 v3, {WSR}, s67 offen{ST} lds"])
    ops = [(lambda l=l: [a(x) for x in l]) for l in ops] + [(lambda i=i: ldwo(i)) for i in range(16)]
    DRAIN = int(ENV("DRAIN", "5"))
    slots = 2 * (15 - DRAIN) - 1
    def emit_ops():
        nonlocal slots
        n = -(-len(ops) // slots); slots -= 1
        for _ in range(n): ops.pop(0)()
    for k in range(16):
        if PRIO and k in PK: a(f"s_setprio {2 - PK.index(k)}")
        if k == 14: ldswait("L_kvw", 4, 8)
        if k == S2AT:
            a(f"s_cmp_lg_u32 s{sWAVE}, {S2W}")
            a("s_cbranch_scc1 L_s2a")
            ld2()
            a.label("L_s2a")
        def extra():
            if k == DRAIN:
                stamp(a, 23, VS)
                a("s_waitcnt vmcnt(0)")
                stamp(a, 24, VS)
                one_lane(a, f"ds_add_rtn_u32 v{T0+4}, v{T0+4}, v{T0+3}")
            if k > DRAIN: emit_ops()
        def extra0():
            if k == DRAIN + 1:
                a("s_waitcnt lgkmcnt(0)")
                a(f"v_readfirstlane_b32 s70, v{T0+4}")
                a("s_cmp_eq_u32 s70, 7")
                a(f"s_cselect_b32 s70, 0, {OOB:#x}")
                one_lane(a, f"buffer_store_dword v{T0+3}, v{T0+2}, {WSR}, s70 offen{ST}", 3)
            if k > DRAIN + 1: emit_ops()
        nleft = len(ops)
        if k == S2AT: after_s2 = nleft
        tile(k >> 1, k & 1, extra, extra0)
    assert not ops
    stamp(a, 11, VS)
    a(f"s_cmp_lg_u32 s{sWAVE}, {S2W}")
    a("s_cbranch_scc1 L_s2b")
    a(f"s_waitcnt vmcnt({after_s2})")
    cmp2()
    a("s_cbranch_vccz L_ps2_ok")
    poll(a, "L_ps2", ld2, cmp2)
    a(f"ds_write_b32 v{T0+1}, v{T0+3} offset:8")
    a("s_waitcnt lgkmcnt(0)")
    a("s_branch L_s2w_ok")
    a.label("L_s2b")
    ldswait("L_s2w", 8, 1)
    stamp(a, 16, VS)
    if PRIO: a("s_setprio 3")
    zero(a, T0, 12)
    bump(8)
    def gld(buf, q, off): a(f"buffer_load_dwordx4 {vr(GFR + 12*buf + 4*q)}, v{VG}, {WSR}, s{76+q} offen offset:{off}{'' if 'P' in ENV('XG', '') else ST}")
    def gm(buf, j):
        d = vr(GACC + 16*j, 16)
        a(f"{MF} {d}, {vr(GFR + 12*buf + 4 + 4*j)}, {vr(GFR + 12*buf)}, {d}")
    a("s_mov_b32 s80, 4")
    a(f"v_mov_b32 v0, {LCNT}")
    a("v_mov_b32 v2, 1")
    a.label("L_aloop")
    ms = list(range(16))
    def gstep():
        m = ms.pop(0); b, j = (m >> 1) & 3, m & 1
        if m == 8: a(f"v_add_u32 v{VG}, s81, v{VG}")
        if j == 0: a("s_waitcnt vmcnt(9)")
        gm(b, j)
        if j == 0: gld(b, 1, b * 1024)
        else: gld(b, 0, b * 1024); gld(b, 2, b * 1024)
    for k in range(12):
        def extra():
            gstep()
            if k == 1:
                a("s_sub_u32 s80, s80, 1")
                a("s_cmp_eq_u32 s80, 0")
                a(f"s_cselect_b32 s81, {OOB:#x}, s87")
            if k == 7:
                one_lane(a, f"ds_add_u32 v0, v2 offset:12")
            if k == 6 and PRIO:
                a("s_cbranch_scc0 L_np")
                a("s_setprio 0")
                a.label("L_np")
        tile(k >> 1, k & 1, extra, gstep if k % 3 == 2 else (lambda: None))
    assert not ms
    bump(6)
    a(f"v_add_u32 v{VG}, 4096, v{VG}")
    a("s_cmp_lg_u32 s80, 3")
    a("s_cbranch_scc1 L_kv2_ok")
    a(f"s_mov_b32 s98, {SPIN*8}")
    a.label("L_kv2")
    a(f"ds_read_b32 v2, v0 offset:12")
    a("s_waitcnt lgkmcnt(0)")
    a(f"v_cmp_gt_u32 vcc, 8, v2")
    a("s_cbranch_vccz L_kv2_ok")
    a("s_sleep 1")
    a("s_sub_u32 s98, s98, 1")
    a("s_cmp_lg_u32 s98, 0")
    a("s_cbranch_scc1 L_kv2")
    a.label("L_kv2_ok")
    if PRIO:
        a("s_cmp_gt_u32 s80, 2")
        a("s_cbranch_scc1 L_aloop")
        a("s_setprio 2")
        a("s_cmp_gt_u32 s80, 1")
        a("s_cbranch_scc1 L_aloop")
        a("s_setprio 1")
    a("s_cmp_lg_u32 s80, 0")
    a("s_cbranch_scc1 L_aloop")
    if PRIO: a("s_setprio 0")
    a("v_lshrrev_b32 v2, 4, v3")
    if STAMP: a(f"v_lshl_add_u32 v0, s{sWAVE}, 6, v2")
    a(f"{MF} {vr(OB,16)}, {vr(V1)}, {vr(SB+8)}, {vr(OB,16)}")
    stamp(a, 17, VS)
    a(f"s_mul_i32 s79, s{sWAVE}, 2304")
    a(f"s_add_u32 s79, s79, {LQ}")
    a(f"s_xor_b32 s80, s{sWAVE}, 4")
    a("s_mul_i32 s80, s80, 2304")
    a(f"s_add_u32 s80, s80, {LQ}")
    a(f"v_add_u32 v{KF}, s79, v3")
    a(f"v_add_u32 v{KF+1}, s80, v3")
    a(f"v_lshl_add_u32 v{KF+2}, v2, 2, s79")
    a(f"v_lshl_add_u32 v{KF+3}, v2, 2, s80")
    a(f"v_and_b32 v{V0A}, 31, v2")
    a(f"v_lshlrev_b32 v{V0A}, 2, v{V0A}")
    a("s_lshl_b32 s79, s84, 7")
    a(f"s_add_u32 s79, s79, {WS_G}")
    a(f"buffer_load_dword v{VG}, v{V0A}, {WSR}, s79 offen{ST}")
    a("s_cmp_eq_u32 s66, 0")
    a("s_cbranch_scc1 L_keepA")
    a(f"ds_write_b128 v{KF}, {vr(OA)}")
    a(f"ds_write_b128 v{KF}, {vr(OA+4)} offset:1024")
    a(f"ds_write_b32 v{KF+2}, v{OA+8} offset:2048")
    for i in range(9): a(f"v_mov_b32 v{OA+i}, v{OB+i}")
    for i in range(4): a(f"v_mov_b32 v{QA+i}, v{QB+i}")
    a("s_branch L_sent")
    a.label("L_keepA")
    a(f"ds_write_b128 v{KF}, {vr(OB)}")
    a(f"ds_write_b128 v{KF}, {vr(OB+4)} offset:1024")
    a(f"ds_write_b32 v{KF+2}, v{OB+8} offset:2048")
    a.label("L_sent")
    a(f"s_lshl_b32 s79, s{sQB}, 3")
    a("s_lshl_b32 s80, s65, 1")
    a("s_add_u32 s79, s79, s80")
    a("s_add_u32 s79, s79, s66")
    a(f"s_mul_i32 s81, s79, {144*1024}")
    a(f"s_lshl_b32 s80, s{sHEAD}, 10")
    a("s_add_u32 s81, s81, s80")
    a(f"s_add_u32 s81, s81, {WS_AF}")
    a("s_waitcnt lgkmcnt(0)")
    a("s_barrier")
    a(f"ds_read_b128 {vr(OB)}, v{KF+1}")
    a(f"ds_read_b128 {vr(OB+4)}, v{KF+1} offset:1024")
    a(f"ds_read_b32 v{OB+8}, v{KF+3} offset:2048")
    a("s_waitcnt lgkmcnt(0)")
    for i in range(9): a(f"v_add_f32 v{OA+i}, v{OA+i}, v{OB+i}")
    def lbcast():
        if ONE_ROW:
            a(f"v_mov_b32 v{OB}, v{OA+8}")
            a(f"v_permlane32_swap_b32 v{OA+8}, v{OB}")
    lbcast()
    a(f"v_cmp_nge_f32 vcc, {f32(2.0**60)}, v{OA+8}")
    a("s_mov_b64 s[82:83], vcc")
    a(f"v_cmp_nle_f32 vcc, {f32(2.0**-60)}, v{OA+8}")
    a("s_or_b64 vcc, vcc, s[82:83]")
    a("s_cbranch_vccnz L_redo")
    a.label("L_aok")
    a(f"v_rcp_f32 v12, v{OA+8}")
    for i in range(8): a(f"v_mul_f32 v{OA+i}, v12, v{OA+i}")
    for i in range(4): a(f"v_cvt_pk_bf16_f32 v{SA+i}, v{OA+2*i}, v{OA+2*i+1}")
    for i in range(4): a(f"v_min_u32 v{SA+i}, -2, v{SA+i}")
    a(f"buffer_store_dwordx4 {vr(SA)}, v3, {WSR}, s81 offen{STS}")
    stamp(a, 18, VS)
    srd(a, S_OUT, 20, 21, 2048 * 1024)
    a("s_lshl_b32 s79, s68, 15")
    a("v_add_u32 v14, s79, v3")
    a("s_lshl_b32 s80, s69, 13")
    a("s_add_u32 s80, s80, s79")
    a("v_add_u32 v15, s80, v3")
    a("v_and_b32 v12, 31, v2")
    a("v_lshlrev_b32 v12, 10, v12")
    a("v_lshrrev_b32 v13, 5, v2")
    a("v_lshl_or_b32 v11, v13, 4, v12")
    a("s_lshl_b32 s79, s84, 15")
    a(f"s_lshl_b32 s80, s{sQB}, 7")
    a("s_add_u32 s79, s79, s80")
    a("s_lshl_b32 s80, s69, 5")
    a("s_add_u32 s79, s79, s80")
    a("s_add_u32 s87, s85, 4096")
    a("s_barrier")
    a("s_waitcnt vmcnt(0)")
    a(f"v_sub_f32 v10, 1.0, v{VG}")
    stamp(a, 19, VS)
    OF, A2 = 16, 64
    def ldO():
        for i in range(8): a(f"buffer_load_dwordx4 {vr(OF+4*i)}, v3, {WSR}, s{85 if i < 4 else 87} offen offset:{(i&3)*1024}{ST}")
    def cmpO():
        for i in range(8):
            a(f"s_waitcnt vmcnt({7-i})")
            for j in range(2):
                d = vr(A2 + 16*j, 16)
                a(f"{MF} {d}, {vr(WO + 32*j + 4*i)}, {vr(OF+4*i)}, {'0' if i == 0 else d}")
            r = OF + 4*i
            if i == 0: a(f"v_max_u32 v12, v{r}, v{r+1}")
            else: a(f"v_max3_u32 v12, v{r}, v{r+1}, v12")
            a(f"v_max3_u32 v12, v{r+2}, v{r+3}, v12")
        a("v_cmp_eq_u32 vcc, -1, v12")
    for r in range(32): a(f"v_mul_f32 v{GACC+r}, v10, v{GACC+r}")
    poll(a, "L_ps3", ldO, cmpO, wait=False)
    stamp(a, 20, VS)
    for kq in range(4):
        if kq < 3:
            a(f"s_cmp_lg_u32 s69, {kq}")
            a(f"s_cbranch_scc1 L_red{kq+1}")
        for sl in [x for x in range(4) if x != kq] + [kq]:
            for r in range(8*sl, 8*sl + 8):
                if sl == kq: a(f"v_fma_f32 v{OF + r - 8*sl}, v{VG}, v{A2+r}, v{GACC+r}")
                else: a(f"v_fmac_f32 v{GACC+r}, v{VG}, v{A2+r}")
            if sl != kq:
                for k in range(2): a(f"ds_write_b128 v14, {vr(GACC + 8*sl + 4*k)} offset:{sl*8192 + ((kq - sl - 1) & 3)*2048 + k*1024}")
        if kq < 3:
            a("s_branch L_redw")
            a.label(f"L_red{kq+1}")
    a.label("L_redw")
    a("s_waitcnt lgkmcnt(0)")
    a("s_barrier")
    for q in range(3):
        for k in range(2): a(f"ds_read_b128 {vr(OF + 8 + 8*q + 4*k)}, v15 offset:{q*2048 + k*1024}")
    a("s_waitcnt lgkmcnt(4)")
    for r in range(0, 8, 2): a(f"v_pk_add_f32 {vr(OF+r,2)}, {vr(OF+r,2)}, {vr(OF+8+r,2)}")
    a("s_waitcnt lgkmcnt(0)")
    for r in range(0, 8, 2): a(f"v_pk_add_f32 {vr(OF+16+r,2)}, {vr(OF+16+r,2)}, {vr(OF+24+r,2)}")
    for r in range(0, 8, 2): a(f"v_pk_add_f32 {vr(OF+r,2)}, {vr(OF+r,2)}, {vr(OF+16+r,2)}")
    for i in range(4): a(f"v_cvt_pk_bf16_f32 v{48+i}, v{OF+2*i}, v{OF+2*i+1}")
    a("v_permlane32_swap_b32 v48, v50")
    a("v_permlane32_swap_b32 v49, v51")
    a(f"buffer_store_dwordx4 v[48:51], v11, {SR(S_OUT)}, s79 offen")
    if ENV("FIXT"):
        a.label("L_fixt")
        a("s_memrealtime s[100:101]")
        a("s_waitcnt lgkmcnt(0)")
        a("s_sub_u32 s100, s100, s96")
        a(f"s_cmp_lt_u32 s100, {int(ENV('FIXT'))}")
        a("s_cbranch_scc1 L_fixt")
    if STAMP: a("s_waitcnt vmcnt(0)")
    stamp_out(a, 0, S_WS, VS, 14)
    if STAMP and ENV("DBGOUT"):
        a(f"s_lshl_b32 s66, s{sWAVE}, 8")
        a("s_or_b32 s66, s66, s2")
        a(f"s_cmp_lg_u32 s66, {int(ENV('DBGOUT'))}")
        a("s_cbranch_scc1 L_exit")
        a(f"v_readlane_b32 s67, v{VS}, 1")
        for k, idx in enumerate((3, 4, 5, 6, 7, 10, 11, 16, 17, 18, 19, 20, 14)):
            a(f"v_readlane_b32 s66, v{VS}, {32+idx}")
            a("s_sub_u32 s66, s66, s67")
            a(f"v_writelane_b32 v14, s66, {k}")
        a(f"v_readlane_b32 s66, v{VS}, 14")
        a(f"v_readlane_b32 s67, v{VS}, 0")
        a("s_sub_u32 s66, s66, s67")
        a("v_writelane_b32 v14, s66, 13")
        a("v_lshlrev_b32 v15, 2, v2")
        one_lane(a, f"buffer_store_dword v14, v15, {SR(S_DBG)}, 0 offen offset:4", "0x3fff")
    a("s_endpgm")
    a.label("L_redo")
    a(f"s_mul_i32 s79, s66, {32*VST}")
    a(f"s_add_u32 s79, s79, {32*VST}")
    a(f"v_subrev_u32 v{VV0}, s79, v{VV0}")
    a(f"v_subrev_u32 v{VV1}, s79, v{VV1}")
    a(f"v_mov_b32 v{VK}, v3")
    a("v_mov_b32 v12, 0xff800000")
    a("s_mov_b32 s80, 0")
    a.label("L_fmax")
    a(f"ds_read_b128 {vr(KF)}, v{VK}")
    a("s_waitcnt lgkmcnt(0)")
    a(f"{MF} {vr(SA,16)}, {vr(KF)}, {vr(QA)}, 0")
    a(f"v_add_u32 v{VK}, 1024, v{VK}")
    rowmax(a, SA, 12, acc=True)
    a("s_add_u32 s80, s80, 1")
    a("s_cmp_lt_u32 s80, 64")
    a("s_cbranch_scc1 L_fmax")
    halfmax(a, 12, 13)
    for i in range(16): a(f"v_sub_f32 v{CC+i}, 0, v12")
    zero(a, OA, 16)
    a(f"v_mov_b32 v{VK}, v3")
    a("s_mov_b32 s80, 0")
    a.label("L_fslow")
    a(f"ds_read_b128 {vr(KF)}, v{VK}")
    a(f"ds_read_b128 {vr(V0A)}, v{VV0}")
    a(f"ds_read_b128 {vr(V1)}, v{VV1}")
    a("s_waitcnt lgkmcnt(0)")
    a(f"{MF} {vr(SA,16)}, {vr(KF)}, {vr(QA)}, {vr(CC,16)}")
    a(f"v_add_u32 v{VK}, 1024, v{VK}")
    a(f"v_add_u32 v{VV0}, {VST}, v{VV0}")
    a(f"v_add_u32 v{VV1}, {VST}, v{VV1}")
    for i in range(16): a(f"v_exp_f32 v{SA+i}, v{SA+i}")
    for i in range(8): a(f"v_cvt_pk_bf16_f32 v{SB+i}, v{SA+2*i}, v{SA+2*i+1}")
    a(f"{MF} {vr(OA,16)}, {vr(V0A)}, {vr(SB)}, {vr(OA,16)}")
    a(f"{MF} {vr(OA,16)}, {vr(V1)}, {vr(SB+4)}, {vr(OA,16)}")
    a("s_add_u32 s80, s80, 1")
    a("s_cmp_lt_u32 s80, 64")
    a("s_cbranch_scc1 L_fslow")
    a("s_nop 9")
    lbcast()
    a("s_branch L_aok")

def build():
    a = Asm()
    head(a)
    p1_loader(a)
    p1_compute(a)
    attn(a)
    a.label("L_exit")
    a("s_endpgm")
    n = a.fix(verbose="-v" in sys.argv)
    print("instructions:", len(a.lines), "nop states inserted:", n, "lds", LDS_BYTES, file=sys.stderr)
    name = NAME + "_kernel"
    hdr = open("cdna_kernels/" + NAME + ".s.ref").read().split("; Override launch")[0]
    out = hdr + f"; @launch grid=(256,1,1) block=(512,1,1) lds={LDS_BYTES}\n"
    out += '.amdgcn_target "amdgcn-amd-amdhsa--gfx950"\n.text\n'
    out += f".globl {name}\n.p2align 8\n.type {name},@function\n{name}:\n" + a.text()
    out += '.section .rodata,"a"\n' + kd(name)
    dst = sys.argv[1] if len(sys.argv) > 1 and not sys.argv[1].startswith("-") else "cdna_kernels/" + NAME + ".s"
    open(dst, "w").write(out)
if __name__ == "__main__": build()
```

```python
import os, sys
from common import *

MF = "v_mfma_f32_32x32x16_bf16"
ST = " sc1"
STS = " sc1 nt" if os.environ.get("SNT") else " sc1"
ENV = os.environ.get
WS_F1 = 0x1480000
WS_F2 = 0x1490000
WS_F3 = 0x1498000
WS_TAG = 0x14a0000
SPIN = 1 << 17

S_DBG, S_WS, S_X, S_G, S_U, S_WA, S_WB, S_WC = 24, 28, 32, 36, 40, 44, 48, 52
S_RO, S_RD, S_GW = 56, 44, 48
S_OUT = 32
sWAVE, sMB, sNB, sVC = 3, 60, 61, 62
sHEAD, sQB = 63, 64
WSR = f"s[{S_WS}:{S_WS+3}]"
def SR(n): return f"s[{n}:{n+3}]"
VS = 1

NXS = 6
LX, XSLOT = 0, 16384
LW = NXS * XSLOT
NW1, WS1 = 5, 12288
NW2, WS2, LW2 = 6, 8192, LW + 12288
LRD = LW
LRO = LW + NW1 * WS1
LDS_BYTES = 163840
LCNT = LDS_BYTES - 16
LC2 = LDS_BYTES - 32
assert LRO + 2048 <= LCNT and (16 % NW1) * WS1 == LW2 - LW and LW2 + NW2 * WS2 <= LRO
KROT = 8 - NXS
def wslot(s): return (LW + (s % NW1) * WS1, WS1) if s < 16 else (LW2 + ((s - 16) % NW2) * WS2, WS2)
def acc(tt, ct): return 96 + (tt * 4 + ct) * 16 if ct < 4 else 224 + tt * 16
HP = 224
DT = 36
FR0, FR1 = 16, 36
VXA, VW = 56, 60
ONE_ROW = not ENV("ALLONES")
VST, VROT = 1104, 0
LK, LV = 0, 65536
LQ = LV + 64 * VST
LQI = 143360
LASTB = 27
QA, QB, CC, OA, OB, SA, SB, KF, V0A, V0B, V1 = 8, 12, 16, 32, 48, 64, 80, 96, 100, 104, 108
VK, VV0, VV1, VG = 4, 5, 6, 7
GACC, GFR, WO = 112, 144, 192

class Lgkm:
    def __init__(s, a): s.a = a; s.q = []
    def rd(s, tag, text): s.a(text); s.q.append(tag)
    def need(s, *tags):
        idx = [i for i, t in enumerate(s.q) if t in tags]
        if not idx: return
        n = len(s.q) - 1 - max(idx)
        assert n <= 15
        s.a(f"s_waitcnt lgkmcnt({n})")
        s.q = s.q[max(idx) + 1:]
    def all(s, extra=""):
        s.a("s_waitcnt " + extra + "lgkmcnt(0)")
        s.q = []

def poll(a, name, load, cmp, wait=True):
    a(f"s_mov_b32 s98, {SPIN}")
    a.label(name)
    load()
    if wait: a("s_waitcnt vmcnt(0)")
    cmp()
    a(f"s_cbranch_vccz {name}_ok")
    a(f"s_sleep {int(ENV('SLEEP', '4'))}")
    a("s_sub_u32 s98, s98, 1")
    a("s_cmp_lg_u32 s98, 0")
    a(f"s_cbranch_scc1 {name}")
    a.label(f"{name}_ok")

def rowmax(a, S, dst, acc=False):
    if acc: a(f"v_max3_f32 v{dst}, v{S}, v{S+1}, v{dst}")
    else: a(f"v_max_f32 v{dst}, v{S}, v{S+1}")
    for k in range(2, 16, 2): a(f"v_max3_f32 v{dst}, v{S+k}, v{S+k+1}, v{dst}")
def halfmax(a, dst, tmp):
    a(f"v_mov_b32 v{tmp}, v{dst}")
    a(f"v_permlane32_swap_b32 v{tmp}, v{dst}")
    a(f"v_max_f32 v{dst}, v{tmp}, v{dst}")
def zero(a, b, n):
    for r in range(0, n, 2): a(f"v_pk_mul_f32 {vr(b+r,2)}, 0, 0")
def one_lane(a, text, mask=1):
    a(f"s_mov_b64 exec, {mask}"); a(text); a("s_mov_b64 exec, -1")

def head(a):
    a("s_cmp_ge_u32 s2, 256")
    a("s_cbranch_scc1 L_exit")
    a("s_load_dwordx16 s[4:19], s[0:1], 0")
    a("s_load_dwordx4 s[20:23], s[0:1], 64")
    a(f"s_load_dwordx2 s[{S_WS}:{S_WS+1}], s[0:1], 80")
    if ENV("FIXT"):
        a("s_memrealtime s[96:97]")
    if STAMP: a(f"v_mov_b32 v{VS}, 0")
    stamp(a, 0, VS); stamp(a, 1, VS, real=True)
    a("v_lshrrev_b32 v3, 6, v0")
    a("v_and_b32 v2, 63, v0")
    a(f"v_readfirstlane_b32 s{sWAVE}, v3")
    a("s_and_b32 s65, s2, 7")
    a("s_lshr_b32 s66, s2, 3")
    a("s_and_b32 s67, s65, 1")
    a("s_lshl_b32 s67, s67, 3")
    a("s_and_b32 s68, s66, 7")
    a(f"s_add_u32 s{sMB}, s67, s68")
    a("s_lshr_b32 s67, s65, 1")
    a("s_lshl_b32 s67, s67, 2")
    a("s_lshr_b32 s68, s66, 3")
    a(f"s_add_u32 s{sNB}, s67, s68")
    a("s_cmp_eq_u32 s68, 3")
    a(f"s_cselect_b32 s{sVC}, 1, 0")
    a("s_lshl_b32 s67, s65, 2")
    a("s_and_b32 s68, s66, 3")
    a(f"s_add_u32 s{sHEAD}, s67, s68")
    a(f"s_lshr_b32 s{sQB}, s66, 2")
    a("v_lshlrev_b32 v3, 4, v2")
    a(f"s_mov_b32 s{S_WS+2}, {WS_SIZE:#x}")
    a(f"s_mov_b32 s{S_WS+3}, 0x00020000")
    a(f"s_lshr_b32 s67, s{sNB}, 2")
    a(f"s_sub_u32 s81, s{sNB}, s67")
    a("s_add_u32 s81, s81, 16")
    a(f"s_lshl_b32 s82, s{sNB}, 11")
    a(f"s_lshl_b32 s67, s{sMB}, 7")
    a("s_add_u32 s82, s82, s67")
    a(f"s_add_u32 s82, s82, {WS_F1}")
    a("v_lshrrev_b32 v8, 3, v2")
    a("v_and_b32 v4, 7, v2")
    a("v_bfe_u32 v5, v2, 4, 1")
    a("v_lshlrev_b32 v5, 2, v5")
    a("v_xor_b32 v5, v5, v4")
    a("v_lshlrev_b32 v9, 4, v5")
    a(f"s_cmp_lt_u32 s{sWAVE}, 4")
    a("s_waitcnt lgkmcnt(0)")
    srd(a, S_X, 4, 5, 2048 * 1024)
    srd(a, S_DBG, 22, 23, 256)
    a("s_cbranch_scc1 L_compute")

def p1_compute(a):
    a.label("L_compute")
    a(f"s_and_b32 s65, s{sWAVE}, 1")
    a(f"s_lshr_b32 s66, s{sWAVE}, 1")
    if ENV("CODEPF", "1") == "1":
        a("s_getpc_b64 s[84:85]")
        a.label("L_pc")
        a("s_sub_u32 s84, s84, L_pc-L_loader")
        a("s_subb_u32 s85, s85, 0")
        a("v_lshlrev_b32 v11, 7, v0")
        a("v_min_u32 v11, L_exit-L_loader, v11")
        a("global_load_dword v61, v11, s[84:85]")
        assert True
        a("v_lshlrev_b32 v11, 19, v2")
        a(f"s_cmp_eq_u32 s{sWAVE}, 0")
        a(f"s_cselect_b32 s67, 0, {OOB:#x}")
        a(f"buffer_load_dword v62, v11, {WSR}, s67 offen")
    a("v_and_b32 v8, 31, v2")
    a("v_lshrrev_b32 v4, 5, v2")
    a("v_bfe_u32 v5, v2, 1, 3")
    a("v_xor_b32 v5, v5, v4")
    a("s_lshl_b32 s67, s65, 13")
    a("v_lshl_add_u32 v6, v8, 7, s67")
    for ks in range(4):
        a(f"v_xor_b32 v7, {2*ks}, v5")
        a(f"v_lshl_add_u32 v{VXA+ks}, v7, 4, v6")
    a("v_bfe_u32 v5, v2, 2, 2")
    a("v_and_b32 v6, 3, v2")
    a("v_bfe_u32 v7, v2, 4, 1")
    a("v_lshlrev_b32 v6, 3, v6")
    a("v_lshl_or_b32 v6, v7, 5, v6")
    a("v_lshrrev_b32 v7, 1, v5")
    a("v_lshl_or_b32 v6, v7, 6, v6")
    a("v_lshl_or_b32 v6, v5, 7, v6")
    a("v_lshl_or_b32 v6, v4, 10, v6")
    a("s_lshl_b32 s67, s66, 6")
    a("v_xor_b32 v6, s67, v6")
    a(f"v_add_u32 v{VW}, {LW}, v6")
    zero(a, 96, 160)
    a(f"v_mov_b32 v5, {LCNT}")
    a("ds_write_b128 v5, v[96:99]")

    a(f"s_mov_b32 s78, {(-(NW1-1)*WS1) & 0xffffffff:#x}")
    a(f"s_mov_b32 s79, {(-(NXS-1)*XSLOT) & 0xffffffff:#x}")
    a("s_mov_b32 s73, 0")
    a("s_mov_b32 s74, 0")
    a("s_mov_b32 s75, 8")
    a("s_waitcnt lgkmcnt(0)")
    def reads(fs, ks, nu):
        kk = ks & 1
        X = lambda t: f"ds_read_b128 {vr(fs+4*t)}, v{VXA+ks} offset:{t*4096}"
        W = lambda u, j: f"ds_read_b64_tr_b16 {vr(fs+8+4*u+2*j, 2)}, v{VW} offset:{u*4096 + kk*2048 + j*512}"
        l = [X(0), W(0,0), W(0,1), X(1)]
        for u in range(1, nu): l += [W(u,0), W(u,1)]
        return l
    def loop(name, cts, swap, nu_next_last, hook=None):
        nu = len(cts)
        NWS, WSLOT = (NW1, WS1) if nu == 3 else (NW2, WS2)
        a.label(name)
        for ks in range(4):
            kk = ks & 1
            cur, nxt = (FR0, FR1) if kk == 0 else (FR1, FR0)
            mms = []
            for u, ct in enumerate(cts):
                for t in range(2):
                    d = vr(acc(t, ct), 16); w = vr(cur + 8 + 4*u); x = vr(cur + 4*t)
                    mms.append(f"{MF} {d}, {x}, {w}, {d}" if (swap and ct < 4) else f"{MF} {d}, {w}, {x}, {d}")
            rd = reads(nxt, (ks + 1) & 3, nu)
            post = []
            if kk == 0:
                post += ["s_add_u32 s73, s73, 1", f"s_cmp_eq_u32 s73, {NWS}", f"s_cselect_b32 s76, s78, {WSLOT}", "s_cselect_b32 s73, 0, s73", f"v_add_u32 v{VW}, s76, v{VW}"]
                if ks == 2:
                    post += ["s_add_u32 s74, s74, 1", f"s_cmp_eq_u32 s74, {NXS}", f"s_cselect_b32 s77, s79, {XSLOT}", "s_cselect_b32 s74, 0, s74", f"v_add_u32 v{VXA}, s77, v{VXA}"]
            elif ks == 3:
                post += [f"v_add_u32 v{VXA+i}, s77, v{VXA+i}" for i in range(1, 4)] + ["s_sub_u32 s75, s75, 1", "s_cmp_lg_u32 s75, 0"]
            if ks == 3 and hook: hook()
            a("s_waitcnt lgkmcnt(0)")
            if kk == 1:
                a(mms.pop(0))
                a("s_barrier")
            other = rd + post
            per = 3
            while mms:
                if kk == 0 or len(mms) < 2*nu - 1 or True:
                    pass
                if kk == 0: a(mms.pop(0))
                for _ in range(per):
                    if other: a(other.pop(0))
                if kk == 1: a(mms.pop(0))
            for o in other: a(o)
        a(f"s_cbranch_scc1 {name}")
    a(f"s_lshl_b32 s68, s{sMB}, 2")
    a("s_lshl_b32 s69, s65, 1")
    a("s_add_u32 s69, s68, s69")
    a(f"v_add_u32 v9, {VROT}, v2")
    a("v_and_b32 v9, 15, v9")
    a("v_lshl_or_b32 v9, v4, 4, v9")
    a("v_lshlrev_b32 v9, 4, v9")
    a("v_bfe_u32 v10, v2, 4, 1")
    a("v_lshl_or_b32 v9, v10, 16, v9")
    a(f"s_lshr_b32 s70, s{sNB}, 2")
    a("s_lshl_b32 s70, s70, 19")
    a("s_lshl_b32 s71, s66, 17")
    a("s_add_u32 s70, s70, s71")
    a("s_lshl_b32 s71, s69, 10")
    a("s_add_u32 s70, s70, s71")
    a(f"s_add_u32 s70, s70, {WS_V}")
    a(f"s_add_u32 s71, s70, {4*65536}")
    a(f"s_cmp_lt_u32 s{sNB}, 8")
    a(f"s_cselect_b32 s86, {f32(QSCALE)}, 1.0")
    a(f"s_lshl_b32 s67, s{sNB}, 2")
    a("s_lshl_b32 s68, s66, 1")
    a("s_add_u32 s67, s67, s68")
    a("s_lshl_b32 s67, s67, 16")
    a("s_lshl_b32 s68, s69, 10")
    a("s_add_u32 s67, s67, s68")
    a(f"s_add_u32 s88, s67, {WS_QK}")
    a("s_add_u32 s89, s88, 0x10000")
    a(f"s_mul_i32 s67, s69, {144*1024}")
    a("s_lshl_b32 s68, s66, 11")
    a("s_add_u32 s67, s67, s68")
    a(f"s_add_u32 s67, s67, {WS_AF + 32*1024}")
    for i in (1, 0):
        a(f"s_lshl_b32 s68, s{sNB if i else 81}, 12")
        a("s_add_u32 s68, s67, s68")
        for n in range(4): a(f"s_add_u32 s{DT + (1-i)*4 + n}, s68, {(n>>1)*144*1024 + (n&1)*1024}")
    a(f"v_mov_b32 v10, {f32(-GK1*0.044715)}")
    a(f"v_mov_b32 v11, {f32(-GK1*0.044715)}")
    a(f"v_mov_b32 v12, {f32(-GK1)}")
    a(f"v_mov_b32 v13, {f32(-GK1)}")
    stamp(a, 2, VS)
    a("s_barrier")
    stamp(a, 3, VS)
    for l in reads(FR0, 0, 3): a(l)

    def f_qk():
        l = []
        for t in range(2):
            b = acc(t, 4)
            for hh in range(2):
                l += [f"v_mul_f32 v{b+8*hh+i}, s86, v{b+8*hh+i}" for i in range(8)]
                l += [f"v_cvt_pk_bf16_f32 v{b+8*hh+i}, v{b+8*hh+2*i}, v{b+8*hh+2*i+1}" for i in range(4)]
                l.append(f"buffer_store_dwordx4 {vr(b+8*hh)}, v3, {WSR}, s{88+hh} offen offset:{t*1024}{STS}")
        return l
    def f_v():
        l = []
        for j in range(2):
            for t in range(2):
                b = acc(t, 2*j)
                for hh in range(2):
                    l += [f"v_cvt_pk_bf16_f32 v{b+8*hh+i}, v{b+8*hh+2*i}, v{b+8*hh+2*i+1}" for i in range(4)]
                    l.append(f"buffer_store_dwordx4 {vr(b+8*hh)}, v9, {WSR}, s{70+j} offen offset:{t*1024 + hh*512}{STS}")
        return l
    def f_gelu1():
        l = []
        for t in range(2):
            for q in range(4):
                G, U, T = acc(t, 0) + 4*q, acc(t, 2) + 4*q, 64 + (q & 1) * 4
                l += [f"v_mul_f32 v{T+p}, v{G+p}, v{G+p}" for p in range(4)]
                l += [f"v_fma_f32 v{T+p}, v{T+p}, v10, v12" for p in range(4)]
                l += [f"v_mul_f32 v{T+p}, v{T+p}, v{G+p}" for p in range(4)]
                for p in range(4): l += [f"v_exp_f32 v{T+p}, v{T+p}", f"v_mul_f32 v{U+p}, v{U+p}, v{G+p}"]
                l += [f"v_add_f32 v{T+p}, 1.0, v{T+p}" for p in range(4)]
                l += [f"v_rcp_f32 v{T+p}, v{T+p}" for p in range(4)]
                l += [f"v_mul_f32 v{U+p}, v{U+p}, v{T+p}" for p in range(4)]
                o = HP + 16 + t*8 + q*2
                l += [f"v_cvt_pk_bf16_f32 v{o+p}, v{U+2*p}, v{U+2*p+1}" for p in range(2)]
        return l
    SPK = int(ENV("SPK", "4"))
    def pass2(fill):
        cost = lambda x: 8 if x.startswith(("v_exp", "v_rcp")) else 4
        for n in range(32):
            ks, kk, st = n & 3, n & 1, 16 + (n >> 1)
            cur, nxt = (FR0, FR1) if kk == 0 else (FR1, FR0)
            mms = [f"{MF} {vr(acc(t, ct), 16)}, {vr(cur + 8 + 4*u)}, {vr(cur + 4*t)}, {vr(acc(t, ct), 16)}" for u, ct in enumerate((1, 3)) for t in range(2)]
            rd = []
            if n < 31:
                m = n + 1
                wo_ = wslot(16 + (m >> 1))[0] - LW2 + (m & 1) * 2048
                X = lambda t: f"ds_read_b128 {vr(nxt+4*t)}, v{VXA + (m & 3)} offset:{t*4096}"
                W = lambda u, j: f"ds_read_b64_tr_b16 {vr(nxt+8+4*u+2*j, 2)}, v{VW} offset:{wo_ + u*4096 + j*512}"
                rd = [X(0), W(0,0), W(0,1), X(1), W(1,0), W(1,1)]
            j = 8 + (n >> 2)
            dx = (((j + 1) % NXS) - (j % NXS)) * XSLOT & 0xffffffff
            upd = []
            if n < 28:
                if ks == 2: upd = [f"v_add_u32 v{VXA}, {dx:#x}, v{VXA}"]
                if ks == 3: upd = [f"v_add_u32 v{VXA+i}, {dx:#x}, v{VXA+i}" for i in range(1, 4)]
            drain = kk == 1 and st == PUBS
            if drain: assert not any(x.startswith("buffer_store") for x in fill)
            a("s_waitcnt " + ("vmcnt(0) " if drain else "") + "lgkmcnt(0)")
            nst = 0
            for g in range(4):
                a(mms[g])
                bud = 24 if g < 3 else 20
                if g == 0 and kk == 1 and st <= LASTB: a("s_barrier"); bud -= 4
                for _ in range(3):
                    if rd: a(rd.pop(0)); bud -= 4
                while not rd and upd and bud > 0: a(upd.pop(0)); bud -= 4
                while n >= 1 and fill and bud >= cost(fill[0]):
                    if fill[0].startswith("buffer_store"):
                        if nst >= SPK: break
                        nst += 1
                    bud -= cost(fill[0]); a(fill.pop(0))
            assert not rd and not upd
        for x in fill: a(x)
        print("pass-2 filler left over:", len(fill), file=sys.stderr)
    a(f"s_cmp_eq_u32 s{sVC}, 1")
    a("s_cbranch_scc1 L_p1loopV")
    loop("L_p1loopA", (0, 2, 4), False, 2)
    stamp(a, 4, VS)
    pass2(f_qk() + f_gelu1())
    a("s_branch L_p2done")
    loop("L_p1loopV", (0, 2, 4), True, 2)
    stamp(a, 4, VS)
    pass2(f_v() + f_qk())
    a.label("L_p2done")
    stamp(a, 6, VS)
    n = 0
    for t in range(2):
        g, u = acc(t, 1), acc(t, 3)
        for hh in range(2):
            T = 16 + (n & 1) * 8; n += 1
            G, U = g + 8*hh, u + 8*hh
            for p in range(4): a(f"v_pk_mul_f32 {vr(T+2*p,2)}, {vr(G+2*p,2)}, {vr(G+2*p,2)}")
            for p in range(4): a(f"v_pk_fma_f32 {vr(T+2*p,2)}, {vr(T+2*p,2)}, v[10:11], v[12:13]")
            for p in range(4): a(f"v_pk_mul_f32 {vr(T+2*p,2)}, {vr(T+2*p,2)}, {vr(G+2*p,2)}")
            for p in range(8): a(f"v_exp_f32 v{T+p}, v{T+p}")
            for p in range(4): a(f"v_pk_mul_f32 {vr(U+2*p,2)}, {vr(U+2*p,2)}, {vr(G+2*p,2)}")
            for p in range(4): a(f"v_pk_add_f32 {vr(T+2*p,2)}, {vr(T+2*p,2)}, 1.0 op_sel_hi:[1,0]")
            for p in range(8): a(f"v_rcp_f32 v{T+p}, v{T+p}")
            for p in range(4): a(f"v_pk_mul_f32 {vr(U+2*p,2)}, {vr(U+2*p,2)}, {vr(T+2*p,2)}")
            o = HP + (t*2 + hh) * 4
            for p in range(4): a(f"v_cvt_pk_bf16_f32 v{o+p}, v{U+2*p}, v{U+2*p+1}")
    stamp(a, 7, VS)

PUBS = int(ENV("PUBS", "21"))

def p1_loader(a):
    a.label("L_loader")
    a(f"s_sub_u32 s65, s{sWAVE}, 4")
    a("s_lshl_b32 s66, s65, 3")
    a("v_add_u32 v8, s66, v8")
    a("v_lshrrev_b32 v5, 4, v2")
    a("s_and_b32 s66, s65, 1")
    a("s_lshl_b32 s66, s66, 2")
    a("v_add_u32 v5, s66, v5")
    a("v_xor_b32 v5, v5, v4")
    a("v_lshlrev_b32 v5, 4, v5")
    a("v_lshl_add_u32 v12, v8, 10, v5")
    a(f"s_lshl_b32 s74, s{sMB}, 17")
    a("s_lshl_b32 s75, s65, 10")
    a(f"s_lshl_b32 s90, s{sNB}, 1")
    a(f"s_add_u32 s90, s90, s{sMB}")
    if ENV("ROT", "1") == "2":
        a(f"s_lshr_b32 s91, s{sNB}, 2")
        a("s_add_u32 s90, s90, s91")
    if ENV("ROT", "1") == "0": a("s_mov_b32 s90, 0")
    if ENV("ROT", "1") in ("3", "4"):
        a(f"s_add_u32 s90, s{sNB}, s{sMB}")
        a(f"s_lshl_b32 s90, s90, {1 if ENV('ROT') == '3' else 2}")
    a("s_lshl_b32 s91, s90, 1")
    issued = []
    DNT = " nt" if ENV("DNT") else ""
    PNT = " nt" if ENV("PNT") else ""
    def dma(voff, srdn, soff, m0val, pre):
        a(f"s_add_u32 m0, s75, {m0val}")
        a(pre)
        a(f"buffer_load_dwordx4 v{voff}, {SR(srdn)}, s{soff} offen{DNT} lds")
    def itemsW(s):
        base, size = wslot(s)
        free = max([-1] + [p for p in range(s) if wslot(p)[0] < base + size and base < wslot(p)[0] + wslot(p)[1]])
        def f(u):
            def g():
                if u == 0:
                    a(f"s_add_u32 s92, s91, {s if s < 16 else s + 2*KROT}")
                    a("s_and_b32 s92, s92, 15")
                    if s < 16:
                        a(f"s_mul_i32 s93, s92, {32*3072}")
                        a("s_mul_i32 s92, s92, s73")
                    else: a(f"s_mul_i32 s92, s92, {32*3584}")
                if s < 16:
                    if u == 0: dma(13, S_WA, 76, base, "s_add_u32 s76, s71, s92")
                    if u == 1: dma(13, S_WB, 76, base + 4096, "s_add_u32 s76, s69, s92")
                    if u == 2: dma(11, S_WC, 76, base + 8192, "s_add_u32 s76, s70, s93")
                else:
                    dma(10, (S_G, S_U)[u], 76, base + 4096*u, "s_add_u32 s76, s70, s92")
                issued.append(("W", s))
            return g
        return [(free, f(u)) for u in range(3 if s < 16 else 2)]
    def itemsX(j):
        base = LX + (j % NXS) * XSLOT
        def f(m):
            def g():
                if m == 0:
                    a(f"s_add_u32 s99, s90, {j if j < 8 else j + KROT}")
                    a("s_and_b32 s99, s99, 7")
                    a("s_lshl_b32 s99, s99, 7")
                    a("s_add_u32 s99, s99, s74")
                dma(12, S_X, 76, base + m*4096, f"s_add_u32 s76, s99, {m*32768}")
                issued.append(("X", j))
            return g
        if 8 <= j < 8 + NXS: return []
        return [(2*(j-NXS) + 1, f(m)) for m in range(4)]
    queue = []
    for j in range(16): queue += itemsX(j) + itemsW(2*j) + itemsW(2*j+1)
    def issue(nmax, bar):
        n = 0
        while queue and n < nmax and queue[0][0] <= bar:
            queue.pop(0)[1](); n += 1
    def wait_stage(s):
        assert sum(e == ("W", s) for e in issued) == (3 if s < 16 else 2) and sum(e == ("X", s // 2) for e in issued) == (0 if 8 <= s // 2 < 8 + NXS else 4), s
        last = max(k for k, e in enumerate(issued) if e == ("W", s) or e == ("X", s // 2))
        n = len(issued) - 1 - last
        assert n <= 63
        a(f"s_waitcnt vmcnt({n})")
    def wait_tag(tag):
        n = len(issued) - 1 - max(k for k, e in enumerate(issued) if e == tag)
        assert n <= 63
        a(f"s_waitcnt vmcnt({n})")
    issue(4, -1)
    a("s_lshl_b32 s66, s65, 8")
    a("s_or_b32 s66, s66, s2")
    a(f"s_cselect_b32 s83, {OOB:#x}, 0")
    a(f"s_add_u32 s84, s83, {WS_TAG}")
    a("v_mov_b32 v5, 0")
    a(f"buffer_load_dword v14, v5, {WSR}, s84 offen{ST}")
    issued.append(("T", 0))
    srd(a, S_G, 12, 13, 512 * 3584)
    srd(a, S_U, 14, 15, 512 * 3584)
    srd(a, S_WC, 6, 7, 512 * 3072)
    a(f"s_cmp_eq_u32 s{sVC}, 1")
    a(f"s_cselect_b32 s{S_WA}, s6, s12")
    a(f"s_cselect_b32 s{S_WA+1}, s7, s13")
    a(f"s_cselect_b32 s{S_WA+2}, s{S_WC+2}, s{S_G+2}")
    a(f"s_mov_b32 s{S_WA+3}, 0x00020000")
    a(f"s_cselect_b32 s{S_WB}, s6, s14")
    a(f"s_cselect_b32 s{S_WB+1}, s7, s15")
    a(f"s_mov_b32 s{S_WB+2}, s{S_WA+2}")
    a(f"s_mov_b32 s{S_WB+3}, 0x00020000")
    a("s_movk_i32 s66, 3072")
    a("s_cselect_b32 s66, s66, 3584")
    a("v_mul_u32_u24 v6, 3584, v8")
    a("v_add_u32 v10, v6, v9")
    a("v_mul_u32_u24 v6, 3072, v8")
    a("v_add_u32 v11, v6, v9")
    a("v_mul_u32_u24 v6, s66, v8")
    a("v_add_u32 v13, v6, v9")
    a("s_lshl_b32 s73, s66, 5")
    a("s_lshl_b32 s67, s81, 7")
    a(f"s_lshr_b32 s68, s{sNB}, 2")
    a("s_lshl_b32 s68, s68, 8")
    a("s_add_u32 s68, s68, 2048")
    a("s_add_u32 s69, s68, 128")
    a(f"s_cmp_eq_u32 s{sVC}, 1")
    a("s_cselect_b32 s71, s68, s67")
    a("s_cselect_b32 s69, s69, s67")
    a("s_mov_b32 s94, s71")
    a("s_mov_b32 s95, s69")
    a(f"s_lshl_b32 s70, s{sNB}, 7")
    PFK = ENV("PF", "0") == "4"
    if PFK:
        issue(3, -1)
        a("s_lshr_b32 s66, s2, 1")
        a("s_and_b32 s67, s2, 1")
        a("s_mul_i32 s68, s66, 3072")
        a("s_mul_i32 s76, s67, 1536")
        a("s_add_u32 s68, s68, s76")
        a("s_mul_i32 s66, s66, 3584")
        a("s_mul_i32 s67, s67, 768")
        a("s_add_u32 s66, s66, s67")
        a("s_add_u32 s66, s66, 2048")
        a("s_lshl_b32 s67, s2, 13")
        a("s_cmp_eq_u32 s65, 1")
        a("s_cselect_b32 s66, s68, s66")
        a("s_cselect_b32 s76, 11, 5")
        a(f"s_mov_b32 s77, {128*3584}")
        a(f"s_cselect_b32 s77, {128*3072}, s77")
        a("s_cselect_b32 s94, s6, s12")
        a("s_cselect_b32 s95, s7, s13")
        a("s_cmp_eq_u32 s65, 3")
        a("s_cselect_b32 s94, s14, s94")
        a("s_cselect_b32 s95, s15, s95")
        a("v_min_u32 v28, s76, v2")
        a("v_lshl_add_u32 v28, v28, 7, s66")
        a("v_bfe_u32 v29, v2, 1, 3")
        a("v_lshl_add_u32 v29, v29, 10, s67")
        a("v_and_b32 v27, 1, v2")
        a("v_lshl_add_u32 v29, v27, 7, v29")
        a("s_cmp_eq_u32 s65, 0")
        a("s_cselect_b32 s94, s4, s94")
        a("s_cselect_b32 s95, s5, s95")
        a("s_cselect_b32 s77, 256, s77")
        a("s_cselect_b64 vcc, -1, 0")
        a("v_cndmask_b32 v28, v28, v29, vcc")
        for n in [int(x) for x in ENV("PFPOS", "0,3,7,3").split(",")]:
            issue(n, -1)
            a("s_mov_b64 exec, 0xffff")
            a("global_load_dword v30, v28, s[94:95]")
            a("s_mov_b64 exec, -1")
            a("v_add_u32 v28, s77, v28")
            issued.append(("P", 0))
    else:
        issue(int(ENV("FIRST", "10")), -1)
    def prefetch(kinds):
        a("s_mov_b32 s94, s4"); a("s_mov_b32 s95, s5")
        for r in (66, 67, 68, 76): a(f"s_mov_b32 s{r}, 0")
        a("s_mov_b32 s77, 0")
        for lw, k in enumerate(kinds):
            if k is None: continue
            p, per, first, n, T, J = k
            a(f"s_cmp_eq_u32 s65, {lw}")
            a(f"s_cselect_b32 s94, s{p}, s94")
            a(f"s_cselect_b32 s95, s{p+1}, s95")
            a(f"s_cselect_b32 s66, {per}, s66")
            a(f"s_cselect_b32 s67, {first}, s67")
            a(f"s_cselect_b32 s68, {n-1}, s68")
            a(f"s_cselect_b32 s76, {T}, s76")
            a(f"s_cselect_b32 s77, {J}, s77")
        a("s_mul_i32 s66, s66, s2")
        a("s_add_u32 s66, s66, s67")
        a("v_min_u32 v28, s68, v2")
        a("v_mov_b32 v29, s77")
        a("v_cmp_le_u32 vcc, s76, v28")
        a("v_lshl_add_u32 v28, v28, 7, s66")
        a("v_cndmask_b32 v29, 0, v29, vcc")
        a("v_add_u32 v28, v28, v29")
        a("global_load_dword v30, v28, s[94:95]")
        issued.append(("P", 0))
    PF = ENV("PF", "0") in ("1", "3")
    PFX = ENV("PF", "0") in ("2", "3")
    def prefetch_x1():
        a("s_lshr_b32 s66, s2, 3")
        a("s_and_b32 s67, s2, 1")
        a("s_lshl_b32 s67, s67, 20")
        a("s_lshl_b32 s68, s66, 15")
        a("s_add_u32 s67, s67, s68")
        a("s_lshl_b32 s68, s65, 13")
        a("s_add_u32 s67, s67, s68")
        a("v_lshlrev_b32 v28, 7, v2")
        a("s_and_b32 s66, s66, 7")
        a("s_lshl_b32 s66, s66, 6")
        a("v_add_u32 v27, s66, v2")
        a("s_lshr_b32 s68, s73, 5")
        a("v_mul_u32_u24 v29, s68, v27")
        a("v_mul_u32_u24 v26, 3072, v27")
        a("s_cmp_eq_u32 s65, 0")
        a(f"s_cselect_b32 s66, s94, {OOB:#x}")
        a(f"buffer_load_dword v30, v29, {SR(S_WA)}, s66 offen{PNT}")
        a("s_cmp_eq_u32 s65, 1")
        a(f"s_cselect_b32 s66, s95, {OOB:#x}")
        a(f"buffer_load_dword v30, v29, {SR(S_WB)}, s66 offen{PNT}")
        a(f"s_lshl_b32 s66, s{sNB}, 7")
        a("s_cmp_eq_u32 s65, 2")
        a(f"s_cselect_b32 s66, s66, {OOB:#x}")
        a(f"buffer_load_dword v30, v26, {SR(S_WC)}, s66 offen{PNT}")
        a(f"buffer_load_dword v30, v28, {SR(S_X)}, s67 offen{PNT}")
        issued.extend([("P", 0)] * 4)
    def prefetch_x2():
        a("v_mul_u32_u24 v29, 3584, v27")
        a(f"s_lshl_b32 s67, s{sNB}, 7")
        a("s_cmp_eq_u32 s65, 1")
        a(f"s_cselect_b32 s66, s67, {OOB:#x}")
        a(f"buffer_load_dword v30, v29, {SR(S_G)}, s66 offen{PNT}")
        a("s_cmp_eq_u32 s65, 2")
        a(f"s_cselect_b32 s66, s67, {OOB:#x}")
        a(f"buffer_load_dword v30, v29, {SR(S_U)}, s66 offen{PNT}")
        issued.extend([("P", 0)] * 2)
    if PFX and not PF: prefetch_x1()
    if PF: prefetch([(4, 8192, 0, 64, 0, 0), (6, 6144, 0, 48, 0, 0), (12, 7168, 2048, 24, 12, 2048), (14, 7168, 2048, 24, 12, 2048)])
    srd(a, S_RO, 8, 9, 512 * 1024)
    a("v_and_b32 v15, 7, v8")
    a("v_lshl_add_u32 v15, v15, 10, v9")
    a("s_lshl_b32 s78, s65, 11")
    a(f"s_add_u32 s78, s78, {LRD}")
    a("s_lshr_b32 s66, s2, 3")
    a("s_and_b32 s67, s2, 7")
    a("s_lshl_b32 s66, s66, 14")
    a("s_lshl_b32 s67, s67, 7")
    a("s_add_u32 s66, s66, s67")
    a("s_and_b32 s67, s65, 1")
    a("s_lshl_b32 s68, s67, 13")
    a("s_lshl_b32 s67, s67, 10")
    a(f"s_add_u32 m0, s67, {LRO}")
    a("s_add_u32 s66, s66, s68")
    a(f"buffer_load_dwordx4 v15, {SR(S_RO)}, s66 offen{PNT} lds")
    issued.append(("P", 1))
    issue(int(ENV("BURST", "0")), -1)
    a("v_bfe_u32 v18, v2, 2, 2")
    a("v_and_b32 v31, 3, v2")
    a("v_bfe_u32 v19, v2, 4, 1")
    a("v_lshlrev_b32 v31, 3, v31")
    a("v_lshl_or_b32 v31, v19, 5, v31")
    a("v_lshrrev_b32 v19, 1, v18")
    a("v_lshl_or_b32 v31, v19, 6, v31")
    a("v_lshl_or_b32 v31, v18, 7, v31")
    a("v_lshrrev_b32 v19, 5, v2")
    a("v_lshl_or_b32 v31, v19, 9, v31")
    a("v_add_u32 v18, s78, v31")
    a("v_xor_b32 v19, 64, v18")
    a("s_cmp_eq_u32 s65, 0")
    a(f"s_cselect_b32 s82, s82, {OOB:#x}")
    a(f"s_cselect_b32 s85, 0, {OOB:#x}")
    a("v_mov_b32 v6, 1")
    a("v_lshlrev_b32 v4, 7, v2")
    for i in range(4): a(f"s_add_u32 s{86+i}, s85, {WS_F1 + i*8192}")
    stamp(a, 2, VS)
    wait_stage(0)
    stamp(a, 3, VS)
    a("s_barrier")
    a("v_add_u32 v14, 1, v14")
    a("v_max_u32 v14, 1, v14")
    one_lane(a, f"buffer_store_dword v14, v5, {WSR}, s84 offen{ST}")
    issued.append(("T", 1))
    def ld1():
        for i in range(4): a(f"buffer_load_dwordx2 {vr(20+2*i,2)}, v4, {WSR}, s{86+i} offen{ST}")
    PER1, PER2, PSW = [int(x) for x in ENV("PER", "6,4,12").split(",")]
    issue(int(ENV("PER0", "6")), -1)
    def cmp1():
        for i in range(4):
            a(f"v_xor_b32 v{20+2*i}, v{20+2*i}, v16")
            a(f"v_xor_b32 v{21+2*i}, v{21+2*i}, v17")
        a("v_or3_b32 v20, v20, v21, v22")
        a("v_or3_b32 v23, v23, v24, v25")
        a("v_or3_b32 v20, v20, v26, v27")
        a("v_or_b32 v20, v20, v23")
        a("v_cmp_ne_u32 vcc, 0, v20")
    def ltable(t, regs):
        for i in range(8): a(f"v_mov_b32 v{HP+8+i}, -1")
        r = regs[2]
        a(f"s_lshl_b32 s{r}, s{sQB}, 3")
        a(f"s_lshl_b32 s{t}, s65, 1")
        a(f"s_add_u32 s{r}, s{r}, s{t}")
        a(f"s_mul_i32 s{r}, s{r}, {144*1024}")
        a(f"s_lshl_b32 s{t}, s{sHEAD}, 10")
        a(f"s_add_u32 s{r}, s{r}, s{t}")
        a(f"s_add_u32 s{r}, s{r}, {WS_AF}")
        a(f"s_add_u32 s{regs[3]}, s{r}, {144*1024}")
    a(f"s_lshr_b32 s66, s{sHEAD}, 2")
    a("s_lshl_b32 s67, s66, 11")
    a(f"s_lshl_b32 s68, s{sQB}, 8")
    a("s_add_u32 s68, s68, s67")
    a(f"s_add_u32 s67, s67, {8*2048}")
    a(f"s_lshr_b32 s66, s{sHEAD}, 3")
    a("s_lshl_b32 s66, s66, 13")
    a(f"s_add_u32 s66, s66, {2*2048}")
    a("v_add_u32 v70, s67, v4")
    a("v_add_u32 v71, s66, v4")
    a("v_and_b32 v72, 1, v2")
    a("v_lshl_add_u32 v72, v72, 7, s68")
    a("v_cmp_gt_u32 vcc, 32, v2")
    a("v_cndmask_b32 v71, v72, v71, vcc")
    a("v_cmp_gt_u32 vcc, 16, v2")
    a("v_cndmask_b32 v70, v71, v70, vcc")
    def lda(): a(f"buffer_load_dwordx2 v[72:73], v70, {WSR}, s86 offen{ST}")
    def cmpa():
        a("v_xor_b32 v72, v72, v16")
        a("v_xor_b32 v73, v73, v17")
        a("v_or_b32 v72, v72, v73")
        a("v_cmp_ne_u32 vcc, 0, v72")
    a(f"v_mov_b32 v7, {LCNT}")
    SIDE1, SIDE2 = [int(x) for x in ENV("SIDE", "16,24").split(",")]
    def side_out():
        wait_tag(("S", 0))
        for nl in range(2):
            for j in range(2): a(f"ds_read_b64_tr_b16 {vr(HP+4*nl+2*j,2)}, v{18+nl} offset:{j*1024}")
        a("v_mov_b32 v64, 0")
        a("v_mov_b32 v65, 0")
        for i in range(4):
            a(f"v_dot2_f32_bf16 v64, v{48+i}, v{56+i}, v64")
            a(f"v_dot2_f32_bf16 v65, v{52+i}, v{56+i}, v65")
        a("v_cmp_eq_u32 vcc, 0, v2")
        a("s_waitcnt lgkmcnt(0)")
        for mod in ("quad_perm:[1,0,3,2]", "quad_perm:[2,3,0,1]", "row_half_mirror", "row_mirror"):
            for r in (64, 65): a(f"v_add_f32_dpp v{r}, v{r}, v{r} {mod} row_mask:0xf bank_mask:0xf")
        for r, sb in ((64, 66), (65, 56)):
            for q in range(4): a(f"v_readlane_b32 s{sb+q}, v{r}, {16*q}")
        a("v_mov_b32 v66, s66")
        a("v_mov_b32 v67, s56")
        for q in range(1, 4):
            a(f"v_add_f32 v66, s{66+q}, v66")
            a(f"v_add_f32 v67, s{56+q}, v67")
        a("v_cndmask_b32 v66, v67, v66, vcc")
        a(f"v_mul_f32 v66, {f32(-LOG2E)}, v66")
        a("v_exp_f32 v66, v66")
        a("v_lshlrev_b32 v68, 2, v2")
        a("v_add_f32 v66, 1.0, v66")
        a("v_rcp_f32 v66, v66")
        a("s_lshl_b32 s71, s71, 2")
        a(f"s_add_u32 s71, s71, {WS_G}")
        one_lane(a, f"buffer_store_dword v66, v68, {WSR}, s71 offen{ST}", 3)
        issued.append(("S", 1))
    for s in range(LASTB + 1):
        E0 = int(ENV("EARLY", "-100"))
        if s in (4, 10, 16, 24) and E0 < 0: stamp(a, {4: 4, 10: 5, 16: 6, 24: 7}[s], VS)
        if 0 <= s - E0 < 6: stamp(a, [4, 7, 24, 27, 21, 30][s - E0], VS)
        if s == LASTB:
            assert not queue
            wait_stage(31)
        else: wait_stage(s + 1)
        if 0 <= s - E0 < 6: stamp(a, [5, 8, 25, 28, 22, 31][s - E0], VS)
        a("s_barrier")
        if 0 <= s - E0 < 5: stamp(a, [6, 9, 26, 29, 23][s - E0], VS)
        issue(PER1 if s < PSW else PER2, s)
        if s == 3:
            wait_tag(("T", 1))
            one_lane(a, f"buffer_store_dword v14, v5, {SR(S_DBG)}, s83 offen{ST}")
            issued.append(("T", 2))
        if s == int(ENV("PFB", "5")) and (PF or PFK):
            prefetch([(16, 7168, 0, 56, 0, 0), None, (12, 7168, 0, 32, 16, 1536), (14, 7168, 0, 32, 16, 1536)])
        if s == int(ENV("PFB", "5")) and PFX: prefetch_x2()
        if s == 9:
            a("s_cmp_lg_u32 s65, 0")
            a("s_cbranch_scc1 L_nowo2")
            for nl in range(2):
                for j in range(2): a(f"ds_read_b64_tr_b16 {vr(36+4*nl+2*j,2)}, v{18+nl} offset:{LRO - LRD + j*1024}")
            a("s_lshr_b32 s66, s2, 3")
            a("s_and_b32 s67, s2, 7")
            a(f"s_mul_i32 s67, s67, {2*144*1024}")
            a("s_lshl_b32 s66, s66, 10")
            a("s_add_u32 s66, s66, s67")
            a(f"s_add_u32 s66, s66, {WS_WF}")
            a(f"s_add_u32 s67, s66, {144*1024}")
            a(f"s_lshl_b32 s68, s{sMB}, 11")
            a(f"s_lshl_b32 s76, s{sNB}, 7")
            a("s_add_u32 s68, s68, s76")
            a(f"s_add_u32 s68, s68, {WS_F2}")
            a(f"s_lshl_b32 s76, s{sQB}, 12")
            a(f"s_lshl_b32 s77, s{sHEAD}, 7")
            a("s_add_u32 s76, s76, s77")
            a(f"s_add_u32 s76, s76, {WS_F3}")
            zero(a, 44, 4)
            a("s_waitcnt lgkmcnt(0)")
            a(f"buffer_store_dwordx4 v[36:39], v3, {WSR}, s66 offen{STS}")
            a(f"buffer_store_dwordx4 v[40:43], v3, {WSR}, s67 offen{STS}")
            a("s_mov_b64 exec, 1")
            a(f"buffer_store_dwordx4 v[44:47], v3, {WSR}, s68 offen{STS}")
            a(f"buffer_store_dword v44, v3, {WSR}, s76 offen{ST}")
            a("s_mov_b64 exec, -1")
            a.label("L_nowo2")
        if s == SIDE1:
            srd(a, S_RD, 16, 17, 1792 * 1024)
            srd(a, S_GW, 18, 19, 1024)
            a(f"s_mul_i32 s66, s{sHEAD}, 3")
            a("s_add_u32 s66, s66, s65")
            a(f"s_add_u32 s67, s{sHEAD}, 96")
            a("s_cmp_eq_u32 s65, 3")
            a("s_cselect_b32 s66, s67, s66")
            a("s_lshl_b32 s69, s66, 14")
            a(f"s_lshl_b32 s68, s{sQB}, 7")
            a("s_mov_b32 m0, s78")
            a("s_add_u32 s69, s69, s68")
            a(f"buffer_load_dwordx4 v15, {SR(S_RD)}, s69 offen{PNT} lds")
            a("s_add_u32 m0, s78, 1024")
            a("s_add_u32 s69, s69, 8192")
            a(f"buffer_load_dwordx4 v15, {SR(S_RD)}, s69 offen{PNT} lds")
            a(f"s_mul_i32 s79, s{sQB}, {2*144*1024}")
            a("s_lshl_b32 s67, s66, 10")
            a("s_add_u32 s79, s79, s67")
            a(f"s_add_u32 s79, s79, {WS_WF + 32*1024}")
            a("s_cmp_lt_u32 s66, 112")
            a(f"s_cselect_b32 s79, s79, {OOB:#x}")
            a(f"s_add_u32 s80, s79, {144*1024}")
            a(f"s_lshl_b32 s71, s{sMB}, 7")
            a(f"s_lshl_b32 s67, s{sNB}, 3")
            a("s_add_u32 s71, s71, s67")
            a("s_lshl_b32 s67, s65, 1")
            a("s_add_u32 s71, s71, s67")
            a("s_lshl_b32 s67, s71, 10")
            a(f"buffer_load_dwordx4 v[48:51], v3, {SR(S_X)}, s67 offen")
            a(f"buffer_load_dwordx4 v[52:55], v3, {SR(S_X)}, s67 offen offset:1024")
            a(f"buffer_load_dwordx4 v[56:59], v3, {SR(S_GW)}, 0 offen")
            issued.extend([("S", 0)] * 5)
        if s == SIDE2:
            side_out()
            if LEARLY:
                ltable(68, (79, 80, 66, 67))
                for n, r in enumerate((79, 80, 66, 67)): a(f"buffer_store_dwordx4 {vr(HP+4*n)}, v3, {WSR}, s{r} offen{STS}")
                issued.extend([("S", 1)] * 4)
        if s == 14:
            a(f"buffer_load_dword v16, v5, {SR(S_DBG)}, s85 offen{ST}")
            issued.append(("T", 3))
        if s == PUBS:
            a("s_cmp_lg_u32 s65, 0")
            a("s_cbranch_scc1 L_f1done")
            wait_tag(("T", 3))
            a("v_cmp_eq_u32 vcc, 0, v16")
            a("s_cbranch_vccz L_pt_ok")
            poll(a, "L_pt", lambda: a(f"buffer_load_dword v16, v5, {SR(S_DBG)}, 0 offen{ST}"), lambda: a("v_cmp_eq_u32 vcc, 0, v16"))
            a("v_not_b32 v17, v16")
            one_lane(a, f"buffer_store_dwordx2 v[16:17], v5, {WSR}, s82 offen{ST}")
            a.label("L_f1done")
        if s == LASTB - 1:
            lda(); issued.append(("F", 0))
    a("s_cmp_ge_u32 s65, 2")
    a("s_cbranch_scc1 L_nocs")
    const_setup(a, 9, 32, 8)
    const_write(a, 9, 32)
    a.label("L_nocs")
    if E0 < 0: stamp(a, 8, VS)
    a("s_cmp_lg_u32 s65, 0")
    a("s_cbranch_scc1 L_wl")
    a("s_waitcnt vmcnt(0)")
    cmpa()
    a("s_cbranch_vccz L_ps1_ok")
    poll(a, "L_ps1", lda, cmpa)
    a("ds_write_b32 v7, v6")
    a("s_branch L_wl_ok")
    a.label("L_wl")
    a(f"s_mov_b32 s98, {SPIN*8}")
    a.label("L_wl2")
    a("ds_read_b32 v8, v7")
    a("s_waitcnt lgkmcnt(0)")
    a("v_cmp_ne_u32 vcc, 1, v8")
    a("s_cbranch_vccz L_wl_ok")
    a("s_sleep 1")
    a("s_sub_u32 s98, s98, 1")
    a("s_cmp_lg_u32 s98, 0")
    a("s_cbranch_scc1 L_wl2")
    a.label("L_wl_ok")
    if E0 < 0: stamp(a, 9, VS)
    a(f"s_lshl_b32 s56, s{sHEAD}, 16")
    a(f"s_lshl_b32 s67, s{sQB}, 13")
    a("s_lshl_b32 s57, s65, 11")
    a("s_add_u32 s59, s67, s57")
    a("s_add_u32 s67, s59, s56")
    a(f"s_add_u32 m0, s57, {LQI}")
    a(f"s_add_u32 s67, s67, {WS_QK}")
    for i in range(2): a(f"buffer_load_dwordx4 v3, {WSR}, s67 offen offset:{i*1024}{ST} lds")
    a(f"s_mul_i32 s58, s65, {2*VST}")
    kv8(a, 0)
    a(f"s_mov_b32 s{DT}, s79")
    a(f"s_mov_b32 s{DT+1}, s80")
    ltable(68, (DT, DT+1, DT+2, DT+3))
    a(f"v_mov_b32 v{WO}, v16")
    a(f"v_mov_b32 v{WO+1}, v17")
    a("s_branch L_attn")

def kv8(a, p0):
    a(f"s_add_u32 s94, s59, {p0*1024}")
    a("s_and_b32 s94, s94, 0xffff")
    a("s_add_u32 s94, s94, s56")
    a(f"s_add_u32 m0, s57, {LK + p0*1024}")
    a(f"s_add_u32 s67, s94, {WS_QK + 32*65536}")
    for i in range(2): a(f"buffer_load_dwordx4 v3, {WSR}, s67 offen offset:{i*1024}{ST} lds")
    a(f"s_add_u32 s67, s94, {WS_V}")
    for i in range(2):
        a(f"s_add_u32 m0, s58, {LV + (p0+i)*VST - i*1024}")
        a(f"buffer_load_dwordx4 v3, {WSR}, s67 offen offset:{i*1024}{ST} lds")

LEARLY = False
def const_setup(a, va, vd, t):
    a(f"v_and_b32 v{t}, 255, v0")
    a(f"v_lshrrev_b32 v{va}, 2, v{t}")
    a(f"v_mul_u32_u24 v{va}, {VST}, v{va}")
    a(f"v_and_b32 v{t}, 3, v{t}")
    a(f"v_mul_u32_u24 v{t}, v{t}, v{t}")
    a(f"v_min_u32 v{t}, 4, v{t}")
    a(f"v_lshl_add_u32 v{va}, v{t}, 4, v{va}")
    a(f"v_add_u32 v{va}, {LV + 1024}, v{va}")
    a(f"v_mov_b32 v{vd}, 0x3f803f80")
    if ONE_ROW:
        a(f"v_cmp_eq_u32 vcc, 0, v{t}")
        a(f"v_cndmask_b32 v{vd}, 0, v{vd}, vcc")
    a(f"v_mov_b32 v{vd+1}, v{vd}")
def const_write(a, va, vd):
    a(f"ds_write_b64 v{va}, {vr(vd,2)}")
    a(f"ds_write_b64 v{va}, {vr(vd,2)} offset:8")

def attn(a):
    a.label("L_attn")
    a(f"s_and_b32 s65, s{sWAVE}, 3")
    a(f"s_lshr_b32 s66, s{sWAVE}, 2")
    a("s_lshl_b32 s67, s66, 10")
    a(f"v_add_u32 v{VK}, s67, v3")
    a(f"v_add_u32 v8, {VROT}, v2")
    a("v_and_b32 v8, 15, v8")
    a("v_lshrrev_b32 v9, 5, v2")
    a("v_lshl_or_b32 v8, v9, 4, v8")
    a("v_lshlrev_b32 v8, 4, v8")
    a("v_add_u32 v9, 512, v8")
    a("v_and_b32 v10, 31, v2")
    a("v_subrev_u32 v11, 20, v10")
    a("v_cmp_gt_u32 vcc, 8, v11")
    a("v_mov_b32 v11, 1040")
    a("v_mov_b32 v12, 1088")
    a("v_cndmask_b32 v11, v11, v12, vcc")
    a("v_cmp_eq_u32 vcc, 16, v10")
    a("v_mov_b32 v12, 1024")
    a("v_cndmask_b32 v11, v11, v12, vcc")
    a("v_cmp_gt_u32 vcc, 16, v10")
    a("v_cndmask_b32 v8, v11, v8, vcc")
    a("v_cndmask_b32 v9, v11, v9, vcc")
    a(f"s_mul_i32 s67, s66, {VST}")
    a(f"s_add_u32 s67, s67, {LV}")
    a(f"v_add_u32 v{VV0}, s67, v8")
    a(f"v_add_u32 v{VV1}, s67, v9")
    a("s_lshl_b32 s67, s65, 11")
    a(f"s_add_u32 s67, s67, {LQI}")
    a("v_add_u32 v20, s67, v3")
    zero(a, OA, 32); zero(a, V1, 4); zero(a, GACC, 32); zero(a, GFR, 36)
    T0 = GFR + 36
    a(f"s_lshl_b32 s73, s{sMB}, 11")
    a(f"s_lshl_b32 s74, s{sNB}, 7")
    a("s_add_u32 s73, s73, s74")
    a(f"s_add_u32 s73, s73, {WS_F2}")
    a(f"s_lshl_b32 s74, s{sQB}, 12")
    a(f"s_lshl_b32 s75, s{sHEAD}, 7")
    a("s_add_u32 s74, s74, s75")
    a(f"s_add_u32 s74, s74, {WS_F3}")
    a(f"v_mov_b32 v{T0+2}, s73")
    a(f"v_writelane_b32 v{T0+2}, s74, 1")
    a(f"v_mov_b32 v{T0+3}, 1")
    a(f"v_mov_b32 v{T0+4}, {LCNT+4}")
    g = T0 + 5
    a(f"v_and_b32 v{g+2}, 15, v2")
    a(f"v_lshlrev_b32 v{g+2}, 7, v{g+2}")
    a(f"s_lshr_b32 s74, s{sHEAD}, 1")
    a("s_lshl_b32 s74, s74, 11")
    a(f"s_add_u32 s74, s74, {WS_F2}")
    a(f"s_lshl_b32 s88, s{sQB}, 12")
    a(f"s_lshr_b32 s89, s{sHEAD}, 2")
    a("s_lshl_b32 s89, s89, 12")
    a("s_sub_u32 s89, s89, 4096")
    a(f"v_mov_b32 v{g}, s88")
    a(f"v_mov_b32 v{g+1}, s89")
    a("v_cmp_gt_u32 vcc, 32, v2")
    a(f"v_cndmask_b32 v{g}, v{g+1}, v{g}, vcc")
    a(f"v_lshl_add_u32 v{g+3}, v2, 7, v{g}")
    a(f"s_mov_b32 s88, {WS_F3}")
    a(f"s_and_b32 s68, s{sWAVE}, 1")
    a(f"s_lshr_b32 s69, s{sWAVE}, 1")
    a(f"s_lshl_b32 s84, s{sHEAD}, 1")
    a("s_add_u32 s84, s84, s68")
    a(f"s_mul_i32 s85, s84, {144*1024}")
    a(f"s_add_u32 s85, s85, {WS_AF}")
    a(f"s_mul_i32 s86, s{sQB}, {2*144*1024}")
    a(f"s_add_u32 s86, s86, {WS_WF}")
    a(f"s_mul_i32 s75, s69, {28*1024}")
    a(f"s_add_u32 s75, s75, {32*1024}")
    a("s_add_u32 s76, s85, s75")
    a("s_add_u32 s77, s86, s75")
    a(f"s_add_u32 s78, s77, {144*1024}")
    a("s_lshl_b32 s75, s69, 13")
    a("s_add_u32 s85, s85, s75")
    a("s_add_u32 s86, s86, s75")
    a(f"v_mov_b32 v{VG}, v3")
    a("s_movk_i32 s87, 4096")
    a(f"s_lshl_b32 s90, s{sHEAD}, 16")
    a(f"s_lshl_b32 s91, s{sWAVE}, 10")
    a(f"s_mul_i32 s92, s{sWAVE}, {VST}")
    a(f"s_lshl_b32 s93, s{sQB}, 13")
    a("s_add_u32 s93, s93, s91")
    const_setup(a, T0+9, T0+10, T0)
    a(f"s_lshr_b32 s95, s{sWAVE}, 2")
    a(f"s_or_b32 s95, s95, s{sVC}")
    a(f"v_lshlrev_b32 v{WO+2}, 7, v2")
    a(f"s_cmp_lt_u32 s{sWAVE}, 4")
    a("s_cbranch_scc1 L_x1")
    for p0 in (8, 16, 24): kv8(a, p0)
    a("s_waitcnt vmcnt(8)")
    a.label("L_x1")
    a("s_waitcnt lgkmcnt(0)")
    a("s_setprio 3")
    a("s_barrier")
    stamp(a, 10, VS)
    a(f"ds_read_b128 {vr(QA)}, v20")
    a(f"ds_read_b128 {vr(QB)}, v20 offset:1024")
    a(f"ds_read_b128 {vr(V0B)}, v3")
    a(f"ds_read_b128 {vr(KF)}, v{VK}")
    a(f"ds_read_b128 {vr(V0A)}, v{VV0}")
    a(f"s_cmp_lt_u32 s{sWAVE}, 6")
    a("s_cbranch_scc1 L_nocs2")
    const_write(a, T0+9, T0+10)
    a.label("L_nocs2")
    def kvops(groups):
        ops = []
        for p0 in groups:
            ops.append([f"s_add_u32 s94, s93, {p0*1024}", "s_and_b32 s94, s94, 0xffff", "s_add_u32 s94, s94, s90",
                        f"s_add_u32 m0, s91, {LK + p0*1024}", f"s_add_u32 s67, s94, {WS_QK + 32*65536}",
                        f"buffer_load_dwordx4 v3, {WSR}, s67 offen{ST} lds"])
            ops.append([f"s_add_u32 m0, s92, {LV + p0*VST}", f"s_add_u32 s67, s94, {WS_V}",
                        f"buffer_load_dwordx4 v3, {WSR}, s67 offen{ST} lds"])
        return ops
    def burst():
        for n in range(4): a(f"buffer_store_dwordx4 {vr(HP+4*n)}, v3, {WSR}, s{DT+n} offen{STS}")
        a("s_cmp_lg_u32 s95, 0")
        a("s_cbranch_scc1 L_st4")
        for n in range(4, 8): a(f"buffer_store_dwordx4 {vr(HP+4*n)}, v3, {WSR}, s{DT+n} offen{STS}")
        a.label("L_st4")
        stamp(a, 21, VS)
    BURSTK = int(ENV("BURSTK", "-1"))
    if BURSTK < 0: burst()
    a("s_waitcnt lgkmcnt(0)")
    a(f"{MF} {vr(SA,16)}, {vr(V0B)}, {vr(QA)}, 0")
    a(f"{MF} {vr(SB,16)}, {vr(V0B)}, {vr(QB)}, 0")
    rowmax(a, SA, T0)
    rowmax(a, SB, T0, acc=True)
    halfmax(a, T0, T0 + 1)
    for i in range(16): a(f"v_sub_f32 v{CC+i}, 0, v{T0}")
    a("s_waitcnt lgkmcnt(0)")
    a(f"{MF} {vr(SA,16)}, {vr(KF)}, {vr(QA)}, {vr(CC,16)}")
    zero(a, SB + 8, 4)
    a("s_nop 9")

    def tile(n, which, extra, extra0=lambda: None):
        S, T, O, OT, QT = (SA, SB, OA, OB, QB) if which == 0 else (SB, SA, OB, OA, QA)
        v0 = V0A if n % 2 == 0 else V0B
        v0n = V0B if n % 2 == 0 else V0A
        e = lambda i: a(f"v_exp_f32 v{S+i}, v{S+i}")
        c = lambda i: a(f"v_cvt_pk_bf16_f32 v{S + (i>>2)*8 + (i&3)}, v{S+2*i}, v{S+2*i+1}")
        e(0); e(1)
        if which == 1: a("s_waitcnt lgkmcnt(0)")
        a(f"{MF} {vr(OT,16)}, {vr(V1)}, {vr(T+8)}, {vr(OT,16)}")
        if which == 0:
            a(f"ds_read_b128 {vr(V1)}, v{VV1} offset:{2*n*VST}")
            a(f"ds_read_b128 {vr(v0n)}, v{VV0} offset:{2*(n+1)*VST}")
        e(2); e(3); e(4); e(5)
        a(f"{MF} {vr(T,16)}, {vr(KF)}, {vr(QT)}, {vr(CC,16)}")
        if which == 0: a(f"ds_read_b128 {vr(KF)}, v{VK} offset:{2*(n+1)*1024}")
        e(6); e(7); e(8)
        extra0()
        for i in range(4): c(i)
        e(9); e(10)
        a(f"{MF} {vr(O,16)}, {vr(v0)}, {vr(S)}, {vr(O,16)}")
        e(11); e(12); e(13); e(14)
        extra()
        e(15)
        for i in range(4, 8): c(i)
    def bump(n):
        a(f"v_add_u32 v{VK}, {2*n*1024}, v{VK}")
        a(f"v_add_u32 v{VV0}, {2*n*VST}, v{VV0}")
        a(f"v_add_u32 v{VV1}, {2*n*VST}, v{VV1}")
    PRIO = ENV("PRIO", "1") == "1"
    DPER, DRAIN = int(ENV("DPER", "1")), int(ENV("DRAIN", "10"))
    wo = list(range(16))
    g = T0 + 5
    def ld2():
        a(f"buffer_load_dword v{g}, v{g+2}, {WSR}, s74 offen{ST}")
        a(f"buffer_load_dword v{g+1}, v{g+3}, {WSR}, s88 offen{ST}")
    def cmp2():
        a(f"v_and_b32 v{g}, v{g}, v{g+1}")
        a(f"v_cmp_ne_u32 vcc, 1, v{g}")
    def ldswait(name, off, val):
        a(f"s_mov_b32 s98, {SPIN*8}")
        a.label(name)
        a(f"ds_read_b32 v{T0}, v{T0+1} offset:{off}")
        a("s_waitcnt lgkmcnt(0)")
        a(f"v_cmp_ne_u32 vcc, {val}, v{T0}")
        a(f"s_cbranch_vccz {name}_ok")
        a("s_sleep 1")
        a("s_sub_u32 s98, s98, 1")
        a("s_cmp_lg_u32 s98, 0")
        a(f"s_cbranch_scc1 {name}")
        a.label(f"{name}_ok")
    a(f"v_mov_b32 v{T0+1}, {LCNT}")
    S2W = int(ENV('S2WAVE', '0'))
    S2AT = int(ENV('S2AT', '14'))
    def ldwo(i):
        if i % 4 == 0: a(f"s_add_u32 s71, s86, {(i>>3)*144*1024 + (i&7)*1024}")
        a(f"buffer_load_dwordx4 {vr(WO + 4*i)}, v3, {WSR}, s71 offen offset:{(i&3)*1024}{ST}")
    PK = [int(x) for x in ENV("PK", "3,7,12").split(",")]
    ops = kvops((32, 40, 48, 56))
    ops = [(lambda l=l: [a(x) for x in l]) for l in ops] + [(lambda i=i: ldwo(i)) for i in range(16)]
    def ldb():
        for i in range(4):
            a(f"s_mov_b32 s70, {WS_F1 + i*8192}")
            a(f"buffer_load_dwordx2 {vr(WO+4+2*i,2)}, v{WO+2}, {WSR}, s70 offen{ST}")
    def cmpb():
        b = WO + 4
        for i in range(4):
            a(f"v_xor_b32 v{b+2*i}, v{b+2*i}, v{WO}")
            a(f"v_xor_b32 v{b+2*i+1}, v{b+2*i+1}, v{WO+1}")
        a(f"v_or3_b32 v{b}, v{b}, v{b+1}, v{b+2}")
        a(f"v_or3_b32 v{b+3}, v{b+3}, v{b+4}, v{b+5}")
        a(f"v_or3_b32 v{b}, v{b}, v{b+6}, v{b+7}")
        a(f"v_or_b32 v{b}, v{b}, v{b+3}")
        a(f"v_cmp_ne_u32 vcc, 0, v{b}")
    DRAIN = int(ENV("DRAIN", "5"))
    KVW = int(ENV("KVW", "10"))
    nkv = 8
    slots = 2 * (15 - DRAIN) - 1
    def emit_ops():
        nonlocal slots
        n = -(-len(ops) // slots); slots -= 1
        if kcur < KVW: n = min(1, len(ops) - 16)
        for _ in range(n): ops.pop(0)()
    for k in range(16):
        if PRIO and k in PK: a(f"s_setprio {2 - PK.index(k)}")
        kcur = k
        if k == KVW: ldswait("L_kvw", 4, 8)
        if k == S2AT:
            a(f"s_cmp_lg_u32 s{sWAVE}, {S2W}")
            a("s_cbranch_scc1 L_s2a")
            ld2()
            a.label("L_s2a")
        def extra():
            if k == BURSTK: burst()
            if k == DRAIN - 2:
                a(f"s_cmp_lg_u32 s{sWAVE}, 4")
                a("s_cbranch_scc1 L_s1b0")
                ldb()
                a.label("L_s1b0")
            if k == DRAIN:
                stamp(a, 23, VS)
                a("s_waitcnt vmcnt(0)")
                stamp(a, 24, VS)
                a(f"s_cmp_lg_u32 s{sWAVE}, 4")
                a("s_cbranch_scc1 L_ps1b_ok")
                cmpb()
                a("s_cbranch_vccz L_ps1b_ok")
                poll(a, "L_ps1b", ldb, cmpb)
                one_lane(a, f"ds_add_rtn_u32 v{T0+4}, v{T0+4}, v{T0+3}")
            if k > DRAIN: emit_ops()
        def extra0():
            if k == DRAIN + 1:
                a("s_waitcnt lgkmcnt(0)")
                a(f"v_readfirstlane_b32 s70, v{T0+4}")
                a("s_cmp_eq_u32 s70, 7")
                a(f"s_cselect_b32 s70, 0, {OOB:#x}")
                one_lane(a, f"buffer_store_dword v{T0+3}, v{T0+2}, {WSR}, s70 offen{ST}", 3)
            if k > DRAIN + 1: emit_ops()
        nleft = len(ops)
        if k == S2AT: after_s2 = nleft
        tile(k >> 1, k & 1, extra, extra0)
    assert not ops
    stamp(a, 11, VS)
    a(f"s_cmp_lg_u32 s{sWAVE}, {S2W}")
    a("s_cbranch_scc1 L_s2b")
    a(f"s_waitcnt vmcnt({after_s2})")
    cmp2()
    a("s_cbranch_vccz L_ps2_ok")
    poll(a, "L_ps2", ld2, cmp2)
    a(f"ds_write_b32 v{T0+1}, v{T0+3} offset:8")
    a("s_waitcnt lgkmcnt(0)")
    a("s_branch L_s2w_ok")
    a.label("L_s2b")
    ldswait("L_s2w", 8, 1)
    stamp(a, 16, VS)
    if PRIO: a("s_setprio 3")
    zero(a, T0, 12)
    bump(8)
    def gld(buf, q, off): a(f"buffer_load_dwordx4 {vr(GFR + 12*buf + 4*q)}, v{VG}, {WSR}, s{76+q} offen offset:{off}{'' if 'P' in ENV('XG', '') else ST}")
    def gm(buf, j):
        d = vr(GACC + 16*j, 16)
        a(f"{MF} {d}, {vr(GFR + 12*buf + 4 + 4*j)}, {vr(GFR + 12*buf)}, {d}")
    a("s_mov_b32 s80, 4")
    a(f"v_mov_b32 v0, {LCNT}")
    a("v_mov_b32 v2, 1")
    a.label("L_aloop")
    ms = list(range(16))
    def gstep():
        m = ms.pop(0); b, j = (m >> 1) & 3, m & 1
        if m == 8: a(f"v_add_u32 v{VG}, s81, v{VG}")
        if j == 0: a("s_waitcnt vmcnt(9)")
        gm(b, j)
        if j == 0: gld(b, 1, b * 1024)
        else: gld(b, 0, b * 1024); gld(b, 2, b * 1024)
    for k in range(12):
        def extra():
            gstep()
            if k == 1:
                a("s_sub_u32 s80, s80, 1")
                a("s_cmp_eq_u32 s80, 0")
                a(f"s_cselect_b32 s81, {OOB:#x}, s87")
            if k == 7:
                one_lane(a, f"ds_add_u32 v0, v2 offset:12")
            if k == 6 and PRIO:
                a("s_cbranch_scc0 L_np")
                a("s_setprio 0")
                a.label("L_np")
        tile(k >> 1, k & 1, extra, gstep if k % 3 == 2 else (lambda: None))
    assert not ms
    bump(6)
    a(f"v_add_u32 v{VG}, 4096, v{VG}")
    a("s_cmp_lg_u32 s80, 3")
    a("s_cbranch_scc1 L_kv2_ok")
    a(f"s_mov_b32 s98, {SPIN*8}")
    a.label("L_kv2")
    a(f"ds_read_b32 v2, v0 offset:12")
    a("s_waitcnt lgkmcnt(0)")
    a(f"v_cmp_gt_u32 vcc, 8, v2")
    a("s_cbranch_vccz L_kv2_ok")
    a("s_sleep 1")
    a("s_sub_u32 s98, s98, 1")
    a("s_cmp_lg_u32 s98, 0")
    a("s_cbranch_scc1 L_kv2")
    a.label("L_kv2_ok")
    if PRIO:
        a("s_cmp_gt_u32 s80, 2")
        a("s_cbranch_scc1 L_aloop")
        a("s_setprio 2")
        a("s_cmp_gt_u32 s80, 1")
        a("s_cbranch_scc1 L_aloop")
        a("s_setprio 1")
    a("s_cmp_lg_u32 s80, 0")
    a("s_cbranch_scc1 L_aloop")
    if PRIO: a("s_setprio 0")
    a("v_lshrrev_b32 v2, 4, v3")
    if STAMP: a(f"v_lshl_add_u32 v0, s{sWAVE}, 6, v2")
    a(f"{MF} {vr(OB,16)}, {vr(V1)}, {vr(SB+8)}, {vr(OB,16)}")
    stamp(a, 17, VS)
    a(f"s_mul_i32 s79, s{sWAVE}, 2304")
    a(f"s_add_u32 s79, s79, {LQ}")
    a(f"s_xor_b32 s80, s{sWAVE}, 4")
    a("s_mul_i32 s80, s80, 2304")
    a(f"s_add_u32 s80, s80, {LQ}")
    a(f"v_add_u32 v{KF}, s79, v3")
    a(f"v_add_u32 v{KF+1}, s80, v3")
    a(f"v_lshl_add_u32 v{KF+2}, v2, 2, s79")
    a(f"v_lshl_add_u32 v{KF+3}, v2, 2, s80")
    a(f"v_and_b32 v{V0A}, 31, v2")
    a(f"v_lshlrev_b32 v{V0A}, 2, v{V0A}")
    a("s_lshl_b32 s79, s84, 7")
    a(f"s_add_u32 s79, s79, {WS_G}")
    a(f"buffer_load_dword v{VG}, v{V0A}, {WSR}, s79 offen{ST}")
    a("s_cmp_eq_u32 s66, 0")
    a("s_cbranch_scc1 L_keepA")
    a(f"ds_write_b128 v{KF}, {vr(OA)}")
    a(f"ds_write_b128 v{KF}, {vr(OA+4)} offset:1024")
    a(f"ds_write_b32 v{KF+2}, v{OA+8} offset:2048")
    for i in range(9): a(f"v_mov_b32 v{OA+i}, v{OB+i}")
    for i in range(4): a(f"v_mov_b32 v{QA+i}, v{QB+i}")
    a("s_branch L_sent")
    a.label("L_keepA")
    a(f"ds_write_b128 v{KF}, {vr(OB)}")
    a(f"ds_write_b128 v{KF}, {vr(OB+4)} offset:1024")
    a(f"ds_write_b32 v{KF+2}, v{OB+8} offset:2048")
    a.label("L_sent")
    a(f"s_lshl_b32 s79, s{sQB}, 3")
    a("s_lshl_b32 s80, s65, 1")
    a("s_add_u32 s79, s79, s80")
    a("s_add_u32 s79, s79, s66")
    a(f"s_mul_i32 s81, s79, {144*1024}")
    a(f"s_lshl_b32 s80, s{sHEAD}, 10")
    a("s_add_u32 s81, s81, s80")
    a(f"s_add_u32 s81, s81, {WS_AF}")
    a("s_waitcnt lgkmcnt(0)")
    a("s_barrier")
    a(f"ds_read_b128 {vr(OB)}, v{KF+1}")
    a(f"ds_read_b128 {vr(OB+4)}, v{KF+1} offset:1024")
    a(f"ds_read_b32 v{OB+8}, v{KF+3} offset:2048")
    a("s_waitcnt lgkmcnt(0)")
    for i in range(9): a(f"v_add_f32 v{OA+i}, v{OA+i}, v{OB+i}")
    def lbcast():
        if ONE_ROW:
            a(f"v_mov_b32 v{OB}, v{OA+8}")
            a(f"v_permlane32_swap_b32 v{OA+8}, v{OB}")
    lbcast()
    a(f"v_cmp_nge_f32 vcc, {f32(2.0**60)}, v{OA+8}")
    a("s_mov_b64 s[82:83], vcc")
    a(f"v_cmp_nle_f32 vcc, {f32(2.0**-60)}, v{OA+8}")
    a("s_or_b64 vcc, vcc, s[82:83]")
    a("s_cbranch_vccnz L_redo")
    a.label("L_aok")
    a(f"v_rcp_f32 v12, v{OA+8}")
    for i in range(8): a(f"v_mul_f32 v{OA+i}, v12, v{OA+i}")
    for i in range(4): a(f"v_cvt_pk_bf16_f32 v{SA+i}, v{OA+2*i}, v{OA+2*i+1}")
    for i in range(4): a(f"v_min_u32 v{SA+i}, -2, v{SA+i}")
    a(f"buffer_store_dwordx4 {vr(SA)}, v3, {WSR}, s81 offen{STS}")
    stamp(a, 18, VS)
    srd(a, S_OUT, 20, 21, 2048 * 1024)
    a("s_lshl_b32 s79, s68, 15")
    a("v_add_u32 v14, s79, v3")
    a("s_lshl_b32 s80, s69, 13")
    a("s_add_u32 s80, s80, s79")
    a("v_add_u32 v15, s80, v3")
    a("v_and_b32 v12, 31, v2")
    a("v_lshlrev_b32 v12, 10, v12")
    a("v_lshrrev_b32 v13, 5, v2")
    a("v_lshl_or_b32 v11, v13, 4, v12")
    a("s_lshl_b32 s79, s84, 15")
    a(f"s_lshl_b32 s80, s{sQB}, 7")
    a("s_add_u32 s79, s79, s80")
    a("s_lshl_b32 s80, s69, 5")
    a("s_add_u32 s79, s79, s80")
    a("s_add_u32 s87, s85, 4096")
    a("s_barrier")
    a("s_waitcnt vmcnt(0)")
    a(f"v_sub_f32 v10, 1.0, v{VG}")
    stamp(a, 19, VS)
    OF, A2 = 16, 64
    def ldO():
        for i in range(8): a(f"buffer_load_dwordx4 {vr(OF+4*i)}, v3, {WSR}, s{85 if i < 4 else 87} offen offset:{(i&3)*1024}{ST}")
    def cmpO():
        for i in range(8):
            a(f"s_waitcnt vmcnt({7-i})")
            for j in range(2):
                d = vr(A2 + 16*j, 16)
                a(f"{MF} {d}, {vr(WO + 32*j + 4*i)}, {vr(OF+4*i)}, {'0' if i == 0 else d}")
            r = OF + 4*i
            if i == 0: a(f"v_max_u32 v12, v{r}, v{r+1}")
            else: a(f"v_max3_u32 v12, v{r}, v{r+1}, v12")
            a(f"v_max3_u32 v12, v{r+2}, v{r+3}, v12")
        a("v_cmp_eq_u32 vcc, -1, v12")
    for r in range(32): a(f"v_mul_f32 v{GACC+r}, v10, v{GACC+r}")
    poll(a, "L_ps3", ldO, cmpO, wait=False)
    stamp(a, 20, VS)
    for kq in range(4):
        if kq < 3:
            a(f"s_cmp_lg_u32 s69, {kq}")
            a(f"s_cbranch_scc1 L_red{kq+1}")
        for sl in [x for x in range(4) if x != kq] + [kq]:
            for r in range(8*sl, 8*sl + 8):
                if sl == kq: a(f"v_fma_f32 v{OF + r - 8*sl}, v{VG}, v{A2+r}, v{GACC+r}")
                else: a(f"v_fmac_f32 v{GACC+r}, v{VG}, v{A2+r}")
            if sl != kq:
                for k in range(2): a(f"ds_write_b128 v14, {vr(GACC + 8*sl + 4*k)} offset:{sl*8192 + ((kq - sl - 1) & 3)*2048 + k*1024}")
        if kq < 3:
            a("s_branch L_redw")
            a.label(f"L_red{kq+1}")
    a.label("L_redw")
    a("s_waitcnt lgkmcnt(0)")
    a("s_barrier")
    for q in range(3):
        for k in range(2): a(f"ds_read_b128 {vr(OF + 8 + 8*q + 4*k)}, v15 offset:{q*2048 + k*1024}")
    a("s_waitcnt lgkmcnt(4)")
    for r in range(0, 8, 2): a(f"v_pk_add_f32 {vr(OF+r,2)}, {vr(OF+r,2)}, {vr(OF+8+r,2)}")
    a("s_waitcnt lgkmcnt(0)")
    for r in range(0, 8, 2): a(f"v_pk_add_f32 {vr(OF+16+r,2)}, {vr(OF+16+r,2)}, {vr(OF+24+r,2)}")
    for r in range(0, 8, 2): a(f"v_pk_add_f32 {vr(OF+r,2)}, {vr(OF+r,2)}, {vr(OF+16+r,2)}")
    for i in range(4): a(f"v_cvt_pk_bf16_f32 v{48+i}, v{OF+2*i}, v{OF+2*i+1}")
    a("v_permlane32_swap_b32 v48, v50")
    a("v_permlane32_swap_b32 v49, v51")
    a(f"buffer_store_dwordx4 v[48:51], v11, {SR(S_OUT)}, s79 offen")
    if ENV("FIXT"):
        a.label("L_fixt")
        a("s_memrealtime s[100:101]")
        a("s_waitcnt lgkmcnt(0)")
        a("s_sub_u32 s100, s100, s96")
        a(f"s_cmp_lt_u32 s100, {int(ENV('FIXT'))}")
        a("s_cbranch_scc1 L_fixt")
    if STAMP: a("s_waitcnt vmcnt(0)")
    stamp_out(a, 0, S_WS, VS, 14)
    if STAMP and ENV("DBGOUT"):
        a(f"s_lshl_b32 s66, s{sWAVE}, 8")
        a("s_or_b32 s66, s66, s2")
        a(f"s_cmp_lg_u32 s66, {int(ENV('DBGOUT'))}")
        a("s_cbranch_scc1 L_exit")
        a(f"v_readlane_b32 s67, v{VS}, 1")
        for k, idx in enumerate((3, 4, 5, 6, 7, 10, 11, 16, 17, 18, 19, 20, 14)):
            a(f"v_readlane_b32 s66, v{VS}, {32+idx}")
            a("s_sub_u32 s66, s66, s67")
            a(f"v_writelane_b32 v14, s66, {k}")
        a(f"v_readlane_b32 s66, v{VS}, 14")
        a(f"v_readlane_b32 s67, v{VS}, 0")
        a("s_sub_u32 s66, s66, s67")
        a("v_writelane_b32 v14, s66, 13")
        a("v_lshlrev_b32 v15, 2, v2")
        one_lane(a, f"buffer_store_dword v14, v15, {SR(S_DBG)}, 0 offen offset:4", "0x3fff")
    a("s_endpgm")
    a.label("L_redo")
    a(f"s_mul_i32 s79, s66, {VST}")
    a(f"s_add_u32 s79, s79, {64*VST}")
    a(f"v_subrev_u32 v{VV0}, s79, v{VV0}")
    a(f"v_subrev_u32 v{VV1}, s79, v{VV1}")
    a(f"v_mov_b32 v{VK}, v3")
    a("v_mov_b32 v12, 0xff800000")
    a("s_mov_b32 s80, 0")
    a.label("L_fmax")
    a(f"ds_read_b128 {vr(KF)}, v{VK}")
    a("s_waitcnt lgkmcnt(0)")
    a(f"{MF} {vr(SA,16)}, {vr(KF)}, {vr(QA)}, 0")
    a(f"v_add_u32 v{VK}, 1024, v{VK}")
    rowmax(a, SA, 12, acc=True)
    a("s_add_u32 s80, s80, 1")
    a("s_cmp_lt_u32 s80, 64")
    a("s_cbranch_scc1 L_fmax")
    halfmax(a, 12, 13)
    for i in range(16): a(f"v_sub_f32 v{CC+i}, 0, v12")
    zero(a, OA, 16)
    a(f"v_mov_b32 v{VK}, v3")
    a("s_mov_b32 s80, 0")
    a.label("L_fslow")
    a(f"ds_read_b128 {vr(KF)}, v{VK}")
    a(f"ds_read_b128 {vr(V0A)}, v{VV0}")
    a(f"ds_read_b128 {vr(V1)}, v{VV1}")
    a("s_waitcnt lgkmcnt(0)")
    a(f"{MF} {vr(SA,16)}, {vr(KF)}, {vr(QA)}, {vr(CC,16)}")
    a(f"v_add_u32 v{VK}, 1024, v{VK}")
    a(f"v_add_u32 v{VV0}, {VST}, v{VV0}")
    a(f"v_add_u32 v{VV1}, {VST}, v{VV1}")
    for i in range(16): a(f"v_exp_f32 v{SA+i}, v{SA+i}")
    for i in range(8): a(f"v_cvt_pk_bf16_f32 v{SB+i}, v{SA+2*i}, v{SA+2*i+1}")
    a(f"{MF} {vr(OA,16)}, {vr(V0A)}, {vr(SB)}, {vr(OA,16)}")
    a(f"{MF} {vr(OA,16)}, {vr(V1)}, {vr(SB+4)}, {vr(OA,16)}")
    a("s_add_u32 s80, s80, 1")
    a("s_cmp_lt_u32 s80, 64")
    a("s_cbranch_scc1 L_fslow")
    a("s_nop 9")
    lbcast()
    a("s_branch L_aok")

def build():
    a = Asm()
    head(a)
    p1_loader(a)
    p1_compute(a)
    attn(a)
    a.label("L_exit")
    a("s_endpgm")
    n = a.fix(verbose="-v" in sys.argv)
    print("instructions:", len(a.lines), "nop states inserted:", n, "lds", LDS_BYTES, file=sys.stderr)
    name = NAME + "_kernel"
    hdr = open("cdna_kernels/" + NAME + ".s.ref").read().split("; Override launch")[0]
    out = hdr + f"; @launch grid=(256,1,1) block=(512,1,1) lds={LDS_BYTES}\n"
    out += '.amdgcn_target "amdgcn-amd-amdhsa--gfx950"\n.text\n'
    out += f".globl {name}\n.p2align 8\n.type {name},@function\n{name}:\n" + a.text()
    out += '.section .rodata,"a"\n' + kd(name)
    dst = sys.argv[1] if len(sys.argv) > 1 and not sys.argv[1].startswith("-") else "cdna_kernels/" + NAME + ".s"
    open(dst, "w").write(out)
if __name__ == "__main__": build()
```

```python
import os, sys
from common import *

MF = "v_mfma_f32_32x32x16_bf16"
ST = " sc1"
STS = " sc1 nt" if os.environ.get("SNT") else " sc1"
ENV = os.environ.get
WS_F1 = 0x1480000
WS_F2 = 0x1490000
WS_F3 = 0x1498000
WS_TAG = 0x14a0000
SPIN = 1 << 17

S_DBG, S_WS, S_X, S_G, S_U, S_WA, S_WB, S_WC = 24, 28, 32, 36, 40, 44, 48, 52
S_RO, S_RD, S_GW = 56, 44, 48
S_OUT = 32
sWAVE, sMB, sNB, sVC = 3, 60, 61, 62
sHEAD, sQB = 63, 64
WSR = f"s[{S_WS}:{S_WS+3}]"
def SR(n): return f"s[{n}:{n+3}]"
VS = 1

NXS = 6
LX, XSLOT = 0, 16384
LW = NXS * XSLOT
NW1, WS1 = 5, 12288
NW2, WS2, LW2 = 6, 8192, LW + 12288
LRD = LW
LRO = LW + NW1 * WS1
LDS_BYTES = 163840
LCNT = LDS_BYTES - 16
LC2 = LDS_BYTES - 32
assert LRO + 2048 <= LCNT and (16 % NW1) * WS1 == LW2 - LW and LW2 + NW2 * WS2 <= LRO
KROT = 8 - NXS
def wslot(s): return (LW + (s % NW1) * WS1, WS1) if s < 16 else (LW2 + ((s - 16) % NW2) * WS2, WS2)
def acc(tt, ct): return 96 + (tt * 4 + ct) * 16 if ct < 4 else 224 + tt * 16
HP = 224
DT = 36
FR0, FR1 = 16, 36
VXA, VW = 56, 60
ONE_ROW = not ENV("ALLONES")
VST, VROT = 1104, 0
LK, LV = 0, 65536
LQ = LV + 64 * VST
LQI = 143360
LASTB = 28
QA, QB, CC, OA, OB, SA, SB, KF, V0A, V0B, V1 = 8, 12, 16, 32, 48, 64, 80, 96, 100, 104, 108
VK, VV0, VV1, VG = 4, 5, 6, 7
GACC, GFR, WO = 112, 144, 192

class Lgkm:
    def __init__(s, a): s.a = a; s.q = []
    def rd(s, tag, text): s.a(text); s.q.append(tag)
    def need(s, *tags):
        idx = [i for i, t in enumerate(s.q) if t in tags]
        if not idx: return
        n = len(s.q) - 1 - max(idx)
        assert n <= 15
        s.a(f"s_waitcnt lgkmcnt({n})")
        s.q = s.q[max(idx) + 1:]
    def all(s, extra=""):
        s.a("s_waitcnt " + extra + "lgkmcnt(0)")
        s.q = []

def poll(a, name, load, cmp, wait=True):
    a(f"s_mov_b32 s98, {SPIN}")
    a.label(name)
    load()
    if wait: a("s_waitcnt vmcnt(0)")
    cmp()
    a(f"s_cbranch_vccz {name}_ok")
    a(f"s_sleep {int(ENV('SLEEP', '4'))}")
    a("s_sub_u32 s98, s98, 1")
    a("s_cmp_lg_u32 s98, 0")
    a(f"s_cbranch_scc1 {name}")
    a.label(f"{name}_ok")

def rowmax(a, S, dst, acc=False):
    if acc: a(f"v_max3_f32 v{dst}, v{S}, v{S+1}, v{dst}")
    else: a(f"v_max_f32 v{dst}, v{S}, v{S+1}")
    for k in range(2, 16, 2): a(f"v_max3_f32 v{dst}, v{S+k}, v{S+k+1}, v{dst}")
def halfmax(a, dst, tmp):
    a(f"v_mov_b32 v{tmp}, v{dst}")
    a(f"v_permlane32_swap_b32 v{tmp}, v{dst}")
    a(f"v_max_f32 v{dst}, v{tmp}, v{dst}")
def zero(a, b, n):
    for r in range(0, n, 2): a(f"v_pk_mul_f32 {vr(b+r,2)}, 0, 0")
def one_lane(a, text, mask=1):
    a(f"s_mov_b64 exec, {mask}"); a(text); a("s_mov_b64 exec, -1")

def head(a):
    a("s_cmp_ge_u32 s2, 256")
    a("s_cbranch_scc1 L_exit")
    a("s_load_dwordx16 s[4:19], s[0:1], 0")
    a("s_load_dwordx4 s[20:23], s[0:1], 64")
    a(f"s_load_dwordx2 s[{S_WS}:{S_WS+1}], s[0:1], 80")
    if ENV("FIXT"):
        a("s_memrealtime s[96:97]")
    if STAMP: a(f"v_mov_b32 v{VS}, 0")
    stamp(a, 0, VS); stamp(a, 1, VS, real=True)
    a("v_lshrrev_b32 v3, 6, v0")
    a("v_and_b32 v2, 63, v0")
    a(f"v_readfirstlane_b32 s{sWAVE}, v3")
    a("s_and_b32 s65, s2, 7")
    a("s_lshr_b32 s66, s2, 3")
    a("s_and_b32 s67, s65, 1")
    a("s_lshl_b32 s67, s67, 3")
    a("s_and_b32 s68, s66, 7")
    a(f"s_add_u32 s{sMB}, s67, s68")
    a("s_lshr_b32 s67, s65, 1")
    a("s_lshl_b32 s67, s67, 2")
    a("s_lshr_b32 s68, s66, 3")
    a(f"s_add_u32 s{sNB}, s67, s68")
    a("s_cmp_eq_u32 s68, 3")
    a(f"s_cselect_b32 s{sVC}, 1, 0")
    a("s_lshl_b32 s67, s65, 2")
    a("s_and_b32 s68, s66, 3")
    a(f"s_add_u32 s{sHEAD}, s67, s68")
    a(f"s_lshr_b32 s{sQB}, s66, 2")
    a("v_lshlrev_b32 v3, 4, v2")
    a(f"s_mov_b32 s{S_WS+2}, {WS_SIZE:#x}")
    a(f"s_mov_b32 s{S_WS+3}, 0x00020000")
    a(f"s_lshr_b32 s67, s{sNB}, 2")
    a(f"s_sub_u32 s81, s{sNB}, s67")
    a("s_add_u32 s81, s81, 16")
    a(f"s_lshl_b32 s82, s{sNB}, 11")
    a(f"s_lshl_b32 s67, s{sMB}, 7")
    a("s_add_u32 s82, s82, s67")
    a(f"s_add_u32 s82, s82, {WS_F1}")
    a("v_lshrrev_b32 v8, 3, v2")
    a("v_and_b32 v4, 7, v2")
    a("v_bfe_u32 v5, v2, 4, 1")
    a("v_lshlrev_b32 v5, 2, v5")
    a("v_xor_b32 v5, v5, v4")
    a("v_lshlrev_b32 v9, 4, v5")
    a(f"s_cmp_lt_u32 s{sWAVE}, 4")
    a("s_waitcnt lgkmcnt(0)")
    srd(a, S_X, 4, 5, 2048 * 1024)
    srd(a, S_DBG, 22, 23, 256)
    a("s_cbranch_scc1 L_compute")

def p1_compute(a):
    a.label("L_compute")
    a(f"s_and_b32 s65, s{sWAVE}, 1")
    a(f"s_lshr_b32 s66, s{sWAVE}, 1")
    if ENV("CODEPF", "1") == "1":
        a("s_getpc_b64 s[84:85]")
        a.label("L_pc")
        a("s_sub_u32 s84, s84, L_pc-L_loader")
        a("s_subb_u32 s85, s85, 0")
        a("v_lshlrev_b32 v11, 7, v0")
        a("v_min_u32 v11, L_exit-L_loader, v11")
        a("global_load_dword v61, v11, s[84:85]")
        assert True
    a("v_and_b32 v8, 31, v2")
    a("v_lshrrev_b32 v4, 5, v2")
    a("v_bfe_u32 v5, v2, 1, 3")
    a("v_xor_b32 v5, v5, v4")
    a("s_lshl_b32 s67, s65, 13")
    a("v_lshl_add_u32 v6, v8, 7, s67")
    for ks in range(4):
        a(f"v_xor_b32 v7, {2*ks}, v5")
        a(f"v_lshl_add_u32 v{VXA+ks}, v7, 4, v6")
    a("v_bfe_u32 v5, v2, 2, 2")
    a("v_and_b32 v6, 3, v2")
    a("v_bfe_u32 v7, v2, 4, 1")
    a("v_lshlrev_b32 v6, 3, v6")
    a("v_lshl_or_b32 v6, v7, 5, v6")
    a("v_lshrrev_b32 v7, 1, v5")
    a("v_lshl_or_b32 v6, v7, 6, v6")
    a("v_lshl_or_b32 v6, v5, 7, v6")
    a("v_lshl_or_b32 v6, v4, 10, v6")
    a("s_lshl_b32 s67, s66, 6")
    a("v_xor_b32 v6, s67, v6")
    a(f"v_add_u32 v{VW}, {LW}, v6")
    zero(a, 96, 160)
    a(f"v_mov_b32 v5, {LCNT}")
    a("ds_write_b128 v5, v[96:99]")

    a(f"s_mov_b32 s78, {(-(NW1-1)*WS1) & 0xffffffff:#x}")
    a(f"s_mov_b32 s79, {(-(NXS-1)*XSLOT) & 0xffffffff:#x}")
    a("s_mov_b32 s73, 0")
    a("s_mov_b32 s74, 0")
    a("s_mov_b32 s75, 8")
    a("s_waitcnt lgkmcnt(0)")
    def reads(fs, ks, nu):
        kk = ks & 1
        X = lambda t: f"ds_read_b128 {vr(fs+4*t)}, v{VXA+ks} offset:{t*4096}"
        W = lambda u, j: f"ds_read_b64_tr_b16 {vr(fs+8+4*u+2*j, 2)}, v{VW} offset:{u*4096 + kk*2048 + j*512}"
        l = [X(0), W(0,0), W(0,1), X(1)]
        for u in range(1, nu): l += [W(u,0), W(u,1)]
        return l
    def loop(name, cts, swap, nu_next_last, hook=None):
        nu = len(cts)
        NWS, WSLOT = (NW1, WS1) if nu == 3 else (NW2, WS2)
        a.label(name)
        for ks in range(4):
            kk = ks & 1
            cur, nxt = (FR0, FR1) if kk == 0 else (FR1, FR0)
            mms = []
            for u, ct in enumerate(cts):
                for t in range(2):
                    d = vr(acc(t, ct), 16); w = vr(cur + 8 + 4*u); x = vr(cur + 4*t)
                    mms.append(f"{MF} {d}, {x}, {w}, {d}" if (swap and ct < 4) else f"{MF} {d}, {w}, {x}, {d}")
            rd = reads(nxt, (ks + 1) & 3, nu)
            post = []
            if kk == 0:
                post += ["s_add_u32 s73, s73, 1", f"s_cmp_eq_u32 s73, {NWS}", f"s_cselect_b32 s76, s78, {WSLOT}", "s_cselect_b32 s73, 0, s73", f"v_add_u32 v{VW}, s76, v{VW}"]
                if ks == 2:
                    post += ["s_add_u32 s74, s74, 1", f"s_cmp_eq_u32 s74, {NXS}", f"s_cselect_b32 s77, s79, {XSLOT}", "s_cselect_b32 s74, 0, s74", f"v_add_u32 v{VXA}, s77, v{VXA}"]
            elif ks == 3:
                post += [f"v_add_u32 v{VXA+i}, s77, v{VXA+i}" for i in range(1, 4)] + ["s_sub_u32 s75, s75, 1", "s_cmp_lg_u32 s75, 0"]
            if ks == 3 and hook: hook()
            a("s_waitcnt lgkmcnt(0)")
            if kk == 1:
                a(mms.pop(0))
                a("s_barrier")
            other = rd + post
            per = 3
            while mms:
                if kk == 0 or len(mms) < 2*nu - 1 or True:
                    pass
                if kk == 0: a(mms.pop(0))
                for _ in range(per):
                    if other: a(other.pop(0))
                if kk == 1: a(mms.pop(0))
            for o in other: a(o)
        a(f"s_cbranch_scc1 {name}")
    a(f"s_lshl_b32 s68, s{sMB}, 2")
    a("s_lshl_b32 s69, s65, 1")
    a("s_add_u32 s69, s68, s69")
    a(f"v_add_u32 v9, {VROT}, v2")
    a("v_and_b32 v9, 15, v9")
    a("v_lshl_or_b32 v9, v4, 4, v9")
    a("v_lshlrev_b32 v9, 4, v9")
    a("v_bfe_u32 v10, v2, 4, 1")
    a("v_lshl_or_b32 v9, v10, 16, v9")
    a(f"s_lshr_b32 s70, s{sNB}, 2")
    a("s_lshl_b32 s70, s70, 19")
    a("s_lshl_b32 s71, s66, 17")
    a("s_add_u32 s70, s70, s71")
    a("s_lshl_b32 s71, s69, 10")
    a("s_add_u32 s70, s70, s71")
    a(f"s_add_u32 s70, s70, {WS_V}")
    a(f"s_add_u32 s71, s70, {4*65536}")
    a(f"s_cmp_lt_u32 s{sNB}, 8")
    a(f"s_cselect_b32 s86, {f32(QSCALE)}, 1.0")
    a(f"s_lshl_b32 s67, s{sNB}, 2")
    a("s_lshl_b32 s68, s66, 1")
    a("s_add_u32 s67, s67, s68")
    a("s_lshl_b32 s67, s67, 16")
    a("s_lshl_b32 s68, s69, 10")
    a("s_add_u32 s67, s67, s68")
    a(f"s_add_u32 s88, s67, {WS_QK}")
    a("s_add_u32 s89, s88, 0x10000")
    a(f"s_mul_i32 s67, s69, {144*1024}")
    a("s_lshl_b32 s68, s66, 11")
    a("s_add_u32 s67, s67, s68")
    a(f"s_add_u32 s67, s67, {WS_AF + 32*1024}")
    for i in (1, 0):
        a(f"s_lshl_b32 s68, s{sNB if i else 81}, 12")
        a("s_add_u32 s68, s67, s68")
        for n in range(4): a(f"s_add_u32 s{DT + (1-i)*4 + n}, s68, {(n>>1)*144*1024 + (n&1)*1024}")
    a(f"v_mov_b32 v10, {f32(-GK1*0.044715)}")
    a(f"v_mov_b32 v11, {f32(-GK1*0.044715)}")
    a(f"v_mov_b32 v12, {f32(-GK1)}")
    a(f"v_mov_b32 v13, {f32(-GK1)}")
    stamp(a, 2, VS)
    a("s_barrier")
    stamp(a, 3, VS)
    for l in reads(FR0, 0, 3): a(l)

    def f_qk():
        l = []
        for t in range(2):
            b = acc(t, 4)
            for hh in range(2):
                l += [f"v_mul_f32 v{b+8*hh+i}, s86, v{b+8*hh+i}" for i in range(8)]
                l += [f"v_cvt_pk_bf16_f32 v{b+8*hh+i}, v{b+8*hh+2*i}, v{b+8*hh+2*i+1}" for i in range(4)]
                l.append(f"buffer_store_dwordx4 {vr(b+8*hh)}, v3, {WSR}, s{88+hh} offen offset:{t*1024}{STS}")
        return l
    def f_v():
        l = []
        for j in range(2):
            for t in range(2):
                b = acc(t, 2*j)
                for hh in range(2):
                    l += [f"v_cvt_pk_bf16_f32 v{b+8*hh+i}, v{b+8*hh+2*i}, v{b+8*hh+2*i+1}" for i in range(4)]
                    l.append(f"buffer_store_dwordx4 {vr(b+8*hh)}, v9, {WSR}, s{70+j} offen offset:{t*1024 + hh*512}{STS}")
        return l
    def f_gelu1():
        l = []
        for t in range(2):
            for q in range(4):
                G, U, T = acc(t, 0) + 4*q, acc(t, 2) + 4*q, 64 + (q & 1) * 4
                l += [f"v_mul_f32 v{T+p}, v{G+p}, v{G+p}" for p in range(4)]
                l += [f"v_fma_f32 v{T+p}, v{T+p}, v10, v12" for p in range(4)]
                l += [f"v_mul_f32 v{T+p}, v{T+p}, v{G+p}" for p in range(4)]
                for p in range(4): l += [f"v_exp_f32 v{T+p}, v{T+p}", f"v_mul_f32 v{U+p}, v{U+p}, v{G+p}"]
                l += [f"v_add_f32 v{T+p}, 1.0, v{T+p}" for p in range(4)]
                l += [f"v_rcp_f32 v{T+p}, v{T+p}" for p in range(4)]
                l += [f"v_mul_f32 v{U+p}, v{U+p}, v{T+p}" for p in range(4)]
                o = HP + 16 + t*8 + q*2
                l += [f"v_cvt_pk_bf16_f32 v{o+p}, v{U+2*p}, v{U+2*p+1}" for p in range(2)]
        return l
    SPK = int(ENV("SPK", "4"))
    def pass2(fill, PUBS, gap):
        cost = lambda x: 8 if x.startswith(("v_exp", "v_rcp")) else 4
        X2 = ENV("X2", "")
        if "F" in X2: fill = [x for x in fill if False]
        if "S" in X2: fill = [x for x in fill if not x.startswith("buffer_store")]
        if "G" in X2: fill = fill[:52]
        FS = (FR0, FR1, 72)
        lg = Lgkm(a)
        lg.q = [(0, i) for i in range(6)] + [("junk", 0)] * 2
        def rds(m):
            fs = FS[m % 3]
            wo_ = wslot(16 + (m >> 1))[0] - LW2 + (m & 1) * 2048
            X = lambda t: f"ds_read_b128 {vr(fs+4*t)}, v{VXA + (m & 3)} offset:{t*4096}"
            W = lambda u, j: f"ds_read_b64_tr_b16 {vr(fs+8+4*u+2*j, 2)}, v{VW} offset:{wo_ + u*4096 + j*512}"
            l = [((m, i), x) for i, x in enumerate([X(0), W(0,0), W(0,1), X(1), W(1,0), W(1,1)])]
            j = 8 + (m >> 2)
            if m < 28:
                dx = (((j + 1) % NXS) - (j % NXS)) * XSLOT & 0xffffffff
                l.append((None, f"v_add_u32 v{VXA + (m & 3)}, {dx:#x}, v{VXA + (m & 3)}"))
            return l
        def put(e):
            if e[0] is None: a(e[1])
            else: lg.rd(e[0], e[1])
        nxt_store = 0
        put(rds(0)[-1])
        for e in rds(1): put(e)
        for n in range(32):
            kk, st = n & 1, 16 + (n >> 1)
            cur = FS[n % 3]
            rd = rds(n + 2) if n + 2 < 32 else []
            nst = 0
            for g, (u, t) in enumerate(((0, 0), (0, 1), (1, 0), (1, 1))):
                ct = (1, 3)[u]
                before = len(a.lines)
                lg.need(*[(n, i) for i in range(6)])
                bud = 24 - 4 * (len(a.lines) - before)
                a(f"{MF} {vr(acc(t, ct), 16)}, {vr(cur + 8 + 4*u)}, {vr(cur + 4*t)}, {vr(acc(t, ct), 16)}")
                if g == 0 and kk == 0 and st <= LASTB:
                    if st == PUBS:
                        assert not any(x.startswith("buffer_store") for x in fill)
                        a("s_waitcnt vmcnt(0)"); bud -= 4
                    if "B" not in X2: a("s_barrier"); bud -= 4
                for _ in range(2):
                    if rd and len(lg.q) < 15: put(rd.pop(0)); bud -= 4
                while n >= 1 and fill and bud >= cost(fill[0]):
                    if fill[0].startswith("buffer_store"):
                        if 4*n + g < nxt_store: break
                        nxt_store = 4*n + g + gap
                    bud -= cost(fill[0]); a(fill.pop(0))
            assert not rd
        for x in fill: a(x)
        print("pass-2 filler left over:", len(fill), file=sys.stderr)
    a(f"s_cmp_eq_u32 s{sVC}, 1")
    a("s_cbranch_scc1 L_p1loopV")
    loop("L_p1loopA", (0, 2, 4), False, 2)
    stamp(a, 4, VS)
    pass2(f_qk() + f_gelu1(), PUBS, int(ENV('GAPA', '1')))
    a("s_branch L_p2done")
    loop("L_p1loopV", (0, 2, 4), True, 2)
    stamp(a, 4, VS)
    pass2(f_v() + f_qk(), PUBC, int(ENV('GAPC', '1')))
    a.label("L_p2done")
    stamp(a, 6, VS)
    n = 0
    for t in range(2):
        g, u = acc(t, 1), acc(t, 3)
        for hh in range(2):
            T = 16 + (n & 1) * 8; n += 1
            G, U = g + 8*hh, u + 8*hh
            for p in range(4): a(f"v_pk_mul_f32 {vr(T+2*p,2)}, {vr(G+2*p,2)}, {vr(G+2*p,2)}")
            for p in range(4): a(f"v_pk_fma_f32 {vr(T+2*p,2)}, {vr(T+2*p,2)}, v[10:11], v[12:13]")
            for p in range(4): a(f"v_pk_mul_f32 {vr(T+2*p,2)}, {vr(T+2*p,2)}, {vr(G+2*p,2)}")
            for p in range(8): a(f"v_exp_f32 v{T+p}, v{T+p}")
            for p in range(4): a(f"v_pk_mul_f32 {vr(U+2*p,2)}, {vr(U+2*p,2)}, {vr(G+2*p,2)}")
            for p in range(4): a(f"v_pk_add_f32 {vr(T+2*p,2)}, {vr(T+2*p,2)}, 1.0 op_sel_hi:[1,0]")
            for p in range(8): a(f"v_rcp_f32 v{T+p}, v{T+p}")
            for p in range(4): a(f"v_pk_mul_f32 {vr(U+2*p,2)}, {vr(U+2*p,2)}, {vr(T+2*p,2)}")
            o = HP + (t*2 + hh) * 4
            for p in range(4): a(f"v_cvt_pk_bf16_f32 v{o+p}, v{U+2*p}, v{U+2*p+1}")
    stamp(a, 7, VS)

PUBC = int(ENV("PUBC", "22"))
PUBS = int(ENV("PUBS", "22"))

def p1_loader(a):
    a.label("L_loader")
    if ENV("LPRIO", "1") == "1": a("s_setprio 3")
    a(f"s_sub_u32 s65, s{sWAVE}, 4")
    a("s_lshl_b32 s66, s65, 3")
    a("v_add_u32 v8, s66, v8")
    a("v_lshrrev_b32 v5, 4, v2")
    a("s_and_b32 s66, s65, 1")
    a("s_lshl_b32 s66, s66, 2")
    a("v_add_u32 v5, s66, v5")
    a("v_xor_b32 v5, v5, v4")
    a("v_lshlrev_b32 v5, 4, v5")
    a("v_lshl_add_u32 v12, v8, 10, v5")
    a(f"s_lshl_b32 s74, s{sMB}, 17")
    a("s_lshl_b32 s75, s65, 10")
    a(f"s_lshl_b32 s90, s{sNB}, 1")
    a(f"s_add_u32 s90, s90, s{sMB}")
    if ENV("ROT", "1") == "2":
        a(f"s_lshr_b32 s91, s{sNB}, 2")
        a("s_add_u32 s90, s90, s91")
    if ENV("ROT", "1") == "0": a("s_mov_b32 s90, 0")
    if ENV("ROT", "1") in ("3", "4"):
        a(f"s_add_u32 s90, s{sNB}, s{sMB}")
        a(f"s_lshl_b32 s90, s90, {1 if ENV('ROT') == '3' else 2}")
    a("s_lshl_b32 s91, s90, 1")
    issued = []
    DNT = " nt" if ENV("DNT") else ""
    PNT = " nt" if ENV("PNT") else ""
    def dma(voff, srdn, soff, m0val, pre):
        a(f"s_add_u32 m0, s75, {m0val}")
        a(pre)
        if "D" in ENV("X2", "") and voff == 10: a("s_nop 0")
        else: a(f"buffer_load_dwordx4 v{voff}, {SR(srdn)}, s{soff} offen{DNT} lds")
    def itemsW(s):
        base, size = wslot(s)
        free = max([-1] + [p + (p >= 16) for p in range(s) if wslot(p)[0] < base + size and base < wslot(p)[0] + wslot(p)[1]])
        def f(u):
            def g():
                if u == 0:
                    a(f"s_add_u32 s92, s91, {s if s < 16 else s + 2*KROT}")
                    a("s_and_b32 s92, s92, 15")
                    if s < 16:
                        a(f"s_mul_i32 s93, s92, {32*3072}")
                        a("s_mul_i32 s92, s92, s73")
                    else: a(f"s_mul_i32 s92, s92, {32*3584}")
                if s < 16:
                    if u == 0: dma(13, S_WA, 76, base, "s_add_u32 s76, s71, s92")
                    if u == 1: dma(13, S_WB, 76, base + 4096, "s_add_u32 s76, s69, s92")
                    if u == 2: dma(11, S_WC, 76, base + 8192, "s_add_u32 s76, s70, s93")
                else:
                    dma(10, (S_G, S_U)[u], 76, base + 4096*u, "s_add_u32 s76, s70, s92")
                issued.append(("W", s))
            return g
        return [(free, f(u)) for u in range(3 if s < 16 else 2)]
    def itemsX(j):
        base = LX + (j % NXS) * XSLOT
        def f(m):
            def g():
                if m == 0:
                    a(f"s_add_u32 s99, s90, {j if j < 8 else j + KROT}")
                    a("s_and_b32 s99, s99, 7")
                    a("s_lshl_b32 s99, s99, 7")
                    a("s_add_u32 s99, s99, s74")
                dma(12, S_X, 76, base + m*4096, f"s_add_u32 s76, s99, {m*32768}")
                issued.append(("X", j))
            return g
        if 8 <= j < 8 + NXS: return []
        return [(2*(j-NXS) + 1 + (j - NXS >= 8), f(m)) for m in range(4)]
    queue = []
    for j in range(16): queue += itemsX(j) + itemsW(2*j) + itemsW(2*j+1)
    def issue(nmax, bar):
        n = 0
        while queue and n < nmax and queue[0][0] <= bar:
            queue.pop(0)[1](); n += 1
    def wait_stage(s):
        assert sum(e == ("W", s) for e in issued) == (3 if s < 16 else 2) and sum(e == ("X", s // 2) for e in issued) == (0 if 8 <= s // 2 < 8 + NXS else 4), s
        last = max(k for k, e in enumerate(issued) if e == ("W", s) or e == ("X", s // 2))
        n = len(issued) - 1 - last
        assert n <= 63
        a(f"s_waitcnt vmcnt({n})")
    def wait_tag(tag):
        n = len(issued) - 1 - max(k for k, e in enumerate(issued) if e == tag)
        assert n <= 63
        a(f"s_waitcnt vmcnt({n})")
    issue(4, -1)
    a("s_lshl_b32 s66, s65, 8")
    a("s_or_b32 s66, s66, s2")
    a(f"s_cselect_b32 s83, {OOB:#x}, 0")
    a(f"s_add_u32 s84, s83, {WS_TAG}")
    a("v_mov_b32 v5, 0")
    a(f"buffer_load_dword v14, v5, {WSR}, s84 offen{ST}")
    issued.append(("T", 0))
    srd(a, S_G, 12, 13, 512 * 3584)
    srd(a, S_U, 14, 15, 512 * 3584)
    srd(a, S_WC, 6, 7, 512 * 3072)
    a(f"s_cmp_eq_u32 s{sVC}, 1")
    a(f"s_cselect_b32 s{S_WA}, s6, s12")
    a(f"s_cselect_b32 s{S_WA+1}, s7, s13")
    a(f"s_cselect_b32 s{S_WA+2}, s{S_WC+2}, s{S_G+2}")
    a(f"s_mov_b32 s{S_WA+3}, 0x00020000")
    a(f"s_cselect_b32 s{S_WB}, s6, s14")
    a(f"s_cselect_b32 s{S_WB+1}, s7, s15")
    a(f"s_mov_b32 s{S_WB+2}, s{S_WA+2}")
    a(f"s_mov_b32 s{S_WB+3}, 0x00020000")
    a("s_movk_i32 s66, 3072")
    a("s_cselect_b32 s66, s66, 3584")
    a("v_mul_u32_u24 v6, 3584, v8")
    a("v_add_u32 v10, v6, v9")
    a("v_mul_u32_u24 v6, 3072, v8")
    a("v_add_u32 v11, v6, v9")
    a("v_mul_u32_u24 v6, s66, v8")
    a("v_add_u32 v13, v6, v9")
    a("s_lshl_b32 s73, s66, 5")
    a("s_lshl_b32 s67, s81, 7")
    a(f"s_lshr_b32 s68, s{sNB}, 2")
    a("s_lshl_b32 s68, s68, 8")
    a("s_add_u32 s68, s68, 2048")
    a("s_add_u32 s69, s68, 128")
    a(f"s_cmp_eq_u32 s{sVC}, 1")
    a("s_cselect_b32 s71, s68, s67")
    a("s_cselect_b32 s69, s69, s67")
    a("s_mov_b32 s94, s71")
    a("s_mov_b32 s95, s69")
    a(f"s_lshl_b32 s70, s{sNB}, 7")
    PFK = ENV("PF", "0") == "4"
    if PFK:
        issue(3, -1)
        a("s_lshr_b32 s66, s2, 1")
        a("s_and_b32 s67, s2, 1")
        a("s_mul_i32 s68, s66, 3072")
        a("s_mul_i32 s76, s67, 1536")
        a("s_add_u32 s68, s68, s76")
        a("s_mul_i32 s66, s66, 3584")
        a("s_mul_i32 s67, s67, 768")
        a("s_add_u32 s66, s66, s67")
        a("s_add_u32 s66, s66, 2048")
        a("s_lshl_b32 s67, s2, 13")
        a("s_cmp_eq_u32 s65, 1")
        a("s_cselect_b32 s66, s68, s66")
        a("s_cselect_b32 s76, 11, 5")
        a(f"s_mov_b32 s77, {128*3584}")
        a(f"s_cselect_b32 s77, {128*3072}, s77")
        a("s_cselect_b32 s94, s6, s12")
        a("s_cselect_b32 s95, s7, s13")
        a("s_cmp_eq_u32 s65, 3")
        a("s_cselect_b32 s94, s14, s94")
        a("s_cselect_b32 s95, s15, s95")
        a("v_min_u32 v28, s76, v2")
        a("v_lshl_add_u32 v28, v28, 7, s66")
        a("v_bfe_u32 v29, v2, 1, 3")
        a("v_lshl_add_u32 v29, v29, 10, s67")
        a("v_and_b32 v27, 1, v2")
        a("v_lshl_add_u32 v29, v27, 7, v29")
        a("s_cmp_eq_u32 s65, 0")
        a("s_cselect_b32 s94, s4, s94")
        a("s_cselect_b32 s95, s5, s95")
        a("s_cselect_b32 s77, 256, s77")
        a("s_cselect_b64 vcc, -1, 0")
        a("v_cndmask_b32 v28, v28, v29, vcc")
        for n in [int(x) for x in ENV("PFPOS", "0,3,7,3").split(",")]:
            issue(n, -1)
            a("s_mov_b64 exec, 0xffff")
            a("global_load_dword v30, v28, s[94:95]")
            a("s_mov_b64 exec, -1")
            a("v_add_u32 v28, s77, v28")
            issued.append(("P", 0))
    else:
        issue(int(ENV("FIRST", "10")), -1)
    def prefetch(kinds):
        a("s_mov_b32 s94, s4"); a("s_mov_b32 s95, s5")
        for r in (66, 67, 68, 76): a(f"s_mov_b32 s{r}, 0")
        a("s_mov_b32 s77, 0")
        for lw, k in enumerate(kinds):
            if k is None: continue
            p, per, first, n, T, J = k
            a(f"s_cmp_eq_u32 s65, {lw}")
            a(f"s_cselect_b32 s94, s{p}, s94")
            a(f"s_cselect_b32 s95, s{p+1}, s95")
            a(f"s_cselect_b32 s66, {per}, s66")
            a(f"s_cselect_b32 s67, {first}, s67")
            a(f"s_cselect_b32 s68, {n-1}, s68")
            a(f"s_cselect_b32 s76, {T}, s76")
            a(f"s_cselect_b32 s77, {J}, s77")
        a("s_mul_i32 s66, s66, s2")
        a("s_add_u32 s66, s66, s67")
        a("v_min_u32 v28, s68, v2")
        a("v_mov_b32 v29, s77")
        a("v_cmp_le_u32 vcc, s76, v28")
        a("v_lshl_add_u32 v28, v28, 7, s66")
        a("v_cndmask_b32 v29, 0, v29, vcc")
        a("v_add_u32 v28, v28, v29")
        a("global_load_dword v30, v28, s[94:95]")
        issued.append(("P", 0))
    PF = ENV("PF", "0") in ("1", "3")
    PFX = ENV("PF", "0") in ("2", "3")
    def prefetch_x1():
        a("s_lshr_b32 s66, s2, 3")
        a("s_and_b32 s67, s2, 1")
        a("s_lshl_b32 s67, s67, 20")
        a("s_lshl_b32 s68, s66, 15")
        a("s_add_u32 s67, s67, s68")
        a("s_lshl_b32 s68, s65, 13")
        a("s_add_u32 s67, s67, s68")
        a("v_lshlrev_b32 v28, 7, v2")
        a("s_and_b32 s66, s66, 7")
        a("s_lshl_b32 s66, s66, 6")
        a("v_add_u32 v27, s66, v2")
        a("s_lshr_b32 s68, s73, 5")
        a("v_mul_u32_u24 v29, s68, v27")
        a("v_mul_u32_u24 v26, 3072, v27")
        a("s_cmp_eq_u32 s65, 0")
        a(f"s_cselect_b32 s66, s94, {OOB:#x}")
        a(f"buffer_load_dword v30, v29, {SR(S_WA)}, s66 offen{PNT}")
        a("s_cmp_eq_u32 s65, 1")
        a(f"s_cselect_b32 s66, s95, {OOB:#x}")
        a(f"buffer_load_dword v30, v29, {SR(S_WB)}, s66 offen{PNT}")
        a(f"s_lshl_b32 s66, s{sNB}, 7")
        a("s_cmp_eq_u32 s65, 2")
        a(f"s_cselect_b32 s66, s66, {OOB:#x}")
        a(f"buffer_load_dword v30, v26, {SR(S_WC)}, s66 offen{PNT}")
        a(f"buffer_load_dword v30, v28, {SR(S_X)}, s67 offen{PNT}")
        issued.extend([("P", 0)] * 4)
    def prefetch_x2():
        a("v_mul_u32_u24 v29, 3584, v27")
        a(f"s_lshl_b32 s67, s{sNB}, 7")
        a("s_cmp_eq_u32 s65, 1")
        a(f"s_cselect_b32 s66, s67, {OOB:#x}")
        a(f"buffer_load_dword v30, v29, {SR(S_G)}, s66 offen{PNT}")
        a("s_cmp_eq_u32 s65, 2")
        a(f"s_cselect_b32 s66, s67, {OOB:#x}")
        a(f"buffer_load_dword v30, v29, {SR(S_U)}, s66 offen{PNT}")
        issued.extend([("P", 0)] * 2)
    if PFX and not PF: prefetch_x1()
    if PF: prefetch([(4, 8192, 0, 64, 0, 0), (6, 6144, 0, 48, 0, 0), (12, 7168, 2048, 24, 12, 2048), (14, 7168, 2048, 24, 12, 2048)])
    srd(a, S_RO, 8, 9, 512 * 1024)
    a("v_and_b32 v15, 7, v8")
    a("v_lshl_add_u32 v15, v15, 10, v9")
    a("s_lshl_b32 s78, s65, 11")
    a(f"s_add_u32 s78, s78, {LRD}")
    a("s_lshr_b32 s66, s2, 3")
    a("s_and_b32 s67, s2, 7")
    a("s_lshl_b32 s66, s66, 14")
    a("s_lshl_b32 s67, s67, 7")
    a("s_add_u32 s66, s66, s67")
    a("s_and_b32 s67, s65, 1")
    a("s_lshl_b32 s68, s67, 13")
    a("s_lshl_b32 s67, s67, 10")
    a(f"s_add_u32 m0, s67, {LRO}")
    a("s_add_u32 s66, s66, s68")
    a(f"buffer_load_dwordx4 v15, {SR(S_RO)}, s66 offen{PNT} lds")
    issued.append(("P", 1))
    issue(int(ENV("BURST", "0")), -1)
    a("v_bfe_u32 v18, v2, 2, 2")
    a("v_and_b32 v31, 3, v2")
    a("v_bfe_u32 v19, v2, 4, 1")
    a("v_lshlrev_b32 v31, 3, v31")
    a("v_lshl_or_b32 v31, v19, 5, v31")
    a("v_lshrrev_b32 v19, 1, v18")
    a("v_lshl_or_b32 v31, v19, 6, v31")
    a("v_lshl_or_b32 v31, v18, 7, v31")
    a("v_lshrrev_b32 v19, 5, v2")
    a("v_lshl_or_b32 v31, v19, 9, v31")
    a("v_add_u32 v18, s78, v31")
    a("v_xor_b32 v19, 64, v18")
    a("s_cmp_eq_u32 s65, 0")
    a(f"s_cselect_b32 s82, s82, {OOB:#x}")
    a(f"s_cselect_b32 s85, 0, {OOB:#x}")
    a("v_mov_b32 v6, 1")
    a("v_lshlrev_b32 v4, 7, v2")
    for i in range(4): a(f"s_add_u32 s{86+i}, s85, {WS_F1 + i*8192}")
    stamp(a, 2, VS)
    wait_stage(0)
    stamp(a, 3, VS)
    a("s_barrier")
    a("v_add_u32 v14, 1, v14")
    a("v_max_u32 v14, 1, v14")
    one_lane(a, f"buffer_store_dword v14, v5, {WSR}, s84 offen{ST}")
    issued.append(("T", 1))
    def ld1():
        for i in range(4): a(f"buffer_load_dwordx2 {vr(20+2*i,2)}, v4, {WSR}, s{86+i} offen{ST}")
    PER1, PER2, PSW = [int(x) for x in ENV("PER", "6,4,12").split(",")]
    issue(int(ENV("PER0", "6")), -1)
    def cmp1():
        for i in range(4):
            a(f"v_xor_b32 v{20+2*i}, v{20+2*i}, v16")
            a(f"v_xor_b32 v{21+2*i}, v{21+2*i}, v17")
        a("v_or3_b32 v20, v20, v21, v22")
        a("v_or3_b32 v23, v23, v24, v25")
        a("v_or3_b32 v20, v20, v26, v27")
        a("v_or_b32 v20, v20, v23")
        a("v_cmp_ne_u32 vcc, 0, v20")
    def ltable(t, regs):
        for i in range(8): a(f"v_mov_b32 v{HP+8+i}, -1")
        r = regs[2]
        a(f"s_lshl_b32 s{r}, s{sQB}, 3")
        a(f"s_lshl_b32 s{t}, s65, 1")
        a(f"s_add_u32 s{r}, s{r}, s{t}")
        a(f"s_mul_i32 s{r}, s{r}, {144*1024}")
        a(f"s_lshl_b32 s{t}, s{sHEAD}, 10")
        a(f"s_add_u32 s{r}, s{r}, s{t}")
        a(f"s_add_u32 s{r}, s{r}, {WS_AF}")
        a(f"s_add_u32 s{regs[3]}, s{r}, {144*1024}")
    a(f"s_lshr_b32 s66, s{sHEAD}, 2")
    a("s_lshl_b32 s67, s66, 11")
    a(f"s_lshl_b32 s68, s{sQB}, 8")
    a("s_add_u32 s68, s68, s67")
    a(f"s_add_u32 s67, s67, {8*2048}")
    a(f"s_lshr_b32 s66, s{sHEAD}, 3")
    a("s_lshl_b32 s66, s66, 13")
    a(f"s_add_u32 s66, s66, {2*2048}")
    a("v_add_u32 v70, s67, v4")
    a("v_add_u32 v71, s66, v4")
    a("v_and_b32 v72, 1, v2")
    a("v_lshl_add_u32 v72, v72, 7, s68")
    a("v_cmp_gt_u32 vcc, 32, v2")
    a("v_cndmask_b32 v71, v72, v71, vcc")
    a("v_cmp_gt_u32 vcc, 16, v2")
    a("v_cndmask_b32 v70, v71, v70, vcc")
    def lda(): a(f"buffer_load_dwordx2 v[72:73], v70, {WSR}, s86 offen{ST}")
    def cmpa():
        a("v_xor_b32 v72, v72, v16")
        a("v_xor_b32 v73, v73, v17")
        a("v_or_b32 v72, v72, v73")
        a("v_cmp_ne_u32 vcc, 0, v72")
    a(f"v_mov_b32 v7, {LCNT}")
    SIDE1, SIDE2 = [int(x) for x in ENV("SIDE", "16,25").split(",")]
    def side_out():
        wait_tag(("S", 0))
        for nl in range(2):
            for j in range(2): a(f"ds_read_b64_tr_b16 {vr(HP+4*nl+2*j,2)}, v{18+nl} offset:{j*1024}")
        a("v_mov_b32 v64, 0")
        a("v_mov_b32 v65, 0")
        for i in range(4):
            a(f"v_dot2_f32_bf16 v64, v{48+i}, v{56+i}, v64")
            a(f"v_dot2_f32_bf16 v65, v{52+i}, v{56+i}, v65")
        a("v_cmp_eq_u32 vcc, 0, v2")
        a("s_waitcnt lgkmcnt(0)")
        for mod in ("quad_perm:[1,0,3,2]", "quad_perm:[2,3,0,1]", "row_half_mirror", "row_mirror"):
            for r in (64, 65): a(f"v_add_f32_dpp v{r}, v{r}, v{r} {mod} row_mask:0xf bank_mask:0xf")
        for r, sb in ((64, 66), (65, 56)):
            for q in range(4): a(f"v_readlane_b32 s{sb+q}, v{r}, {16*q}")
        a("v_mov_b32 v66, s66")
        a("v_mov_b32 v67, s56")
        for q in range(1, 4):
            a(f"v_add_f32 v66, s{66+q}, v66")
            a(f"v_add_f32 v67, s{56+q}, v67")
        a("v_cndmask_b32 v66, v67, v66, vcc")
        a(f"v_mul_f32 v66, {f32(-LOG2E)}, v66")
        a("v_exp_f32 v66, v66")
        a("v_lshlrev_b32 v68, 2, v2")
        a("v_add_f32 v66, 1.0, v66")
        a("v_rcp_f32 v66, v66")
        a("s_lshl_b32 s71, s71, 2")
        a(f"s_add_u32 s71, s71, {WS_G}")
        one_lane(a, f"buffer_store_dword v66, v68, {WSR}, s71 offen{ST}", 3)
        issued.append(("S", 1))
    for s in range(LASTB + 1):
        E0 = int(ENV("EARLY", "-100"))
        if s in (4, 10, 16, 24) and E0 < 0: stamp(a, {4: 4, 10: 5, 16: 6, 24: 7}[s], VS)
        if 0 <= s - E0 < 6: stamp(a, [4, 7, 24, 27, 21, 30][s - E0], VS)
        if s == LASTB:
            assert not queue
            wait_stage(31)
        else: wait_stage(s + 1)
        if 0 <= s - E0 < 6: stamp(a, [5, 8, 25, 28, 22, 31][s - E0], VS)
        if s < 16 or "B" not in ENV("X2", ""): a("s_barrier")
        if 0 <= s - E0 < 5: stamp(a, [6, 9, 26, 29, 23][s - E0], VS)
        issue(PER1 if s < PSW else PER2, s)
        if s == 3:
            wait_tag(("T", 1))
            one_lane(a, f"buffer_store_dword v14, v5, {SR(S_DBG)}, s83 offen{ST}")
            issued.append(("T", 2))
        if s == int(ENV("PFB", "5")) and (PF or PFK):
            prefetch([(16, 7168, 0, 56, 0, 0), None, (12, 7168, 0, 32, 16, 1536), (14, 7168, 0, 32, 16, 1536)])
        if s == int(ENV("PFB", "5")) and PFX: prefetch_x2()
        if s == int(ENV("PF2", "-1")):
            a("s_lshr_b32 s66, s2, 3")
            a("s_and_b32 s66, s66, 7")
            a("s_lshl_b32 s66, s66, 6")
            a("s_lshr_b32 s67, s65, 1")
            a("s_lshl_b32 s67, s67, 5")
            a("s_add_u32 s66, s66, s67")
            a("v_and_b32 v27, 31, v2")
            a("v_add_u32 v27, s66, v27")
            a("v_mul_u32_u24 v29, 3584, v27")
            a("v_add_u32 v29, s70, v29")
            a("s_bitcmp1_b32 s65, 0")
            a("s_cselect_b32 s94, s14, s12")
            a("s_cselect_b32 s95, s15, s13")
            a("s_mov_b64 exec, 0xffffffff")
            a("global_load_dword v30, v29, s[94:95]")
            a("s_mov_b64 exec, -1")
            a(f"s_mul_i32 s66, s{sHEAD}, 3")
            a("s_add_u32 s66, s66, s65")
            a(f"s_add_u32 s67, s{sHEAD}, 96")
            a("s_cmp_eq_u32 s65, 3")
            a("s_cselect_b32 s66, s67, s66")
            a("s_min_u32 s66, s66, 111")
            a("s_lshl_b32 s66, s66, 14")
            a(f"s_lshl_b32 s67, s{sQB}, 7")
            a("s_add_u32 s66, s66, s67")
            a("v_lshl_add_u32 v29, v2, 10, s66")
            a("s_mov_b64 exec, 0xffff")
            a("global_load_dword v30, v29, s[16:17]")
            a("s_mov_b64 exec, -1")
            issued.extend([("P", 0)] * 2)
        if s == 9:
            a("s_cmp_lg_u32 s65, 0")
            a("s_cbranch_scc1 L_nowo2")
            for nl in range(2):
                for j in range(2): a(f"ds_read_b64_tr_b16 {vr(36+4*nl+2*j,2)}, v{18+nl} offset:{LRO - LRD + j*1024}")
            a("s_lshr_b32 s66, s2, 3")
            a("s_and_b32 s67, s2, 7")
            a(f"s_mul_i32 s67, s67, {2*144*1024}")
            a("s_lshl_b32 s66, s66, 10")
            a("s_add_u32 s66, s66, s67")
            a(f"s_add_u32 s66, s66, {WS_WF}")
            a(f"s_add_u32 s67, s66, {144*1024}")
            a(f"s_lshl_b32 s68, s{sMB}, 11")
            a(f"s_lshl_b32 s76, s{sNB}, 7")
            a("s_add_u32 s68, s68, s76")
            a(f"s_add_u32 s68, s68, {WS_F2}")
            a(f"s_lshl_b32 s76, s{sQB}, 12")
            a(f"s_lshl_b32 s77, s{sHEAD}, 7")
            a("s_add_u32 s76, s76, s77")
            a(f"s_add_u32 s76, s76, {WS_F3}")
            zero(a, 44, 4)
            a("s_waitcnt lgkmcnt(0)")
            a(f"buffer_store_dwordx4 v[36:39], v3, {WSR}, s66 offen{STS}")
            a(f"buffer_store_dwordx4 v[40:43], v3, {WSR}, s67 offen{STS}")
            a("s_mov_b64 exec, 1")
            a(f"buffer_store_dwordx4 v[44:47], v3, {WSR}, s68 offen{STS}")
            a(f"buffer_store_dword v44, v3, {WSR}, s76 offen{ST}")
            a("s_mov_b64 exec, -1")
            a.label("L_nowo2")
        if s == SIDE1:
            srd(a, S_RD, 16, 17, 1792 * 1024)
            srd(a, S_GW, 18, 19, 1024)
            a(f"s_mul_i32 s66, s{sHEAD}, 3")
            a("s_add_u32 s66, s66, s65")
            a(f"s_add_u32 s67, s{sHEAD}, 96")
            a("s_cmp_eq_u32 s65, 3")
            a("s_cselect_b32 s66, s67, s66")
            a("s_lshl_b32 s69, s66, 14")
            a(f"s_lshl_b32 s68, s{sQB}, 7")
            a("s_mov_b32 m0, s78")
            a("s_add_u32 s69, s69, s68")
            a(f"buffer_load_dwordx4 v15, {SR(S_RD)}, s69 offen{PNT} lds")
            a("s_add_u32 m0, s78, 1024")
            a("s_add_u32 s69, s69, 8192")
            a(f"buffer_load_dwordx4 v15, {SR(S_RD)}, s69 offen{PNT} lds")
            a(f"s_mul_i32 s79, s{sQB}, {2*144*1024}")
            a("s_lshl_b32 s67, s66, 10")
            a("s_add_u32 s79, s79, s67")
            a(f"s_add_u32 s79, s79, {WS_WF + 32*1024}")
            a("s_cmp_lt_u32 s66, 112")
            a(f"s_cselect_b32 s79, s79, {OOB:#x}")
            a(f"s_add_u32 s80, s79, {144*1024}")
            a(f"s_lshl_b32 s71, s{sMB}, 7")
            a(f"s_lshl_b32 s67, s{sNB}, 3")
            a("s_add_u32 s71, s71, s67")
            a("s_lshl_b32 s67, s65, 1")
            a("s_add_u32 s71, s71, s67")
            a("s_lshl_b32 s67, s71, 10")
            a(f"buffer_load_dwordx4 v[48:51], v3, {SR(S_X)}, s67 offen")
            a(f"buffer_load_dwordx4 v[52:55], v3, {SR(S_X)}, s67 offen offset:1024")
            a(f"buffer_load_dwordx4 v[56:59], v3, {SR(S_GW)}, 0 offen")
            issued.extend([("S", 0)] * 5)
        if s == SIDE2:
            side_out()
            if LEARLY:
                ltable(68, (79, 80, 66, 67))
                for n, r in enumerate((79, 80, 66, 67)): a(f"buffer_store_dwordx4 {vr(HP+4*n)}, v3, {WSR}, s{r} offen{STS}")
                issued.extend([("S", 1)] * 4)
        if s == 14:
            a(f"buffer_load_dword v16, v5, {SR(S_DBG)}, s85 offen{ST}")
            issued.append(("T", 3))
        if s == min(PUBS, PUBC) - 1:
            a("s_cmp_lg_u32 s65, 0")
            a("s_cbranch_scc1 L_tagdone")
            wait_tag(("T", 3))
            a("v_cmp_eq_u32 vcc, 0, v16")
            a("s_cbranch_vccz L_pt_ok")
            poll(a, "L_pt", lambda: a(f"buffer_load_dword v16, v5, {SR(S_DBG)}, 0 offen{ST}"), lambda: a("v_cmp_eq_u32 vcc, 0, v16"))
            a("v_not_b32 v17, v16")
            a.label("L_tagdone")
        for typ, at in ((0, PUBS), (1, PUBC)):
            if s == at:
                a(f"s_lshl_b32 s66, s65, 1")
                a(f"s_add_u32 s66, s66, s{sVC}")
                a(f"s_cmp_lg_u32 s66, {typ}")
                a(f"s_cbranch_scc1 L_f1done{typ}")
                one_lane(a, f"buffer_store_dwordx2 v[16:17], v5, {WSR}, s82 offen{ST}")
                a.label(f"L_f1done{typ}")
        if s == LASTB - 1:
            lda(); issued.append(("F", 0))
    a("s_cmp_ge_u32 s65, 2")
    a("s_cbranch_scc1 L_nocs")
    const_setup(a, 9, 32, 8)
    const_write(a, 9, 32)
    a.label("L_nocs")
    if E0 < 0: stamp(a, 8, VS)
    a("s_cmp_lg_u32 s65, 0")
    a("s_cbranch_scc1 L_wl")
    a("s_waitcnt vmcnt(0)")
    cmpa()
    a("s_cbranch_vccz L_ps1_ok")
    poll(a, "L_ps1", lda, cmpa)
    a("ds_write_b32 v7, v6")
    a("s_branch L_wl_ok")
    a.label("L_wl")
    a(f"s_mov_b32 s98, {SPIN*8}")
    a.label("L_wl2")
    a("ds_read_b32 v8, v7")
    a("s_waitcnt lgkmcnt(0)")
    a("v_cmp_ne_u32 vcc, 1, v8")
    a("s_cbranch_vccz L_wl_ok")
    a("s_sleep 1")
    a("s_sub_u32 s98, s98, 1")
    a("s_cmp_lg_u32 s98, 0")
    a("s_cbranch_scc1 L_wl2")
    a.label("L_wl_ok")
    if E0 < 0: stamp(a, 9, VS)
    a(f"s_lshl_b32 s56, s{sHEAD}, 16")
    a(f"s_lshl_b32 s67, s{sQB}, 13")
    a("s_lshl_b32 s57, s65, 11")
    a("s_add_u32 s59, s67, s57")
    a("s_add_u32 s67, s59, s56")
    a(f"s_add_u32 m0, s57, {LQI}")
    a(f"s_add_u32 s67, s67, {WS_QK}")
    for i in range(2): a(f"buffer_load_dwordx4 v3, {WSR}, s67 offen offset:{i*1024}{ST} lds")
    a(f"s_mul_i32 s58, s65, {2*VST}")
    kv8(a, 0)
    a(f"s_mov_b32 s{DT}, s79")
    a(f"s_mov_b32 s{DT+1}, s80")
    ltable(68, (DT, DT+1, DT+2, DT+3))
    a(f"v_mov_b32 v{WO}, v16")
    a(f"v_mov_b32 v{WO+1}, v17")
    a("s_branch L_attn")

def kv8(a, p0):
    a(f"s_add_u32 s94, s59, {p0*1024}")
    a("s_and_b32 s94, s94, 0xffff")
    a("s_add_u32 s94, s94, s56")
    a(f"s_add_u32 m0, s57, {LK + p0*1024}")
    a(f"s_add_u32 s67, s94, {WS_QK + 32*65536}")
    for i in range(2): a(f"buffer_load_dwordx4 v3, {WSR}, s67 offen offset:{i*1024}{ST} lds")
    a(f"s_add_u32 s67, s94, {WS_V}")
    for i in range(2):
        a(f"s_add_u32 m0, s58, {LV + (p0+i)*VST - i*1024}")
        a(f"buffer_load_dwordx4 v3, {WSR}, s67 offen offset:{i*1024}{ST} lds")

LEARLY = False
def const_setup(a, va, vd, t):
    a(f"v_and_b32 v{t}, 255, v0")
    a(f"v_lshrrev_b32 v{va}, 2, v{t}")
    a(f"v_mul_u32_u24 v{va}, {VST}, v{va}")
    a(f"v_and_b32 v{t}, 3, v{t}")
    a(f"v_mul_u32_u24 v{t}, v{t}, v{t}")
    a(f"v_min_u32 v{t}, 4, v{t}")
    a(f"v_lshl_add_u32 v{va}, v{t}, 4, v{va}")
    a(f"v_add_u32 v{va}, {LV + 1024}, v{va}")
    a(f"v_mov_b32 v{vd}, 0x3f803f80")
    if ONE_ROW:
        a(f"v_cmp_eq_u32 vcc, 0, v{t}")
        a(f"v_cndmask_b32 v{vd}, 0, v{vd}, vcc")
    a(f"v_mov_b32 v{vd+1}, v{vd}")
def const_write(a, va, vd):
    a(f"ds_write_b64 v{va}, {vr(vd,2)}")
    a(f"ds_write_b64 v{va}, {vr(vd,2)} offset:8")

def attn(a):
    a.label("L_attn")
    a(f"s_and_b32 s65, s{sWAVE}, 3")
    a(f"s_lshr_b32 s66, s{sWAVE}, 2")
    a("s_lshl_b32 s67, s66, 10")
    a(f"v_add_u32 v{VK}, s67, v3")
    a(f"v_add_u32 v8, {VROT}, v2")
    a("v_and_b32 v8, 15, v8")
    a("v_lshrrev_b32 v9, 5, v2")
    a("v_lshl_or_b32 v8, v9, 4, v8")
    a("v_lshlrev_b32 v8, 4, v8")
    a("v_add_u32 v9, 512, v8")
    a("v_and_b32 v10, 31, v2")
    a("v_subrev_u32 v11, 20, v10")
    a("v_cmp_gt_u32 vcc, 8, v11")
    a("v_mov_b32 v11, 1040")
    a("v_mov_b32 v12, 1088")
    a("v_cndmask_b32 v11, v11, v12, vcc")
    a("v_cmp_eq_u32 vcc, 16, v10")
    a("v_mov_b32 v12, 1024")
    a("v_cndmask_b32 v11, v11, v12, vcc")
    a("v_cmp_gt_u32 vcc, 16, v10")
    a("v_cndmask_b32 v8, v11, v8, vcc")
    a("v_cndmask_b32 v9, v11, v9, vcc")
    a(f"s_mul_i32 s67, s66, {VST}")
    a(f"s_add_u32 s67, s67, {LV}")
    a(f"v_add_u32 v{VV0}, s67, v8")
    a(f"v_add_u32 v{VV1}, s67, v9")
    a("s_lshl_b32 s67, s65, 11")
    a(f"s_add_u32 s67, s67, {LQI}")
    a("v_add_u32 v20, s67, v3")
    zero(a, OA, 32); zero(a, V1, 4); zero(a, GACC, 32)
    T0 = GFR + 36
    a(f"s_lshl_b32 s73, s{sMB}, 11")
    a(f"s_lshl_b32 s74, s{sNB}, 7")
    a("s_add_u32 s73, s73, s74")
    a(f"s_add_u32 s73, s73, {WS_F2}")
    a(f"s_lshl_b32 s74, s{sQB}, 12")
    a(f"s_lshl_b32 s75, s{sHEAD}, 7")
    a("s_add_u32 s74, s74, s75")
    a(f"s_add_u32 s74, s74, {WS_F3}")
    a(f"v_mov_b32 v{T0+2}, s73")
    a(f"v_writelane_b32 v{T0+2}, s74, 1")
    a(f"v_mov_b32 v{T0+3}, 1")
    a(f"v_mov_b32 v{T0+4}, {LCNT+4}")
    g = T0 + 5
    a(f"v_and_b32 v{g+2}, 15, v2")
    a(f"v_lshlrev_b32 v{g+2}, 7, v{g+2}")
    a(f"s_lshr_b32 s74, s{sHEAD}, 1")
    a("s_lshl_b32 s74, s74, 11")
    a(f"s_add_u32 s74, s74, {WS_F2}")
    a(f"s_lshl_b32 s88, s{sQB}, 12")
    a(f"s_lshr_b32 s89, s{sHEAD}, 2")
    a("s_lshl_b32 s89, s89, 12")
    a("s_sub_u32 s89, s89, 4096")
    a(f"v_mov_b32 v{g}, s88")
    a(f"v_mov_b32 v{g+1}, s89")
    a("v_cmp_gt_u32 vcc, 32, v2")
    a(f"v_cndmask_b32 v{g}, v{g+1}, v{g}, vcc")
    a(f"v_lshl_add_u32 v{g+3}, v2, 7, v{g}")
    a(f"s_mov_b32 s88, {WS_F3}")
    a(f"s_and_b32 s68, s{sWAVE}, 1")
    a(f"s_lshr_b32 s69, s{sWAVE}, 1")
    a(f"s_lshl_b32 s84, s{sHEAD}, 1")
    a("s_add_u32 s84, s84, s68")
    a(f"s_mul_i32 s85, s84, {144*1024}")
    a(f"s_add_u32 s85, s85, {WS_AF}")
    a(f"s_mul_i32 s86, s{sQB}, {2*144*1024}")
    a(f"s_add_u32 s86, s86, {WS_WF}")
    a(f"s_mul_i32 s75, s69, {28*1024}")
    a(f"s_add_u32 s75, s75, {32*1024}")
    a("s_add_u32 s76, s85, s75")
    a("s_add_u32 s77, s86, s75")
    a(f"s_add_u32 s78, s77, {144*1024}")
    a("s_lshl_b32 s75, s69, 13")
    a("s_add_u32 s85, s85, s75")
    a("s_add_u32 s86, s86, s75")
    a(f"v_mov_b32 v{VG}, v3")
    a("s_movk_i32 s87, 4096")
    a(f"s_lshl_b32 s90, s{sHEAD}, 16")
    a(f"s_lshl_b32 s91, s{sWAVE}, 10")
    a(f"s_mul_i32 s92, s{sWAVE}, {VST}")
    a(f"s_lshl_b32 s93, s{sQB}, 13")
    a("s_add_u32 s93, s93, s91")
    const_setup(a, T0+9, T0+10, T0)
    a(f"v_lshlrev_b32 v{WO+2}, 7, v2")
    a(f"s_cmp_lt_u32 s{sWAVE}, 4")
    a("s_cbranch_scc1 L_x1")
    for p0 in (8, 16, 24): kv8(a, p0)
    a("s_waitcnt vmcnt(8)")
    a.label("L_x1")
    a("s_waitcnt lgkmcnt(0)")
    a("s_setprio 3")
    a("s_barrier")
    stamp(a, 10, VS)
    a(f"ds_read_b128 {vr(QA)}, v20")
    a(f"ds_read_b128 {vr(QB)}, v20 offset:1024")
    a(f"ds_read_b128 {vr(V0B)}, v3")
    a(f"ds_read_b128 {vr(KF)}, v{VK}")
    a(f"ds_read_b128 {vr(V0A)}, v{VV0}")
    a(f"s_cmp_lt_u32 s{sWAVE}, 6")
    a("s_cbranch_scc1 L_nocs2")
    const_write(a, T0+9, T0+10)
    a.label("L_nocs2")
    def kvops(groups):
        ops = []
        for p0 in groups:
            ops.append([f"s_add_u32 s94, s93, {p0*1024}", "s_and_b32 s94, s94, 0xffff", "s_add_u32 s94, s94, s90",
                        f"s_add_u32 m0, s91, {LK + p0*1024}", f"s_add_u32 s67, s94, {WS_QK + 32*65536}",
                        f"buffer_load_dwordx4 v3, {WSR}, s67 offen{ST} lds"])
            ops.append([f"s_add_u32 m0, s92, {LV + p0*VST}", f"s_add_u32 s67, s94, {WS_V}",
                        f"buffer_load_dwordx4 v3, {WSR}, s67 offen{ST} lds"])
        return ops
    def burst(young):
        t = "y" if young else "o"
        a(f"s_cmp_{'lt' if young else 'ge'}_u32 s{sWAVE}, 4")
        a(f"s_cbranch_scc1 L_st4{t}")
        for n in range(4): a(f"buffer_store_dwordx4 {vr(HP+4*n)}, v3, {WSR}, s{DT+n} offen{STS}")
        if not young:
            a(f"s_cmp_lg_u32 s{sVC}, 0")
            a(f"s_cbranch_scc1 L_st4{t}")
            for n in range(4, 8): a(f"buffer_store_dwordx4 {vr(HP+4*n)}, v3, {WSR}, s{DT+n} offen{STS}")
        a.label(f"L_st4{t}")
    BURSTK = int(ENV("BURSTK", "2"))
    burst(False)
    if BURSTK < 0: burst(True)
    stamp(a, 21, VS) if not ENV("EARLY") else None
    a("s_waitcnt lgkmcnt(0)")
    a(f"{MF} {vr(SA,16)}, {vr(V0B)}, {vr(QA)}, 0")
    a(f"{MF} {vr(SB,16)}, {vr(V0B)}, {vr(QB)}, 0")
    rowmax(a, SA, T0)
    rowmax(a, SB, T0, acc=True)
    halfmax(a, T0, T0 + 1)
    for i in range(16): a(f"v_sub_f32 v{CC+i}, 0, v{T0}")
    a("s_waitcnt lgkmcnt(0)")
    a(f"{MF} {vr(SA,16)}, {vr(KF)}, {vr(QA)}, {vr(CC,16)}")
    zero(a, SB + 8, 4)
    a("s_nop 9")

    def tile(n, which, extra, extra0=lambda: None):
        S, T, O, OT, QT = (SA, SB, OA, OB, QB) if which == 0 else (SB, SA, OB, OA, QA)
        v0 = V0A if n % 2 == 0 else V0B
        v0n = V0B if n % 2 == 0 else V0A
        e = lambda i: a(f"v_exp_f32 v{S+i}, v{S+i}")
        c = lambda i: a(f"v_cvt_pk_bf16_f32 v{S + (i>>2)*8 + (i&3)}, v{S+2*i}, v{S+2*i+1}")
        e(0); e(1)
        if which == 1: a("s_waitcnt lgkmcnt(0)")
        a(f"{MF} {vr(OT,16)}, {vr(V1)}, {vr(T+8)}, {vr(OT,16)}")
        if which == 0:
            a(f"ds_read_b128 {vr(V1)}, v{VV1} offset:{2*n*VST}")
            a(f"ds_read_b128 {vr(v0n)}, v{VV0} offset:{2*(n+1)*VST}")
        e(2); e(3); e(4); e(5)
        a(f"{MF} {vr(T,16)}, {vr(KF)}, {vr(QT)}, {vr(CC,16)}")
        if which == 0: a(f"ds_read_b128 {vr(KF)}, v{VK} offset:{2*(n+1)*1024}")
        e(6); e(7); e(8)
        extra0()
        for i in range(4): c(i)
        e(9); e(10)
        a(f"{MF} {vr(O,16)}, {vr(v0)}, {vr(S)}, {vr(O,16)}")
        e(11); e(12); e(13); e(14)
        extra()
        e(15)
        for i in range(4, 8): c(i)
    def bump(n):
        a(f"v_add_u32 v{VK}, {2*n*1024}, v{VK}")
        a(f"v_add_u32 v{VV0}, {2*n*VST}, v{VV0}")
        a(f"v_add_u32 v{VV1}, {2*n*VST}, v{VV1}")
    PRIO = ENV("PRIO", "1") == "1"
    DPER, DRAIN = int(ENV("DPER", "1")), int(ENV("DRAIN", "10"))
    wo = list(range(16))
    g = T0 + 5
    def ld2():
        a(f"buffer_load_dword v{g}, v{g+2}, {WSR}, s74 offen{ST}")
        a(f"buffer_load_dword v{g+1}, v{g+3}, {WSR}, s88 offen{ST}")
    def cmp2():
        a(f"v_and_b32 v{g}, v{g}, v{g+1}")
        a(f"v_cmp_ne_u32 vcc, 1, v{g}")
    def ldswait(name, off, val):
        a(f"s_mov_b32 s98, {SPIN*8}")
        a.label(name)
        a(f"ds_read_b32 v{T0}, v{T0+1} offset:{off}")
        a("s_waitcnt lgkmcnt(0)")
        a(f"v_cmp_ne_u32 vcc, {val}, v{T0}")
        a(f"s_cbranch_vccz {name}_ok")
        a("s_sleep 1")
        a("s_sub_u32 s98, s98, 1")
        a("s_cmp_lg_u32 s98, 0")
        a(f"s_cbranch_scc1 {name}")
        a.label(f"{name}_ok")
    a(f"v_mov_b32 v{T0+1}, {LCNT}")
    S2W = int(ENV('S2WAVE', '0'))
    S2AT = int(ENV('S2AT', '14'))
    def ldwo(i):
        if i % 4 == 0: a(f"s_add_u32 s71, s86, {(i>>3)*144*1024 + (i&7)*1024}")
        a(f"buffer_load_dwordx4 {vr(WO + 4*i)}, v3, {WSR}, s71 offen offset:{(i&3)*1024}{ST}")
    PK = [int(x) for x in ENV("PK", "3,7,12").split(",")]
    ops = kvops((32, 40, 48, 56))
    ops = [(lambda l=l: [a(x) for x in l]) for l in ops] + [(lambda i=i: ldwo(i)) for i in range(16)]
    def ldb():
        for i in range(4):
            a(f"s_mov_b32 s70, {WS_F1 + i*8192}")
            a(f"buffer_load_dwordx2 {vr(WO+4+2*i,2)}, v{WO+2}, {WSR}, s70 offen{ST}")
    def cmpb():
        b = WO + 4
        for i in range(4):
            a(f"v_xor_b32 v{b+2*i}, v{b+2*i}, v{WO}")
            a(f"v_xor_b32 v{b+2*i+1}, v{b+2*i+1}, v{WO+1}")
        a(f"v_or3_b32 v{b}, v{b}, v{b+1}, v{b+2}")
        a(f"v_or3_b32 v{b+3}, v{b+3}, v{b+4}, v{b+5}")
        a(f"v_or3_b32 v{b}, v{b}, v{b+6}, v{b+7}")
        a(f"v_or_b32 v{b}, v{b}, v{b+3}")
        a(f"v_cmp_ne_u32 vcc, 0, v{b}")
    DRAIN = int(ENV("DRAIN", "5"))
    KVW = int(ENV("KVW", "10"))
    nkv = 8
    slots = 2 * (15 - DRAIN) - 1
    def emit_ops():
        nonlocal slots
        n = -(-len(ops) // slots); slots -= 1
        if kcur < KVW: n = min(1, len(ops) - 16)
        for _ in range(n): ops.pop(0)()
    for k in range(16):
        if PRIO and k in PK: a(f"s_setprio {2 - PK.index(k)}")
        kcur = k
        if k == KVW: ldswait("L_kvw", 4, 8)
        if k == S2AT:
            a(f"s_cmp_lg_u32 s{sWAVE}, {S2W}")
            a("s_cbranch_scc1 L_s2a")
            ld2()
            a.label("L_s2a")
        def extra():
            if k == BURSTK: burst(True)
            if k == DRAIN - 2:
                a(f"s_cmp_lg_u32 s{sWAVE}, 4")
                a("s_cbranch_scc1 L_s1b0")
                ldb()
                a.label("L_s1b0")
            if k == DRAIN:
                stamp(a, 23, VS) if not ENV("EARLY") else None
                a("s_waitcnt vmcnt(0)")
                stamp(a, 24, VS) if not ENV("EARLY") else None
                a(f"s_cmp_lg_u32 s{sWAVE}, 4")
                a("s_cbranch_scc1 L_ps1b_ok")
                cmpb()
                a("s_cbranch_vccz L_ps1b_ok")
                poll(a, "L_ps1b", ldb, cmpb)
                one_lane(a, f"ds_add_rtn_u32 v{T0+4}, v{T0+4}, v{T0+3}")
            if k > DRAIN: emit_ops()
        def extra0():
            if k == DRAIN + 1:
                a("s_waitcnt lgkmcnt(0)")
                a(f"v_readfirstlane_b32 s70, v{T0+4}")
                a("s_cmp_eq_u32 s70, 7")
                a(f"s_cselect_b32 s70, 0, {OOB:#x}")
                one_lane(a, f"buffer_store_dword v{T0+3}, v{T0+2}, {WSR}, s70 offen{ST}", 3)
            if k > DRAIN + 1: emit_ops()
        nleft = len(ops)
        if k == S2AT: after_s2 = nleft
        tile(k >> 1, k & 1, extra, extra0)
    assert not ops
    stamp(a, 11, VS)
    a(f"s_cmp_lg_u32 s{sWAVE}, {S2W}")
    a("s_cbranch_scc1 L_s2b")
    a(f"s_waitcnt vmcnt({after_s2})")
    cmp2()
    a("s_cbranch_vccz L_ps2_ok")
    poll(a, "L_ps2", ld2, cmp2)
    a(f"ds_write_b32 v{T0+1}, v{T0+3} offset:8")
    a("s_waitcnt lgkmcnt(0)")
    a("s_branch L_s2w_ok")
    a.label("L_s2b")
    ldswait("L_s2w", 8, 1)
    stamp(a, 16, VS)
    if PRIO: a("s_setprio 3")
    bump(8)
    def gld(buf, q, off): a(f"buffer_load_dwordx4 {vr(GFR + 12*buf + 4*q)}, v{VG}, {WSR}, s{76+q} offen offset:{off}{'' if 'P' in ENV('XG', '') else ST}")
    def gm(buf, j):
        d = vr(GACC + 16*j, 16)
        a(f"{MF} {d}, {vr(GFR + 12*buf + 4 + 4*j)}, {vr(GFR + 12*buf)}, {d}")
    for b in range(4):
        for q in (1, 0, 2): gld(b, q, b * 1024)
    a(f"v_add_u32 v{VG}, 4096, v{VG}")
    a("s_mov_b32 s80, 6")
    a(f"v_mov_b32 v0, {LCNT}")
    a("v_mov_b32 v2, 1")
    a.label("L_aloop")
    def gstep(m, wait=9):
        b, j = (m >> 1) & 3, m & 1
        if j == 0: a(f"s_waitcnt vmcnt({wait})")
        gm(b, j)
        if j == 0: gld(b, 1, b * 1024)
        else: gld(b, 0, b * 1024); gld(b, 2, b * 1024)
    for k in range(8):
        def extra():
            gstep(k)
            if k == 1: a("s_sub_u32 s80, s80, 1")
            if k == 2:
                one_lane(a, f"ds_add_u32 v0, v2 offset:12")
        tile(k >> 1, k & 1, extra)
    bump(4)
    a(f"v_add_u32 v{VG}, 4096, v{VG}")
    a("s_cmp_lg_u32 s80, 5")
    a("s_cbranch_scc1 L_kv2_ok")
    a(f"s_mov_b32 s98, {SPIN*8}")
    a.label("L_kv2")
    a(f"ds_read_b32 v2, v0 offset:12")
    a("s_waitcnt lgkmcnt(0)")
    a(f"v_cmp_gt_u32 vcc, 8, v2")
    a("s_cbranch_vccz L_kv2_ok")
    a("s_sleep 1")
    a("s_sub_u32 s98, s98, 1")
    a("s_cmp_lg_u32 s98, 0")
    a("s_cbranch_scc1 L_kv2")
    a.label("L_kv2_ok")
    if PRIO:
        for lim, pr in zip([int(x) for x in ENV("PL", "4,2,1").split(",")], (2, 1, 0)):
            a(f"s_cmp_gt_u32 s80, {lim}")
            a("s_cbranch_scc1 L_aloop")
            a(f"s_setprio {pr}")
    a("s_cmp_lg_u32 s80, 0")
    a("s_cbranch_scc1 L_aloop")
    a("v_lshrrev_b32 v2, 4, v3")
    if STAMP: a(f"v_lshl_add_u32 v0, s{sWAVE}, 6, v2")
    a(f"{MF} {vr(OB,16)}, {vr(V1)}, {vr(SB+8)}, {vr(OB,16)}")
    stamp(a, 17, VS)
    a(f"s_mul_i32 s79, s{sWAVE}, 2304")
    a(f"s_add_u32 s79, s79, {LQ}")
    a(f"s_xor_b32 s80, s{sWAVE}, 4")
    a("s_mul_i32 s80, s80, 2304")
    a(f"s_add_u32 s80, s80, {LQ}")
    a(f"v_add_u32 v{KF}, s79, v3")
    a(f"v_add_u32 v{KF+1}, s80, v3")
    a(f"v_lshl_add_u32 v{KF+2}, v2, 2, s79")
    a(f"v_lshl_add_u32 v{KF+3}, v2, 2, s80")
    a(f"v_and_b32 v{V0A}, 31, v2")
    a(f"v_lshlrev_b32 v{V0A}, 2, v{V0A}")
    a("s_lshl_b32 s79, s84, 7")
    a(f"s_add_u32 s79, s79, {WS_G}")
    VGT = V0B
    a(f"buffer_load_dword v{VGT}, v{V0A}, {WSR}, s79 offen{ST}")
    a("s_cmp_eq_u32 s66, 0")
    a("s_cbranch_scc1 L_keepA")
    a(f"ds_write_b128 v{KF}, {vr(OA)}")
    a(f"ds_write_b128 v{KF}, {vr(OA+4)} offset:1024")
    a(f"ds_write_b32 v{KF+2}, v{OA+8} offset:2048")
    for i in range(9): a(f"v_mov_b32 v{OA+i}, v{OB+i}")
    for i in range(4): a(f"v_mov_b32 v{QA+i}, v{QB+i}")
    a("s_branch L_sent")
    a.label("L_keepA")
    a(f"ds_write_b128 v{KF}, {vr(OB)}")
    a(f"ds_write_b128 v{KF}, {vr(OB+4)} offset:1024")
    a(f"ds_write_b32 v{KF+2}, v{OB+8} offset:2048")
    a.label("L_sent")
    a(f"s_lshl_b32 s79, s{sQB}, 3")
    a("s_lshl_b32 s80, s65, 1")
    a("s_add_u32 s79, s79, s80")
    a("s_add_u32 s79, s79, s66")
    a(f"s_mul_i32 s81, s79, {144*1024}")
    a(f"s_lshl_b32 s80, s{sHEAD}, 10")
    a("s_add_u32 s81, s81, s80")
    a(f"s_add_u32 s81, s81, {WS_AF}")
    a("s_waitcnt lgkmcnt(0)")
    a("s_barrier")
    a(f"ds_read_b128 {vr(OB)}, v{KF+1}")
    a(f"ds_read_b128 {vr(OB+4)}, v{KF+1} offset:1024")
    a(f"ds_read_b32 v{OB+8}, v{KF+3} offset:2048")
    a("s_waitcnt lgkmcnt(0)")
    for i in range(9): a(f"v_add_f32 v{OA+i}, v{OA+i}, v{OB+i}")
    def lbcast():
        if ONE_ROW:
            a(f"v_mov_b32 v{OB}, v{OA+8}")
            a(f"v_permlane32_swap_b32 v{OA+8}, v{OB}")
    lbcast()
    a(f"v_cmp_nge_f32 vcc, {f32(2.0**60)}, v{OA+8}")
    a("s_mov_b64 s[82:83], vcc")
    a(f"v_cmp_nle_f32 vcc, {f32(2.0**-60)}, v{OA+8}")
    a("s_or_b64 vcc, vcc, s[82:83]")
    a("s_cbranch_vccnz L_redo")
    a.label("L_aok")
    a(f"v_rcp_f32 v12, v{OA+8}")
    for i in range(8): a(f"v_mul_f32 v{OA+i}, v12, v{OA+i}")
    for i in range(4): a(f"v_cvt_pk_bf16_f32 v{SA+i}, v{OA+2*i}, v{OA+2*i+1}")
    for i in range(4): a(f"v_min_u32 v{SA+i}, -2, v{SA+i}")
    a(f"buffer_store_dwordx4 {vr(SA)}, v3, {WSR}, s81 offen{STS}")
    stamp(a, 18, VS)
    srd(a, S_OUT, 20, 21, 2048 * 1024)
    a("s_lshl_b32 s79, s68, 15")
    a("v_add_u32 v14, s79, v3")
    a("s_lshl_b32 s80, s69, 13")
    a("s_add_u32 s80, s80, s79")
    a("v_add_u32 v15, s80, v3")
    a("v_and_b32 v12, 31, v2")
    a("v_lshlrev_b32 v12, 10, v12")
    a("v_lshrrev_b32 v13, 5, v2")
    a("v_lshl_or_b32 v11, v13, 4, v12")
    a("s_lshl_b32 s79, s84, 15")
    a(f"s_lshl_b32 s80, s{sQB}, 7")
    a("s_add_u32 s79, s79, s80")
    a("s_lshl_b32 s80, s69, 5")
    a("s_add_u32 s79, s79, s80")
    a("s_add_u32 s87, s85, 4096")
    a("s_barrier")
    a("s_waitcnt vmcnt(1)")
    for b in range(4): gm(b, 0); gm(b, 1)
    a("s_waitcnt vmcnt(0)")
    stamp(a, 19, VS)
    OF, A2 = 16, 64
    def ldO():
        for i in range(8): a(f"buffer_load_dwordx4 {vr(OF+4*i)}, v3, {WSR}, s{85 if i < 4 else 87} offen offset:{(i&3)*1024}{ST}")
    def cmpO():
        for i in range(8):
            a(f"s_waitcnt vmcnt({7-i})")
            for j in range(2):
                d = vr(A2 + 16*j, 16)
                a(f"{MF} {d}, {vr(WO + 32*j + 4*i)}, {vr(OF+4*i)}, {'0' if i == 0 else d}")
            r = OF + 4*i
            if i == 0: a(f"v_max_u32 v12, v{r}, v{r+1}")
            else: a(f"v_max3_u32 v12, v{r}, v{r+1}, v12")
            a(f"v_max3_u32 v12, v{r+2}, v{r+3}, v12")
        a("v_cmp_eq_u32 vcc, -1, v12")
    ldO()
    a(f"v_sub_f32 v10, 1.0, v{VGT}")
    for r in range(32): a(f"v_mul_f32 v{GACC+r}, v10, v{GACC+r}")
    a(f"s_mov_b32 s98, {SPIN}")
    a("s_branch L_ps3c")
    def ldO2():
        ldO(); a.label("L_ps3c")
    poll(a, "L_ps3", ldO2, cmpO, wait=False)
    stamp(a, 20, VS)
    for kq in range(4):
        if kq < 3:
            a(f"s_cmp_lg_u32 s69, {kq}")
            a(f"s_cbranch_scc1 L_red{kq+1}")
        for sl in [x for x in range(4) if x != kq] + [kq]:
            for r in range(8*sl, 8*sl + 8):
                if sl == kq: a(f"v_fma_f32 v{OF + r - 8*sl}, v{VGT}, v{A2+r}, v{GACC+r}")
                else: a(f"v_fmac_f32 v{GACC+r}, v{VGT}, v{A2+r}")
            if sl != kq:
                for k in range(2): a(f"ds_write_b128 v14, {vr(GACC + 8*sl + 4*k)} offset:{sl*8192 + ((kq - sl - 1) & 3)*2048 + k*1024}")
        if kq < 3:
            a("s_branch L_redw")
            a.label(f"L_red{kq+1}")
    a.label("L_redw")
    a("s_waitcnt lgkmcnt(0)")
    a("s_barrier")
    for q in range(3):
        for k in range(2): a(f"ds_read_b128 {vr(OF + 8 + 8*q + 4*k)}, v15 offset:{q*2048 + k*1024}")
    a("s_waitcnt lgkmcnt(4)")
    for r in range(0, 8, 2): a(f"v_pk_add_f32 {vr(OF+r,2)}, {vr(OF+r,2)}, {vr(OF+8+r,2)}")
    a("s_waitcnt lgkmcnt(0)")
    for r in range(0, 8, 2): a(f"v_pk_add_f32 {vr(OF+16+r,2)}, {vr(OF+16+r,2)}, {vr(OF+24+r,2)}")
    for r in range(0, 8, 2): a(f"v_pk_add_f32 {vr(OF+r,2)}, {vr(OF+r,2)}, {vr(OF+16+r,2)}")
    for i in range(4): a(f"v_cvt_pk_bf16_f32 v{48+i}, v{OF+2*i}, v{OF+2*i+1}")
    a("v_permlane32_swap_b32 v48, v50")
    a("v_permlane32_swap_b32 v49, v51")
    a(f"buffer_store_dwordx4 v[48:51], v11, {SR(S_OUT)}, s79 offen")
    if ENV("FIXT"):
        a.label("L_fixt")
        a("s_memrealtime s[100:101]")
        a("s_waitcnt lgkmcnt(0)")
        a("s_sub_u32 s100, s100, s96")
        a(f"s_cmp_lt_u32 s100, {int(ENV('FIXT'))}")
        a("s_cbranch_scc1 L_fixt")
    if STAMP: a("s_waitcnt vmcnt(0)")
    stamp_out(a, 0, S_WS, VS, 14)
    if STAMP and ENV("DBGOUT"):
        a(f"s_lshl_b32 s66, s{sWAVE}, 8")
        a("s_or_b32 s66, s66, s2")
        a(f"s_cmp_lg_u32 s66, {int(ENV('DBGOUT'))}")
        a("s_cbranch_scc1 L_exit")
        a(f"v_readlane_b32 s67, v{VS}, 1")
        for k, idx in enumerate((3, 4, 5, 6, 7, 10, 11, 16, 17, 18, 19, 20, 14)):
            a(f"v_readlane_b32 s66, v{VS}, {32+idx}")
            a("s_sub_u32 s66, s66, s67")
            a(f"v_writelane_b32 v14, s66, {k}")
        a(f"v_readlane_b32 s66, v{VS}, 14")
        a(f"v_readlane_b32 s67, v{VS}, 0")
        a("s_sub_u32 s66, s66, s67")
        a("v_writelane_b32 v14, s66, 13")
        a("v_lshlrev_b32 v15, 2, v2")
        one_lane(a, f"buffer_store_dword v14, v15, {SR(S_DBG)}, 0 offen offset:4", "0x3fff")
    a("s_endpgm")
    a.label("L_redo")
    a(f"s_mul_i32 s79, s66, {VST}")
    a(f"s_add_u32 s79, s79, {64*VST}")
    a(f"v_subrev_u32 v{VV0}, s79, v{VV0}")
    a(f"v_subrev_u32 v{VV1}, s79, v{VV1}")
    a(f"v_mov_b32 v{VK}, v3")
    a("v_mov_b32 v12, 0xff800000")
    a("s_mov_b32 s80, 0")
    a.label("L_fmax")
    a(f"ds_read_b128 {vr(KF)}, v{VK}")
    a("s_waitcnt lgkmcnt(0)")
    a(f"{MF} {vr(SA,16)}, {vr(KF)}, {vr(QA)}, 0")
    a(f"v_add_u32 v{VK}, 1024, v{VK}")
    rowmax(a, SA, 12, acc=True)
    a("s_add_u32 s80, s80, 1")
    a("s_cmp_lt_u32 s80, 64")
    a("s_cbranch_scc1 L_fmax")
    halfmax(a, 12, 13)
    for i in range(16): a(f"v_sub_f32 v{CC+i}, 0, v12")
    zero(a, OA, 16)
    a(f"v_mov_b32 v{VK}, v3")
    a("s_mov_b32 s80, 0")
    a.label("L_fslow")
    a(f"ds_read_b128 {vr(KF)}, v{VK}")
    a(f"ds_read_b128 {vr(V0A)}, v{VV0}")
    a(f"ds_read_b128 {vr(V1)}, v{VV1}")
    a("s_waitcnt lgkmcnt(0)")
    a(f"{MF} {vr(SA,16)}, {vr(KF)}, {vr(QA)}, {vr(CC,16)}")
    a(f"v_add_u32 v{VK}, 1024, v{VK}")
    a(f"v_add_u32 v{VV0}, {VST}, v{VV0}")
    a(f"v_add_u32 v{VV1}, {VST}, v{VV1}")
    for i in range(16): a(f"v_exp_f32 v{SA+i}, v{SA+i}")
    for i in range(8): a(f"v_cvt_pk_bf16_f32 v{SB+i}, v{SA+2*i}, v{SA+2*i+1}")
    a(f"{MF} {vr(OA,16)}, {vr(V0A)}, {vr(SB)}, {vr(OA,16)}")
    a(f"{MF} {vr(OA,16)}, {vr(V1)}, {vr(SB+4)}, {vr(OA,16)}")
    a("s_add_u32 s80, s80, 1")
    a("s_cmp_lt_u32 s80, 64")
    a("s_cbranch_scc1 L_fslow")
    a("s_nop 9")
    lbcast()
    a("s_branch L_aok")

def build():
    a = Asm()
    head(a)
    p1_loader(a)
    p1_compute(a)
    attn(a)
    a.label("L_exit")
    a("s_endpgm")
    n = a.fix(verbose="-v" in sys.argv)
    print("instructions:", len(a.lines), "nop states inserted:", n, "lds", LDS_BYTES, file=sys.stderr)
    name = NAME + "_kernel"
    hdr = open("cdna_kernels/" + NAME + ".s.ref").read().split("; Override launch")[0]
    out = hdr + f"; @launch grid=(256,1,1) block=(512,1,1) lds={LDS_BYTES}\n"
    out += '.amdgcn_target "amdgcn-amd-amdhsa--gfx950"\n.text\n'
    out += f".globl {name}\n.p2align 8\n.type {name},@function\n{name}:\n" + a.text()
    out += '.section .rodata,"a"\n' + kd(name)
    dst = sys.argv[1] if len(sys.argv) > 1 and not sys.argv[1].startswith("-") else "cdna_kernels/" + NAME + ".s"
    open(dst, "w").write(out)
if __name__ == "__main__": build()
```

```python
import os, sys
from common import *

MF = "v_mfma_f32_32x32x16_bf16"
ST = " sc1"
STS = " sc1 nt" if os.environ.get("SNT") else " sc1"
ENV = os.environ.get
WS_F1 = 0x1480000
WS_F2 = 0x1490000
WS_F3 = 0x1498000
WS_TAG = 0x14a0000
SPIN = 1 << 17

S_DBG, S_WS, S_X, S_G, S_U, S_WA, S_WB, S_WC = 24, 28, 32, 36, 40, 44, 48, 52
S_RO, S_RD, S_GW = 56, 44, 48
S_OUT = 32
sWAVE, sMB, sNB, sVC = 3, 60, 61, 62
sHEAD, sQB = 63, 64
WSR = f"s[{S_WS}:{S_WS+3}]"
def SR(n): return f"s[{n}:{n+3}]"
VS = 1

NXS = 6
LX, XSLOT = 0, 16384
LW = NXS * XSLOT
NW1, WS1 = 5, 12288
NW2, WS2, LW2 = 6, 8192, LW + 12288
LRD = LW
LRO = LW + NW1 * WS1
LDS_BYTES = 163840
LCNT = LDS_BYTES - 16
LC2 = LDS_BYTES - 32
assert LRO + 2048 <= LCNT and (16 % NW1) * WS1 == LW2 - LW and LW2 + NW2 * WS2 <= LRO
KROT = 8 - NXS
def wslot(s): return (LW + (s % NW1) * WS1, WS1) if s < 16 else (LW2 + ((s - 16) % NW2) * WS2, WS2)
def acc(tt, ct): return 96 + (tt * 4 + ct) * 16 if ct < 4 else 224 + tt * 16
HP = 224
DT = 36
FR0, FR1 = 16, 36
VXA, VW = 56, 60
ONE_ROW = not ENV("ALLONES")
VST, VROT = 1104, 0
LK, LV = 0, 65536
LQ = LV + 64 * VST
LQI = 143360
LASTB = 28
QA, QB, CC, OA, OB, SA, SB, KF, V0A, V0B, V1 = 8, 12, 16, 32, 48, 64, 80, 96, 100, 104, 108
VK, VV0, VV1, VG = 4, 5, 6, 7
GACC, GFR, WO = 112, 144, 192

class Lgkm:
    def __init__(s, a): s.a = a; s.q = []
    def rd(s, tag, text): s.a(text); s.q.append(tag)
    def need(s, *tags):
        idx = [i for i, t in enumerate(s.q) if t in tags]
        if not idx: return
        n = len(s.q) - 1 - max(idx)
        assert n <= 15
        s.a(f"s_waitcnt lgkmcnt({n})")
        s.q = s.q[max(idx) + 1:]
    def all(s, extra=""):
        s.a("s_waitcnt " + extra + "lgkmcnt(0)")
        s.q = []

def poll(a, name, load, cmp, wait=True):
    a(f"s_mov_b32 s98, {SPIN}")
    a.label(name)
    load()
    if wait: a("s_waitcnt vmcnt(0)")
    cmp()
    a(f"s_cbranch_vccz {name}_ok")
    a(f"s_sleep {int(ENV('SLEEP', '4'))}")
    a("s_sub_u32 s98, s98, 1")
    a("s_cmp_lg_u32 s98, 0")
    a(f"s_cbranch_scc1 {name}")
    a.label(f"{name}_ok")

def rowmax(a, S, dst, acc=False):
    if acc: a(f"v_max3_f32 v{dst}, v{S}, v{S+1}, v{dst}")
    else: a(f"v_max_f32 v{dst}, v{S}, v{S+1}")
    for k in range(2, 16, 2): a(f"v_max3_f32 v{dst}, v{S+k}, v{S+k+1}, v{dst}")
def halfmax(a, dst, tmp):
    a(f"v_mov_b32 v{tmp}, v{dst}")
    a(f"v_permlane32_swap_b32 v{tmp}, v{dst}")
    a(f"v_max_f32 v{dst}, v{tmp}, v{dst}")
def zero(a, b, n):
    for r in range(0, n, 2): a(f"v_pk_mul_f32 {vr(b+r,2)}, 0, 0")
def one_lane(a, text, mask=1):
    a(f"s_mov_b64 exec, {mask}"); a(text); a("s_mov_b64 exec, -1")

def head(a):
    a("s_cmp_ge_u32 s2, 256")
    a("s_cbranch_scc1 L_exit")
    a("s_load_dwordx16 s[4:19], s[0:1], 0")
    a("s_load_dwordx4 s[20:23], s[0:1], 64")
    a(f"s_load_dwordx2 s[{S_WS}:{S_WS+1}], s[0:1], 80")
    if ENV("FIXT"):
        a("s_memrealtime s[96:97]")
    if STAMP: a(f"v_mov_b32 v{VS}, 0")
    stamp(a, 0, VS); stamp(a, 1, VS, real=True)
    a("v_lshrrev_b32 v3, 6, v0")
    a("v_and_b32 v2, 63, v0")
    a(f"v_readfirstlane_b32 s{sWAVE}, v3")
    a("s_and_b32 s65, s2, 7")
    a("s_lshr_b32 s66, s2, 3")
    a("s_and_b32 s67, s65, 1")
    a("s_lshl_b32 s67, s67, 3")
    a("s_and_b32 s68, s66, 7")
    a(f"s_add_u32 s{sMB}, s67, s68")
    a("s_lshr_b32 s67, s65, 1")
    a("s_lshl_b32 s67, s67, 2")
    a("s_lshr_b32 s68, s66, 3")
    a(f"s_add_u32 s{sNB}, s67, s68")
    a("s_cmp_eq_u32 s68, 3")
    a(f"s_cselect_b32 s{sVC}, 1, 0")
    a("s_lshl_b32 s67, s65, 2")
    a("s_and_b32 s68, s66, 3")
    a(f"s_add_u32 s{sHEAD}, s67, s68")
    a(f"s_lshr_b32 s{sQB}, s66, 2")
    a("v_lshlrev_b32 v3, 4, v2")
    a(f"s_mov_b32 s{S_WS+2}, {WS_SIZE:#x}")
    a(f"s_mov_b32 s{S_WS+3}, 0x00020000")
    a(f"s_lshr_b32 s67, s{sNB}, 2")
    a(f"s_sub_u32 s81, s{sNB}, s67")
    a("s_add_u32 s81, s81, 16")
    a(f"s_lshl_b32 s82, s{sNB}, 11")
    a(f"s_lshl_b32 s67, s{sMB}, 7")
    a("s_add_u32 s82, s82, s67")
    a(f"s_add_u32 s82, s82, {WS_F1}")
    a("v_lshrrev_b32 v8, 3, v2")
    a("v_and_b32 v4, 7, v2")
    a("v_bfe_u32 v5, v2, 4, 1")
    a("v_lshlrev_b32 v5, 2, v5")
    a("v_xor_b32 v5, v5, v4")
    a("v_lshlrev_b32 v9, 4, v5")
    a(f"s_cmp_lt_u32 s{sWAVE}, 4")
    a("s_waitcnt lgkmcnt(0)")
    srd(a, S_X, 4, 5, 2048 * 1024)
    srd(a, S_DBG, 22, 23, 256)
    a("s_cbranch_scc1 L_compute")

def p1_compute(a):
    a.label("L_compute")
    a(f"s_and_b32 s65, s{sWAVE}, 1")
    a(f"s_lshr_b32 s66, s{sWAVE}, 1")
    if ENV("CODEPF", "1") == "1":
        a("s_getpc_b64 s[84:85]")
        a.label("L_pc")
        a("s_sub_u32 s84, s84, L_pc-L_loader")
        a("s_subb_u32 s85, s85, 0")
        a("v_lshlrev_b32 v11, 7, v0")
        a("v_min_u32 v11, L_exit-L_loader, v11")
        a("global_load_dword v61, v11, s[84:85]")
        assert True
    a("v_and_b32 v8, 31, v2")
    a("v_lshrrev_b32 v4, 5, v2")
    a("v_bfe_u32 v5, v2, 1, 3")
    a("v_xor_b32 v5, v5, v4")
    a("s_lshl_b32 s67, s65, 13")
    a("v_lshl_add_u32 v6, v8, 7, s67")
    for ks in range(4):
        a(f"v_xor_b32 v7, {2*ks}, v5")
        a(f"v_lshl_add_u32 v{VXA+ks}, v7, 4, v6")
    a("v_bfe_u32 v5, v2, 2, 2")
    a("v_and_b32 v6, 3, v2")
    a("v_bfe_u32 v7, v2, 4, 1")
    a("v_lshlrev_b32 v6, 3, v6")
    a("v_lshl_or_b32 v6, v7, 5, v6")
    a("v_lshrrev_b32 v7, 1, v5")
    a("v_lshl_or_b32 v6, v7, 6, v6")
    a("v_lshl_or_b32 v6, v5, 7, v6")
    a("v_lshl_or_b32 v6, v4, 10, v6")
    a("s_lshl_b32 s67, s66, 6")
    a("v_xor_b32 v6, s67, v6")
    a(f"v_add_u32 v{VW}, {LW}, v6")
    zero(a, 96, 160)
    a(f"v_mov_b32 v5, {LCNT}")
    a("ds_write_b128 v5, v[96:99]")

    a(f"s_mov_b32 s78, {(-(NW1-1)*WS1) & 0xffffffff:#x}")
    a(f"s_mov_b32 s79, {(-(NXS-1)*XSLOT) & 0xffffffff:#x}")
    a("s_mov_b32 s73, 0")
    a("s_mov_b32 s74, 0")
    a("s_mov_b32 s75, 8")
    a("s_waitcnt lgkmcnt(0)")
    def reads(fs, ks, nu):
        kk = ks & 1
        X = lambda t: f"ds_read_b128 {vr(fs+4*t)}, v{VXA+ks} offset:{t*4096}"
        W = lambda u, j: f"ds_read_b64_tr_b16 {vr(fs+8+4*u+2*j, 2)}, v{VW} offset:{u*4096 + kk*2048 + j*512}"
        l = [X(0), W(0,0), W(0,1), X(1)]
        for u in range(1, nu): l += [W(u,0), W(u,1)]
        return l
    def loop(name, cts, swap, nu_next_last, hook=None):
        nu = len(cts)
        NWS, WSLOT = (NW1, WS1) if nu == 3 else (NW2, WS2)
        a.label(name)
        for ks in range(4):
            kk = ks & 1
            cur, nxt = (FR0, FR1) if kk == 0 else (FR1, FR0)
            mms = []
            for u, ct in enumerate(cts):
                for t in range(2):
                    d = vr(acc(t, ct), 16); w = vr(cur + 8 + 4*u); x = vr(cur + 4*t)
                    mms.append(f"{MF} {d}, {x}, {w}, {d}" if (swap and ct < 4) else f"{MF} {d}, {w}, {x}, {d}")
            rd = reads(nxt, (ks + 1) & 3, nu)
            post = []
            if kk == 0:
                post += ["s_add_u32 s73, s73, 1", f"s_cmp_eq_u32 s73, {NWS}", f"s_cselect_b32 s76, s78, {WSLOT}", "s_cselect_b32 s73, 0, s73", f"v_add_u32 v{VW}, s76, v{VW}"]
                if ks == 2:
                    post += ["s_add_u32 s74, s74, 1", f"s_cmp_eq_u32 s74, {NXS}", f"s_cselect_b32 s77, s79, {XSLOT}", "s_cselect_b32 s74, 0, s74", f"v_add_u32 v{VXA}, s77, v{VXA}"]
            elif ks == 3:
                post += [f"v_add_u32 v{VXA+i}, s77, v{VXA+i}" for i in range(1, 4)] + ["s_sub_u32 s75, s75, 1", "s_cmp_lg_u32 s75, 0"]
            if ks == 3 and hook: hook()
            a("s_waitcnt lgkmcnt(0)")
            if kk == 1:
                a(mms.pop(0))
                a("s_barrier")
            other = rd + post
            per = 3
            while mms:
                if kk == 0 or len(mms) < 2*nu - 1 or True:
                    pass
                if kk == 0: a(mms.pop(0))
                for _ in range(per):
                    if other: a(other.pop(0))
                if kk == 1: a(mms.pop(0))
            for o in other: a(o)
        a(f"s_cbranch_scc1 {name}")
    a(f"s_lshl_b32 s68, s{sMB}, 2")
    a("s_lshl_b32 s69, s65, 1")
    a("s_add_u32 s69, s68, s69")
    a(f"v_add_u32 v9, {VROT}, v2")
    a("v_and_b32 v9, 15, v9")
    a("v_lshl_or_b32 v9, v4, 4, v9")
    a("v_lshlrev_b32 v9, 4, v9")
    a("v_bfe_u32 v10, v2, 4, 1")
    a("v_lshl_or_b32 v9, v10, 16, v9")
    a(f"s_lshr_b32 s70, s{sNB}, 2")
    a("s_lshl_b32 s70, s70, 19")
    a("s_lshl_b32 s71, s66, 17")
    a("s_add_u32 s70, s70, s71")
    a("s_lshl_b32 s71, s69, 10")
    a("s_add_u32 s70, s70, s71")
    a(f"s_add_u32 s70, s70, {WS_V}")
    a(f"s_add_u32 s71, s70, {4*65536}")
    a(f"s_cmp_lt_u32 s{sNB}, 8")
    a(f"s_cselect_b32 s86, {f32(QSCALE)}, 1.0")
    a(f"s_lshl_b32 s67, s{sNB}, 2")
    a("s_lshl_b32 s68, s66, 1")
    a("s_add_u32 s67, s67, s68")
    a("s_lshl_b32 s67, s67, 16")
    a("s_lshl_b32 s68, s69, 10")
    a("s_add_u32 s67, s67, s68")
    a(f"s_add_u32 s88, s67, {WS_QK}")
    a("s_add_u32 s89, s88, 0x10000")
    a(f"s_mul_i32 s67, s69, {144*1024}")
    a("s_lshl_b32 s68, s66, 11")
    a("s_add_u32 s67, s67, s68")
    a(f"s_add_u32 s67, s67, {WS_AF + 32*1024}")
    for i in (1, 0):
        a(f"s_lshl_b32 s68, s{sNB if i else 81}, 12")
        a("s_add_u32 s68, s67, s68")
        for n in range(4): a(f"s_add_u32 s{DT + (1-i)*4 + n}, s68, {(n>>1)*144*1024 + (n&1)*1024}")
    a(f"v_mov_b32 v10, {f32(-GK1*0.044715)}")
    a(f"v_mov_b32 v11, {f32(-GK1*0.044715)}")
    a(f"v_mov_b32 v12, {f32(-GK1)}")
    a(f"v_mov_b32 v13, {f32(-GK1)}")
    stamp(a, 2, VS)
    a("s_barrier")
    stamp(a, 3, VS)
    for l in reads(FR0, 0, 3): a(l)

    def f_qk():
        l = []
        for t in range(2):
            b = acc(t, 4)
            for hh in range(2):
                l += [f"v_mul_f32 v{b+8*hh+i}, s86, v{b+8*hh+i}" for i in range(8)]
                l += [f"v_cvt_pk_bf16_f32 v{b+8*hh+i}, v{b+8*hh+2*i}, v{b+8*hh+2*i+1}" for i in range(4)]
                l.append(f"buffer_store_dwordx4 {vr(b+8*hh)}, v3, {WSR}, s{88+hh} offen offset:{t*1024}{STS}")
        return l
    def f_v():
        l = []
        for j in range(2):
            for t in range(2):
                b = acc(t, 2*j)
                for hh in range(2):
                    l += [f"v_cvt_pk_bf16_f32 v{b+8*hh+i}, v{b+8*hh+2*i}, v{b+8*hh+2*i+1}" for i in range(4)]
                    l.append(f"buffer_store_dwordx4 {vr(b+8*hh)}, v9, {WSR}, s{70+j} offen offset:{t*1024 + hh*512}{STS}")
        return l
    def f_gelu1():
        l = []
        for t in range(2):
            for q in range(4):
                G, U, T = acc(t, 0) + 4*q, acc(t, 2) + 4*q, 64 + (q & 1) * 4
                l += [f"v_mul_f32 v{T+p}, v{G+p}, v{G+p}" for p in range(4)]
                l += [f"v_fma_f32 v{T+p}, v{T+p}, v10, v12" for p in range(4)]
                l += [f"v_mul_f32 v{T+p}, v{T+p}, v{G+p}" for p in range(4)]
                for p in range(4): l += [f"v_exp_f32 v{T+p}, v{T+p}", f"v_mul_f32 v{U+p}, v{U+p}, v{G+p}"]
                l += [f"v_add_f32 v{T+p}, 1.0, v{T+p}" for p in range(4)]
                l += [f"v_rcp_f32 v{T+p}, v{T+p}" for p in range(4)]
                l += [f"v_mul_f32 v{U+p}, v{U+p}, v{T+p}" for p in range(4)]
                o = HP + 16 + t*8 + q*2
                l += [f"v_cvt_pk_bf16_f32 v{o+p}, v{U+2*p}, v{U+2*p+1}" for p in range(2)]
        return l
    SPK = int(ENV("SPK", "4"))
    def pass2(fill, PUBS, gap):
        cost = lambda x: 8 if x.startswith(("v_exp", "v_rcp")) else 4
        X2 = ENV("X2", "")
        if "F" in X2: fill = [x for x in fill if False]
        if "S" in X2: fill = [x for x in fill if not x.startswith("buffer_store")]
        if "G" in X2: fill = fill[:52]
        FS = (FR0, FR1, 72)
        lg = Lgkm(a)
        lg.q = [(0, i) for i in range(6)] + [("junk", 0)] * 2
        def rds(m):
            fs = FS[m % 3]
            wo_ = wslot(16 + (m >> 1))[0] - LW2 + (m & 1) * 2048
            X = lambda t: f"ds_read_b128 {vr(fs+4*t)}, v{VXA + (m & 3)} offset:{t*4096}"
            W = lambda u, j: f"ds_read_b64_tr_b16 {vr(fs+8+4*u+2*j, 2)}, v{VW} offset:{wo_ + u*4096 + j*512}"
            l = [((m, i), x) for i, x in enumerate([X(0), W(0,0), W(0,1), X(1), W(1,0), W(1,1)])]
            j = 8 + (m >> 2)
            if m < 28:
                dx = (((j + 1) % NXS) - (j % NXS)) * XSLOT & 0xffffffff
                l.append((None, f"v_add_u32 v{VXA + (m & 3)}, {dx:#x}, v{VXA + (m & 3)}"))
            return l
        def put(e):
            if e[0] is None: a(e[1])
            else: lg.rd(e[0], e[1])
        nxt_store = 0
        put(rds(0)[-1])
        for e in rds(1): put(e)
        for n in range(32):
            kk, st = n & 1, 16 + (n >> 1)
            cur = FS[n % 3]
            rd = rds(n + 2) if n + 2 < 32 else []
            nst = 0
            for g, (u, t) in enumerate(((0, 0), (0, 1), (1, 0), (1, 1))):
                ct = (1, 3)[u]
                before = len(a.lines)
                lg.need(*[(n, i) for i in range(6)])
                bud = 24 - 4 * (len(a.lines) - before)
                a(f"{MF} {vr(acc(t, ct), 16)}, {vr(cur + 8 + 4*u)}, {vr(cur + 4*t)}, {vr(acc(t, ct), 16)}")
                if g == 0 and kk == 0 and st <= LASTB:
                    if st == PUBS:
                        assert not any(x.startswith("buffer_store") for x in fill)
                        a("s_waitcnt vmcnt(0)"); bud -= 4
                    if "B" not in X2: a("s_barrier"); bud -= 4
                for _ in range(2):
                    if rd and len(lg.q) < 15: put(rd.pop(0)); bud -= 4
                while n >= 1 and fill and bud >= cost(fill[0]):
                    if fill[0].startswith("buffer_store"):
                        if 4*n + g < nxt_store: break
                        nxt_store = 4*n + g + gap
                    bud -= cost(fill[0]); a(fill.pop(0))
            assert not rd
        for x in fill: a(x)
        print("pass-2 filler left over:", len(fill), file=sys.stderr)
    a(f"s_cmp_eq_u32 s{sVC}, 1")
    a("s_cbranch_scc1 L_p1loopV")
    loop("L_p1loopA", (0, 2, 4), False, 2)
    stamp(a, 4, VS)
    pass2(f_qk() + f_gelu1(), PUBS, int(ENV('GAPA', '1')))
    a("s_branch L_p2done")
    loop("L_p1loopV", (0, 2, 4), True, 2)
    stamp(a, 4, VS)
    pass2(f_v() + f_qk(), PUBC, int(ENV('GAPC', '1')))
    a.label("L_p2done")
    stamp(a, 6, VS)
    n = 0
    for t in range(2):
        g, u = acc(t, 1), acc(t, 3)
        for hh in range(2):
            T = 16 + (n & 1) * 8; n += 1
            G, U = g + 8*hh, u + 8*hh
            for p in range(4): a(f"v_pk_mul_f32 {vr(T+2*p,2)}, {vr(G+2*p,2)}, {vr(G+2*p,2)}")
            for p in range(4): a(f"v_pk_fma_f32 {vr(T+2*p,2)}, {vr(T+2*p,2)}, v[10:11], v[12:13]")
            for p in range(4): a(f"v_pk_mul_f32 {vr(T+2*p,2)}, {vr(T+2*p,2)}, {vr(G+2*p,2)}")
            for p in range(8): a(f"v_exp_f32 v{T+p}, v{T+p}")
            for p in range(4): a(f"v_pk_mul_f32 {vr(U+2*p,2)}, {vr(U+2*p,2)}, {vr(G+2*p,2)}")
            for p in range(4): a(f"v_pk_add_f32 {vr(T+2*p,2)}, {vr(T+2*p,2)}, 1.0 op_sel_hi:[1,0]")
            for p in range(8): a(f"v_rcp_f32 v{T+p}, v{T+p}")
            for p in range(4): a(f"v_pk_mul_f32 {vr(U+2*p,2)}, {vr(U+2*p,2)}, {vr(T+2*p,2)}")
            o = HP + (t*2 + hh) * 4
            for p in range(4): a(f"v_cvt_pk_bf16_f32 v{o+p}, v{U+2*p}, v{U+2*p+1}")
    stamp(a, 7, VS)

PUBC = int(ENV("PUBC", "22"))
PUBS = int(ENV("PUBS", "22"))

def p1_loader(a):
    a.label("L_loader")
    if ENV("LPRIO", "1") == "1": a("s_setprio 3")
    a(f"s_sub_u32 s65, s{sWAVE}, 4")
    a("s_lshl_b32 s66, s65, 3")
    a("v_add_u32 v8, s66, v8")
    a("v_lshrrev_b32 v5, 4, v2")
    a("s_and_b32 s66, s65, 1")
    a("s_lshl_b32 s66, s66, 2")
    a("v_add_u32 v5, s66, v5")
    a("v_xor_b32 v5, v5, v4")
    a("v_lshlrev_b32 v5, 4, v5")
    a("v_lshl_add_u32 v12, v8, 10, v5")
    a(f"s_lshl_b32 s74, s{sMB}, 17")
    a("s_lshl_b32 s75, s65, 10")
    a(f"s_lshl_b32 s90, s{sNB}, 1")
    a(f"s_add_u32 s90, s90, s{sMB}")
    if ENV("ROT", "1") == "2":
        a(f"s_lshr_b32 s91, s{sNB}, 2")
        a("s_add_u32 s90, s90, s91")
    if ENV("ROT", "1") == "0": a("s_mov_b32 s90, 0")
    if ENV("ROT", "1") == "5": a(f"s_mov_b32 s90, s{sMB}")
    if ENV("ROT", "1") == "6": a(f"s_lshl_b32 s90, s{sNB}, 1")
    if ENV("ROT", "1") == "7":
        a(f"s_lshl_b32 s90, s{sNB}, 2")
        a(f"s_add_u32 s90, s90, s{sMB}")
    if ENV("ROT", "1") in ("3", "4"):
        a(f"s_add_u32 s90, s{sNB}, s{sMB}")
        a(f"s_lshl_b32 s90, s90, {1 if ENV('ROT') == '3' else 2}")
    a("s_lshl_b32 s91, s90, 1")
    issued = []
    DNT = " nt" if ENV("DNT") else ""
    PNT = " nt" if ENV("PNT") else ""
    def dma(voff, srdn, soff, m0val, pre):
        a(f"s_add_u32 m0, s75, {m0val}")
        a(pre)
        if "D" in ENV("X2", "") and voff == 10: a("s_nop 0")
        else: a(f"buffer_load_dwordx4 v{voff}, {SR(srdn)}, s{soff} offen{DNT} lds")
    def itemsW(s):
        base, size = wslot(s)
        free = max([-1] + [p + (p >= 16) for p in range(s) if wslot(p)[0] < base + size and base < wslot(p)[0] + wslot(p)[1]])
        def f(u):
            def g():
                if u == 0:
                    a(f"s_add_u32 s92, s91, {s if s < 16 else s + 2*KROT}")
                    a("s_and_b32 s92, s92, 15")
                    if s < 16:
                        a(f"s_mul_i32 s93, s92, {32*3072}")
                        a("s_mul_i32 s92, s92, s73")
                    else: a(f"s_mul_i32 s92, s92, {32*3584}")
                if s < 16:
                    if u == 0: dma(13, S_WA, 76, base, "s_add_u32 s76, s71, s92")
                    if u == 1: dma(13, S_WB, 76, base + 4096, "s_add_u32 s76, s69, s92")
                    if u == 2: dma(11, S_WC, 76, base + 8192, "s_add_u32 s76, s70, s93")
                else:
                    dma(10, (S_G, S_U)[u], 76, base + 4096*u, "s_add_u32 s76, s70, s92")
                issued.append(("W", s))
            return g
        return [(free, f(u)) for u in range(3 if s < 16 else 2)]
    def itemsX(j):
        base = LX + (j % NXS) * XSLOT
        def f(m):
            def g():
                if m == 0:
                    a(f"s_add_u32 s99, s90, {j if j < 8 else j + KROT}")
                    a("s_and_b32 s99, s99, 7")
                    a("s_lshl_b32 s99, s99, 7")
                    a("s_add_u32 s99, s99, s74")
                dma(12, S_X, 76, base + m*4096, f"s_add_u32 s76, s99, {m*32768}")
                issued.append(("X", j))
            return g
        if 8 <= j < 8 + NXS: return []
        return [(2*(j-NXS) + 1 + (j - NXS >= 8), f(m)) for m in range(4)]
    queue = []
    for j in range(16): queue += itemsX(j) + itemsW(2*j) + itemsW(2*j+1)
    def issue(nmax, bar):
        n = 0
        while queue and n < nmax and queue[0][0] <= bar:
            queue.pop(0)[1](); n += 1
    def wait_stage(s):
        assert sum(e == ("W", s) for e in issued) == (3 if s < 16 else 2) and sum(e == ("X", s // 2) for e in issued) == (0 if 8 <= s // 2 < 8 + NXS else 4), s
        last = max(k for k, e in enumerate(issued) if e == ("W", s) or e == ("X", s // 2))
        n = len(issued) - 1 - last
        assert n <= 63
        a(f"s_waitcnt vmcnt({n})")
    def wait_tag(tag):
        n = len(issued) - 1 - max(k for k, e in enumerate(issued) if e == tag)
        assert n <= 63
        a(f"s_waitcnt vmcnt({n})")
    stamp(a, 22, VS)
    issue(4, -1)
    a("s_lshl_b32 s66, s65, 8")
    a("s_or_b32 s66, s66, s2")
    a(f"s_cselect_b32 s83, {OOB:#x}, 0")
    a(f"s_add_u32 s84, s83, {WS_TAG}")
    a("v_mov_b32 v5, 0")
    a(f"buffer_load_dword v14, v5, {WSR}, s84 offen{ST}")
    issued.append(("T", 0))
    srd(a, S_G, 12, 13, 512 * 3584)
    srd(a, S_U, 14, 15, 512 * 3584)
    srd(a, S_WC, 6, 7, 512 * 3072)
    a(f"s_cmp_eq_u32 s{sVC}, 1")
    a(f"s_cselect_b32 s{S_WA}, s6, s12")
    a(f"s_cselect_b32 s{S_WA+1}, s7, s13")
    a(f"s_cselect_b32 s{S_WA+2}, s{S_WC+2}, s{S_G+2}")
    a(f"s_mov_b32 s{S_WA+3}, 0x00020000")
    a(f"s_cselect_b32 s{S_WB}, s6, s14")
    a(f"s_cselect_b32 s{S_WB+1}, s7, s15")
    a(f"s_mov_b32 s{S_WB+2}, s{S_WA+2}")
    a(f"s_mov_b32 s{S_WB+3}, 0x00020000")
    a("s_movk_i32 s66, 3072")
    a("s_cselect_b32 s66, s66, 3584")
    a("v_mul_u32_u24 v6, 3584, v8")
    a("v_add_u32 v10, v6, v9")
    a("v_mul_u32_u24 v6, 3072, v8")
    a("v_add_u32 v11, v6, v9")
    a("v_mul_u32_u24 v6, s66, v8")
    a("v_add_u32 v13, v6, v9")
    a("s_lshl_b32 s73, s66, 5")
    a("s_lshl_b32 s67, s81, 7")
    a(f"s_lshr_b32 s68, s{sNB}, 2")
    a("s_lshl_b32 s68, s68, 8")
    a("s_add_u32 s68, s68, 2048")
    a("s_add_u32 s69, s68, 128")
    a(f"s_cmp_eq_u32 s{sVC}, 1")
    a("s_cselect_b32 s71, s68, s67")
    a("s_cselect_b32 s69, s69, s67")
    a("s_mov_b32 s94, s71")
    a("s_mov_b32 s95, s69")
    a(f"s_lshl_b32 s70, s{sNB}, 7")
    PFK = ENV("PF", "0") == "4"
    if PFK:
        issue(3, -1)
        a("s_lshr_b32 s66, s2, 1")
        a("s_and_b32 s67, s2, 1")
        a("s_mul_i32 s68, s66, 3072")
        a("s_mul_i32 s76, s67, 1536")
        a("s_add_u32 s68, s68, s76")
        a("s_mul_i32 s66, s66, 3584")
        a("s_mul_i32 s67, s67, 768")
        a("s_add_u32 s66, s66, s67")
        a("s_add_u32 s66, s66, 2048")
        a("s_lshl_b32 s67, s2, 13")
        a("s_cmp_eq_u32 s65, 1")
        a("s_cselect_b32 s66, s68, s66")
        a("s_cselect_b32 s76, 11, 5")
        a(f"s_mov_b32 s77, {128*3584}")
        a(f"s_cselect_b32 s77, {128*3072}, s77")
        a("s_cselect_b32 s94, s6, s12")
        a("s_cselect_b32 s95, s7, s13")
        a("s_cmp_eq_u32 s65, 3")
        a("s_cselect_b32 s94, s14, s94")
        a("s_cselect_b32 s95, s15, s95")
        a("v_min_u32 v28, s76, v2")
        a("v_lshl_add_u32 v28, v28, 7, s66")
        a("v_bfe_u32 v29, v2, 1, 3")
        a("v_lshl_add_u32 v29, v29, 10, s67")
        a("v_and_b32 v27, 1, v2")
        a("v_lshl_add_u32 v29, v27, 7, v29")
        a("s_cmp_eq_u32 s65, 0")
        a("s_cselect_b32 s94, s4, s94")
        a("s_cselect_b32 s95, s5, s95")
        a("s_cselect_b32 s77, 256, s77")
        a("s_cselect_b64 vcc, -1, 0")
        a("v_cndmask_b32 v28, v28, v29, vcc")
        for n in [int(x) for x in ENV("PFPOS", "0,3,7,3").split(",")]:
            issue(n, -1)
            a("s_mov_b64 exec, 0xffff")
            a("global_load_dword v30, v28, s[94:95]")
            a("s_mov_b64 exec, -1")
            a("v_add_u32 v28, s77, v28")
            issued.append(("P", 0))
    else:
        issue(int(ENV("FIRST", "10")), -1)
    def prefetch(kinds):
        a("s_mov_b32 s94, s4"); a("s_mov_b32 s95, s5")
        for r in (66, 67, 68, 76): a(f"s_mov_b32 s{r}, 0")
        a("s_mov_b32 s77, 0")
        for lw, k in enumerate(kinds):
            if k is None: continue
            p, per, first, n, T, J = k
            a(f"s_cmp_eq_u32 s65, {lw}")
            a(f"s_cselect_b32 s94, s{p}, s94")
            a(f"s_cselect_b32 s95, s{p+1}, s95")
            a(f"s_cselect_b32 s66, {per}, s66")
            a(f"s_cselect_b32 s67, {first}, s67")
            a(f"s_cselect_b32 s68, {n-1}, s68")
            a(f"s_cselect_b32 s76, {T}, s76")
            a(f"s_cselect_b32 s77, {J}, s77")
        a("s_mul_i32 s66, s66, s2")
        a("s_add_u32 s66, s66, s67")
        a("v_min_u32 v28, s68, v2")
        a("v_mov_b32 v29, s77")
        a("v_cmp_le_u32 vcc, s76, v28")
        a("v_lshl_add_u32 v28, v28, 7, s66")
        a("v_cndmask_b32 v29, 0, v29, vcc")
        a("v_add_u32 v28, v28, v29")
        a("global_load_dword v30, v28, s[94:95]")
        issued.append(("P", 0))
    PF = ENV("PF", "0") in ("1", "3")
    PFX = ENV("PF", "0") in ("2", "3")
    def prefetch_x1():
        a("s_lshr_b32 s66, s2, 3")
        a("s_and_b32 s67, s2, 1")
        a("s_lshl_b32 s67, s67, 20")
        a("s_lshl_b32 s68, s66, 15")
        a("s_add_u32 s67, s67, s68")
        a("s_lshl_b32 s68, s65, 13")
        a("s_add_u32 s67, s67, s68")
        a("v_lshlrev_b32 v28, 7, v2")
        a("s_and_b32 s66, s66, 7")
        a("s_lshl_b32 s66, s66, 6")
        a("v_add_u32 v27, s66, v2")
        a("s_lshr_b32 s68, s73, 5")
        a("v_mul_u32_u24 v29, s68, v27")
        a("v_mul_u32_u24 v26, 3072, v27")
        a("s_cmp_eq_u32 s65, 0")
        a(f"s_cselect_b32 s66, s94, {OOB:#x}")
        a(f"buffer_load_dword v30, v29, {SR(S_WA)}, s66 offen{PNT}")
        a("s_cmp_eq_u32 s65, 1")
        a(f"s_cselect_b32 s66, s95, {OOB:#x}")
        a(f"buffer_load_dword v30, v29, {SR(S_WB)}, s66 offen{PNT}")
        a(f"s_lshl_b32 s66, s{sNB}, 7")
        a("s_cmp_eq_u32 s65, 2")
        a(f"s_cselect_b32 s66, s66, {OOB:#x}")
        a(f"buffer_load_dword v30, v26, {SR(S_WC)}, s66 offen{PNT}")
        a(f"buffer_load_dword v30, v28, {SR(S_X)}, s67 offen{PNT}")
        issued.extend([("P", 0)] * 4)
    def prefetch_x2():
        a("v_mul_u32_u24 v29, 3584, v27")
        a(f"s_lshl_b32 s67, s{sNB}, 7")
        a("s_cmp_eq_u32 s65, 1")
        a(f"s_cselect_b32 s66, s67, {OOB:#x}")
        a(f"buffer_load_dword v30, v29, {SR(S_G)}, s66 offen{PNT}")
        a("s_cmp_eq_u32 s65, 2")
        a(f"s_cselect_b32 s66, s67, {OOB:#x}")
        a(f"buffer_load_dword v30, v29, {SR(S_U)}, s66 offen{PNT}")
        issued.extend([("P", 0)] * 2)
    if PFX and not PF: prefetch_x1()
    if PF: prefetch([(4, 8192, 0, 64, 0, 0), (6, 6144, 0, 48, 0, 0), (12, 7168, 2048, 24, 12, 2048), (14, 7168, 2048, 24, 12, 2048)])
    srd(a, S_RO, 8, 9, 512 * 1024)
    a("v_and_b32 v15, 7, v8")
    a("v_lshl_add_u32 v15, v15, 10, v9")
    a("s_lshl_b32 s78, s65, 11")
    a(f"s_add_u32 s78, s78, {LRD}")
    a("s_lshr_b32 s66, s2, 3")
    a("s_and_b32 s67, s2, 7")
    a("s_lshl_b32 s66, s66, 14")
    a("s_lshl_b32 s67, s67, 7")
    a("s_add_u32 s66, s66, s67")
    a("s_and_b32 s67, s65, 1")
    a("s_lshl_b32 s68, s67, 13")
    a("s_lshl_b32 s67, s67, 10")
    a(f"s_add_u32 m0, s67, {LRO}")
    a("s_add_u32 s66, s66, s68")
    a(f"buffer_load_dwordx4 v15, {SR(S_RO)}, s66 offen{PNT} lds")
    issued.append(("P", 1))
    issue(int(ENV("BURST", "0")), -1)
    a("v_bfe_u32 v18, v2, 2, 2")
    a("v_and_b32 v31, 3, v2")
    a("v_bfe_u32 v19, v2, 4, 1")
    a("v_lshlrev_b32 v31, 3, v31")
    a("v_lshl_or_b32 v31, v19, 5, v31")
    a("v_lshrrev_b32 v19, 1, v18")
    a("v_lshl_or_b32 v31, v19, 6, v31")
    a("v_lshl_or_b32 v31, v18, 7, v31")
    a("v_lshrrev_b32 v19, 5, v2")
    a("v_lshl_or_b32 v31, v19, 9, v31")
    a("v_add_u32 v18, s78, v31")
    a("v_xor_b32 v19, 64, v18")
    a("s_cmp_eq_u32 s65, 0")
    a(f"s_cselect_b32 s82, s82, {OOB:#x}")
    a(f"s_cselect_b32 s85, 0, {OOB:#x}")
    a("v_mov_b32 v6, 1")
    a("v_lshlrev_b32 v4, 7, v2")
    for i in range(4): a(f"s_add_u32 s{86+i}, s85, {WS_F1 + i*8192}")
    stamp(a, 2, VS)
    wait_stage(0)
    stamp(a, 3, VS)
    a("s_barrier")
    a("v_add_u32 v14, 1, v14")
    a("v_max_u32 v14, 1, v14")
    one_lane(a, f"buffer_store_dword v14, v5, {WSR}, s84 offen{ST}")
    issued.append(("T", 1))
    def ld1():
        for i in range(4): a(f"buffer_load_dwordx2 {vr(20+2*i,2)}, v4, {WSR}, s{86+i} offen{ST}")
    PER1, PER2, PSW = [int(x) for x in ENV("PER", "6,4,12").split(",")]
    issue(int(ENV("PER0", "6")), -1)
    def cmp1():
        for i in range(4):
            a(f"v_xor_b32 v{20+2*i}, v{20+2*i}, v16")
            a(f"v_xor_b32 v{21+2*i}, v{21+2*i}, v17")
        a("v_or3_b32 v20, v20, v21, v22")
        a("v_or3_b32 v23, v23, v24, v25")
        a("v_or3_b32 v20, v20, v26, v27")
        a("v_or_b32 v20, v20, v23")
        a("v_cmp_ne_u32 vcc, 0, v20")
    def ltable(t, regs):
        for i in range(8): a(f"v_mov_b32 v{HP+8+i}, -1")
        r = regs[2]
        a(f"s_lshl_b32 s{r}, s{sQB}, 3")
        a(f"s_lshl_b32 s{t}, s65, 1")
        a(f"s_add_u32 s{r}, s{r}, s{t}")
        a(f"s_mul_i32 s{r}, s{r}, {144*1024}")
        a(f"s_lshl_b32 s{t}, s{sHEAD}, 10")
        a(f"s_add_u32 s{r}, s{r}, s{t}")
        a(f"s_add_u32 s{r}, s{r}, {WS_AF}")
        a(f"s_add_u32 s{regs[3]}, s{r}, {144*1024}")
    a(f"s_lshr_b32 s66, s{sHEAD}, 2")
    a("s_lshl_b32 s67, s66, 11")
    a(f"s_lshl_b32 s68, s{sQB}, 8")
    a("s_add_u32 s68, s68, s67")
    a(f"s_add_u32 s67, s67, {8*2048}")
    a(f"s_lshr_b32 s66, s{sHEAD}, 3")
    a("s_lshl_b32 s66, s66, 13")
    a(f"s_add_u32 s66, s66, {2*2048}")
    a("v_add_u32 v70, s67, v4")
    a("v_add_u32 v71, s66, v4")
    a("v_and_b32 v72, 1, v2")
    a("v_lshl_add_u32 v72, v72, 7, s68")
    a("v_cmp_gt_u32 vcc, 32, v2")
    a("v_cndmask_b32 v71, v72, v71, vcc")
    a("v_cmp_gt_u32 vcc, 16, v2")
    a("v_cndmask_b32 v70, v71, v70, vcc")
    def lda(): a(f"buffer_load_dwordx2 v[72:73], v70, {WSR}, s86 offen{ST}")
    def cmpa():
        a("v_xor_b32 v72, v72, v16")
        a("v_xor_b32 v73, v73, v17")
        a("v_or_b32 v72, v72, v73")
        a("v_cmp_ne_u32 vcc, 0, v72")
    a(f"v_mov_b32 v7, {LCNT}")
    SIDE1, SIDE2 = [int(x) for x in ENV("SIDE", "16,25").split(",")]
    def side_out():
        wait_tag(("S", 0))
        for nl in range(2):
            for j in range(2): a(f"ds_read_b64_tr_b16 {vr(HP+4*nl+2*j,2)}, v{18+nl} offset:{j*1024}")
        a("v_mov_b32 v64, 0")
        a("v_mov_b32 v65, 0")
        for i in range(4):
            a(f"v_dot2_f32_bf16 v64, v{48+i}, v{56+i}, v64")
            a(f"v_dot2_f32_bf16 v65, v{52+i}, v{56+i}, v65")
        a("v_cmp_eq_u32 vcc, 0, v2")
        a("s_waitcnt lgkmcnt(0)")
        for mod in ("quad_perm:[1,0,3,2]", "quad_perm:[2,3,0,1]", "row_half_mirror", "row_mirror"):
            for r in (64, 65): a(f"v_add_f32_dpp v{r}, v{r}, v{r} {mod} row_mask:0xf bank_mask:0xf")
        for r, sb in ((64, 66), (65, 56)):
            for q in range(4): a(f"v_readlane_b32 s{sb+q}, v{r}, {16*q}")
        a("v_mov_b32 v66, s66")
        a("v_mov_b32 v67, s56")
        for q in range(1, 4):
            a(f"v_add_f32 v66, s{66+q}, v66")
            a(f"v_add_f32 v67, s{56+q}, v67")
        a("v_cndmask_b32 v66, v67, v66, vcc")
        a(f"v_mul_f32 v66, {f32(-LOG2E)}, v66")
        a("v_exp_f32 v66, v66")
        a("v_lshlrev_b32 v68, 2, v2")
        a("v_add_f32 v66, 1.0, v66")
        a("v_rcp_f32 v66, v66")
        a("s_lshl_b32 s71, s71, 2")
        a(f"s_add_u32 s71, s71, {WS_G}")
        one_lane(a, f"buffer_store_dword v66, v68, {WSR}, s71 offen{ST}", 3)
        issued.append(("S", 1))
    for s in range(LASTB + 1):
        E0 = int(ENV("EARLY", "-100"))
        if s in (4, 10, 16, 24) and E0 < 0: stamp(a, {4: 4, 10: 5, 16: 6, 24: 7}[s], VS)
        if 0 <= s - E0 < 6: stamp(a, [4, 7, 24, 27, 21, 30][s - E0], VS)
        if s == LASTB:
            assert not queue
            wait_stage(31)
        else: wait_stage(s + 1)
        if 0 <= s - E0 < 6: stamp(a, [5, 8, 25, 28, 22, 31][s - E0], VS)
        if s < 16 or "B" not in ENV("X2", ""): a("s_barrier")
        if 0 <= s - E0 < 5: stamp(a, [6, 9, 26, 29, 23][s - E0], VS)
        issue(PER1 if s < PSW else PER2, s)
        if s == 3:
            wait_tag(("T", 1))
            one_lane(a, f"buffer_store_dword v14, v5, {SR(S_DBG)}, s83 offen{ST}")
            issued.append(("T", 2))
        if s == int(ENV("PFB", "5")) and (PF or PFK):
            prefetch([(16, 7168, 0, 56, 0, 0), None, (12, 7168, 0, 32, 16, 1536), (14, 7168, 0, 32, 16, 1536)])
        if s == int(ENV("PFB", "5")) and PFX: prefetch_x2()
        if s == int(ENV("PF2", "-1")):
            a("s_lshr_b32 s66, s2, 3")
            a("s_and_b32 s66, s66, 7")
            a("s_lshl_b32 s66, s66, 6")
            a("s_lshr_b32 s67, s65, 1")
            a("s_lshl_b32 s67, s67, 5")
            a("s_add_u32 s66, s66, s67")
            a("v_and_b32 v27, 31, v2")
            a("v_add_u32 v27, s66, v27")
            a("v_mul_u32_u24 v29, 3584, v27")
            a("v_add_u32 v29, s70, v29")
            a("s_bitcmp1_b32 s65, 0")
            a("s_cselect_b32 s94, s14, s12")
            a("s_cselect_b32 s95, s15, s13")
            a("s_mov_b64 exec, 0xffffffff")
            a("global_load_dword v30, v29, s[94:95]")
            a("s_mov_b64 exec, -1")
            a(f"s_mul_i32 s66, s{sHEAD}, 3")
            a("s_add_u32 s66, s66, s65")
            a(f"s_add_u32 s67, s{sHEAD}, 96")
            a("s_cmp_eq_u32 s65, 3")
            a("s_cselect_b32 s66, s67, s66")
            a("s_min_u32 s66, s66, 111")
            a("s_lshl_b32 s66, s66, 14")
            a(f"s_lshl_b32 s67, s{sQB}, 7")
            a("s_add_u32 s66, s66, s67")
            a("v_lshl_add_u32 v29, v2, 10, s66")
            a("s_mov_b64 exec, 0xffff")
            a("global_load_dword v30, v29, s[16:17]")
            a("s_mov_b64 exec, -1")
            issued.extend([("P", 0)] * 2)
        if s == 9:
            a("s_cmp_lg_u32 s65, 0")
            a("s_cbranch_scc1 L_nowo2")
            for nl in range(2):
                for j in range(2): a(f"ds_read_b64_tr_b16 {vr(36+4*nl+2*j,2)}, v{18+nl} offset:{LRO - LRD + j*1024}")
            a("s_lshr_b32 s66, s2, 3")
            a("s_and_b32 s67, s2, 7")
            a(f"s_mul_i32 s67, s67, {2*144*1024}")
            a("s_lshl_b32 s66, s66, 10")
            a("s_add_u32 s66, s66, s67")
            a(f"s_add_u32 s66, s66, {WS_WF}")
            a(f"s_add_u32 s67, s66, {144*1024}")
            a(f"s_lshl_b32 s68, s{sMB}, 11")
            a(f"s_lshl_b32 s76, s{sNB}, 7")
            a("s_add_u32 s68, s68, s76")
            a(f"s_add_u32 s68, s68, {WS_F2}")
            a(f"s_lshl_b32 s76, s{sQB}, 12")
            a(f"s_lshl_b32 s77, s{sHEAD}, 7")
            a("s_add_u32 s76, s76, s77")
            a(f"s_add_u32 s76, s76, {WS_F3}")
            zero(a, 44, 4)
            a("s_waitcnt lgkmcnt(0)")
            a(f"buffer_store_dwordx4 v[36:39], v3, {WSR}, s66 offen{STS}")
            a(f"buffer_store_dwordx4 v[40:43], v3, {WSR}, s67 offen{STS}")
            a("s_mov_b64 exec, 1")
            a(f"buffer_store_dwordx4 v[44:47], v3, {WSR}, s68 offen{STS}")
            a(f"buffer_store_dword v44, v3, {WSR}, s76 offen{ST}")
            a("s_mov_b64 exec, -1")
            a.label("L_nowo2")
        if s == SIDE1:
            srd(a, S_RD, 16, 17, 1792 * 1024)
            srd(a, S_GW, 18, 19, 1024)
            a(f"s_mul_i32 s66, s{sHEAD}, 3")
            a("s_add_u32 s66, s66, s65")
            a(f"s_add_u32 s67, s{sHEAD}, 96")
            a("s_cmp_eq_u32 s65, 3")
            a("s_cselect_b32 s66, s67, s66")
            a("s_lshl_b32 s69, s66, 14")
            a(f"s_lshl_b32 s68, s{sQB}, 7")
            a("s_mov_b32 m0, s78")
            a("s_add_u32 s69, s69, s68")
            a(f"buffer_load_dwordx4 v15, {SR(S_RD)}, s69 offen{PNT} lds")
            a("s_add_u32 m0, s78, 1024")
            a("s_add_u32 s69, s69, 8192")
            a(f"buffer_load_dwordx4 v15, {SR(S_RD)}, s69 offen{PNT} lds")
            a(f"s_mul_i32 s79, s{sQB}, {2*144*1024}")
            a("s_lshl_b32 s67, s66, 10")
            a("s_add_u32 s79, s79, s67")
            a(f"s_add_u32 s79, s79, {WS_WF + 32*1024}")
            a("s_cmp_lt_u32 s66, 112")
            a(f"s_cselect_b32 s79, s79, {OOB:#x}")
            a(f"s_add_u32 s80, s79, {144*1024}")
            a(f"s_lshl_b32 s71, s{sMB}, 7")
            a(f"s_lshl_b32 s67, s{sNB}, 3")
            a("s_add_u32 s71, s71, s67")
            a("s_lshl_b32 s67, s65, 1")
            a("s_add_u32 s71, s71, s67")
            a("s_lshl_b32 s67, s71, 10")
            a(f"buffer_load_dwordx4 v[48:51], v3, {SR(S_X)}, s67 offen")
            a(f"buffer_load_dwordx4 v[52:55], v3, {SR(S_X)}, s67 offen offset:1024")
            a(f"buffer_load_dwordx4 v[56:59], v3, {SR(S_GW)}, 0 offen")
            issued.extend([("S", 0)] * 5)
        if s == SIDE2:
            side_out()
            if LEARLY:
                ltable(68, (79, 80, 66, 67))
                for n, r in enumerate((79, 80, 66, 67)): a(f"buffer_store_dwordx4 {vr(HP+4*n)}, v3, {WSR}, s{r} offen{STS}")
                issued.extend([("S", 1)] * 4)
        if s == 14:
            a(f"buffer_load_dword v16, v5, {SR(S_DBG)}, s85 offen{ST}")
            issued.append(("T", 3))
        if s == min(PUBS, PUBC) - 1:
            a("s_cmp_lg_u32 s65, 0")
            a("s_cbranch_scc1 L_tagdone")
            wait_tag(("T", 3))
            a("v_cmp_eq_u32 vcc, 0, v16")
            a("s_cbranch_vccz L_pt_ok")
            poll(a, "L_pt", lambda: a(f"buffer_load_dword v16, v5, {SR(S_DBG)}, 0 offen{ST}"), lambda: a("v_cmp_eq_u32 vcc, 0, v16"))
            a("v_not_b32 v17, v16")
            a.label("L_tagdone")
        for typ, at in ((0, PUBS), (1, PUBC)):
            if s == at:
                a(f"s_lshl_b32 s66, s65, 1")
                a(f"s_add_u32 s66, s66, s{sVC}")
                a(f"s_cmp_lg_u32 s66, {typ}")
                a(f"s_cbranch_scc1 L_f1done{typ}")
                one_lane(a, f"buffer_store_dwordx2 v[16:17], v5, {WSR}, s82 offen{ST}")
                a.label(f"L_f1done{typ}")
        if s == LASTB - 1:
            lda(); issued.append(("F", 0))
    a("s_cmp_ge_u32 s65, 2")
    a("s_cbranch_scc1 L_nocs")
    const_setup(a, 9, 32, 8)
    const_write(a, 9, 32)
    a.label("L_nocs")
    if E0 < 0: stamp(a, 8, VS)
    a("s_cmp_lg_u32 s65, 0")
    a("s_cbranch_scc1 L_wl")
    a("s_waitcnt vmcnt(0)")
    cmpa()
    a("s_cbranch_vccz L_ps1_ok")
    poll(a, "L_ps1", lda, cmpa)
    a("ds_write_b32 v7, v6")
    a("s_branch L_wl_ok")
    a.label("L_wl")
    a(f"s_mov_b32 s98, {SPIN*8}")
    a.label("L_wl2")
    a("ds_read_b32 v8, v7")
    a("s_waitcnt lgkmcnt(0)")
    a("v_cmp_ne_u32 vcc, 1, v8")
    a("s_cbranch_vccz L_wl_ok")
    a("s_sleep 1")
    a("s_sub_u32 s98, s98, 1")
    a("s_cmp_lg_u32 s98, 0")
    a("s_cbranch_scc1 L_wl2")
    a.label("L_wl_ok")
    if E0 < 0: stamp(a, 9, VS)
    a(f"s_lshl_b32 s56, s{sHEAD}, 16")
    a(f"s_lshl_b32 s67, s{sQB}, 13")
    a("s_lshl_b32 s57, s65, 11")
    a("s_add_u32 s59, s67, s57")
    a("s_add_u32 s67, s59, s56")
    a(f"s_add_u32 m0, s57, {LQI}")
    a(f"s_add_u32 s67, s67, {WS_QK}")
    for i in range(2): a(f"buffer_load_dwordx4 v3, {WSR}, s67 offen offset:{i*1024}{ST} lds")
    a(f"s_mul_i32 s58, s65, {2*VST}")
    kv8(a, 0)
    a(f"s_mov_b32 s{DT}, s79")
    a(f"s_mov_b32 s{DT+1}, s80")
    ltable(68, (DT, DT+1, DT+2, DT+3))
    a(f"v_mov_b32 v{WO}, v16")
    a(f"v_mov_b32 v{WO+1}, v17")
    a("s_branch L_attn")

def kv8(a, p0):
    a(f"s_add_u32 s94, s59, {p0*1024}")
    a("s_and_b32 s94, s94, 0xffff")
    a("s_add_u32 s94, s94, s56")
    a(f"s_add_u32 m0, s57, {LK + p0*1024}")
    a(f"s_add_u32 s67, s94, {WS_QK + 32*65536}")
    for i in range(2): a(f"buffer_load_dwordx4 v3, {WSR}, s67 offen offset:{i*1024}{ST} lds")
    a(f"s_add_u32 s67, s94, {WS_V}")
    for i in range(2):
        a(f"s_add_u32 m0, s58, {LV + (p0+i)*VST - i*1024}")
        a(f"buffer_load_dwordx4 v3, {WSR}, s67 offen offset:{i*1024}{ST} lds")

LEARLY = False
def const_setup(a, va, vd, t):
    a(f"v_and_b32 v{t}, 255, v0")
    a(f"v_lshrrev_b32 v{va}, 2, v{t}")
    a(f"v_mul_u32_u24 v{va}, {VST}, v{va}")
    a(f"v_and_b32 v{t}, 3, v{t}")
    a(f"v_mul_u32_u24 v{t}, v{t}, v{t}")
    a(f"v_min_u32 v{t}, 4, v{t}")
    a(f"v_lshl_add_u32 v{va}, v{t}, 4, v{va}")
    a(f"v_add_u32 v{va}, {LV + 1024}, v{va}")
    a(f"v_mov_b32 v{vd}, 0x3f803f80")
    if ONE_ROW:
        a(f"v_cmp_eq_u32 vcc, 0, v{t}")
        a(f"v_cndmask_b32 v{vd}, 0, v{vd}, vcc")
    a(f"v_mov_b32 v{vd+1}, v{vd}")
def const_write(a, va, vd):
    a(f"ds_write_b64 v{va}, {vr(vd,2)}")
    a(f"ds_write_b64 v{va}, {vr(vd,2)} offset:8")

def attn(a):
    a.label("L_attn")
    a(f"s_and_b32 s65, s{sWAVE}, 3")
    a(f"s_lshr_b32 s66, s{sWAVE}, 2")
    a("s_lshl_b32 s67, s66, 10")
    a(f"v_add_u32 v{VK}, s67, v3")
    a(f"v_add_u32 v8, {VROT}, v2")
    a("v_and_b32 v8, 15, v8")
    a("v_lshrrev_b32 v9, 5, v2")
    a("v_lshl_or_b32 v8, v9, 4, v8")
    a("v_lshlrev_b32 v8, 4, v8")
    a("v_add_u32 v9, 512, v8")
    a("v_and_b32 v10, 31, v2")
    a("v_subrev_u32 v11, 20, v10")
    a("v_cmp_gt_u32 vcc, 8, v11")
    a("v_mov_b32 v11, 1040")
    a("v_mov_b32 v12, 1088")
    a("v_cndmask_b32 v11, v11, v12, vcc")
    a("v_cmp_eq_u32 vcc, 16, v10")
    a("v_mov_b32 v12, 1024")
    a("v_cndmask_b32 v11, v11, v12, vcc")
    a("v_cmp_gt_u32 vcc, 16, v10")
    a("v_cndmask_b32 v8, v11, v8, vcc")
    a("v_cndmask_b32 v9, v11, v9, vcc")
    a(f"s_mul_i32 s67, s66, {VST}")
    a(f"s_add_u32 s67, s67, {LV}")
    a(f"v_add_u32 v{VV0}, s67, v8")
    a(f"v_add_u32 v{VV1}, s67, v9")
    a("s_lshl_b32 s67, s65, 11")
    a(f"s_add_u32 s67, s67, {LQI}")
    a("v_add_u32 v20, s67, v3")
    zero(a, OA, 32); zero(a, V1, 4); zero(a, GACC, 32)
    T0 = GFR + 36
    a(f"s_lshl_b32 s73, s{sMB}, 11")
    a(f"s_lshl_b32 s74, s{sNB}, 7")
    a("s_add_u32 s73, s73, s74")
    a(f"s_add_u32 s73, s73, {WS_F2}")
    a(f"s_lshl_b32 s74, s{sQB}, 12")
    a(f"s_lshl_b32 s75, s{sHEAD}, 7")
    a("s_add_u32 s74, s74, s75")
    a(f"s_add_u32 s74, s74, {WS_F3}")
    a(f"v_mov_b32 v{T0+2}, s73")
    a(f"v_writelane_b32 v{T0+2}, s74, 1")
    a(f"v_mov_b32 v{T0+3}, 1")
    a(f"v_mov_b32 v{T0+4}, {LCNT+4}")
    g = T0 + 5
    a(f"v_and_b32 v{g+2}, 15, v2")
    a(f"v_lshlrev_b32 v{g+2}, 7, v{g+2}")
    a(f"s_lshr_b32 s74, s{sHEAD}, 1")
    a("s_lshl_b32 s74, s74, 11")
    a(f"s_add_u32 s74, s74, {WS_F2}")
    a(f"s_lshl_b32 s88, s{sQB}, 12")
    a(f"s_lshr_b32 s89, s{sHEAD}, 2")
    a("s_lshl_b32 s89, s89, 12")
    a("s_sub_u32 s89, s89, 4096")
    a(f"v_mov_b32 v{g}, s88")
    a(f"v_mov_b32 v{g+1}, s89")
    a("v_cmp_gt_u32 vcc, 32, v2")
    a(f"v_cndmask_b32 v{g}, v{g+1}, v{g}, vcc")
    a(f"v_lshl_add_u32 v{g+3}, v2, 7, v{g}")
    a(f"s_mov_b32 s88, {WS_F3}")
    a(f"s_and_b32 s68, s{sWAVE}, 1")
    a(f"s_lshr_b32 s69, s{sWAVE}, 1")
    a(f"s_lshl_b32 s84, s{sHEAD}, 1")
    a("s_add_u32 s84, s84, s68")
    a(f"s_mul_i32 s85, s84, {144*1024}")
    a(f"s_add_u32 s85, s85, {WS_AF}")
    a(f"s_mul_i32 s86, s{sQB}, {2*144*1024}")
    a(f"s_add_u32 s86, s86, {WS_WF}")
    a(f"s_mul_i32 s75, s69, {28*1024}")
    a(f"s_add_u32 s75, s75, {32*1024}")
    a("s_add_u32 s76, s85, s75")
    a("s_add_u32 s77, s86, s75")
    a(f"s_add_u32 s78, s77, {144*1024}")
    a("s_lshl_b32 s75, s69, 13")
    a("s_add_u32 s85, s85, s75")
    a("s_add_u32 s86, s86, s75")
    a(f"v_mov_b32 v{VG}, v3")
    a("s_movk_i32 s87, 4096")
    a(f"s_lshl_b32 s90, s{sHEAD}, 16")
    a(f"s_lshl_b32 s91, s{sWAVE}, 10")
    a(f"s_mul_i32 s92, s{sWAVE}, {VST}")
    a(f"s_lshl_b32 s93, s{sQB}, 13")
    a("s_add_u32 s93, s93, s91")
    const_setup(a, T0+9, T0+10, T0)
    a(f"v_lshlrev_b32 v{WO+2}, 7, v2")
    a(f"s_cmp_lt_u32 s{sWAVE}, 4")
    a("s_cbranch_scc1 L_x1")
    for p0 in (8, 16, 24): kv8(a, p0)
    a("s_waitcnt vmcnt(8)")
    a.label("L_x1")
    a("s_waitcnt lgkmcnt(0)")
    a("s_setprio 3")
    a("s_barrier")
    stamp(a, 10, VS)
    a(f"ds_read_b128 {vr(QA)}, v20")
    a(f"ds_read_b128 {vr(QB)}, v20 offset:1024")
    a(f"ds_read_b128 {vr(V0B)}, v3")
    a(f"ds_read_b128 {vr(KF)}, v{VK}")
    a(f"ds_read_b128 {vr(V0A)}, v{VV0}")
    a(f"s_cmp_lt_u32 s{sWAVE}, 6")
    a("s_cbranch_scc1 L_nocs2")
    const_write(a, T0+9, T0+10)
    a.label("L_nocs2")
    def kvops(groups):
        ops = []
        for p0 in groups:
            ops.append([f"s_add_u32 s94, s93, {p0*1024}", "s_and_b32 s94, s94, 0xffff", "s_add_u32 s94, s94, s90",
                        f"s_add_u32 m0, s91, {LK + p0*1024}", f"s_add_u32 s67, s94, {WS_QK + 32*65536}",
                        f"buffer_load_dwordx4 v3, {WSR}, s67 offen{ST} lds"])
            ops.append([f"s_add_u32 m0, s92, {LV + p0*VST}", f"s_add_u32 s67, s94, {WS_V}",
                        f"buffer_load_dwordx4 v3, {WSR}, s67 offen{ST} lds"])
        return ops
    def burst(young):
        t = "y" if young else "o"
        a(f"s_cmp_{'lt' if young else 'ge'}_u32 s{sWAVE}, 4")
        a(f"s_cbranch_scc1 L_st4{t}")
        for n in range(4): a(f"buffer_store_dwordx4 {vr(HP+4*n)}, v3, {WSR}, s{DT+n} offen{STS}")
        if not young:
            a(f"s_cmp_lg_u32 s{sVC}, 0")
            a(f"s_cbranch_scc1 L_st4{t}")
            for n in range(4, 8): a(f"buffer_store_dwordx4 {vr(HP+4*n)}, v3, {WSR}, s{DT+n} offen{STS}")
        a.label(f"L_st4{t}")
    BURSTK = int(ENV("BURSTK", "2"))
    burst(False)
    if BURSTK < 0: burst(True)
    stamp(a, 21, VS) if not ENV("EARLY") else None
    a("s_waitcnt lgkmcnt(0)")
    a(f"{MF} {vr(SA,16)}, {vr(V0B)}, {vr(QA)}, 0")
    a(f"{MF} {vr(SB,16)}, {vr(V0B)}, {vr(QB)}, 0")
    rowmax(a, SA, T0)
    rowmax(a, SB, T0, acc=True)
    halfmax(a, T0, T0 + 1)
    for i in range(16): a(f"v_sub_f32 v{CC+i}, 0, v{T0}")
    a("s_waitcnt lgkmcnt(0)")
    a(f"{MF} {vr(SA,16)}, {vr(KF)}, {vr(QA)}, {vr(CC,16)}")
    zero(a, SB + 8, 4)
    a("s_nop 9")

    def tile(n, which, extra, extra0=lambda: None):
        S, T, O, OT, QT = (SA, SB, OA, OB, QB) if which == 0 else (SB, SA, OB, OA, QA)
        v0 = V0A if n % 2 == 0 else V0B
        v0n = V0B if n % 2 == 0 else V0A
        e = lambda i: a(f"v_exp_f32 v{S+i}, v{S+i}")
        c = lambda i: a(f"v_cvt_pk_bf16_f32 v{S + (i>>2)*8 + (i&3)}, v{S+2*i}, v{S+2*i+1}")
        e(0); e(1)
        if which == 1: a("s_waitcnt lgkmcnt(0)")
        a(f"{MF} {vr(OT,16)}, {vr(V1)}, {vr(T+8)}, {vr(OT,16)}")
        if which == 0:
            a(f"ds_read_b128 {vr(V1)}, v{VV1} offset:{2*n*VST}")
            a(f"ds_read_b128 {vr(v0n)}, v{VV0} offset:{2*(n+1)*VST}")
        e(2); e(3); e(4); e(5)
        a(f"{MF} {vr(T,16)}, {vr(KF)}, {vr(QT)}, {vr(CC,16)}")
        if which == 0: a(f"ds_read_b128 {vr(KF)}, v{VK} offset:{2*(n+1)*1024}")
        e(6); e(7); e(8)
        extra0()
        for i in range(4): c(i)
        e(9); e(10)
        a(f"{MF} {vr(O,16)}, {vr(v0)}, {vr(S)}, {vr(O,16)}")
        e(11); e(12); e(13); e(14)
        extra()
        e(15)
        for i in range(4, 8): c(i)
    def bump(n):
        a(f"v_add_u32 v{VK}, {2*n*1024}, v{VK}")
        a(f"v_add_u32 v{VV0}, {2*n*VST}, v{VV0}")
        a(f"v_add_u32 v{VV1}, {2*n*VST}, v{VV1}")
    PRIO = ENV("PRIO", "1") == "1"
    DPER, DRAIN = int(ENV("DPER", "1")), int(ENV("DRAIN", "10"))
    wo = list(range(16))
    g = T0 + 5
    def ld2():
        a(f"buffer_load_dword v{g}, v{g+2}, {WSR}, s74 offen{ST}")
        a(f"buffer_load_dword v{g+1}, v{g+3}, {WSR}, s88 offen{ST}")
    def cmp2():
        a(f"v_and_b32 v{g}, v{g}, v{g+1}")
        a(f"v_cmp_ne_u32 vcc, 1, v{g}")
    def ldswait(name, off, val):
        a(f"s_mov_b32 s98, {SPIN*8}")
        a.label(name)
        a(f"ds_read_b32 v{T0}, v{T0+1} offset:{off}")
        a("s_waitcnt lgkmcnt(0)")
        a(f"v_cmp_ne_u32 vcc, {val}, v{T0}")
        a(f"s_cbranch_vccz {name}_ok")
        a("s_sleep 1")
        a("s_sub_u32 s98, s98, 1")
        a("s_cmp_lg_u32 s98, 0")
        a(f"s_cbranch_scc1 {name}")
        a.label(f"{name}_ok")
    a(f"v_mov_b32 v{T0+1}, {LCNT}")
    S2W = int(ENV('S2WAVE', '0'))
    S2AT = int(ENV('S2AT', '14'))
    def ldwo(i):
        if i % 4 == 0: a(f"s_add_u32 s71, s86, {(i>>3)*144*1024 + (i&7)*1024}")
        a(f"buffer_load_dwordx4 {vr(WO + 4*i)}, v3, {WSR}, s71 offen offset:{(i&3)*1024}{ST}")
    PK = [int(x) for x in ENV("PK", "3,7,12").split(",")]
    ops = kvops((32, 40, 48, 56))
    ops = [(lambda l=l: [a(x) for x in l]) for l in ops] + [(lambda i=i: ldwo(i)) for i in range(16)]
    def ldb():
        for i in range(4):
            a(f"s_mov_b32 s70, {WS_F1 + i*8192}")
            a(f"buffer_load_dwordx2 {vr(WO+4+2*i,2)}, v{WO+2}, {WSR}, s70 offen{ST}")
    def cmpb():
        b = WO + 4
        for i in range(4):
            a(f"v_xor_b32 v{b+2*i}, v{b+2*i}, v{WO}")
            a(f"v_xor_b32 v{b+2*i+1}, v{b+2*i+1}, v{WO+1}")
        a(f"v_or3_b32 v{b}, v{b}, v{b+1}, v{b+2}")
        a(f"v_or3_b32 v{b+3}, v{b+3}, v{b+4}, v{b+5}")
        a(f"v_or3_b32 v{b}, v{b}, v{b+6}, v{b+7}")
        a(f"v_or_b32 v{b}, v{b}, v{b+3}")
        a(f"v_cmp_ne_u32 vcc, 0, v{b}")
    DRAIN = int(ENV("DRAIN", "5"))
    KVW = int(ENV("KVW", "10"))
    nkv = 8
    slots = 2 * (15 - DRAIN) - 1
    def emit_ops():
        nonlocal slots
        n = -(-len(ops) // slots); slots -= 1
        if kcur < KVW: n = min(1, len(ops) - 16)
        for _ in range(n): ops.pop(0)()
    for k in range(16):
        if PRIO and k in PK: a(f"s_setprio {2 - PK.index(k)}")
        kcur = k
        if k == KVW: ldswait("L_kvw", 4, 8)
        if k == S2AT:
            a(f"s_cmp_lg_u32 s{sWAVE}, {S2W}")
            a("s_cbranch_scc1 L_s2a")
            ld2()
            a.label("L_s2a")
        def extra():
            if k == BURSTK: burst(True)
            if k == DRAIN - 2:
                a(f"s_cmp_lg_u32 s{sWAVE}, 4")
                a("s_cbranch_scc1 L_s1b0")
                ldb()
                a.label("L_s1b0")
            if k == DRAIN:
                stamp(a, 23, VS) if not ENV("EARLY") else None
                a("s_waitcnt vmcnt(0)")
                stamp(a, 24, VS) if not ENV("EARLY") else None
                a(f"s_cmp_lg_u32 s{sWAVE}, 4")
                a("s_cbranch_scc1 L_ps1b_ok")
                cmpb()
                a("s_cbranch_vccz L_ps1b_ok")
                poll(a, "L_ps1b", ldb, cmpb)
                one_lane(a, f"ds_add_rtn_u32 v{T0+4}, v{T0+4}, v{T0+3}")
            if k > DRAIN: emit_ops()
        def extra0():
            if k == DRAIN + 1:
                a("s_waitcnt lgkmcnt(0)")
                a(f"v_readfirstlane_b32 s70, v{T0+4}")
                a("s_cmp_eq_u32 s70, 7")
                a(f"s_cselect_b32 s70, 0, {OOB:#x}")
                one_lane(a, f"buffer_store_dword v{T0+3}, v{T0+2}, {WSR}, s70 offen{ST}", 3)
            if k > DRAIN + 1: emit_ops()
        nleft = len(ops)
        if k == S2AT: after_s2 = nleft
        tile(k >> 1, k & 1, extra, extra0)
    assert not ops
    stamp(a, 11, VS)
    a(f"s_cmp_lg_u32 s{sWAVE}, {S2W}")
    a("s_cbranch_scc1 L_s2b")
    a(f"s_waitcnt vmcnt({after_s2})")
    cmp2()
    a("s_cbranch_vccz L_ps2_ok")
    poll(a, "L_ps2", ld2, cmp2)
    a(f"ds_write_b32 v{T0+1}, v{T0+3} offset:8")
    a("s_waitcnt lgkmcnt(0)")
    a("s_branch L_s2w_ok")
    a.label("L_s2b")
    ldswait("L_s2w", 8, 1)
    stamp(a, 16, VS)
    if PRIO: a("s_setprio 3")
    bump(8)
    def gld(buf, q, off): a(f"buffer_load_dwordx4 {vr(GFR + 12*buf + 4*q)}, v{VG}, {WSR}, s{76+q} offen offset:{off}{'' if 'P' in ENV('XG', '') else ST}")
    def gm(buf, j):
        d = vr(GACC + 16*j, 16)
        a(f"{MF} {d}, {vr(GFR + 12*buf + 4 + 4*j)}, {vr(GFR + 12*buf)}, {d}")
    for b in range(4):
        for q in (1, 0, 2): gld(b, q, b * 1024)
    a(f"v_add_u32 v{VG}, 4096, v{VG}")
    a("s_mov_b32 s80, 6")
    a(f"v_mov_b32 v0, {LCNT}")
    a("v_mov_b32 v2, 1")
    a.label("L_aloop")
    def gstep(m, wait=9):
        b, j = (m >> 1) & 3, m & 1
        if j == 0: a(f"s_waitcnt vmcnt({wait})")
        gm(b, j)
        if j == 0: gld(b, 1, b * 1024)
        else: gld(b, 0, b * 1024); gld(b, 2, b * 1024)
    for k in range(8):
        def extra():
            gstep(k)
            if k == 1: a("s_sub_u32 s80, s80, 1")
            if k == 2:
                one_lane(a, f"ds_add_u32 v0, v2 offset:12")
        tile(k >> 1, k & 1, extra)
    bump(4)
    a(f"v_add_u32 v{VG}, 4096, v{VG}")
    a("s_cmp_lg_u32 s80, 5")
    a("s_cbranch_scc1 L_kv2_ok")
    a(f"s_mov_b32 s98, {SPIN*8}")
    a.label("L_kv2")
    a(f"ds_read_b32 v2, v0 offset:12")
    a("s_waitcnt lgkmcnt(0)")
    a(f"v_cmp_gt_u32 vcc, 8, v2")
    a("s_cbranch_vccz L_kv2_ok")
    a("s_sleep 1")
    a("s_sub_u32 s98, s98, 1")
    a("s_cmp_lg_u32 s98, 0")
    a("s_cbranch_scc1 L_kv2")
    a.label("L_kv2_ok")
    if PRIO:
        for lim, pr in zip([int(x) for x in ENV("PL", "4,2,1").split(",")], (2, 1, 0)):
            a(f"s_cmp_gt_u32 s80, {lim}")
            a("s_cbranch_scc1 L_aloop")
            a(f"s_setprio {pr}")
    a("s_cmp_lg_u32 s80, 0")
    a("s_cbranch_scc1 L_aloop")
    a("v_lshrrev_b32 v2, 4, v3")
    if STAMP: a(f"v_lshl_add_u32 v0, s{sWAVE}, 6, v2")
    a(f"{MF} {vr(OB,16)}, {vr(V1)}, {vr(SB+8)}, {vr(OB,16)}")
    stamp(a, 17, VS)
    a(f"s_mul_i32 s79, s{sWAVE}, 2304")
    a(f"s_add_u32 s79, s79, {LQ}")
    a(f"s_xor_b32 s80, s{sWAVE}, 4")
    a("s_mul_i32 s80, s80, 2304")
    a(f"s_add_u32 s80, s80, {LQ}")
    a(f"v_add_u32 v{KF}, s79, v3")
    a(f"v_add_u32 v{KF+1}, s80, v3")
    a(f"v_lshl_add_u32 v{KF+2}, v2, 2, s79")
    a(f"v_lshl_add_u32 v{KF+3}, v2, 2, s80")
    a(f"v_and_b32 v{V0A}, 31, v2")
    a(f"v_lshlrev_b32 v{V0A}, 2, v{V0A}")
    a("s_lshl_b32 s79, s84, 7")
    a(f"s_add_u32 s79, s79, {WS_G}")
    VGT = V0B
    a(f"buffer_load_dword v{VGT}, v{V0A}, {WSR}, s79 offen{ST}")
    a("s_cmp_eq_u32 s66, 0")
    a("s_cbranch_scc1 L_keepA")
    a(f"ds_write_b128 v{KF}, {vr(OA)}")
    a(f"ds_write_b128 v{KF}, {vr(OA+4)} offset:1024")
    a(f"ds_write_b32 v{KF+2}, v{OA+8} offset:2048")
    for i in range(9): a(f"v_mov_b32 v{OA+i}, v{OB+i}")
    for i in range(4): a(f"v_mov_b32 v{QA+i}, v{QB+i}")
    a("s_branch L_sent")
    a.label("L_keepA")
    a(f"ds_write_b128 v{KF}, {vr(OB)}")
    a(f"ds_write_b128 v{KF}, {vr(OB+4)} offset:1024")
    a(f"ds_write_b32 v{KF+2}, v{OB+8} offset:2048")
    a.label("L_sent")
    a(f"s_lshl_b32 s79, s{sQB}, 3")
    a("s_lshl_b32 s80, s65, 1")
    a("s_add_u32 s79, s79, s80")
    a("s_add_u32 s79, s79, s66")
    a(f"s_mul_i32 s81, s79, {144*1024}")
    a(f"s_lshl_b32 s80, s{sHEAD}, 10")
    a("s_add_u32 s81, s81, s80")
    a(f"s_add_u32 s81, s81, {WS_AF}")
    a("s_waitcnt lgkmcnt(0)")
    a("s_barrier")
    a(f"ds_read_b128 {vr(OB)}, v{KF+1}")
    a(f"ds_read_b128 {vr(OB+4)}, v{KF+1} offset:1024")
    a(f"ds_read_b32 v{OB+8}, v{KF+3} offset:2048")
    a("s_waitcnt lgkmcnt(0)")
    for i in range(9): a(f"v_add_f32 v{OA+i}, v{OA+i}, v{OB+i}")
    def lbcast():
        if ONE_ROW:
            a(f"v_mov_b32 v{OB}, v{OA+8}")
            a(f"v_permlane32_swap_b32 v{OA+8}, v{OB}")
    lbcast()
    a(f"v_cmp_nge_f32 vcc, {f32(2.0**60)}, v{OA+8}")
    a("s_mov_b64 s[82:83], vcc")
    a(f"v_cmp_nle_f32 vcc, {f32(2.0**-60)}, v{OA+8}")
    a("s_or_b64 vcc, vcc, s[82:83]")
    a("s_cbranch_vccnz L_redo")
    a.label("L_aok")
    a(f"v_rcp_f32 v12, v{OA+8}")
    for i in range(8): a(f"v_mul_f32 v{OA+i}, v12, v{OA+i}")
    for i in range(4): a(f"v_cvt_pk_bf16_f32 v{SA+i}, v{OA+2*i}, v{OA+2*i+1}")
    for i in range(4): a(f"v_min_u32 v{SA+i}, -2, v{SA+i}")
    a(f"buffer_store_dwordx4 {vr(SA)}, v3, {WSR}, s81 offen{STS}")
    stamp(a, 18, VS)
    srd(a, S_OUT, 20, 21, 2048 * 1024)
    a("s_lshl_b32 s79, s68, 15")
    a("v_add_u32 v14, s79, v3")
    a("s_lshl_b32 s80, s69, 13")
    a("s_add_u32 s80, s80, s79")
    a("v_add_u32 v15, s80, v3")
    a("v_and_b32 v12, 31, v2")
    a("v_lshlrev_b32 v12, 10, v12")
    a("v_lshrrev_b32 v13, 5, v2")
    a("v_lshl_or_b32 v11, v13, 4, v12")
    a("s_lshl_b32 s79, s84, 15")
    a(f"s_lshl_b32 s80, s{sQB}, 7")
    a("s_add_u32 s79, s79, s80")
    a("s_lshl_b32 s80, s69, 5")
    a("s_add_u32 s79, s79, s80")
    a("s_add_u32 s87, s85, 4096")
    a("s_barrier")
    a("s_waitcnt vmcnt(1)")
    for b in range(4): gm(b, 0); gm(b, 1)
    a("s_waitcnt vmcnt(0)")
    stamp(a, 19, VS)
    OF, A2 = 16, 64
    def ldO():
        for i in range(8): a(f"buffer_load_dwordx4 {vr(OF+4*i)}, v3, {WSR}, s{85 if i < 4 else 87} offen offset:{(i&3)*1024}{ST}")
    def cmpO():
        for i in range(8):
            a(f"s_waitcnt vmcnt({7-i})")
            for j in range(2):
                d = vr(A2 + 16*j, 16)
                a(f"{MF} {d}, {vr(WO + 32*j + 4*i)}, {vr(OF+4*i)}, {'0' if i == 0 else d}")
            r = OF + 4*i
            if i == 0: a(f"v_max_u32 v12, v{r}, v{r+1}")
            else: a(f"v_max3_u32 v12, v{r}, v{r+1}, v12")
            a(f"v_max3_u32 v12, v{r+2}, v{r+3}, v12")
        a("v_cmp_eq_u32 vcc, -1, v12")
    ldO()
    a(f"v_sub_f32 v10, 1.0, v{VGT}")
    for r in range(32): a(f"v_mul_f32 v{GACC+r}, v10, v{GACC+r}")
    a(f"s_mov_b32 s98, {SPIN}")
    a("s_branch L_ps3c")
    def ldO2():
        ldO(); a.label("L_ps3c")
    poll(a, "L_ps3", ldO2, cmpO, wait=False)
    stamp(a, 20, VS)
    for kq in range(4):
        if kq < 3:
            a(f"s_cmp_lg_u32 s69, {kq}")
            a(f"s_cbranch_scc1 L_red{kq+1}")
        for sl in [x for x in range(4) if x != kq] + [kq]:
            for r in range(8*sl, 8*sl + 8):
                if sl == kq: a(f"v_fma_f32 v{OF + r - 8*sl}, v{VGT}, v{A2+r}, v{GACC+r}")
                else: a(f"v_fmac_f32 v{GACC+r}, v{VGT}, v{A2+r}")
            if sl != kq:
                for k in range(2): a(f"ds_write_b128 v14, {vr(GACC + 8*sl + 4*k)} offset:{sl*8192 + ((kq - sl - 1) & 3)*2048 + k*1024}")
        if kq < 3:
            a("s_branch L_redw")
            a.label(f"L_red{kq+1}")
    a.label("L_redw")
    a("s_waitcnt lgkmcnt(0)")
    a("s_barrier")
    for q in range(3):
        for k in range(2): a(f"ds_read_b128 {vr(OF + 8 + 8*q + 4*k)}, v15 offset:{q*2048 + k*1024}")
    a("s_waitcnt lgkmcnt(4)")
    for r in range(0, 8, 2): a(f"v_pk_add_f32 {vr(OF+r,2)}, {vr(OF+r,2)}, {vr(OF+8+r,2)}")
    a("s_waitcnt lgkmcnt(0)")
    for r in range(0, 8, 2): a(f"v_pk_add_f32 {vr(OF+16+r,2)}, {vr(OF+16+r,2)}, {vr(OF+24+r,2)}")
    for r in range(0, 8, 2): a(f"v_pk_add_f32 {vr(OF+r,2)}, {vr(OF+r,2)}, {vr(OF+16+r,2)}")
    for i in range(4): a(f"v_cvt_pk_bf16_f32 v{48+i}, v{OF+2*i}, v{OF+2*i+1}")
    a("v_permlane32_swap_b32 v48, v50")
    a("v_permlane32_swap_b32 v49, v51")
    a(f"buffer_store_dwordx4 v[48:51], v11, {SR(S_OUT)}, s79 offen")
    if ENV("FIXT"):
        a.label("L_fixt")
        a("s_memrealtime s[100:101]")
        a("s_waitcnt lgkmcnt(0)")
        a("s_sub_u32 s100, s100, s96")
        a(f"s_cmp_lt_u32 s100, {int(ENV('FIXT'))}")
        a("s_cbranch_scc1 L_fixt")
    if STAMP: a("s_waitcnt vmcnt(0)")
    stamp_out(a, 0, S_WS, VS, 14)
    if STAMP and ENV("DBGOUT"):
        a(f"s_lshl_b32 s66, s{sWAVE}, 8")
        a("s_or_b32 s66, s66, s2")
        a(f"s_cmp_lg_u32 s66, {int(ENV('DBGOUT'))}")
        a("s_cbranch_scc1 L_exit")
        a(f"v_readlane_b32 s67, v{VS}, 1")
        for k, idx in enumerate((3, 4, 5, 6, 7, 10, 11, 16, 17, 18, 19, 20, 14)):
            a(f"v_readlane_b32 s66, v{VS}, {32+idx}")
            a("s_sub_u32 s66, s66, s67")
            a(f"v_writelane_b32 v14, s66, {k}")
        a(f"v_readlane_b32 s66, v{VS}, 14")
        a(f"v_readlane_b32 s67, v{VS}, 0")
        a("s_sub_u32 s66, s66, s67")
        a("v_writelane_b32 v14, s66, 13")
        a("v_lshlrev_b32 v15, 2, v2")
        one_lane(a, f"buffer_store_dword v14, v15, {SR(S_DBG)}, 0 offen offset:4", "0x3fff")
    a("s_endpgm")
    a.label("L_redo")
    a(f"s_mul_i32 s79, s66, {VST}")
    a(f"s_add_u32 s79, s79, {64*VST}")
    a(f"v_subrev_u32 v{VV0}, s79, v{VV0}")
    a(f"v_subrev_u32 v{VV1}, s79, v{VV1}")
    a(f"v_mov_b32 v{VK}, v3")
    a("v_mov_b32 v12, 0xff800000")
    a("s_mov_b32 s80, 0")
    a.label("L_fmax")
    a(f"ds_read_b128 {vr(KF)}, v{VK}")
    a("s_waitcnt lgkmcnt(0)")
    a(f"{MF} {vr(SA,16)}, {vr(KF)}, {vr(QA)}, 0")
    a(f"v_add_u32 v{VK}, 1024, v{VK}")
    rowmax(a, SA, 12, acc=True)
    a("s_add_u32 s80, s80, 1")
    a("s_cmp_lt_u32 s80, 64")
    a("s_cbranch_scc1 L_fmax")
    halfmax(a, 12, 13)
    for i in range(16): a(f"v_sub_f32 v{CC+i}, 0, v12")
    zero(a, OA, 16)
    a(f"v_mov_b32 v{VK}, v3")
    a("s_mov_b32 s80, 0")
    a.label("L_fslow")
    a(f"ds_read_b128 {vr(KF)}, v{VK}")
    a(f"ds_read_b128 {vr(V0A)}, v{VV0}")
    a(f"ds_read_b128 {vr(V1)}, v{VV1}")
    a("s_waitcnt lgkmcnt(0)")
    a(f"{MF} {vr(SA,16)}, {vr(KF)}, {vr(QA)}, {vr(CC,16)}")
    a(f"v_add_u32 v{VK}, 1024, v{VK}")
    a(f"v_add_u32 v{VV0}, {VST}, v{VV0}")
    a(f"v_add_u32 v{VV1}, {VST}, v{VV1}")
    for i in range(16): a(f"v_exp_f32 v{SA+i}, v{SA+i}")
    for i in range(8): a(f"v_cvt_pk_bf16_f32 v{SB+i}, v{SA+2*i}, v{SA+2*i+1}")
    a(f"{MF} {vr(OA,16)}, {vr(V0A)}, {vr(SB)}, {vr(OA,16)}")
    a(f"{MF} {vr(OA,16)}, {vr(V1)}, {vr(SB+4)}, {vr(OA,16)}")
    a("s_add_u32 s80, s80, 1")
    a("s_cmp_lt_u32 s80, 64")
    a("s_cbranch_scc1 L_fslow")
    a("s_nop 9")
    lbcast()
    a("s_branch L_aok")

def build():
    a = Asm()
    head(a)
    p1_loader(a)
    p1_compute(a)
    attn(a)
    a.label("L_exit")
    a("s_endpgm")
    n = a.fix(verbose="-v" in sys.argv)
    print("instructions:", len(a.lines), "nop states inserted:", n, "lds", LDS_BYTES, file=sys.stderr)
    name = NAME + "_kernel"
    hdr = open("cdna_kernels/" + NAME + ".s.ref").read().split("; Override launch")[0]
    out = hdr + f"; @launch grid=(256,1,1) block=(512,1,1) lds={LDS_BYTES}\n"
    out += '.amdgcn_target "amdgcn-amd-amdhsa--gfx950"\n.text\n'
    out += f".globl {name}\n.p2align 8\n.type {name},@function\n{name}:\n" + a.text()
    out += '.section .rodata,"a"\n' + kd(name)
    dst = sys.argv[1] if len(sys.argv) > 1 and not sys.argv[1].startswith("-") else "cdna_kernels/" + NAME + ".s"
    open(dst, "w").write(out)
if __name__ == "__main__": build()
```

```python
import os, sys
from common import *

MF = "v_mfma_f32_32x32x16_bf16"
ST = " sc1"
STS = " sc1 nt" if os.environ.get("SNT") else " sc1"
ENV = os.environ.get
WS_F1 = 0x1480000
WS_F2 = 0x1490000
WS_F3 = 0x1498000
WS_TAG = 0x14a0000
SPIN = 1 << 17

S_DBG, S_WS, S_X, S_G, S_U, S_WA, S_WB, S_WC = 24, 28, 32, 36, 40, 44, 48, 52
S_RO, S_RD, S_GW = 56, 44, 48
S_OUT = 32
sWAVE, sMB, sNB, sVC = 3, 60, 61, 62
sHEAD, sQB = 63, 64
WSR = f"s[{S_WS}:{S_WS+3}]"
def SR(n): return f"s[{n}:{n+3}]"
VS = 1

NXS = 6
LX, XSLOT = 0, 16384
LW = NXS * XSLOT
NW1, WS1 = 5, 12288
NW2, WS2, LW2 = 6, 8192, LW + 12288
LRD = LW
LRO = LW + NW1 * WS1
LDS_BYTES = 163840
LCNT = LDS_BYTES - 16
LC2 = LDS_BYTES - 32
assert LRO + 2048 <= LCNT and (16 % NW1) * WS1 == LW2 - LW and LW2 + NW2 * WS2 <= LRO
KROT = 8 - NXS
def wslot(s): return (LW + (s % NW1) * WS1, WS1) if s < 16 else (LW2 + ((s - 16) % NW2) * WS2, WS2)
def acc(tt, ct): return 96 + (tt * 4 + ct) * 16 if ct < 4 else 224 + tt * 16
HP = 224
DT = 36
FR0, FR1 = 16, 36
VXA, VW = 56, 60
ONE_ROW = not ENV("ALLONES")
VST, VROT = 1104, 0
LK, LV = 0, 65536
LQ = LV + 64 * VST
LQI = 143360
LASTB = 28
QA, QB, CC, OA, OB, SA, SB, KF, V0A, V0B, V1 = 8, 12, 16, 32, 48, 64, 80, 96, 100, 104, 108
VK, VV0, VV1, VG = 4, 5, 6, 7
GACC, GFR, WO = 112, 144, 192

class Lgkm:
    def __init__(s, a): s.a = a; s.q = []
    def rd(s, tag, text): s.a(text); s.q.append(tag)
    def need(s, *tags):
        idx = [i for i, t in enumerate(s.q) if t in tags]
        if not idx: return
        n = len(s.q) - 1 - max(idx)
        assert n <= 15
        s.a(f"s_waitcnt lgkmcnt({n})")
        s.q = s.q[max(idx) + 1:]
    def all(s, extra=""):
        s.a("s_waitcnt " + extra + "lgkmcnt(0)")
        s.q = []

def poll(a, name, load, cmp, wait=True, slp=None):
    a(f"s_mov_b32 s98, {SPIN}")
    a.label(name)
    load()
    if wait: a("s_waitcnt vmcnt(0)")
    cmp()
    a(f"s_cbranch_vccz {name}_ok")
    a(f"s_sleep {int(ENV('SLEEP', '4')) if slp is None else slp}")
    a("s_sub_u32 s98, s98, 1")
    a("s_cmp_lg_u32 s98, 0")
    a(f"s_cbranch_scc1 {name}")
    a.label(f"{name}_ok")

def rowmax(a, S, dst, acc=False):
    if acc: a(f"v_max3_f32 v{dst}, v{S}, v{S+1}, v{dst}")
    else: a(f"v_max_f32 v{dst}, v{S}, v{S+1}")
    for k in range(2, 16, 2): a(f"v_max3_f32 v{dst}, v{S+k}, v{S+k+1}, v{dst}")
def halfmax(a, dst, tmp):
    a(f"v_mov_b32 v{tmp}, v{dst}")
    a(f"v_permlane32_swap_b32 v{tmp}, v{dst}")
    a(f"v_max_f32 v{dst}, v{tmp}, v{dst}")
def zero(a, b, n):
    for r in range(0, n, 2): a(f"v_pk_mul_f32 {vr(b+r,2)}, 0, 0")
def one_lane(a, text, mask=1):
    a(f"s_mov_b64 exec, {mask}"); a(text); a("s_mov_b64 exec, -1")

def head(a):
    a("s_cmp_ge_u32 s2, 256")
    a("s_cbranch_scc1 L_exit")
    a("s_load_dwordx16 s[4:19], s[0:1], 0")
    a("s_load_dwordx4 s[20:23], s[0:1], 64")
    a(f"s_load_dwordx2 s[{S_WS}:{S_WS+1}], s[0:1], 80")
    if ENV("FIXT"):
        a("s_memrealtime s[96:97]")
    if STAMP: a(f"v_mov_b32 v{VS}, 0")
    stamp(a, 0, VS); stamp(a, 1, VS, real=True)
    a("v_lshrrev_b32 v3, 6, v0")
    a("v_and_b32 v2, 63, v0")
    a(f"v_readfirstlane_b32 s{sWAVE}, v3")
    a("s_and_b32 s65, s2, 7")
    a("s_lshr_b32 s66, s2, 3")
    a("s_and_b32 s67, s65, 1")
    a("s_lshl_b32 s67, s67, 3")
    a("s_and_b32 s68, s66, 7")
    a(f"s_add_u32 s{sMB}, s67, s68")
    a("s_lshr_b32 s67, s65, 1")
    a("s_lshl_b32 s67, s67, 2")
    a("s_lshr_b32 s68, s66, 3")
    a(f"s_add_u32 s{sNB}, s67, s68")
    a("s_cmp_eq_u32 s68, 3")
    a(f"s_cselect_b32 s{sVC}, 1, 0")
    a("s_lshl_b32 s67, s65, 2")
    a("s_and_b32 s68, s66, 3")
    a(f"s_add_u32 s{sHEAD}, s67, s68")
    a(f"s_lshr_b32 s{sQB}, s66, 2")
    a("v_lshlrev_b32 v3, 4, v2")
    a(f"s_mov_b32 s{S_WS+2}, {WS_SIZE:#x}")
    a(f"s_mov_b32 s{S_WS+3}, 0x00020000")
    a(f"s_lshr_b32 s67, s{sNB}, 2")
    a(f"s_sub_u32 s81, s{sNB}, s67")
    a("s_add_u32 s81, s81, 16")
    a(f"s_lshl_b32 s82, s{sNB}, 11")
    a(f"s_lshl_b32 s67, s{sMB}, 7")
    a("s_add_u32 s82, s82, s67")
    a(f"s_add_u32 s82, s82, {WS_F1}")
    a("v_lshrrev_b32 v8, 3, v2")
    a("v_and_b32 v4, 7, v2")
    a("v_bfe_u32 v5, v2, 4, 1")
    a("v_lshlrev_b32 v5, 2, v5")
    a("v_xor_b32 v5, v5, v4")
    a("v_lshlrev_b32 v9, 4, v5")
    a(f"s_cmp_lt_u32 s{sWAVE}, 4")
    a("s_waitcnt lgkmcnt(0)")
    srd(a, S_X, 4, 5, 2048 * 1024)
    srd(a, S_DBG, 22, 23, 256)
    a("s_cbranch_scc1 L_compute")

def p1_compute(a):
    a.label("L_compute")
    if ENV("INV"): a("buffer_inv sc1")
    a(f"s_and_b32 s65, s{sWAVE}, 1")
    a(f"s_lshr_b32 s66, s{sWAVE}, 1")
    if ENV("CODEPF", "1") == "1":
        a("s_getpc_b64 s[84:85]")
        a.label("L_pc")
        a("s_sub_u32 s84, s84, L_pc-L_loader")
        a("s_subb_u32 s85, s85, 0")
        a("v_lshlrev_b32 v11, 7, v0")
        a("v_min_u32 v11, L_exit-L_loader, v11")
        a("global_load_dword v61, v11, s[84:85]")
        assert True
    a("v_and_b32 v8, 31, v2")
    a("v_lshrrev_b32 v4, 5, v2")
    a("v_bfe_u32 v5, v2, 1, 3")
    a("v_xor_b32 v5, v5, v4")
    a("s_lshl_b32 s67, s65, 13")
    a("v_lshl_add_u32 v6, v8, 7, s67")
    for ks in range(4):
        a(f"v_xor_b32 v7, {2*ks}, v5")
        a(f"v_lshl_add_u32 v{VXA+ks}, v7, 4, v6")
    a("v_bfe_u32 v5, v2, 2, 2")
    a("v_and_b32 v6, 3, v2")
    a("v_bfe_u32 v7, v2, 4, 1")
    a("v_lshlrev_b32 v6, 3, v6")
    a("v_lshl_or_b32 v6, v7, 5, v6")
    a("v_lshrrev_b32 v7, 1, v5")
    a("v_lshl_or_b32 v6, v7, 6, v6")
    a("v_lshl_or_b32 v6, v5, 7, v6")
    a("v_lshl_or_b32 v6, v4, 10, v6")
    a("s_lshl_b32 s67, s66, 6")
    a("v_xor_b32 v6, s67, v6")
    a(f"v_add_u32 v{VW}, {LW}, v6")
    zero(a, 96, 160)
    a(f"v_mov_b32 v5, {LCNT}")
    a("ds_write_b128 v5, v[96:99]")

    a(f"s_mov_b32 s78, {(-(NW1-1)*WS1) & 0xffffffff:#x}")
    a(f"s_mov_b32 s79, {(-(NXS-1)*XSLOT) & 0xffffffff:#x}")
    a("s_mov_b32 s73, 0")
    a("s_mov_b32 s74, 0")
    a("s_mov_b32 s75, 8")
    a("s_waitcnt lgkmcnt(0)")
    def reads(fs, ks, nu):
        kk = ks & 1
        X = lambda t: f"ds_read_b128 {vr(fs+4*t)}, v{VXA+ks} offset:{t*4096}"
        W = lambda u, j: f"ds_read_b64_tr_b16 {vr(fs+8+4*u+2*j, 2)}, v{VW} offset:{u*4096 + kk*2048 + j*512}"
        l = [X(0), W(0,0), W(0,1), X(1)]
        for u in range(1, nu): l += [W(u,0), W(u,1)]
        return l
    def loop(name, cts, swap, nu_next_last, hook=None):
        nu = len(cts)
        NWS, WSLOT = (NW1, WS1) if nu == 3 else (NW2, WS2)
        a.label(name)
        for ks in range(4):
            kk = ks & 1
            cur, nxt = (FR0, FR1) if kk == 0 else (FR1, FR0)
            mms = []
            for u, ct in enumerate(cts):
                for t in range(2):
                    d = vr(acc(t, ct), 16); w = vr(cur + 8 + 4*u); x = vr(cur + 4*t)
                    mms.append(f"{MF} {d}, {x}, {w}, {d}" if (swap and ct < 4) else f"{MF} {d}, {w}, {x}, {d}")
            if ENV("FAKE16"):
                mms = []
                for u, ct in enumerate(cts):
                    for t in range(2):
                        w = vr(cur + 8 + 4*u); x = vr(cur + 4*t)
                        d0, d1 = vr(acc(t, ct) + 8*kk, 4), vr(acc(t, ct) + 8*kk + 4, 4)
                        x2 = vr(cur + 4*(1-t))
                        mms.append(f"v_mfma_f32_16x16x32_bf16 {d0}, {w}, {x}, {d0}")
                        mms.append(f"v_mfma_f32_16x16x32_bf16 {d1}, {x2}, {w}, {d1}")
            rd = reads(nxt, (ks + 1) & 3, nu)
            post = []
            if kk == 0:
                post += ["s_add_u32 s73, s73, 1", f"s_cmp_eq_u32 s73, {NWS}", f"s_cselect_b32 s76, s78, {WSLOT}", "s_cselect_b32 s73, 0, s73", f"v_add_u32 v{VW}, s76, v{VW}"]
                if ks == 2:
                    post += ["s_add_u32 s74, s74, 1", f"s_cmp_eq_u32 s74, {NXS}", f"s_cselect_b32 s77, s79, {XSLOT}", "s_cselect_b32 s74, 0, s74", f"v_add_u32 v{VXA}, s77, v{VXA}"]
            elif ks == 3:
                post += [f"v_add_u32 v{VXA+i}, s77, v{VXA+i}" for i in range(1, 4)] + ["s_sub_u32 s75, s75, 1", "s_cmp_lg_u32 s75, 0"]
            if ks == 3 and hook: hook()
            a("s_waitcnt lgkmcnt(0)")
            if kk == 1:
                a(mms.pop(0))
                a("s_barrier")
            other = rd + post
            per = 3 if not ENV('FAKE16') else 2
            while mms:
                if kk == 0 or len(mms) < 2*nu - 1 or True:
                    pass
                if kk == 0: a(mms.pop(0))
                for _ in range(per):
                    if other: a(other.pop(0))
                if kk == 1: a(mms.pop(0))
            for o in other: a(o)
        a(f"s_cbranch_scc1 {name}")
    a(f"s_lshl_b32 s68, s{sMB}, 2")
    a("s_lshl_b32 s69, s65, 1")
    a("s_add_u32 s69, s68, s69")
    a(f"v_add_u32 v9, {VROT}, v2")
    a("v_and_b32 v9, 15, v9")
    a("v_lshl_or_b32 v9, v4, 4, v9")
    a("v_lshlrev_b32 v9, 4, v9")
    a("v_bfe_u32 v10, v2, 4, 1")
    a("v_lshl_or_b32 v9, v10, 16, v9")
    a(f"s_lshr_b32 s70, s{sNB}, 2")
    a("s_lshl_b32 s70, s70, 19")
    a("s_lshl_b32 s71, s66, 17")
    a("s_add_u32 s70, s70, s71")
    a("s_lshl_b32 s71, s69, 10")
    a("s_add_u32 s70, s70, s71")
    a(f"s_add_u32 s70, s70, {WS_V}")
    a(f"s_add_u32 s71, s70, {4*65536}")
    a(f"s_cmp_lt_u32 s{sNB}, 8")
    a(f"s_cselect_b32 s86, {f32(QSCALE)}, 1.0")
    a(f"s_lshl_b32 s67, s{sNB}, 2")
    a("s_lshl_b32 s68, s66, 1")
    a("s_add_u32 s67, s67, s68")
    a("s_lshl_b32 s67, s67, 16")
    a("s_lshl_b32 s68, s69, 10")
    a("s_add_u32 s67, s67, s68")
    a(f"s_add_u32 s88, s67, {WS_QK}")
    a("s_add_u32 s89, s88, 0x10000")
    a(f"s_mul_i32 s67, s69, {144*1024}")
    a("s_lshl_b32 s68, s66, 11")
    a("s_add_u32 s67, s67, s68")
    a(f"s_add_u32 s67, s67, {WS_AF + 32*1024}")
    for i in (1, 0):
        a(f"s_lshl_b32 s68, s{sNB if i else 81}, 12")
        a("s_add_u32 s68, s67, s68")
        for n in range(4): a(f"s_add_u32 s{DT + (1-i)*4 + n}, s68, {(n>>1)*144*1024 + (n&1)*1024}")
    a(f"v_mov_b32 v10, {f32(-GK1*0.044715)}")
    a(f"v_mov_b32 v11, {f32(-GK1*0.044715)}")
    a(f"v_mov_b32 v12, {f32(-GK1)}")
    a(f"v_mov_b32 v13, {f32(-GK1)}")
    stamp(a, 2, VS)
    a("s_barrier")
    stamp(a, 3, VS)
    for l in reads(FR0, 0, 3): a(l)

    def f_qk():
        l = []
        for t in range(2):
            b = acc(t, 4)
            for hh in range(2):
                l += [f"v_mul_f32 v{b+8*hh+i}, s86, v{b+8*hh+i}" for i in range(8)]
                l += [f"v_cvt_pk_bf16_f32 v{b+8*hh+i}, v{b+8*hh+2*i}, v{b+8*hh+2*i+1}" for i in range(4)]
                l.append(f"buffer_store_dwordx4 {vr(b+8*hh)}, v3, {WSR}, s{88+hh} offen offset:{t*1024}{STS}")
        return l
    def f_v():
        l = []
        for j in range(2):
            for t in range(2):
                b = acc(t, 2*j)
                for hh in range(2):
                    l += [f"v_cvt_pk_bf16_f32 v{b+8*hh+i}, v{b+8*hh+2*i}, v{b+8*hh+2*i+1}" for i in range(4)]
                    l.append(f"buffer_store_dwordx4 {vr(b+8*hh)}, v9, {WSR}, s{70+j} offen offset:{t*1024 + hh*512}{STS}")
        return l
    def f_gelu1():
        l = []
        for t in range(2):
            for q in range(4):
                G, U, T = acc(t, 0) + 4*q, acc(t, 2) + 4*q, 64 + (q & 1) * 4
                l += [f"v_mul_f32 v{T+p}, v{G+p}, v{G+p}" for p in range(4)]
                l += [f"v_fma_f32 v{T+p}, v{T+p}, v10, v12" for p in range(4)]
                l += [f"v_mul_f32 v{T+p}, v{T+p}, v{G+p}" for p in range(4)]
                for p in range(4): l += [f"v_exp_f32 v{T+p}, v{T+p}", f"v_mul_f32 v{U+p}, v{U+p}, v{G+p}"]
                l += [f"v_add_f32 v{T+p}, 1.0, v{T+p}" for p in range(4)]
                l += [f"v_rcp_f32 v{T+p}, v{T+p}" for p in range(4)]
                l += [f"v_mul_f32 v{U+p}, v{U+p}, v{T+p}" for p in range(4)]
                o = HP + 16 + t*8 + q*2
                l += [f"v_cvt_pk_bf16_f32 v{o+p}, v{U+2*p}, v{U+2*p+1}" for p in range(2)]
        return l
    SPK = int(ENV("SPK", "4"))
    def pass2(fill, PUBS, gap):
        cost = lambda x: 8 if x.startswith(("v_exp", "v_rcp")) else 4
        X2 = ENV("X2", "")
        if "F" in X2: fill = [x for x in fill if False]
        if "S" in X2: fill = [x for x in fill if not x.startswith("buffer_store")]
        if "G" in X2: fill = fill[:52]
        FS = (FR0, FR1, 72)
        lg = Lgkm(a)
        lg.q = [(0, i) for i in range(6)] + [("junk", 0)] * 2
        def rds(m):
            fs = FS[m % 3]
            wo_ = wslot(16 + (m >> 1))[0] - LW2 + (m & 1) * 2048
            X = lambda t: f"ds_read_b128 {vr(fs+4*t)}, v{VXA + (m & 3)} offset:{t*4096}"
            W = lambda u, j: f"ds_read_b64_tr_b16 {vr(fs+8+4*u+2*j, 2)}, v{VW} offset:{wo_ + u*4096 + j*512}"
            l = [((m, i), x) for i, x in enumerate([X(0), W(0,0), W(0,1), X(1), W(1,0), W(1,1)])]
            j = 8 + (m >> 2)
            if m < 28:
                dx = (((j + 1) % NXS) - (j % NXS)) * XSLOT & 0xffffffff
                l.append((None, f"v_add_u32 v{VXA + (m & 3)}, {dx:#x}, v{VXA + (m & 3)}"))
            return l
        def put(e):
            if e[0] is None: a(e[1])
            else: lg.rd(e[0], e[1])
        nxt_store = 0
        put(rds(0)[-1])
        for e in rds(1): put(e)
        for n in range(32):
            kk, st = n & 1, 16 + (n >> 1)
            cur = FS[n % 3]
            rd = rds(n + 2) if n + 2 < 32 else []
            nst = 0
            for g, (u, t) in enumerate(((0, 0), (0, 1), (1, 0), (1, 1))):
                ct = (1, 3)[u]
                before = len(a.lines)
                lg.need(*[(n, i) for i in range(6)])
                bud = 24 - 4 * (len(a.lines) - before)
                a(f"{MF} {vr(acc(t, ct), 16)}, {vr(cur + 8 + 4*u)}, {vr(cur + 4*t)}, {vr(acc(t, ct), 16)}")
                if g == 0 and kk == 0 and st <= LASTB:
                    if st == PUBS:
                        assert not any(x.startswith("buffer_store") for x in fill)
                        a("s_waitcnt vmcnt(0)"); bud -= 4
                    if "B" not in X2: a("s_barrier"); bud -= 4
                for _ in range(2):
                    if rd and len(lg.q) < 15: put(rd.pop(0)); bud -= 4
                while n >= 1 and fill and bud >= cost(fill[0]):
                    if fill[0].startswith("buffer_store"):
                        if 4*n + g < nxt_store: break
                        nxt_store = 4*n + g + gap
                    bud -= cost(fill[0]); a(fill.pop(0))
            assert not rd
        for x in fill: a(x)
        print("pass-2 filler left over:", len(fill), file=sys.stderr)
    a(f"s_cmp_eq_u32 s{sVC}, 1")
    a("s_cbranch_scc1 L_p1loopV")
    loop("L_p1loopA", (0, 2, 4), False, 2)
    stamp(a, 4, VS)
    pass2(f_qk() + f_gelu1(), PUBS, int(ENV('GAPA', '1')))
    a("s_branch L_p2done")
    loop("L_p1loopV", (0, 2, 4), True, 2)
    stamp(a, 4, VS)
    pass2(f_v() + f_qk(), PUBC, int(ENV('GAPC', '1')))
    a.label("L_p2done")
    stamp(a, 6, VS)
    n = 0
    for t in range(2):
        g, u = acc(t, 1), acc(t, 3)
        for hh in range(2):
            T = 16 + (n & 1) * 8; n += 1
            G, U = g + 8*hh, u + 8*hh
            for p in range(4): a(f"v_pk_mul_f32 {vr(T+2*p,2)}, {vr(G+2*p,2)}, {vr(G+2*p,2)}")
            for p in range(4): a(f"v_pk_fma_f32 {vr(T+2*p,2)}, {vr(T+2*p,2)}, v[10:11], v[12:13]")
            for p in range(4): a(f"v_pk_mul_f32 {vr(T+2*p,2)}, {vr(T+2*p,2)}, {vr(G+2*p,2)}")
            for p in range(8): a(f"v_exp_f32 v{T+p}, v{T+p}")
            for p in range(4): a(f"v_pk_mul_f32 {vr(U+2*p,2)}, {vr(U+2*p,2)}, {vr(G+2*p,2)}")
            for p in range(4): a(f"v_pk_add_f32 {vr(T+2*p,2)}, {vr(T+2*p,2)}, 1.0 op_sel_hi:[1,0]")
            for p in range(8): a(f"v_rcp_f32 v{T+p}, v{T+p}")
            for p in range(4): a(f"v_pk_mul_f32 {vr(U+2*p,2)}, {vr(U+2*p,2)}, {vr(T+2*p,2)}")
            o = HP + (t*2 + hh) * 4
            for p in range(4): a(f"v_cvt_pk_bf16_f32 v{o+p}, v{U+2*p}, v{U+2*p+1}")
    stamp(a, 7, VS)

PUBC = int(ENV("PUBC", "22"))
PUBS = int(ENV("PUBS", "22"))

def p1_loader(a):
    a.label("L_loader")
    if ENV("LPRIO", "1") == "1": a("s_setprio 3")
    a(f"s_sub_u32 s65, s{sWAVE}, 4")
    a("s_lshl_b32 s66, s65, 3")
    a("v_add_u32 v8, s66, v8")
    a("v_lshrrev_b32 v5, 4, v2")
    a("s_and_b32 s66, s65, 1")
    a("s_lshl_b32 s66, s66, 2")
    a("v_add_u32 v5, s66, v5")
    a("v_xor_b32 v5, v5, v4")
    a("v_lshlrev_b32 v5, 4, v5")
    a("v_lshl_add_u32 v12, v8, 10, v5")
    a(f"s_lshl_b32 s74, s{sMB}, 17")
    a("s_lshl_b32 s75, s65, 10")
    a(f"s_lshl_b32 s90, s{sNB}, 1")
    a(f"s_add_u32 s90, s90, s{sMB}")
    if ENV("ROT", "1") == "2":
        a(f"s_lshr_b32 s91, s{sNB}, 2")
        a("s_add_u32 s90, s90, s91")
    if ENV("ROT", "1") == "0": a("s_mov_b32 s90, 0")
    if ENV("ROT", "1") == "5": a(f"s_mov_b32 s90, s{sMB}")
    if ENV("ROT", "1") == "6": a(f"s_lshl_b32 s90, s{sNB}, 1")
    if ENV("ROT", "1") == "7":
        a(f"s_lshl_b32 s90, s{sNB}, 2")
        a(f"s_add_u32 s90, s90, s{sMB}")
    if ENV("ROT", "1") in ("3", "4"):
        a(f"s_add_u32 s90, s{sNB}, s{sMB}")
        a(f"s_lshl_b32 s90, s90, {1 if ENV('ROT') == '3' else 2}")
    a("s_lshl_b32 s91, s90, 1")
    issued = []
    DNT = " nt" if ENV("DNT") else ""
    PNT = " nt" if ENV("PNT") else ""
    def dma(voff, srdn, soff, m0val, pre):
        a(f"s_add_u32 m0, s75, {m0val}")
        a(pre)
        if "D" in ENV("X2", "") and voff == 10: a("s_nop 0")
        else: a(f"buffer_load_dwordx4 v{voff}, {SR(srdn)}, s{soff} offen{DNT} lds")
    def itemsW(s):
        base, size = wslot(s)
        free = max([-1] + [p + (p >= 16) for p in range(s) if wslot(p)[0] < base + size and base < wslot(p)[0] + wslot(p)[1]])
        def f(u):
            def g():
                if u == 0:
                    a(f"s_add_u32 s92, s91, {s if s < 16 else s + 2*KROT}")
                    a("s_and_b32 s92, s92, 15")
                    if s < 16:
                        a(f"s_mul_i32 s93, s92, {32*3072}")
                        a("s_mul_i32 s92, s92, s73")
                    else: a(f"s_mul_i32 s92, s92, {32*3584}")
                if s < 16:
                    if u == 0: dma(13, S_WA, 76, base, "s_add_u32 s76, s71, s92")
                    if u == 1: dma(13, S_WB, 76, base + 4096, "s_add_u32 s76, s69, s92")
                    if u == 2: dma(11, S_WC, 76, base + 8192, "s_add_u32 s76, s70, s93")
                else:
                    dma(10, (S_G, S_U)[u], 76, base + 4096*u, "s_add_u32 s76, s70, s92")
                issued.append(("W", s))
            return g
        return [(free, f(u)) for u in range(3 if s < 16 else 2)]
    def itemsX(j):
        base = LX + (j % NXS) * XSLOT
        def f(m):
            def g():
                if m == 0:
                    a(f"s_add_u32 s99, s90, {j if j < 8 else j + KROT}")
                    a("s_and_b32 s99, s99, 7")
                    a("s_lshl_b32 s99, s99, 7")
                    a("s_add_u32 s99, s99, s74")
                dma(12, S_X, 76, base + m*4096, f"s_add_u32 s76, s99, {m*32768}")
                issued.append(("X", j))
            return g
        if 8 <= j < 8 + NXS: return []
        return [(2*(j-NXS) + 1 + (j - NXS >= 8), f(m)) for m in range(4)]
    queue = []
    for j in range(16): queue += itemsX(j) + itemsW(2*j) + itemsW(2*j+1)
    def issue(nmax, bar):
        n = 0
        while queue and n < nmax and queue[0][0] <= bar:
            queue.pop(0)[1](); n += 1
    def wait_stage(s):
        assert sum(e == ("W", s) for e in issued) == (3 if s < 16 else 2) and sum(e == ("X", s // 2) for e in issued) == (0 if 8 <= s // 2 < 8 + NXS else 4), s
        last = max(k for k, e in enumerate(issued) if e == ("W", s) or e == ("X", s // 2))
        n = len(issued) - 1 - last
        assert n <= 63
        a(f"s_waitcnt vmcnt({n})")
    def wait_tag(tag):
        n = len(issued) - 1 - max(k for k, e in enumerate(issued) if e == tag)
        assert n <= 63
        a(f"s_waitcnt vmcnt({n})")
    stamp(a, 22, VS)
    issue(4, -1)
    a("s_lshl_b32 s66, s65, 8")
    a("s_or_b32 s66, s66, s2")
    a(f"s_cselect_b32 s83, {OOB:#x}, 0")
    a(f"s_add_u32 s84, s83, {WS_TAG}")
    a("v_mov_b32 v5, 0")
    a(f"buffer_load_dword v14, v5, {WSR}, s84 offen{ST}")
    issued.append(("T", 0))
    srd(a, S_G, 12, 13, 512 * 3584)
    srd(a, S_U, 14, 15, 512 * 3584)
    srd(a, S_WC, 6, 7, 512 * 3072)
    a(f"s_cmp_eq_u32 s{sVC}, 1")
    a(f"s_cselect_b32 s{S_WA}, s6, s12")
    a(f"s_cselect_b32 s{S_WA+1}, s7, s13")
    a(f"s_cselect_b32 s{S_WA+2}, s{S_WC+2}, s{S_G+2}")
    a(f"s_mov_b32 s{S_WA+3}, 0x00020000")
    a(f"s_cselect_b32 s{S_WB}, s6, s14")
    a(f"s_cselect_b32 s{S_WB+1}, s7, s15")
    a(f"s_mov_b32 s{S_WB+2}, s{S_WA+2}")
    a(f"s_mov_b32 s{S_WB+3}, 0x00020000")
    a("s_movk_i32 s66, 3072")
    a("s_cselect_b32 s66, s66, 3584")
    a("v_mul_u32_u24 v6, 3584, v8")
    a("v_add_u32 v10, v6, v9")
    a("v_mul_u32_u24 v6, 3072, v8")
    a("v_add_u32 v11, v6, v9")
    a("v_mul_u32_u24 v6, s66, v8")
    a("v_add_u32 v13, v6, v9")
    a("s_lshl_b32 s73, s66, 5")
    a("s_lshl_b32 s67, s81, 7")
    a(f"s_lshr_b32 s68, s{sNB}, 2")
    a("s_lshl_b32 s68, s68, 8")
    a("s_add_u32 s68, s68, 2048")
    a("s_add_u32 s69, s68, 128")
    a(f"s_cmp_eq_u32 s{sVC}, 1")
    a("s_cselect_b32 s71, s68, s67")
    a("s_cselect_b32 s69, s69, s67")
    a("s_mov_b32 s94, s71")
    a("s_mov_b32 s95, s69")
    a(f"s_lshl_b32 s70, s{sNB}, 7")
    PFK = ENV("PF", "0") == "4"
    if PFK:
        issue(3, -1)
        a("s_lshr_b32 s66, s2, 1")
        a("s_and_b32 s67, s2, 1")
        a("s_mul_i32 s68, s66, 3072")
        a("s_mul_i32 s76, s67, 1536")
        a("s_add_u32 s68, s68, s76")
        a("s_mul_i32 s66, s66, 3584")
        a("s_mul_i32 s67, s67, 768")
        a("s_add_u32 s66, s66, s67")
        a("s_add_u32 s66, s66, 2048")
        a("s_lshl_b32 s67, s2, 13")
        a("s_cmp_eq_u32 s65, 1")
        a("s_cselect_b32 s66, s68, s66")
        a("s_cselect_b32 s76, 11, 5")
        a(f"s_mov_b32 s77, {128*3584}")
        a(f"s_cselect_b32 s77, {128*3072}, s77")
        a("s_cselect_b32 s94, s6, s12")
        a("s_cselect_b32 s95, s7, s13")
        a("s_cmp_eq_u32 s65, 3")
        a("s_cselect_b32 s94, s14, s94")
        a("s_cselect_b32 s95, s15, s95")
        a("v_min_u32 v28, s76, v2")
        a("v_lshl_add_u32 v28, v28, 7, s66")
        a("v_bfe_u32 v29, v2, 1, 3")
        a("v_lshl_add_u32 v29, v29, 10, s67")
        a("v_and_b32 v27, 1, v2")
        a("v_lshl_add_u32 v29, v27, 7, v29")
        a("s_cmp_eq_u32 s65, 0")
        a("s_cselect_b32 s94, s4, s94")
        a("s_cselect_b32 s95, s5, s95")
        a("s_cselect_b32 s77, 256, s77")
        a("s_cselect_b64 vcc, -1, 0")
        a("v_cndmask_b32 v28, v28, v29, vcc")
        for n in [int(x) for x in ENV("PFPOS", "0,3,7,3").split(",")]:
            issue(n, -1)
            a("s_mov_b64 exec, 0xffff")
            a("global_load_dword v30, v28, s[94:95]")
            a("s_mov_b64 exec, -1")
            a("v_add_u32 v28, s77, v28")
            issued.append(("P", 0))
    else:
        issue(int(ENV("FIRST", "10")), -1)
    def prefetch(kinds):
        a("s_mov_b32 s94, s4"); a("s_mov_b32 s95, s5")
        for r in (66, 67, 68, 76): a(f"s_mov_b32 s{r}, 0")
        a("s_mov_b32 s77, 0")
        for lw, k in enumerate(kinds):
            if k is None: continue
            p, per, first, n, T, J = k
            a(f"s_cmp_eq_u32 s65, {lw}")
            a(f"s_cselect_b32 s94, s{p}, s94")
            a(f"s_cselect_b32 s95, s{p+1}, s95")
            a(f"s_cselect_b32 s66, {per}, s66")
            a(f"s_cselect_b32 s67, {first}, s67")
            a(f"s_cselect_b32 s68, {n-1}, s68")
            a(f"s_cselect_b32 s76, {T}, s76")
            a(f"s_cselect_b32 s77, {J}, s77")
        a("s_mul_i32 s66, s66, s2")
        a("s_add_u32 s66, s66, s67")
        a("v_min_u32 v28, s68, v2")
        a("v_mov_b32 v29, s77")
        a("v_cmp_le_u32 vcc, s76, v28")
        a("v_lshl_add_u32 v28, v28, 7, s66")
        a("v_cndmask_b32 v29, 0, v29, vcc")
        a("v_add_u32 v28, v28, v29")
        a("global_load_dword v30, v28, s[94:95]")
        issued.append(("P", 0))
    PF = ENV("PF", "0") in ("1", "3")
    PFX = ENV("PF", "0") in ("2", "3")
    def prefetch_x1():
        a("s_lshr_b32 s66, s2, 3")
        a("s_and_b32 s67, s2, 1")
        a("s_lshl_b32 s67, s67, 20")
        a("s_lshl_b32 s68, s66, 15")
        a("s_add_u32 s67, s67, s68")
        a("s_lshl_b32 s68, s65, 13")
        a("s_add_u32 s67, s67, s68")
        a("v_lshlrev_b32 v28, 7, v2")
        a("s_and_b32 s66, s66, 7")
        a("s_lshl_b32 s66, s66, 6")
        a("v_add_u32 v27, s66, v2")
        a("s_lshr_b32 s68, s73, 5")
        a("v_mul_u32_u24 v29, s68, v27")
        a("v_mul_u32_u24 v26, 3072, v27")
        a("s_cmp_eq_u32 s65, 0")
        a(f"s_cselect_b32 s66, s94, {OOB:#x}")
        a(f"buffer_load_dword v30, v29, {SR(S_WA)}, s66 offen{PNT}")
        a("s_cmp_eq_u32 s65, 1")
        a(f"s_cselect_b32 s66, s95, {OOB:#x}")
        a(f"buffer_load_dword v30, v29, {SR(S_WB)}, s66 offen{PNT}")
        a(f"s_lshl_b32 s66, s{sNB}, 7")
        a("s_cmp_eq_u32 s65, 2")
        a(f"s_cselect_b32 s66, s66, {OOB:#x}")
        a(f"buffer_load_dword v30, v26, {SR(S_WC)}, s66 offen{PNT}")
        a(f"buffer_load_dword v30, v28, {SR(S_X)}, s67 offen{PNT}")
        issued.extend([("P", 0)] * 4)
    def prefetch_x2():
        a("v_mul_u32_u24 v29, 3584, v27")
        a(f"s_lshl_b32 s67, s{sNB}, 7")
        a("s_cmp_eq_u32 s65, 1")
        a(f"s_cselect_b32 s66, s67, {OOB:#x}")
        a(f"buffer_load_dword v30, v29, {SR(S_G)}, s66 offen{PNT}")
        a("s_cmp_eq_u32 s65, 2")
        a(f"s_cselect_b32 s66, s67, {OOB:#x}")
        a(f"buffer_load_dword v30, v29, {SR(S_U)}, s66 offen{PNT}")
        issued.extend([("P", 0)] * 2)
    if PFX and not PF: prefetch_x1()
    if PF: prefetch([(4, 8192, 0, 64, 0, 0), (6, 6144, 0, 48, 0, 0), (12, 7168, 2048, 24, 12, 2048), (14, 7168, 2048, 24, 12, 2048)])
    srd(a, S_RO, 8, 9, 512 * 1024)
    a("v_and_b32 v15, 7, v8")
    a("v_lshl_add_u32 v15, v15, 10, v9")
    a("s_lshl_b32 s78, s65, 11")
    a(f"s_add_u32 s78, s78, {LRD}")
    a("s_lshr_b32 s66, s2, 3")
    a("s_and_b32 s67, s2, 7")
    a("s_lshl_b32 s66, s66, 14")
    a("s_lshl_b32 s67, s67, 7")
    a("s_add_u32 s66, s66, s67")
    a("s_and_b32 s67, s65, 1")
    a("s_lshl_b32 s68, s67, 13")
    a("s_lshl_b32 s67, s67, 10")
    a(f"s_add_u32 m0, s67, {LRO}")
    a("s_add_u32 s66, s66, s68")
    a(f"buffer_load_dwordx4 v15, {SR(S_RO)}, s66 offen{PNT} lds")
    issued.append(("P", 1))
    issue(int(ENV("BURST", "0")), -1)
    a("v_bfe_u32 v18, v2, 2, 2")
    a("v_and_b32 v31, 3, v2")
    a("v_bfe_u32 v19, v2, 4, 1")
    a("v_lshlrev_b32 v31, 3, v31")
    a("v_lshl_or_b32 v31, v19, 5, v31")
    a("v_lshrrev_b32 v19, 1, v18")
    a("v_lshl_or_b32 v31, v19, 6, v31")
    a("v_lshl_or_b32 v31, v18, 7, v31")
    a("v_lshrrev_b32 v19, 5, v2")
    a("v_lshl_or_b32 v31, v19, 9, v31")
    a("v_add_u32 v18, s78, v31")
    a("v_xor_b32 v19, 64, v18")
    a("s_cmp_eq_u32 s65, 0")
    a(f"s_cselect_b32 s82, s82, {OOB:#x}")
    a(f"s_cselect_b32 s85, 0, {OOB:#x}")
    a("v_mov_b32 v6, 1")
    a("v_lshlrev_b32 v4, 7, v2")
    for i in range(4): a(f"s_add_u32 s{86+i}, s85, {WS_F1 + i*8192}")
    stamp(a, 2, VS)
    wait_stage(0)
    stamp(a, 3, VS)
    a("s_barrier")
    a("v_add_u32 v14, 1, v14")
    a("v_max_u32 v14, 1, v14")
    one_lane(a, f"buffer_store_dword v14, v5, {WSR}, s84 offen{ST}")
    issued.append(("T", 1))
    def ld1():
        for i in range(4): a(f"buffer_load_dwordx2 {vr(20+2*i,2)}, v4, {WSR}, s{86+i} offen{ST}")
    PER1, PER2, PSW = [int(x) for x in ENV("PER", "6,4,12").split(",")]
    issue(int(ENV("PER0", "6")), -1)
    def cmp1():
        for i in range(4):
            a(f"v_xor_b32 v{20+2*i}, v{20+2*i}, v16")
            a(f"v_xor_b32 v{21+2*i}, v{21+2*i}, v17")
        a("v_or3_b32 v20, v20, v21, v22")
        a("v_or3_b32 v23, v23, v24, v25")
        a("v_or3_b32 v20, v20, v26, v27")
        a("v_or_b32 v20, v20, v23")
        a("v_cmp_ne_u32 vcc, 0, v20")
    def ltable(t, regs):
        for i in range(8): a(f"v_mov_b32 v{HP+8+i}, -1")
        r = regs[2]
        a(f"s_lshl_b32 s{r}, s{sQB}, 3")
        a(f"s_lshl_b32 s{t}, s65, 1")
        a(f"s_add_u32 s{r}, s{r}, s{t}")
        a(f"s_mul_i32 s{r}, s{r}, {144*1024}")
        a(f"s_lshl_b32 s{t}, s{sHEAD}, 10")
        a(f"s_add_u32 s{r}, s{r}, s{t}")
        a(f"s_add_u32 s{r}, s{r}, {WS_AF}")
        a(f"s_add_u32 s{regs[3]}, s{r}, {144*1024}")
    a(f"s_lshr_b32 s66, s{sHEAD}, 2")
    a("s_lshl_b32 s67, s66, 11")
    a(f"s_lshl_b32 s68, s{sQB}, 8")
    a("s_add_u32 s68, s68, s67")
    a(f"s_add_u32 s67, s67, {8*2048}")
    a(f"s_lshr_b32 s66, s{sHEAD}, 3")
    a("s_lshl_b32 s66, s66, 13")
    a(f"s_add_u32 s66, s66, {2*2048}")
    a("v_add_u32 v70, s67, v4")
    a("v_add_u32 v71, s66, v4")
    a("v_and_b32 v72, 1, v2")
    a("v_lshl_add_u32 v72, v72, 7, s68")
    a("v_cmp_gt_u32 vcc, 32, v2")
    a("v_cndmask_b32 v71, v72, v71, vcc")
    a("v_cmp_gt_u32 vcc, 16, v2")
    a("v_cndmask_b32 v70, v71, v70, vcc")
    def lda(): a(f"buffer_load_dwordx2 v[72:73], v70, {WSR}, s86 offen{ST}")
    def cmpa():
        a("v_xor_b32 v72, v72, v16")
        a("v_xor_b32 v73, v73, v17")
        a("v_or_b32 v72, v72, v73")
        a("v_cmp_ne_u32 vcc, 0, v72" if "1" not in ENV("WI", "") else "v_cmp_ne_u32 vcc, v72, v72")
    a(f"v_mov_b32 v7, {LCNT}")
    SIDE1, SIDE2 = [int(x) for x in ENV("SIDE", "16,25").split(",")]
    def side_out():
        wait_tag(("S", 0))
        for nl in range(2):
            for j in range(2): a(f"ds_read_b64_tr_b16 {vr(HP+4*nl+2*j,2)}, v{18+nl} offset:{j*1024}")
        a("v_mov_b32 v64, 0")
        a("v_mov_b32 v65, 0")
        for i in range(4):
            a(f"v_dot2_f32_bf16 v64, v{48+i}, v{56+i}, v64")
            a(f"v_dot2_f32_bf16 v65, v{52+i}, v{56+i}, v65")
        a("v_cmp_eq_u32 vcc, 0, v2")
        a("s_waitcnt lgkmcnt(0)")
        for mod in ("quad_perm:[1,0,3,2]", "quad_perm:[2,3,0,1]", "row_half_mirror", "row_mirror"):
            for r in (64, 65): a(f"v_add_f32_dpp v{r}, v{r}, v{r} {mod} row_mask:0xf bank_mask:0xf")
        for r, sb in ((64, 66), (65, 56)):
            for q in range(4): a(f"v_readlane_b32 s{sb+q}, v{r}, {16*q}")
        a("v_mov_b32 v66, s66")
        a("v_mov_b32 v67, s56")
        for q in range(1, 4):
            a(f"v_add_f32 v66, s{66+q}, v66")
            a(f"v_add_f32 v67, s{56+q}, v67")
        a("v_cndmask_b32 v66, v67, v66, vcc")
        a(f"v_mul_f32 v66, {f32(-LOG2E)}, v66")
        a("v_exp_f32 v66, v66")
        a("v_lshlrev_b32 v68, 2, v2")
        a("v_add_f32 v66, 1.0, v66")
        a("v_rcp_f32 v66, v66")
        a("s_lshl_b32 s71, s71, 2")
        a(f"s_add_u32 s71, s71, {WS_G}")
        one_lane(a, f"buffer_store_dword v66, v68, {WSR}, s71 offen{ST}", 3)
        issued.append(("S", 1))
    for s in range(LASTB + 1):
        E0 = int(ENV("EARLY", "-100"))
        if s in (4, 10, 16, 24) and E0 < 0: stamp(a, {4: 4, 10: 5, 16: 6, 24: 7}[s], VS)
        if 0 <= s - E0 < 6: stamp(a, [4, 7, 24, 27, 21, 30][s - E0], VS)
        if s == LASTB:
            assert not queue
            wait_stage(31)
        else: wait_stage(s + 1)
        if 0 <= s - E0 < 6: stamp(a, [5, 8, 25, 28, 22, 31][s - E0], VS)
        if s < 16 or "B" not in ENV("X2", ""): a("s_barrier")
        if 0 <= s - E0 < 5: stamp(a, [6, 9, 26, 29, 23][s - E0], VS)
        issue(PER1 if s < PSW else PER2, s)
        if s == 3:
            wait_tag(("T", 1))
            one_lane(a, f"buffer_store_dword v14, v5, {SR(S_DBG)}, s83 offen{ST}")
            issued.append(("T", 2))
        if s == int(ENV("PFB", "5")) and (PF or PFK):
            prefetch([(16, 7168, 0, 56, 0, 0), None, (12, 7168, 0, 32, 16, 1536), (14, 7168, 0, 32, 16, 1536)])
        if s == int(ENV("PFB", "5")) and PFX: prefetch_x2()
        if s == int(ENV("PF2", "-1")):
            a("s_lshr_b32 s66, s2, 3")
            a("s_and_b32 s66, s66, 7")
            a("s_lshl_b32 s66, s66, 6")
            a("s_lshr_b32 s67, s65, 1")
            a("s_lshl_b32 s67, s67, 5")
            a("s_add_u32 s66, s66, s67")
            a("v_and_b32 v27, 31, v2")
            a("v_add_u32 v27, s66, v27")
            a("v_mul_u32_u24 v29, 3584, v27")
            a("v_add_u32 v29, s70, v29")
            a("s_bitcmp1_b32 s65, 0")
            a("s_cselect_b32 s94, s14, s12")
            a("s_cselect_b32 s95, s15, s13")
            a("s_mov_b64 exec, 0xffffffff")
            a("global_load_dword v30, v29, s[94:95]")
            a("s_mov_b64 exec, -1")
            a(f"s_mul_i32 s66, s{sHEAD}, 3")
            a("s_add_u32 s66, s66, s65")
            a(f"s_add_u32 s67, s{sHEAD}, 96")
            a("s_cmp_eq_u32 s65, 3")
            a("s_cselect_b32 s66, s67, s66")
            a("s_min_u32 s66, s66, 111")
            a("s_lshl_b32 s66, s66, 14")
            a(f"s_lshl_b32 s67, s{sQB}, 7")
            a("s_add_u32 s66, s66, s67")
            a("v_lshl_add_u32 v29, v2, 10, s66")
            a("s_mov_b64 exec, 0xffff")
            a("global_load_dword v30, v29, s[16:17]")
            a("s_mov_b64 exec, -1")
            issued.extend([("P", 0)] * 2)
        if s == 9:
            a("s_cmp_lg_u32 s65, 0")
            a("s_cbranch_scc1 L_nowo2")
            for nl in range(2):
                for j in range(2): a(f"ds_read_b64_tr_b16 {vr(36+4*nl+2*j,2)}, v{18+nl} offset:{LRO - LRD + j*1024}")
            a("s_lshr_b32 s66, s2, 3")
            a("s_and_b32 s67, s2, 7")
            a(f"s_mul_i32 s67, s67, {2*144*1024}")
            a("s_lshl_b32 s66, s66, 10")
            a("s_add_u32 s66, s66, s67")
            a(f"s_add_u32 s66, s66, {WS_WF}")
            a(f"s_add_u32 s67, s66, {144*1024}")
            a(f"s_lshl_b32 s68, s{sMB}, 11")
            a(f"s_lshl_b32 s76, s{sNB}, 7")
            a("s_add_u32 s68, s68, s76")
            a(f"s_add_u32 s68, s68, {WS_F2}")
            a(f"s_lshl_b32 s76, s{sQB}, 12")
            a(f"s_lshl_b32 s77, s{sHEAD}, 7")
            a("s_add_u32 s76, s76, s77")
            a(f"s_add_u32 s76, s76, {WS_F3}")
            zero(a, 44, 4)
            a("s_waitcnt lgkmcnt(0)")
            a(f"buffer_store_dwordx4 v[36:39], v3, {WSR}, s66 offen{STS}")
            a(f"buffer_store_dwordx4 v[40:43], v3, {WSR}, s67 offen{STS}")
            a("s_mov_b64 exec, 1")
            a(f"buffer_store_dwordx4 v[44:47], v3, {WSR}, s68 offen{STS}")
            a(f"buffer_store_dword v44, v3, {WSR}, s76 offen{ST}")
            a("s_mov_b64 exec, -1")
            a.label("L_nowo2")
        if s == SIDE1:
            srd(a, S_RD, 16, 17, 1792 * 1024)
            srd(a, S_GW, 18, 19, 1024)
            a(f"s_mul_i32 s66, s{sHEAD}, 3")
            a("s_add_u32 s66, s66, s65")
            a(f"s_add_u32 s67, s{sHEAD}, 96")
            a("s_cmp_eq_u32 s65, 3")
            a("s_cselect_b32 s66, s67, s66")
            a("s_lshl_b32 s69, s66, 14")
            a(f"s_lshl_b32 s68, s{sQB}, 7")
            a("s_mov_b32 m0, s78")
            a("s_add_u32 s69, s69, s68")
            a(f"buffer_load_dwordx4 v15, {SR(S_RD)}, s69 offen{PNT} lds")
            a("s_add_u32 m0, s78, 1024")
            a("s_add_u32 s69, s69, 8192")
            a(f"buffer_load_dwordx4 v15, {SR(S_RD)}, s69 offen{PNT} lds")
            a(f"s_mul_i32 s79, s{sQB}, {2*144*1024}")
            a("s_lshl_b32 s67, s66, 10")
            a("s_add_u32 s79, s79, s67")
            a(f"s_add_u32 s79, s79, {WS_WF + 32*1024}")
            a("s_cmp_lt_u32 s66, 112")
            a(f"s_cselect_b32 s79, s79, {OOB:#x}")
            a(f"s_add_u32 s80, s79, {144*1024}")
            a(f"s_lshl_b32 s71, s{sMB}, 7")
            a(f"s_lshl_b32 s67, s{sNB}, 3")
            a("s_add_u32 s71, s71, s67")
            a("s_lshl_b32 s67, s65, 1")
            a("s_add_u32 s71, s71, s67")
            a("s_lshl_b32 s67, s71, 10")
            a(f"buffer_load_dwordx4 v[48:51], v3, {SR(S_X)}, s67 offen")
            a(f"buffer_load_dwordx4 v[52:55], v3, {SR(S_X)}, s67 offen offset:1024")
            a(f"buffer_load_dwordx4 v[56:59], v3, {SR(S_GW)}, 0 offen")
            issued.extend([("S", 0)] * 5)
        if s == SIDE2:
            side_out()
            if LEARLY:
                ltable(68, (79, 80, 66, 67))
                for n, r in enumerate((79, 80, 66, 67)): a(f"buffer_store_dwordx4 {vr(HP+4*n)}, v3, {WSR}, s{r} offen{STS}")
                issued.extend([("S", 1)] * 4)
        if s == 14:
            a(f"buffer_load_dword v16, v5, {SR(S_DBG)}, s85 offen{ST}")
            issued.append(("T", 3))
        if s == min(PUBS, PUBC) - 1:
            a("s_cmp_lg_u32 s65, 0")
            a("s_cbranch_scc1 L_tagdone")
            wait_tag(("T", 3))
            a("v_cmp_eq_u32 vcc, 0, v16")
            a("s_cbranch_vccz L_pt_ok")
            poll(a, "L_pt", lambda: a(f"buffer_load_dword v16, v5, {SR(S_DBG)}, 0 offen{ST}"), lambda: a("v_cmp_eq_u32 vcc, 0, v16"))
            a("v_not_b32 v17, v16")
            a.label("L_tagdone")
        for typ, at in ((0, PUBS), (1, PUBC)):
            if s == at:
                a(f"s_lshl_b32 s66, s65, 1")
                a(f"s_add_u32 s66, s66, s{sVC}")
                a(f"s_cmp_lg_u32 s66, {typ}")
                a(f"s_cbranch_scc1 L_f1done{typ}")
                one_lane(a, f"buffer_store_dwordx2 v[16:17], v5, {WSR}, s82 offen{ST}")
                a.label(f"L_f1done{typ}")
        if s == LASTB - 1:
            lda(); issued.append(("F", 0))
    a("s_cmp_ge_u32 s65, 2")
    a("s_cbranch_scc1 L_nocs")
    const_setup(a, 9, 32, 8)
    const_write(a, 9, 32)
    a.label("L_nocs")
    if E0 < 0: stamp(a, 8, VS)
    a("s_cmp_lg_u32 s65, 0")
    a("s_cbranch_scc1 L_wl")
    a("s_waitcnt vmcnt(0)")
    cmpa()
    a("s_cbranch_vccz L_ps1_ok")
    poll(a, "L_ps1", lda, cmpa)
    a("ds_write_b32 v7, v6")
    a("s_branch L_wl_ok")
    a.label("L_wl")
    a(f"s_mov_b32 s98, {SPIN*8}")
    a.label("L_wl2")
    a("ds_read_b32 v8, v7")
    a("s_waitcnt lgkmcnt(0)")
    a("v_cmp_ne_u32 vcc, 1, v8")
    a("s_cbranch_vccz L_wl_ok")
    a("s_sleep 1")
    a("s_sub_u32 s98, s98, 1")
    a("s_cmp_lg_u32 s98, 0")
    a("s_cbranch_scc1 L_wl2")
    a.label("L_wl_ok")
    if E0 < 0: stamp(a, 9, VS)
    a(f"s_lshl_b32 s56, s{sHEAD}, 16")
    a(f"s_lshl_b32 s67, s{sQB}, 13")
    a("s_lshl_b32 s57, s65, 11")
    a("s_add_u32 s59, s67, s57")
    a("s_add_u32 s67, s59, s56")
    a(f"s_add_u32 m0, s57, {LQI}")
    a(f"s_add_u32 s67, s67, {WS_QK}")
    for i in range(2): a(f"buffer_load_dwordx4 v3, {WSR}, s67 offen offset:{i*1024}{ST} lds")
    a(f"s_mul_i32 s58, s65, {2*VST}")
    kv8(a, 0)
    a(f"s_mov_b32 s{DT}, s79")
    a(f"s_mov_b32 s{DT+1}, s80")
    ltable(68, (DT, DT+1, DT+2, DT+3))
    a(f"v_mov_b32 v{WO}, v16")
    a(f"v_mov_b32 v{WO+1}, v17")
    a("s_branch L_attn")

def kv8(a, p0):
    a(f"s_add_u32 s94, s59, {p0*1024}")
    a("s_and_b32 s94, s94, 0xffff")
    a("s_add_u32 s94, s94, s56")
    a(f"s_add_u32 m0, s57, {LK + p0*1024}")
    a(f"s_add_u32 s67, s94, {WS_QK + 32*65536}")
    for i in range(2): a(f"buffer_load_dwordx4 v3, {WSR}, s67 offen offset:{i*1024}{ST} lds")
    a(f"s_add_u32 s67, s94, {WS_V}")
    for i in range(2):
        a(f"s_add_u32 m0, s58, {LV + (p0+i)*VST - i*1024}")
        a(f"buffer_load_dwordx4 v3, {WSR}, s67 offen offset:{i*1024}{ST} lds")

LEARLY = False
def const_setup(a, va, vd, t):
    a(f"v_and_b32 v{t}, 255, v0")
    a(f"v_lshrrev_b32 v{va}, 2, v{t}")
    a(f"v_mul_u32_u24 v{va}, {VST}, v{va}")
    a(f"v_and_b32 v{t}, 3, v{t}")
    a(f"v_mul_u32_u24 v{t}, v{t}, v{t}")
    a(f"v_min_u32 v{t}, 4, v{t}")
    a(f"v_lshl_add_u32 v{va}, v{t}, 4, v{va}")
    a(f"v_add_u32 v{va}, {LV + 1024}, v{va}")
    a(f"v_mov_b32 v{vd}, 0x3f803f80")
    if ONE_ROW:
        a(f"v_cmp_eq_u32 vcc, 0, v{t}")
        a(f"v_cndmask_b32 v{vd}, 0, v{vd}, vcc")
    a(f"v_mov_b32 v{vd+1}, v{vd}")
def const_write(a, va, vd):
    a(f"ds_write_b64 v{va}, {vr(vd,2)}")
    a(f"ds_write_b64 v{va}, {vr(vd,2)} offset:8")

def attn(a):
    a.label("L_attn")
    a(f"s_and_b32 s65, s{sWAVE}, 3")
    a(f"s_lshr_b32 s66, s{sWAVE}, 2")
    a("s_lshl_b32 s67, s66, 10")
    a(f"v_add_u32 v{VK}, s67, v3")
    a(f"v_add_u32 v8, {VROT}, v2")
    a("v_and_b32 v8, 15, v8")
    a("v_lshrrev_b32 v9, 5, v2")
    a("v_lshl_or_b32 v8, v9, 4, v8")
    a("v_lshlrev_b32 v8, 4, v8")
    a("v_add_u32 v9, 512, v8")
    a("v_and_b32 v10, 31, v2")
    a("v_subrev_u32 v11, 20, v10")
    a("v_cmp_gt_u32 vcc, 8, v11")
    a("v_mov_b32 v11, 1040")
    a("v_mov_b32 v12, 1088")
    a("v_cndmask_b32 v11, v11, v12, vcc")
    a("v_cmp_eq_u32 vcc, 16, v10")
    a("v_mov_b32 v12, 1024")
    a("v_cndmask_b32 v11, v11, v12, vcc")
    a("v_cmp_gt_u32 vcc, 16, v10")
    a("v_cndmask_b32 v8, v11, v8, vcc")
    a("v_cndmask_b32 v9, v11, v9, vcc")
    a(f"s_mul_i32 s67, s66, {VST}")
    a(f"s_add_u32 s67, s67, {LV}")
    a(f"v_add_u32 v{VV0}, s67, v8")
    a(f"v_add_u32 v{VV1}, s67, v9")
    a("s_lshl_b32 s67, s65, 11")
    a(f"s_add_u32 s67, s67, {LQI}")
    a("v_add_u32 v20, s67, v3")
    zero(a, OA, 32); zero(a, V1, 4); zero(a, GACC, 32)
    T0 = GFR + 36
    a(f"s_lshl_b32 s73, s{sMB}, 11")
    a(f"s_lshl_b32 s74, s{sNB}, 7")
    a("s_add_u32 s73, s73, s74")
    a(f"s_add_u32 s73, s73, {WS_F2}")
    a(f"s_lshl_b32 s74, s{sQB}, 12")
    a(f"s_lshl_b32 s75, s{sHEAD}, 7")
    a("s_add_u32 s74, s74, s75")
    a(f"s_add_u32 s74, s74, {WS_F3}")
    a(f"v_mov_b32 v{T0+2}, s73")
    a(f"v_writelane_b32 v{T0+2}, s74, 1")
    a(f"v_mov_b32 v{T0+3}, 1")
    a(f"v_mov_b32 v{T0+4}, {LCNT+4}")
    g = T0 + 5
    a(f"v_and_b32 v{g+2}, 15, v2")
    a(f"v_lshlrev_b32 v{g+2}, 7, v{g+2}")
    a(f"s_lshr_b32 s74, s{sHEAD}, 1")
    a("s_lshl_b32 s74, s74, 11")
    a(f"s_add_u32 s74, s74, {WS_F2}")
    a(f"s_lshl_b32 s88, s{sQB}, 12")
    a(f"s_lshr_b32 s89, s{sHEAD}, 2")
    a("s_lshl_b32 s89, s89, 12")
    a("s_sub_u32 s89, s89, 4096")
    a(f"v_mov_b32 v{g}, s88")
    a(f"v_mov_b32 v{g+1}, s89")
    a("v_cmp_gt_u32 vcc, 32, v2")
    a(f"v_cndmask_b32 v{g}, v{g+1}, v{g}, vcc")
    a(f"v_lshl_add_u32 v{g+3}, v2, 7, v{g}")
    a(f"s_mov_b32 s88, {WS_F3}")
    a(f"s_and_b32 s68, s{sWAVE}, 1")
    a(f"s_lshr_b32 s69, s{sWAVE}, 1")
    a(f"s_lshl_b32 s84, s{sHEAD}, 1")
    a("s_add_u32 s84, s84, s68")
    a(f"s_mul_i32 s85, s84, {144*1024}")
    a(f"s_add_u32 s85, s85, {WS_AF}")
    a(f"s_mul_i32 s86, s{sQB}, {2*144*1024}")
    a(f"s_add_u32 s86, s86, {WS_WF}")
    a(f"s_mul_i32 s75, s69, {28*1024}")
    a(f"s_add_u32 s75, s75, {32*1024}")
    a("s_add_u32 s76, s85, s75")
    a("s_add_u32 s77, s86, s75")
    a(f"s_add_u32 s78, s77, {144*1024}")
    a("s_lshl_b32 s75, s69, 13")
    a("s_add_u32 s85, s85, s75")
    a("s_add_u32 s86, s86, s75")
    a(f"v_mov_b32 v{VG}, v3")
    a("s_movk_i32 s87, 4096")
    a(f"s_lshl_b32 s90, s{sHEAD}, 16")
    a(f"s_lshl_b32 s91, s{sWAVE}, 10")
    a(f"s_mul_i32 s92, s{sWAVE}, {VST}")
    a(f"s_lshl_b32 s93, s{sQB}, 13")
    a("s_add_u32 s93, s93, s91")
    const_setup(a, T0+9, T0+10, T0)
    a(f"v_lshlrev_b32 v{WO+2}, 7, v2")
    a(f"s_cmp_lt_u32 s{sWAVE}, 4")
    a("s_cbranch_scc1 L_x1")
    for p0 in (8, 16, 24): kv8(a, p0)
    a("s_waitcnt vmcnt(8)")
    a.label("L_x1")
    a("s_waitcnt lgkmcnt(0)")
    a("s_setprio 3")
    a("s_barrier")
    stamp(a, 10, VS)
    a(f"ds_read_b128 {vr(QA)}, v20")
    a(f"ds_read_b128 {vr(QB)}, v20 offset:1024")
    a(f"ds_read_b128 {vr(V0B)}, v3")
    a(f"ds_read_b128 {vr(KF)}, v{VK}")
    a(f"ds_read_b128 {vr(V0A)}, v{VV0}")
    a(f"s_cmp_lt_u32 s{sWAVE}, 6")
    a("s_cbranch_scc1 L_nocs2")
    const_write(a, T0+9, T0+10)
    a.label("L_nocs2")
    def kvops(groups):
        ops = []
        for p0 in groups:
            ops.append([f"s_add_u32 s94, s93, {p0*1024}", "s_and_b32 s94, s94, 0xffff", "s_add_u32 s94, s94, s90",
                        f"s_add_u32 m0, s91, {LK + p0*1024}", f"s_add_u32 s67, s94, {WS_QK + 32*65536}",
                        f"buffer_load_dwordx4 v3, {WSR}, s67 offen{ST} lds"])
            ops.append([f"s_add_u32 m0, s92, {LV + p0*VST}", f"s_add_u32 s67, s94, {WS_V}",
                        f"buffer_load_dwordx4 v3, {WSR}, s67 offen{ST} lds"])
        return ops
    def burst(young):
        if "H" in ENV("WI", ""): return
        t = "y" if young else "o"
        a(f"s_cmp_{'lt' if young else 'ge'}_u32 s{sWAVE}, 4")
        a(f"s_cbranch_scc1 L_st4{t}")
        for n in range(4): a(f"buffer_store_dwordx4 {vr(HP+4*n)}, v3, {WSR}, s{DT+n} offen{STS}")
        if not young:
            a(f"s_cmp_lg_u32 s{sVC}, 0")
            a(f"s_cbranch_scc1 L_st4{t}")
            for n in range(4, 8): a(f"buffer_store_dwordx4 {vr(HP+4*n)}, v3, {WSR}, s{DT+n} offen{STS}")
        a.label(f"L_st4{t}")
    BURSTK = int(ENV("BURSTK", "2"))
    burst(False)
    if BURSTK < 0: burst(True)
    stamp(a, 21, VS) if not ENV("EARLY") else None
    a("s_waitcnt lgkmcnt(0)")
    a(f"{MF} {vr(SA,16)}, {vr(V0B)}, {vr(QA)}, 0")
    a(f"{MF} {vr(SB,16)}, {vr(V0B)}, {vr(QB)}, 0")
    rowmax(a, SA, T0)
    rowmax(a, SB, T0, acc=True)
    halfmax(a, T0, T0 + 1)
    for i in range(16): a(f"v_sub_f32 v{CC+i}, 0, v{T0}")
    a("s_waitcnt lgkmcnt(0)")
    a(f"{MF} {vr(SA,16)}, {vr(KF)}, {vr(QA)}, {vr(CC,16)}")
    zero(a, SB + 8, 4)
    a("s_nop 9")

    TV = ENV("TV", "0")
    def tile(n, which, extra, extra0=lambda: None, late=lambda: None):
        S, T, O, OT, QT = (SA, SB, OA, OB, QB) if which == 0 else (SB, SA, OB, OA, QA)
        v0 = V0A if n % 2 == 0 else V0B
        v0n = V0B if n % 2 == 0 else V0A
        e = lambda i: a(f"v_exp_f32 v{S+i}, v{S+i}")
        c = lambda i: a(f"v_cvt_pk_bf16_f32 v{S + (i>>2)*8 + (i&3)}, v{S+2*i}, v{S+2*i+1}")
        pv2 = lambda: a(f"{MF} {vr(OT,16)}, {vr(V1)}, {vr(T+8)}, {vr(OT,16)}")
        qk = lambda: a(f"{MF} {vr(T,16)}, {vr(KF)}, {vr(QT)}, {vr(CC,16)}")
        pv1 = lambda: a(f"{MF} {vr(O,16)}, {vr(v0)}, {vr(S)}, {vr(O,16)}")
        def rdv():
            if which == 0:
                a(f"ds_read_b128 {vr(V1)}, v{VV1} offset:{2*n*VST}")
                a(f"ds_read_b128 {vr(v0n)}, v{VV0} offset:{2*(n+1)*VST}")
        def rdk():
            if which == 0: a(f"ds_read_b128 {vr(KF)}, v{VK} offset:{2*(n+1)*1024}")
        if TV == "0":
            e(0); e(1)
            if which == 1: a("s_waitcnt lgkmcnt(0)")
            pv2(); rdv()
            e(2); e(3); e(4); e(5)
            qk(); rdk()
            e(6); e(7); e(8)
            extra0()
            for i in range(4): c(i)
            e(9); e(10)
            pv1()
            e(11); e(12); e(13); e(14)
            extra()
            e(15)
            for i in range(4, 8): c(i)
            late()
        elif TV == "1":
            e(0); e(1)
            if which == 1: a("s_waitcnt lgkmcnt(0)")
            pv2(); rdv()
            e(2); e(3); e(4); e(5); e(6)
            qk(); rdk()
            e(7); c(0); c(1); c(2); extra0(); c(3); e(8); e(9)
            pv1()
            e(10); e(11); e(12); e(13); e(14)
            extra()
            e(15)
            for i in range(4, 8): c(i)
            late()
        elif TV == "2":
            e(0); e(1)
            if which == 1: a("s_waitcnt lgkmcnt(0)")
            pv2(); rdv()
            e(2); c(0); e(3); e(4); c(1); e(5)
            qk(); rdk()
            e(6); c(2); e(7); e(8); extra0(); c(3); e(9); e(10)
            pv1()
            c(4); e(11); e(12); c(5); e(13); e(14)
            extra()
            c(6); e(15); late(); a("s_nop 0") if False else None
            c(7)
    def bump(n):
        a(f"v_add_u32 v{VK}, {2*n*1024}, v{VK}")
        a(f"v_add_u32 v{VV0}, {2*n*VST}, v{VV0}")
        a(f"v_add_u32 v{VV1}, {2*n*VST}, v{VV1}")
    PRIO = ENV("PRIO", "1") == "1"
    DPER, DRAIN = int(ENV("DPER", "1")), int(ENV("DRAIN", "10"))
    wo = list(range(16))
    g = T0 + 5
    def ld2():
        a(f"buffer_load_dword v{g}, v{g+2}, {WSR}, s74 offen{ST}")
        a(f"buffer_load_dword v{g+1}, v{g+3}, {WSR}, s88 offen{ST}")
    def cmp2():
        a(f"v_and_b32 v{g}, v{g}, v{g+1}")
        a(f"v_cmp_ne_u32 vcc, 1, v{g}" if "2" not in ENV("WI", "") else f"v_cmp_ne_u32 vcc, v{g}, v{g}")
    def ldswait(name, off, val):
        a(f"s_mov_b32 s98, {SPIN*8}")
        a.label(name)
        a(f"ds_read_b32 v{T0}, v{T0+1} offset:{off}")
        a("s_waitcnt lgkmcnt(0)")
        a(f"v_cmp_ne_u32 vcc, {val}, v{T0}")
        a(f"s_cbranch_vccz {name}_ok")
        a("s_sleep 1")
        a("s_sub_u32 s98, s98, 1")
        a("s_cmp_lg_u32 s98, 0")
        a(f"s_cbranch_scc1 {name}")
        a.label(f"{name}_ok")
    a(f"v_mov_b32 v{T0+1}, {LCNT}")
    S2W = int(ENV('S2WAVE', '0'))
    S2AT = int(ENV('S2AT', '14'))
    def ldwo(i):
        if "W" in ENV("WI", "") and i >= 2: return
        if i % 4 == 0: a(f"s_add_u32 s71, s86, {(i>>3)*144*1024 + (i&7)*1024}")
        a(f"buffer_load_dwordx4 {vr(WO + 4*i)}, v3, {WSR}, s71 offen offset:{(i&3)*1024}{'' if 'O' in ENV('XG', 'Q') else ST}")
    PK = [int(x) for x in ENV("PK", "3,7,12").split(",")]
    ops = kvops((32, 40, 48, 56))
    ops = [(lambda l=l: [a(x) for x in l]) for l in ops] + [(lambda i=i: ldwo(i)) for i in range(16)]
    def ldb():
        for i in range(4):
            a(f"s_mov_b32 s70, {WS_F1 + i*8192}")
            a(f"buffer_load_dwordx2 {vr(WO+4+2*i,2)}, v{WO+2}, {WSR}, s70 offen{ST}")
    def cmpb():
        b = WO + 4
        for i in range(4):
            a(f"v_xor_b32 v{b+2*i}, v{b+2*i}, v{WO}")
            a(f"v_xor_b32 v{b+2*i+1}, v{b+2*i+1}, v{WO+1}")
        a(f"v_or3_b32 v{b}, v{b}, v{b+1}, v{b+2}")
        a(f"v_or3_b32 v{b+3}, v{b+3}, v{b+4}, v{b+5}")
        a(f"v_or3_b32 v{b}, v{b}, v{b+6}, v{b+7}")
        a(f"v_or_b32 v{b}, v{b}, v{b+3}")
        a(f"v_cmp_ne_u32 vcc, 0, v{b}")
    DRAIN = int(ENV("DRAIN", "5"))
    KVW = int(ENV("KVW", "10"))
    nkv = 8
    slots = 2 * (15 - DRAIN) - 1
    def emit_ops():
        nonlocal slots
        n = -(-len(ops) // slots); slots -= 1
        if kcur < KVW: n = min(1, len(ops) - 16)
        for _ in range(n): ops.pop(0)()
    for k in range(16):
        if PRIO and k in PK: a(f"s_setprio {2 - PK.index(k)}")
        kcur = k
        if k == KVW: ldswait("L_kvw", 4, 8)
        if k == S2AT:
            a(f"s_cmp_lg_u32 s{sWAVE}, {S2W}")
            a("s_cbranch_scc1 L_s2a")
            ld2()
            a.label("L_s2a")
        def extra():
            if k == BURSTK: burst(True)
            if k == DRAIN - 2:
                a(f"s_cmp_lg_u32 s{sWAVE}, 4")
                a("s_cbranch_scc1 L_s1b0")
                ldb()
                a.label("L_s1b0")
            if k == DRAIN:
                stamp(a, 23, VS) if not ENV("EARLY") else None
                a("s_waitcnt vmcnt(0)")
                stamp(a, 24, VS) if not ENV("EARLY") else None
                a(f"s_cmp_lg_u32 s{sWAVE}, 4")
                a("s_cbranch_scc1 L_ps1b_ok")
                cmpb()
                a("s_cbranch_vccz L_ps1b_ok")
                poll(a, "L_ps1b", ldb, cmpb)
                one_lane(a, f"ds_add_rtn_u32 v{T0+4}, v{T0+4}, v{T0+3}")
            if k > DRAIN: emit_ops()
        def extra0():
            if k == DRAIN + 1:
                a("s_waitcnt lgkmcnt(0)")
                a(f"v_readfirstlane_b32 s70, v{T0+4}")
                a("s_cmp_eq_u32 s70, 7")
                a(f"s_cselect_b32 s70, 0, {OOB:#x}")
                one_lane(a, f"buffer_store_dword v{T0+3}, v{T0+2}, {WSR}, s70 offen{ST}", 3)
            if k > DRAIN + 1: emit_ops()
        nleft = len(ops)
        if k == S2AT: after_s2 = nleft
        tile(k >> 1, k & 1, extra, extra0)
    assert not ops
    stamp(a, 11, VS)
    a(f"s_cmp_lg_u32 s{sWAVE}, {S2W}")
    a("s_cbranch_scc1 L_s2b")
    a(f"s_waitcnt vmcnt({after_s2})")
    cmp2()
    a("s_cbranch_vccz L_ps2_ok")
    poll(a, "L_ps2", ld2, cmp2)
    a(f"ds_write_b32 v{T0+1}, v{T0+3} offset:8")
    a("s_waitcnt lgkmcnt(0)")
    a("s_branch L_s2w_ok")
    a.label("L_s2b")
    ldswait("L_s2w", 8, 1)
    stamp(a, 16, VS)
    if PRIO: a("s_setprio 3")
    bump(8)
    def gld(buf, q, off): a(f"buffer_load_dwordx4 {vr(GFR + 12*buf + 4*q)}, v{VG}, {WSR}, s{76+q} offen offset:{off}{'' if ('P' in ENV('XG', 'Q') or ('Q' in ENV('XG', 'Q') and q)) else ST}")
    def gm(buf, j):
        d = vr(GACC + 16*j, 16)
        a(f"{MF} {d}, {vr(GFR + 12*buf + 4 + 4*j)}, {vr(GFR + 12*buf)}, {d}")
    for b in range(4):
        for q in (1, 0, 2): gld(b, q, b * 1024)
    a(f"v_add_u32 v{VG}, 4096, v{VG}")
    a("s_mov_b32 s80, 6")
    a(f"v_mov_b32 v0, {LCNT}")
    a("v_mov_b32 v2, 1")
    a.label("L_aloop")
    def gstep(m, wait=9):
        b, j = (m >> 1) & 3, m & 1
        if j == 0: a(f"s_waitcnt vmcnt({wait})")
        gm(b, j)
        if j == 0: gld(b, 1, b * 1024)
        else: gld(b, 0, b * 1024); gld(b, 2, b * 1024)
    for k in range(8):
        def late():
            if ENV("LL"):
                b, j = (k >> 1) & 3, k & 1
                if j == 0: gld(b, 1, b * 1024)
                else: gld(b, 0, b * 1024); gld(b, 2, b * 1024)
        def extra():
            if ENV("LL"):
                if k & 1 == 0: a("s_waitcnt vmcnt(9)")
                gm((k >> 1) & 3, k & 1)
            else: gstep(k)
            if k == 1: a("s_sub_u32 s80, s80, 1")
            if k == 2:
                one_lane(a, f"ds_add_u32 v0, v2 offset:12")
        tile(k >> 1, k & 1, extra, late=late)
    bump(4)
    a(f"v_add_u32 v{VG}, 4096, v{VG}")
    a("s_cmp_lg_u32 s80, 5")
    a("s_cbranch_scc1 L_kv2_ok")
    a(f"s_mov_b32 s98, {SPIN*8}")
    a.label("L_kv2")
    a(f"ds_read_b32 v2, v0 offset:12")
    a("s_waitcnt lgkmcnt(0)")
    a(f"v_cmp_gt_u32 vcc, 8, v2")
    a("s_cbranch_vccz L_kv2_ok")
    a("s_sleep 1")
    a("s_sub_u32 s98, s98, 1")
    a("s_cmp_lg_u32 s98, 0")
    a("s_cbranch_scc1 L_kv2")
    a.label("L_kv2_ok")
    if PRIO:
        for lim, pr in zip([int(x) for x in ENV("PL", "4,2,1").split(",")], (2, 1, 0)):
            a(f"s_cmp_gt_u32 s80, {lim}")
            a("s_cbranch_scc1 L_aloop")
            a(f"s_setprio {pr}")
    a("s_cmp_lg_u32 s80, 0")
    a("s_cbranch_scc1 L_aloop")
    a("v_lshrrev_b32 v2, 4, v3")
    if STAMP: a(f"v_lshl_add_u32 v0, s{sWAVE}, 6, v2")
    a(f"{MF} {vr(OB,16)}, {vr(V1)}, {vr(SB+8)}, {vr(OB,16)}")
    stamp(a, 17, VS)
    a(f"s_mul_i32 s79, s{sWAVE}, 2304")
    a(f"s_add_u32 s79, s79, {LQ}")
    a(f"s_xor_b32 s80, s{sWAVE}, 4")
    a("s_mul_i32 s80, s80, 2304")
    a(f"s_add_u32 s80, s80, {LQ}")
    a(f"v_add_u32 v{KF}, s79, v3")
    a(f"v_add_u32 v{KF+1}, s80, v3")
    a(f"v_lshl_add_u32 v{KF+2}, v2, 2, s79")
    a(f"v_lshl_add_u32 v{KF+3}, v2, 2, s80")
    a(f"v_and_b32 v{V0A}, 31, v2")
    a(f"v_lshlrev_b32 v{V0A}, 2, v{V0A}")
    a("s_lshl_b32 s79, s84, 7")
    a(f"s_add_u32 s79, s79, {WS_G}")
    VGT = V0B
    a(f"buffer_load_dword v{VGT}, v{V0A}, {WSR}, s79 offen{ST}")
    a("s_cmp_eq_u32 s66, 0")
    a("s_cbranch_scc1 L_keepA")
    a(f"ds_write_b128 v{KF}, {vr(OA)}")
    a(f"ds_write_b128 v{KF}, {vr(OA+4)} offset:1024")
    a(f"ds_write_b32 v{KF+2}, v{OA+8} offset:2048")
    for i in range(9): a(f"v_mov_b32 v{OA+i}, v{OB+i}")
    for i in range(4): a(f"v_mov_b32 v{QA+i}, v{QB+i}")
    a("s_branch L_sent")
    a.label("L_keepA")
    a(f"ds_write_b128 v{KF}, {vr(OB)}")
    a(f"ds_write_b128 v{KF}, {vr(OB+4)} offset:1024")
    a(f"ds_write_b32 v{KF+2}, v{OB+8} offset:2048")
    a.label("L_sent")
    a(f"s_lshl_b32 s79, s{sQB}, 3")
    a("s_lshl_b32 s80, s65, 1")
    a("s_add_u32 s79, s79, s80")
    a("s_add_u32 s79, s79, s66")
    a(f"s_mul_i32 s81, s79, {144*1024}")
    a(f"s_lshl_b32 s80, s{sHEAD}, 10")
    a("s_add_u32 s81, s81, s80")
    a(f"s_add_u32 s81, s81, {WS_AF}")
    a("s_waitcnt lgkmcnt(0)")
    a("s_barrier")
    a(f"ds_read_b128 {vr(OB)}, v{KF+1}")
    a(f"ds_read_b128 {vr(OB+4)}, v{KF+1} offset:1024")
    a(f"ds_read_b32 v{OB+8}, v{KF+3} offset:2048")
    a("s_waitcnt lgkmcnt(0)")
    for i in range(9): a(f"v_add_f32 v{OA+i}, v{OA+i}, v{OB+i}")
    def lbcast():
        if ONE_ROW:
            a(f"v_mov_b32 v{OB}, v{OA+8}")
            a(f"v_permlane32_swap_b32 v{OA+8}, v{OB}")
    lbcast()
    a(f"v_cmp_nge_f32 vcc, {f32(2.0**60)}, v{OA+8}")
    a("s_mov_b64 s[82:83], vcc")
    a(f"v_cmp_nle_f32 vcc, {f32(2.0**-60)}, v{OA+8}")
    a("s_or_b64 vcc, vcc, s[82:83]")
    a("s_cbranch_vccnz L_redo")
    a.label("L_aok")
    a(f"v_rcp_f32 v12, v{OA+8}")
    for i in range(8): a(f"v_mul_f32 v{OA+i}, v12, v{OA+i}")
    for i in range(4): a(f"v_cvt_pk_bf16_f32 v{SA+i}, v{OA+2*i}, v{OA+2*i+1}")
    for i in range(4): a(f"v_min_u32 v{SA+i}, -2, v{SA+i}")
    a(f"buffer_store_dwordx4 {vr(SA)}, v3, {WSR}, s81 offen{STS}")
    stamp(a, 18, VS)
    srd(a, S_OUT, 20, 21, 2048 * 1024)
    a("s_lshl_b32 s79, s68, 15")
    a("v_add_u32 v14, s79, v3")
    a("s_lshl_b32 s80, s69, 13")
    a("s_add_u32 s80, s80, s79")
    a("v_add_u32 v15, s80, v3")
    a("v_and_b32 v12, 31, v2")
    a("v_lshlrev_b32 v12, 10, v12")
    a("v_lshrrev_b32 v13, 5, v2")
    a("v_lshl_or_b32 v11, v13, 4, v12")
    a("s_lshl_b32 s79, s84, 15")
    a(f"s_lshl_b32 s80, s{sQB}, 7")
    a("s_add_u32 s79, s79, s80")
    a("s_lshl_b32 s80, s69, 5")
    a("s_add_u32 s79, s79, s80")
    a("s_add_u32 s87, s85, 4096")
    a("s_barrier")
    TE = ENV("TE", "0")
    if TE != "2":
        a("s_waitcnt vmcnt(1)")
        for b in range(4): gm(b, 0); gm(b, 1)
    if TE == "0": a("s_waitcnt vmcnt(0)")
    stamp(a, 19, VS)
    OF, A2 = 16, 64
    def ldO():
        for i in range(8): a(f"buffer_load_dwordx4 {vr(OF+4*i)}, v3, {WSR}, s{85 if i < 4 else 87} offen offset:{(i&3)*1024}{ST}")
    def cmpO():
        for i in range(8):
            a(f"s_waitcnt vmcnt({7-i})")
            for j in range(2):
                d = vr(A2 + 16*j, 16)
                a(f"{MF} {d}, {vr(WO + 32*j + 4*i)}, {vr(OF+4*i)}, {'0' if i == 0 else d}")
            r = OF + 4*i
            if i == 0: a(f"v_max_u32 v12, v{r}, v{r+1}")
            else: a(f"v_max3_u32 v12, v{r}, v{r+1}, v12")
            a(f"v_max3_u32 v12, v{r+2}, v{r+3}, v12")
        a("v_cmp_eq_u32 vcc, -1, v12" if "3" not in ENV("WI", "") else "v_cmp_ne_u32 vcc, v12, v12")
    ldO()
    if TE == "2":
        a("s_waitcnt vmcnt(9)")
        for b in range(4): gm(b, 0); gm(b, 1)
    a(f"v_sub_f32 v10, 1.0, v{VGT}")
    for r in range(32): a(f"v_mul_f32 v{GACC+r}, v10, v{GACC+r}")
    a(f"s_mov_b32 s98, {SPIN}")
    a("s_branch L_ps3c")
    def ldO2():
        ldO(); a.label("L_ps3c")
    poll(a, "L_ps3", ldO2, cmpO, wait=False, slp=int(ENV("SLP3", "4")))
    stamp(a, 20, VS)
    for kq in range(4):
        if kq < 3:
            a(f"s_cmp_lg_u32 s69, {kq}")
            a(f"s_cbranch_scc1 L_red{kq+1}")
        for sl in [x for x in range(4) if x != kq] + [kq]:
            for r in range(8*sl, 8*sl + 8):
                if sl == kq: a(f"v_fma_f32 v{OF + r - 8*sl}, v{VGT}, v{A2+r}, v{GACC+r}")
                else: a(f"v_fmac_f32 v{GACC+r}, v{VGT}, v{A2+r}")
            if sl != kq:
                for k in range(2): a(f"ds_write_b128 v14, {vr(GACC + 8*sl + 4*k)} offset:{sl*8192 + ((kq - sl - 1) & 3)*2048 + k*1024}")
        if kq < 3:
            a("s_branch L_redw")
            a.label(f"L_red{kq+1}")
    a.label("L_redw")
    a("s_waitcnt lgkmcnt(0)")
    a("s_barrier")
    for q in range(3):
        for k in range(2): a(f"ds_read_b128 {vr(OF + 8 + 8*q + 4*k)}, v15 offset:{q*2048 + k*1024}")
    a("s_waitcnt lgkmcnt(4)")
    for r in range(0, 8, 2): a(f"v_pk_add_f32 {vr(OF+r,2)}, {vr(OF+r,2)}, {vr(OF+8+r,2)}")
    a("s_waitcnt lgkmcnt(0)")
    for r in range(0, 8, 2): a(f"v_pk_add_f32 {vr(OF+16+r,2)}, {vr(OF+16+r,2)}, {vr(OF+24+r,2)}")
    for r in range(0, 8, 2): a(f"v_pk_add_f32 {vr(OF+r,2)}, {vr(OF+r,2)}, {vr(OF+16+r,2)}")
    for i in range(4): a(f"v_cvt_pk_bf16_f32 v{48+i}, v{OF+2*i}, v{OF+2*i+1}")
    a("v_permlane32_swap_b32 v48, v50")
    a("v_permlane32_swap_b32 v49, v51")
    a(f"buffer_store_dwordx4 v[48:51], v11, {SR(S_OUT)}, s79 offen{ENV('OUTMOD', '').replace('_', ' ')}")
    if ENV("FIXT"):
        a.label("L_fixt")
        a("s_memrealtime s[100:101]")
        a("s_waitcnt lgkmcnt(0)")
        a("s_sub_u32 s100, s100, s96")
        a(f"s_cmp_lt_u32 s100, {int(ENV('FIXT'))}")
        a("s_cbranch_scc1 L_fixt")
    if STAMP: a("s_waitcnt vmcnt(0)")
    stamp_out(a, 0, S_WS, VS, 14)
    if STAMP and ENV("DBGOUT"):
        a(f"s_lshl_b32 s66, s{sWAVE}, 8")
        a("s_or_b32 s66, s66, s2")
        a(f"s_cmp_lg_u32 s66, {int(ENV('DBGOUT'))}")
        a("s_cbranch_scc1 L_exit")
        a(f"v_readlane_b32 s67, v{VS}, 1")
        for k, idx in enumerate((3, 4, 5, 6, 7, 10, 11, 16, 17, 18, 19, 20, 14)):
            a(f"v_readlane_b32 s66, v{VS}, {32+idx}")
            a("s_sub_u32 s66, s66, s67")
            a(f"v_writelane_b32 v14, s66, {k}")
        a(f"v_readlane_b32 s66, v{VS}, 14")
        a(f"v_readlane_b32 s67, v{VS}, 0")
        a("s_sub_u32 s66, s66, s67")
        a("v_writelane_b32 v14, s66, 13")
        a("v_lshlrev_b32 v15, 2, v2")
        one_lane(a, f"buffer_store_dword v14, v15, {SR(S_DBG)}, 0 offen offset:4", "0x3fff")
    a("s_endpgm")
    a.label("L_redo")
    a(f"s_mul_i32 s79, s66, {VST}")
    a(f"s_add_u32 s79, s79, {64*VST}")
    a(f"v_subrev_u32 v{VV0}, s79, v{VV0}")
    a(f"v_subrev_u32 v{VV1}, s79, v{VV1}")
    a(f"v_mov_b32 v{VK}, v3")
    a("v_mov_b32 v12, 0xff800000")
    a("s_mov_b32 s80, 0")
    a.label("L_fmax")
    a(f"ds_read_b128 {vr(KF)}, v{VK}")
    a("s_waitcnt lgkmcnt(0)")
    a(f"{MF} {vr(SA,16)}, {vr(KF)}, {vr(QA)}, 0")
    a(f"v_add_u32 v{VK}, 1024, v{VK}")
    rowmax(a, SA, 12, acc=True)
    a("s_add_u32 s80, s80, 1")
    a("s_cmp_lt_u32 s80, 64")
    a("s_cbranch_scc1 L_fmax")
    halfmax(a, 12, 13)
    for i in range(16): a(f"v_sub_f32 v{CC+i}, 0, v12")
    zero(a, OA, 16)
    a(f"v_mov_b32 v{VK}, v3")
    a("s_mov_b32 s80, 0")
    a.label("L_fslow")
    a(f"ds_read_b128 {vr(KF)}, v{VK}")
    a(f"ds_read_b128 {vr(V0A)}, v{VV0}")
    a(f"ds_read_b128 {vr(V1)}, v{VV1}")
    a("s_waitcnt lgkmcnt(0)")
    a(f"{MF} {vr(SA,16)}, {vr(KF)}, {vr(QA)}, {vr(CC,16)}")
    a(f"v_add_u32 v{VK}, 1024, v{VK}")
    a(f"v_add_u32 v{VV0}, {VST}, v{VV0}")
    a(f"v_add_u32 v{VV1}, {VST}, v{VV1}")
    for i in range(16): a(f"v_exp_f32 v{SA+i}, v{SA+i}")
    for i in range(8): a(f"v_cvt_pk_bf16_f32 v{SB+i}, v{SA+2*i}, v{SA+2*i+1}")
    a(f"{MF} {vr(OA,16)}, {vr(V0A)}, {vr(SB)}, {vr(OA,16)}")
    a(f"{MF} {vr(OA,16)}, {vr(V1)}, {vr(SB+4)}, {vr(OA,16)}")
    a("s_add_u32 s80, s80, 1")
    a("s_cmp_lt_u32 s80, 64")
    a("s_cbranch_scc1 L_fslow")
    a("s_nop 9")
    lbcast()
    a("s_branch L_aok")

def build():
    a = Asm()
    head(a)
    p1_loader(a)
    p1_compute(a)
    attn(a)
    a.label("L_exit")
    a("s_endpgm")
    n = a.fix(verbose="-v" in sys.argv)
    print("instructions:", len(a.lines), "nop states inserted:", n, "lds", LDS_BYTES, file=sys.stderr)
    name = NAME + "_kernel"
    hdr = open("cdna_kernels/" + NAME + ".s.ref").read().split("; Override launch")[0]
    out = hdr + f"; @launch grid=(256,1,1) block=(512,1,1) lds={LDS_BYTES}\n"
    out += '.amdgcn_target "amdgcn-amd-amdhsa--gfx950"\n.text\n'
    out += f".globl {name}\n.p2align 8\n.type {name},@function\n{name}:\n" + a.text()
    out += '.section .rodata,"a"\n' + kd(name)
    dst = sys.argv[1] if len(sys.argv) > 1 and not sys.argv[1].startswith("-") else "cdna_kernels/" + NAME + ".s"
    open(dst, "w").write(out)
if __name__ == "__main__": build()
```

```python
import os, sys
from common import *

MF = "v_mfma_f32_32x32x16_bf16"
ST = " sc1"
STS = " sc1 nt" if os.environ.get("SNT") else " sc1"
ENV = os.environ.get
WS_F1 = 0x1480000
WS_F2 = 0x1490000
WS_F3 = 0x1498000
WS_TAG = 0x14a0000
SPIN = 1 << 17

S_DBG, S_WS, S_X, S_G, S_U, S_WA, S_WB, S_WC = 24, 28, 32, 36, 40, 44, 48, 52
S_RO, S_RD, S_GW = 56, 44, 48
S_OUT = 32
sWAVE, sMB, sNB, sVC = 3, 60, 61, 62
sHEAD, sQB = 63, 64
WSR = f"s[{S_WS}:{S_WS+3}]"
def SR(n): return f"s[{n}:{n+3}]"
VS = 1

NXS = 6
LX, XSLOT = 0, 16384
LW = NXS * XSLOT
NW1, WS1 = 5, 12288
NW2, WS2, LW2 = 6, 8192, LW + 12288
LRD = LW
LRO = LW + NW1 * WS1
LDS_BYTES = 163840
LCNT = LDS_BYTES - 16
LC2 = LDS_BYTES - 32
assert LRO + 2048 <= LCNT and (16 % NW1) * WS1 == LW2 - LW and LW2 + NW2 * WS2 <= LRO
KROT = 8 - NXS
def wslot(s): return (LW + (s % NW1) * WS1, WS1) if s < 16 else (LW2 + ((s - 16) % NW2) * WS2, WS2)
def acc(tt, ct): return 96 + (tt * 4 + ct) * 16 if ct < 4 else 224 + tt * 16
HP = 224
DT = 36
FR0, FR1 = 16, 36
VXA, VW = 56, 60
ONE_ROW = not ENV("ALLONES")
VST, VROT = 1104, 0
LK, LV = 0, 65536
LQ = LV + 64 * VST
LQI = 143360
LASTB = 28
QA, QB, CC, OA, OB, SA, SB, KF, V0A, V0B, V1 = 8, 12, 16, 32, 48, 64, 80, 96, 100, 104, 108
VK, VV0, VV1, VG = 4, 5, 6, 7
GACC, GFR, WO = 112, 144, 192

class Lgkm:
    def __init__(s, a): s.a = a; s.q = []
    def rd(s, tag, text): s.a(text); s.q.append(tag)
    def need(s, *tags):
        idx = [i for i, t in enumerate(s.q) if t in tags]
        if not idx: return
        n = len(s.q) - 1 - max(idx)
        assert n <= 15
        s.a(f"s_waitcnt lgkmcnt({n})")
        s.q = s.q[max(idx) + 1:]
    def all(s, extra=""):
        s.a("s_waitcnt " + extra + "lgkmcnt(0)")
        s.q = []

def poll(a, name, load, cmp, wait=True, slp=None):
    a(f"s_mov_b32 s98, {SPIN}")
    a.label(name)
    load()
    if wait: a("s_waitcnt vmcnt(0)")
    cmp()
    a(f"s_cbranch_vccz {name}_ok")
    a(f"s_sleep {int(ENV('SLEEP', '4')) if slp is None else slp}")
    a("s_sub_u32 s98, s98, 1")
    a("s_cmp_lg_u32 s98, 0")
    a(f"s_cbranch_scc1 {name}")
    a.label(f"{name}_ok")

def rowmax(a, S, dst, acc=False):
    if acc: a(f"v_max3_f32 v{dst}, v{S}, v{S+1}, v{dst}")
    else: a(f"v_max_f32 v{dst}, v{S}, v{S+1}")
    for k in range(2, 16, 2): a(f"v_max3_f32 v{dst}, v{S+k}, v{S+k+1}, v{dst}")
def halfmax(a, dst, tmp):
    a(f"v_mov_b32 v{tmp}, v{dst}")
    a(f"v_permlane32_swap_b32 v{tmp}, v{dst}")
    a(f"v_max_f32 v{dst}, v{tmp}, v{dst}")
def zero(a, b, n):
    for r in range(0, n, 2): a(f"v_pk_mul_f32 {vr(b+r,2)}, 0, 0")
def one_lane(a, text, mask=1):
    a(f"s_mov_b64 exec, {mask}"); a(text); a("s_mov_b64 exec, -1")

def head(a):
    a("s_cmp_ge_u32 s2, 256")
    a("s_cbranch_scc1 L_exit")
    a("s_load_dwordx16 s[4:19], s[0:1], 0")
    a("s_load_dwordx4 s[20:23], s[0:1], 64")
    a(f"s_load_dwordx2 s[{S_WS}:{S_WS+1}], s[0:1], 80")
    if ENV("FIXT"):
        a("s_memrealtime s[96:97]")
    if STAMP: a(f"v_mov_b32 v{VS}, 0")
    stamp(a, 0, VS); stamp(a, 1, VS, real=True)
    a("v_lshrrev_b32 v3, 6, v0")
    a("v_and_b32 v2, 63, v0")
    a(f"v_readfirstlane_b32 s{sWAVE}, v3")
    a("s_and_b32 s65, s2, 7")
    a("s_lshr_b32 s66, s2, 3")
    a("s_and_b32 s67, s65, 1")
    a("s_lshl_b32 s67, s67, 3")
    a("s_and_b32 s68, s66, 7")
    a(f"s_add_u32 s{sMB}, s67, s68")
    a("s_lshr_b32 s67, s65, 1")
    a("s_lshl_b32 s67, s67, 2")
    a("s_lshr_b32 s68, s66, 3")
    if ENV("CFIRST", "1") == "1": a("s_sub_u32 s68, 3, s68")
    a(f"s_add_u32 s{sNB}, s67, s68")
    a("s_cmp_eq_u32 s68, 3")
    a(f"s_cselect_b32 s{sVC}, 1, 0")
    a("s_lshl_b32 s67, s65, 2")
    a("s_and_b32 s68, s66, 3")
    a(f"s_add_u32 s{sHEAD}, s67, s68")
    a(f"s_lshr_b32 s{sQB}, s66, 2")
    a("v_lshlrev_b32 v3, 4, v2")
    a(f"s_mov_b32 s{S_WS+2}, {WS_SIZE:#x}")
    a(f"s_mov_b32 s{S_WS+3}, 0x00020000")
    a(f"s_lshr_b32 s67, s{sNB}, 2")
    a(f"s_sub_u32 s81, s{sNB}, s67")
    a("s_add_u32 s81, s81, 16")
    a(f"s_lshl_b32 s82, s{sNB}, 11")
    a(f"s_lshl_b32 s67, s{sMB}, 7")
    a("s_add_u32 s82, s82, s67")
    a(f"s_add_u32 s82, s82, {WS_F1}")
    a("v_lshrrev_b32 v8, 3, v2")
    a("v_and_b32 v4, 7, v2")
    a("v_bfe_u32 v5, v2, 4, 1")
    a("v_lshlrev_b32 v5, 2, v5")
    a("v_xor_b32 v5, v5, v4")
    a("v_lshlrev_b32 v9, 4, v5")
    a(f"s_cmp_lt_u32 s{sWAVE}, 4")
    a("s_waitcnt lgkmcnt(0)")
    srd(a, S_X, 4, 5, 2048 * 1024)
    srd(a, S_DBG, 22, 23, 256)
    a("s_cbranch_scc1 L_compute")

def p1_compute(a):
    a.label("L_compute")
    if ENV("INV"): a("buffer_inv sc1")
    a(f"s_and_b32 s65, s{sWAVE}, 1")
    a(f"s_lshr_b32 s66, s{sWAVE}, 1")
    if ENV("CODEPF", "1") == "1":
        a("s_getpc_b64 s[84:85]")
        a.label("L_pc")
        a("s_sub_u32 s84, s84, L_pc-L_loader")
        a("s_subb_u32 s85, s85, 0")
        a("v_lshlrev_b32 v11, 7, v0")
        a("v_min_u32 v11, L_exit-L_loader, v11")
        a("global_load_dword v61, v11, s[84:85]")
        a("v_lshlrev_b32 v11, 7, v0")
        a("v_add_u32 v11, 0x8000, v11")
        a("v_min_u32 v11, L_exit-L_loader, v11")
        a("global_load_dword v62, v11, s[84:85]")
    a("v_and_b32 v8, 31, v2")
    a("v_lshrrev_b32 v4, 5, v2")
    a("v_bfe_u32 v5, v2, 1, 3")
    a("v_xor_b32 v5, v5, v4")
    a("s_lshl_b32 s67, s65, 13")
    a("v_lshl_add_u32 v6, v8, 7, s67")
    for ks in range(4):
        a(f"v_xor_b32 v7, {2*ks}, v5")
        a(f"v_lshl_add_u32 v{VXA+ks}, v7, 4, v6")
    a("v_bfe_u32 v5, v2, 2, 2")
    a("v_and_b32 v6, 3, v2")
    a("v_bfe_u32 v7, v2, 4, 1")
    a("v_lshlrev_b32 v6, 3, v6")
    a("v_lshl_or_b32 v6, v7, 5, v6")
    a("v_lshrrev_b32 v7, 1, v5")
    a("v_lshl_or_b32 v6, v7, 6, v6")
    a("v_lshl_or_b32 v6, v5, 7, v6")
    a("v_lshl_or_b32 v6, v4, 10, v6")
    a("s_lshl_b32 s67, s66, 6")
    a("v_xor_b32 v6, s67, v6")
    a(f"v_add_u32 v{VW}, {LW}, v6")
    zero(a, 96, 160)
    a(f"v_mov_b32 v5, {LCNT}")
    a("ds_write_b128 v5, v[96:99]")

    a(f"s_mov_b32 s78, {(-(NW1-1)*WS1) & 0xffffffff:#x}")
    a(f"s_mov_b32 s79, {(-(NXS-1)*XSLOT) & 0xffffffff:#x}")
    a("s_mov_b32 s73, 0")
    a("s_mov_b32 s74, 0")
    a("s_mov_b32 s75, 8")
    a("s_waitcnt lgkmcnt(0)")
    def reads(fs, ks, nu):
        kk = ks & 1
        X = lambda t: f"ds_read_b128 {vr(fs+4*t)}, v{VXA+ks} offset:{t*4096}"
        W = lambda u, j: f"ds_read_b64_tr_b16 {vr(fs+8+4*u+2*j, 2)}, v{VW} offset:{u*4096 + kk*2048 + j*512}"
        l = [X(0), W(0,0), W(0,1), X(1)]
        for u in range(1, nu): l += [W(u,0), W(u,1)]
        return l
    def loop(name, cts, swap, nu_next_last, hook=None):
        nu = len(cts)
        NWS, WSLOT = (NW1, WS1) if nu == 3 else (NW2, WS2)
        a.label(name)
        for ks in range(4):
            kk = ks & 1
            cur, nxt = (FR0, FR1) if kk == 0 else (FR1, FR0)
            mms = []
            for u, ct in enumerate(cts):
                for t in range(2):
                    d = vr(acc(t, ct), 16); w = vr(cur + 8 + 4*u); x = vr(cur + 4*t)
                    mms.append(f"{MF} {d}, {x}, {w}, {d}" if (swap and ct < 4) else f"{MF} {d}, {w}, {x}, {d}")
            if ENV("FAKE16"):
                mms = []
                for u, ct in enumerate(cts):
                    for t in range(2):
                        w = vr(cur + 8 + 4*u); x = vr(cur + 4*t)
                        d0, d1 = vr(acc(t, ct) + 8*kk, 4), vr(acc(t, ct) + 8*kk + 4, 4)
                        x2 = vr(cur + 4*(1-t))
                        mms.append(f"v_mfma_f32_16x16x32_bf16 {d0}, {w}, {x}, {d0}")
                        mms.append(f"v_mfma_f32_16x16x32_bf16 {d1}, {x2}, {w}, {d1}")
            rd = reads(nxt, (ks + 1) & 3, nu)
            post = []
            if kk == 0:
                post += ["s_add_u32 s73, s73, 1", f"s_cmp_eq_u32 s73, {NWS}", f"s_cselect_b32 s76, s78, {WSLOT}", "s_cselect_b32 s73, 0, s73", f"v_add_u32 v{VW}, s76, v{VW}"]
                if ks == 2:
                    post += ["s_add_u32 s74, s74, 1", f"s_cmp_eq_u32 s74, {NXS}", f"s_cselect_b32 s77, s79, {XSLOT}", "s_cselect_b32 s74, 0, s74", f"v_add_u32 v{VXA}, s77, v{VXA}"]
            elif ks == 3:
                post += [f"v_add_u32 v{VXA+i}, s77, v{VXA+i}" for i in range(1, 4)] + ["s_sub_u32 s75, s75, 1", "s_cmp_lg_u32 s75, 0"]
            if ks == 3 and hook: hook()
            a("s_waitcnt lgkmcnt(0)")
            if kk == 1:
                a(mms.pop(0))
                a("s_barrier")
            other = rd + post
            per = 3 if not ENV('FAKE16') else 2
            while mms:
                if kk == 0 or len(mms) < 2*nu - 1 or True:
                    pass
                if kk == 0: a(mms.pop(0))
                for _ in range(per):
                    if other: a(other.pop(0))
                if kk == 1: a(mms.pop(0))
            for o in other: a(o)
        a(f"s_cbranch_scc1 {name}")
    a(f"s_lshl_b32 s68, s{sMB}, 2")
    a("s_lshl_b32 s69, s65, 1")
    a("s_add_u32 s69, s68, s69")
    a(f"v_add_u32 v9, {VROT}, v2")
    a("v_and_b32 v9, 15, v9")
    a("v_lshl_or_b32 v9, v4, 4, v9")
    a("v_lshlrev_b32 v9, 4, v9")
    a("v_bfe_u32 v10, v2, 4, 1")
    a("v_lshl_or_b32 v9, v10, 16, v9")
    a(f"s_lshr_b32 s70, s{sNB}, 2")
    a("s_lshl_b32 s70, s70, 19")
    a("s_lshl_b32 s71, s66, 17")
    a("s_add_u32 s70, s70, s71")
    a("s_lshl_b32 s71, s69, 10")
    a("s_add_u32 s70, s70, s71")
    a(f"s_add_u32 s70, s70, {WS_V}")
    a(f"s_add_u32 s71, s70, {4*65536}")
    a(f"s_cmp_lt_u32 s{sNB}, 8")
    a(f"s_cselect_b32 s86, {f32(QSCALE)}, 1.0")
    a(f"s_lshl_b32 s67, s{sNB}, 2")
    a("s_lshl_b32 s68, s66, 1")
    a("s_add_u32 s67, s67, s68")
    a("s_lshl_b32 s67, s67, 16")
    a("s_lshl_b32 s68, s69, 10")
    a("s_add_u32 s67, s67, s68")
    a(f"s_add_u32 s88, s67, {WS_QK}")
    a("s_add_u32 s89, s88, 0x10000")
    a(f"s_mul_i32 s67, s69, {144*1024}")
    a("s_lshl_b32 s68, s66, 11")
    a("s_add_u32 s67, s67, s68")
    a(f"s_add_u32 s67, s67, {WS_AF + 32*1024}")
    for i in (1, 0):
        a(f"s_lshl_b32 s68, s{sNB if i else 81}, 12")
        a("s_add_u32 s68, s67, s68")
        for n in range(4): a(f"s_add_u32 s{DT + (1-i)*4 + n}, s68, {(n>>1)*144*1024 + (n&1)*1024}")
    a(f"v_mov_b32 v10, {f32(-GK1*0.044715)}")
    a(f"v_mov_b32 v11, {f32(-GK1*0.044715)}")
    a(f"v_mov_b32 v12, {f32(-GK1)}")
    a(f"v_mov_b32 v13, {f32(-GK1)}")
    stamp(a, 2, VS)
    a("s_barrier")
    stamp(a, 3, VS)
    for l in reads(FR0, 0, 3): a(l)

    def f_qk():
        l = []
        for t in range(2):
            b = acc(t, 4)
            for hh in range(2):
                l += [f"v_mul_f32 v{b+8*hh+i}, s86, v{b+8*hh+i}" for i in range(8)]
                l += [f"v_cvt_pk_bf16_f32 v{b+8*hh+i}, v{b+8*hh+2*i}, v{b+8*hh+2*i+1}" for i in range(4)]
                l.append(f"buffer_store_dwordx4 {vr(b+8*hh)}, v3, {WSR}, s{88+hh} offen offset:{t*1024}{STS}")
        return l
    def f_v():
        l = []
        for j in range(2):
            for t in range(2):
                b = acc(t, 2*j)
                for hh in range(2):
                    l += [f"v_cvt_pk_bf16_f32 v{b+8*hh+i}, v{b+8*hh+2*i}, v{b+8*hh+2*i+1}" for i in range(4)]
                    l.append(f"buffer_store_dwordx4 {vr(b+8*hh)}, v9, {WSR}, s{70+j} offen offset:{t*1024 + hh*512}{STS}")
        return l
    def f_gelu1():
        l = []
        for t in range(2):
            for q in range(4):
                G, U, T = acc(t, 0) + 4*q, acc(t, 2) + 4*q, 64 + (q & 1) * 4
                l += [f"v_mul_f32 v{T+p}, v{G+p}, v{G+p}" for p in range(4)]
                l += [f"v_fma_f32 v{T+p}, v{T+p}, v10, v12" for p in range(4)]
                l += [f"v_mul_f32 v{T+p}, v{T+p}, v{G+p}" for p in range(4)]
                for p in range(4): l += [f"v_exp_f32 v{T+p}, v{T+p}", f"v_mul_f32 v{U+p}, v{U+p}, v{G+p}"]
                l += [f"v_add_f32 v{T+p}, 1.0, v{T+p}" for p in range(4)]
                l += [f"v_rcp_f32 v{T+p}, v{T+p}" for p in range(4)]
                l += [f"v_mul_f32 v{U+p}, v{U+p}, v{T+p}" for p in range(4)]
                o = HP + 16 + t*8 + q*2
                l += [f"v_cvt_pk_bf16_f32 v{o+p}, v{U+2*p}, v{U+2*p+1}" for p in range(2)]
        return l
    SPK = int(ENV("SPK", "4"))
    def pass2(fill, PUBS, gap):
        cost = lambda x: 8 if x.startswith(("v_exp", "v_rcp")) else 4
        X2 = ENV("X2", "")
        if "F" in X2: fill = [x for x in fill if False]
        if "S" in X2: fill = [x for x in fill if not x.startswith("buffer_store")]
        if "G" in X2: fill = fill[:52]
        FS = (FR0, FR1, 72)
        lg = Lgkm(a)
        lg.q = [(0, i) for i in range(6)] + [("junk", 0)] * 2
        def rds(m):
            fs = FS[m % 3]
            wo_ = wslot(16 + (m >> 1))[0] - LW2 + (m & 1) * 2048
            X = lambda t: f"ds_read_b128 {vr(fs+4*t)}, v{VXA + (m & 3)} offset:{t*4096}"
            W = lambda u, j: f"ds_read_b64_tr_b16 {vr(fs+8+4*u+2*j, 2)}, v{VW} offset:{wo_ + u*4096 + j*512}"
            l = [((m, i), x) for i, x in enumerate([X(0), W(0,0), W(0,1), X(1), W(1,0), W(1,1)])]
            j = 8 + (m >> 2)
            if m < 28:
                dx = (((j + 1) % NXS) - (j % NXS)) * XSLOT & 0xffffffff
                l.append((None, f"v_add_u32 v{VXA + (m & 3)}, {dx:#x}, v{VXA + (m & 3)}"))
            return l
        def put(e):
            if e[0] is None: a(e[1])
            else: lg.rd(e[0], e[1])
        nxt_store = 0
        put(rds(0)[-1])
        for e in rds(1): put(e)
        for n in range(32):
            kk, st = n & 1, 16 + (n >> 1)
            cur = FS[n % 3]
            rd = rds(n + 2) if n + 2 < 32 else []
            nst = 0
            for g, (u, t) in enumerate(((0, 0), (0, 1), (1, 0), (1, 1))):
                ct = (1, 3)[u]
                before = len(a.lines)
                lg.need(*[(n, i) for i in range(6)])
                bud = 24 - 4 * (len(a.lines) - before)
                a(f"{MF} {vr(acc(t, ct), 16)}, {vr(cur + 8 + 4*u)}, {vr(cur + 4*t)}, {vr(acc(t, ct), 16)}")
                if g == 0 and kk == 0 and st <= LASTB:
                    if st == PUBS:
                        assert not any(x.startswith("buffer_store") for x in fill)
                        a("s_waitcnt vmcnt(0)"); bud -= 4
                    if "B" not in X2: a("s_barrier"); bud -= 4
                for _ in range(2):
                    if rd and len(lg.q) < 15: put(rd.pop(0)); bud -= 4
                while n >= 1 and fill and bud >= cost(fill[0]):
                    if fill[0].startswith("buffer_store"):
                        if 4*n + g < nxt_store: break
                        nxt_store = 4*n + g + gap
                    bud -= cost(fill[0]); a(fill.pop(0))
            assert not rd
        for x in fill: a(x)
        print("pass-2 filler left over:", len(fill), file=sys.stderr)
    a(f"s_cmp_eq_u32 s{sVC}, 1")
    a("s_cbranch_scc1 L_p1loopV")
    loop("L_p1loopA", (0, 2, 4), False, 2)
    stamp(a, 4, VS)
    pass2(f_qk() + f_gelu1(), PUBS, int(ENV('GAPA', '1')))
    a("s_branch L_p2done")
    loop("L_p1loopV", (0, 2, 4), True, 2)
    stamp(a, 4, VS)
    pass2(f_v() + f_qk(), PUBC, int(ENV('GAPC', '1')))
    a.label("L_p2done")
    stamp(a, 6, VS)
    n = 0
    for t in range(2):
        g, u = acc(t, 1), acc(t, 3)
        for hh in range(2):
            T = 16 + (n & 1) * 8; n += 1
            G, U = g + 8*hh, u + 8*hh
            for p in range(4): a(f"v_pk_mul_f32 {vr(T+2*p,2)}, {vr(G+2*p,2)}, {vr(G+2*p,2)}")
            for p in range(4): a(f"v_pk_fma_f32 {vr(T+2*p,2)}, {vr(T+2*p,2)}, v[10:11], v[12:13]")
            for p in range(4): a(f"v_pk_mul_f32 {vr(T+2*p,2)}, {vr(T+2*p,2)}, {vr(G+2*p,2)}")
            for p in range(8): a(f"v_exp_f32 v{T+p}, v{T+p}")
            for p in range(4): a(f"v_pk_mul_f32 {vr(U+2*p,2)}, {vr(U+2*p,2)}, {vr(G+2*p,2)}")
            for p in range(4): a(f"v_pk_add_f32 {vr(T+2*p,2)}, {vr(T+2*p,2)}, 1.0 op_sel_hi:[1,0]")
            for p in range(8): a(f"v_rcp_f32 v{T+p}, v{T+p}")
            for p in range(4): a(f"v_pk_mul_f32 {vr(U+2*p,2)}, {vr(U+2*p,2)}, {vr(T+2*p,2)}")
            o = HP + (t*2 + hh) * 4
            for p in range(4): a(f"v_cvt_pk_bf16_f32 v{o+p}, v{U+2*p}, v{U+2*p+1}")
    stamp(a, 7, VS)

PUBC = int(ENV("PUBC", "22"))
PUBS = int(ENV("PUBS", "22"))

def p1_loader(a):
    a.label("L_loader")
    if ENV("LPRIO", "1") == "1": a("s_setprio 3")
    a(f"s_sub_u32 s65, s{sWAVE}, 4")
    a("s_lshl_b32 s66, s65, 3")
    a("v_add_u32 v8, s66, v8")
    a("v_lshrrev_b32 v5, 4, v2")
    a("s_and_b32 s66, s65, 1")
    a("s_lshl_b32 s66, s66, 2")
    a("v_add_u32 v5, s66, v5")
    a("v_xor_b32 v5, v5, v4")
    a("v_lshlrev_b32 v5, 4, v5")
    a("v_lshl_add_u32 v12, v8, 10, v5")
    a(f"s_lshl_b32 s74, s{sMB}, 17")
    a("s_lshl_b32 s75, s65, 10")
    a(f"s_lshl_b32 s90, s{sNB}, 1")
    a(f"s_add_u32 s90, s90, s{sMB}")
    if ENV("ROT", "1") == "2":
        a(f"s_lshr_b32 s91, s{sNB}, 2")
        a("s_add_u32 s90, s90, s91")
    if ENV("ROT", "1") == "0": a("s_mov_b32 s90, 0")
    if ENV("ROT", "1") == "5": a(f"s_mov_b32 s90, s{sMB}")
    if ENV("ROT", "1") == "6": a(f"s_lshl_b32 s90, s{sNB}, 1")
    if ENV("ROT", "1") == "7":
        a(f"s_lshl_b32 s90, s{sNB}, 2")
        a(f"s_add_u32 s90, s90, s{sMB}")
    if ENV("ROT", "1") in ("3", "4"):
        a(f"s_add_u32 s90, s{sNB}, s{sMB}")
        a(f"s_lshl_b32 s90, s90, {1 if ENV('ROT') == '3' else 2}")
    a("s_lshl_b32 s91, s90, 1")
    issued = []
    DNT = " nt" if ENV("DNT") else ""
    PNT = " nt" if ENV("PNT") else ""
    def dma(voff, srdn, soff, m0val, pre):
        a(f"s_add_u32 m0, s75, {m0val}")
        a(pre)
        if "D" in ENV("X2", "") and voff == 10: a("s_nop 0")
        else: a(f"buffer_load_dwordx4 v{voff}, {SR(srdn)}, s{soff} offen{DNT} lds")
    def itemsW(s):
        base, size = wslot(s)
        free = max([-1] + [p + (p >= 16) for p in range(s) if wslot(p)[0] < base + size and base < wslot(p)[0] + wslot(p)[1]])
        def f(u):
            def g():
                if u == 0:
                    a(f"s_add_u32 s92, s91, {s if s < 16 else s + 2*KROT}")
                    a("s_and_b32 s92, s92, 15")
                    if s < 16:
                        a(f"s_mul_i32 s93, s92, {32*3072}")
                        a("s_mul_i32 s92, s92, s73")
                    else: a(f"s_mul_i32 s92, s92, {32*3584}")
                if s < 16:
                    if u == 0: dma(13, S_WA, 76, base, "s_add_u32 s76, s71, s92")
                    if u == 1: dma(13, S_WB, 76, base + 4096, "s_add_u32 s76, s69, s92")
                    if u == 2: dma(11, S_WC, 76, base + 8192, "s_add_u32 s76, s70, s93")
                else:
                    dma(10, (S_G, S_U)[u], 76, base + 4096*u, "s_add_u32 s76, s70, s92")
                issued.append(("W", s))
            return g
        return [(free, f(u)) for u in range(3 if s < 16 else 2)]
    def itemsX(j):
        base = LX + (j % NXS) * XSLOT
        def f(m):
            def g():
                if m == 0:
                    a(f"s_add_u32 s99, s90, {j if j < 8 else j + KROT}")
                    a("s_and_b32 s99, s99, 7")
                    a("s_lshl_b32 s99, s99, 7")
                    a("s_add_u32 s99, s99, s74")
                dma(12, S_X, 76, base + m*4096, f"s_add_u32 s76, s99, {m*32768}")
                issued.append(("X", j))
            return g
        if 8 <= j < 8 + NXS: return []
        return [(2*(j-NXS) + 1 + (j - NXS >= 8), f(m)) for m in range(4)]
    queue = []
    for j in range(16): queue += itemsX(j) + itemsW(2*j) + itemsW(2*j+1)
    def issue(nmax, bar):
        n = 0
        while queue and n < nmax and queue[0][0] <= bar:
            queue.pop(0)[1](); n += 1
    def wait_stage(s):
        assert sum(e == ("W", s) for e in issued) == (3 if s < 16 else 2) and sum(e == ("X", s // 2) for e in issued) == (0 if 8 <= s // 2 < 8 + NXS else 4), s
        last = max(k for k, e in enumerate(issued) if e == ("W", s) or e == ("X", s // 2))
        n = len(issued) - 1 - last
        assert n <= 63
        a(f"s_waitcnt vmcnt({n})")
    def wait_tag(tag):
        n = len(issued) - 1 - max(k for k, e in enumerate(issued) if e == tag)
        assert n <= 63
        a(f"s_waitcnt vmcnt({n})")
    stamp(a, 22, VS)
    issue(4, -1)
    a("s_lshl_b32 s66, s65, 8")
    a("s_or_b32 s66, s66, s2")
    a(f"s_cselect_b32 s83, {OOB:#x}, 0")
    a(f"s_add_u32 s84, s83, {WS_TAG}")
    a("v_mov_b32 v5, 0")
    a(f"buffer_load_dword v14, v5, {WSR}, s84 offen{ST}")
    issued.append(("T", 0))
    srd(a, S_G, 12, 13, 512 * 3584)
    srd(a, S_U, 14, 15, 512 * 3584)
    srd(a, S_WC, 6, 7, 512 * 3072)
    a(f"s_cmp_eq_u32 s{sVC}, 1")
    a(f"s_cselect_b32 s{S_WA}, s6, s12")
    a(f"s_cselect_b32 s{S_WA+1}, s7, s13")
    a(f"s_cselect_b32 s{S_WA+2}, s{S_WC+2}, s{S_G+2}")
    a(f"s_mov_b32 s{S_WA+3}, 0x00020000")
    a(f"s_cselect_b32 s{S_WB}, s6, s14")
    a(f"s_cselect_b32 s{S_WB+1}, s7, s15")
    a(f"s_mov_b32 s{S_WB+2}, s{S_WA+2}")
    a(f"s_mov_b32 s{S_WB+3}, 0x00020000")
    a("s_movk_i32 s66, 3072")
    a("s_cselect_b32 s66, s66, 3584")
    a("v_mul_u32_u24 v6, 3584, v8")
    a("v_add_u32 v10, v6, v9")
    a("v_mul_u32_u24 v6, 3072, v8")
    a("v_add_u32 v11, v6, v9")
    a("v_mul_u32_u24 v6, s66, v8")
    a("v_add_u32 v13, v6, v9")
    a("s_lshl_b32 s73, s66, 5")
    a("s_lshl_b32 s67, s81, 7")
    a(f"s_lshr_b32 s68, s{sNB}, 2")
    a("s_lshl_b32 s68, s68, 8")
    a("s_add_u32 s68, s68, 2048")
    a("s_add_u32 s69, s68, 128")
    a(f"s_cmp_eq_u32 s{sVC}, 1")
    a("s_cselect_b32 s71, s68, s67")
    a("s_cselect_b32 s69, s69, s67")
    a("s_mov_b32 s94, s71")
    a("s_mov_b32 s95, s69")
    a(f"s_lshl_b32 s70, s{sNB}, 7")
    PFK = ENV("PF", "0") == "4"
    if PFK:
        issue(3, -1)
        a("s_lshr_b32 s66, s2, 1")
        a("s_and_b32 s67, s2, 1")
        a("s_mul_i32 s68, s66, 3072")
        a("s_mul_i32 s76, s67, 1536")
        a("s_add_u32 s68, s68, s76")
        a("s_mul_i32 s66, s66, 3584")
        a("s_mul_i32 s67, s67, 768")
        a("s_add_u32 s66, s66, s67")
        a("s_add_u32 s66, s66, 2048")
        a("s_lshl_b32 s67, s2, 13")
        a("s_cmp_eq_u32 s65, 1")
        a("s_cselect_b32 s66, s68, s66")
        a("s_cselect_b32 s76, 11, 5")
        a(f"s_mov_b32 s77, {128*3584}")
        a(f"s_cselect_b32 s77, {128*3072}, s77")
        a("s_cselect_b32 s94, s6, s12")
        a("s_cselect_b32 s95, s7, s13")
        a("s_cmp_eq_u32 s65, 3")
        a("s_cselect_b32 s94, s14, s94")
        a("s_cselect_b32 s95, s15, s95")
        a("v_min_u32 v28, s76, v2")
        a("v_lshl_add_u32 v28, v28, 7, s66")
        a("v_bfe_u32 v29, v2, 1, 3")
        a("v_lshl_add_u32 v29, v29, 10, s67")
        a("v_and_b32 v27, 1, v2")
        a("v_lshl_add_u32 v29, v27, 7, v29")
        a("s_cmp_eq_u32 s65, 0")
        a("s_cselect_b32 s94, s4, s94")
        a("s_cselect_b32 s95, s5, s95")
        a("s_cselect_b32 s77, 256, s77")
        a("s_cselect_b64 vcc, -1, 0")
        a("v_cndmask_b32 v28, v28, v29, vcc")
        for n in [int(x) for x in ENV("PFPOS", "0,3,7,3").split(",")]:
            issue(n, -1)
            a("s_mov_b64 exec, 0xffff")
            a("global_load_dword v30, v28, s[94:95]")
            a("s_mov_b64 exec, -1")
            a("v_add_u32 v28, s77, v28")
            issued.append(("P", 0))
    else:
        issue(int(ENV("FIRST", "10")), -1)
    def prefetch(kinds):
        a("s_mov_b32 s94, s4"); a("s_mov_b32 s95, s5")
        for r in (66, 67, 68, 76): a(f"s_mov_b32 s{r}, 0")
        a("s_mov_b32 s77, 0")
        for lw, k in enumerate(kinds):
            if k is None: continue
            p, per, first, n, T, J = k
            a(f"s_cmp_eq_u32 s65, {lw}")
            a(f"s_cselect_b32 s94, s{p}, s94")
            a(f"s_cselect_b32 s95, s{p+1}, s95")
            a(f"s_cselect_b32 s66, {per}, s66")
            a(f"s_cselect_b32 s67, {first}, s67")
            a(f"s_cselect_b32 s68, {n-1}, s68")
            a(f"s_cselect_b32 s76, {T}, s76")
            a(f"s_cselect_b32 s77, {J}, s77")
        a("s_mul_i32 s66, s66, s2")
        a("s_add_u32 s66, s66, s67")
        a("v_min_u32 v28, s68, v2")
        a("v_mov_b32 v29, s77")
        a("v_cmp_le_u32 vcc, s76, v28")
        a("v_lshl_add_u32 v28, v28, 7, s66")
        a("v_cndmask_b32 v29, 0, v29, vcc")
        a("v_add_u32 v28, v28, v29")
        a("global_load_dword v30, v28, s[94:95]")
        issued.append(("P", 0))
    PF = ENV("PF", "0") in ("1", "3")
    PFX = ENV("PF", "0") in ("2", "3")
    def prefetch_x1():
        a("s_lshr_b32 s66, s2, 3")
        a("s_and_b32 s67, s2, 1")
        a("s_lshl_b32 s67, s67, 20")
        a("s_lshl_b32 s68, s66, 15")
        a("s_add_u32 s67, s67, s68")
        a("s_lshl_b32 s68, s65, 13")
        a("s_add_u32 s67, s67, s68")
        a("v_lshlrev_b32 v28, 7, v2")
        a("s_and_b32 s66, s66, 7")
        a("s_lshl_b32 s66, s66, 6")
        a("v_add_u32 v27, s66, v2")
        a("s_lshr_b32 s68, s73, 5")
        a("v_mul_u32_u24 v29, s68, v27")
        a("v_mul_u32_u24 v26, 3072, v27")
        a("s_cmp_eq_u32 s65, 0")
        a(f"s_cselect_b32 s66, s94, {OOB:#x}")
        a(f"buffer_load_dword v30, v29, {SR(S_WA)}, s66 offen{PNT}")
        a("s_cmp_eq_u32 s65, 1")
        a(f"s_cselect_b32 s66, s95, {OOB:#x}")
        a(f"buffer_load_dword v30, v29, {SR(S_WB)}, s66 offen{PNT}")
        a(f"s_lshl_b32 s66, s{sNB}, 7")
        a("s_cmp_eq_u32 s65, 2")
        a(f"s_cselect_b32 s66, s66, {OOB:#x}")
        a(f"buffer_load_dword v30, v26, {SR(S_WC)}, s66 offen{PNT}")
        a(f"buffer_load_dword v30, v28, {SR(S_X)}, s67 offen{PNT}")
        issued.extend([("P", 0)] * 4)
    def prefetch_x2():
        a("v_mul_u32_u24 v29, 3584, v27")
        a(f"s_lshl_b32 s67, s{sNB}, 7")
        a("s_cmp_eq_u32 s65, 1")
        a(f"s_cselect_b32 s66, s67, {OOB:#x}")
        a(f"buffer_load_dword v30, v29, {SR(S_G)}, s66 offen{PNT}")
        a("s_cmp_eq_u32 s65, 2")
        a(f"s_cselect_b32 s66, s67, {OOB:#x}")
        a(f"buffer_load_dword v30, v29, {SR(S_U)}, s66 offen{PNT}")
        issued.extend([("P", 0)] * 2)
    if PFX and not PF: prefetch_x1()
    if PF: prefetch([(4, 8192, 0, 64, 0, 0), (6, 6144, 0, 48, 0, 0), (12, 7168, 2048, 24, 12, 2048), (14, 7168, 2048, 24, 12, 2048)])
    srd(a, S_RO, 8, 9, 512 * 1024)
    a("v_and_b32 v15, 7, v8")
    a("v_lshl_add_u32 v15, v15, 10, v9")
    a("s_lshl_b32 s78, s65, 11")
    a(f"s_add_u32 s78, s78, {LRD}")
    a("s_lshr_b32 s66, s2, 3")
    a("s_and_b32 s67, s2, 7")
    a("s_lshl_b32 s66, s66, 14")
    a("s_lshl_b32 s67, s67, 7")
    a("s_add_u32 s66, s66, s67")
    a("s_and_b32 s67, s65, 1")
    a("s_lshl_b32 s68, s67, 13")
    a("s_lshl_b32 s67, s67, 10")
    a(f"s_add_u32 m0, s67, {LRO}")
    a("s_add_u32 s66, s66, s68")
    a(f"buffer_load_dwordx4 v15, {SR(S_RO)}, s66 offen{PNT} lds")
    issued.append(("P", 1))
    issue(int(ENV("BURST", "0")), -1)
    a("v_bfe_u32 v18, v2, 2, 2")
    a("v_and_b32 v31, 3, v2")
    a("v_bfe_u32 v19, v2, 4, 1")
    a("v_lshlrev_b32 v31, 3, v31")
    a("v_lshl_or_b32 v31, v19, 5, v31")
    a("v_lshrrev_b32 v19, 1, v18")
    a("v_lshl_or_b32 v31, v19, 6, v31")
    a("v_lshl_or_b32 v31, v18, 7, v31")
    a("v_lshrrev_b32 v19, 5, v2")
    a("v_lshl_or_b32 v31, v19, 9, v31")
    a("v_add_u32 v18, s78, v31")
    a("v_xor_b32 v19, 64, v18")
    a("s_cmp_eq_u32 s65, 0")
    a(f"s_cselect_b32 s82, s82, {OOB:#x}")
    a(f"s_cselect_b32 s85, 0, {OOB:#x}")
    a("v_mov_b32 v6, 1")
    a("v_lshlrev_b32 v4, 7, v2")
    for i in range(4): a(f"s_add_u32 s{86+i}, s85, {WS_F1 + i*8192}")
    stamp(a, 2, VS)
    wait_stage(0)
    stamp(a, 3, VS)
    a("s_barrier")
    a("v_add_u32 v14, 1, v14")
    a("v_max_u32 v14, 1, v14")
    one_lane(a, f"buffer_store_dword v14, v5, {WSR}, s84 offen{ST}")
    issued.append(("T", 1))
    def ld1():
        for i in range(4): a(f"buffer_load_dwordx2 {vr(20+2*i,2)}, v4, {WSR}, s{86+i} offen{ST}")
    PER1, PER2, PSW = [int(x) for x in ENV("PER", "6,4,12").split(",")]
    issue(int(ENV("PER0", "6")), -1)
    def cmp1():
        for i in range(4):
            a(f"v_xor_b32 v{20+2*i}, v{20+2*i}, v16")
            a(f"v_xor_b32 v{21+2*i}, v{21+2*i}, v17")
        a("v_or3_b32 v20, v20, v21, v22")
        a("v_or3_b32 v23, v23, v24, v25")
        a("v_or3_b32 v20, v20, v26, v27")
        a("v_or_b32 v20, v20, v23")
        a("v_cmp_ne_u32 vcc, 0, v20")
    def ltable(t, regs):
        for i in range(8): a(f"v_mov_b32 v{HP+8+i}, -1")
        r = regs[2]
        a(f"s_lshl_b32 s{r}, s{sQB}, 3")
        a(f"s_lshl_b32 s{t}, s65, 1")
        a(f"s_add_u32 s{r}, s{r}, s{t}")
        a(f"s_mul_i32 s{r}, s{r}, {144*1024}")
        a(f"s_lshl_b32 s{t}, s{sHEAD}, 10")
        a(f"s_add_u32 s{r}, s{r}, s{t}")
        a(f"s_add_u32 s{r}, s{r}, {WS_AF}")
        a(f"s_add_u32 s{regs[3]}, s{r}, {144*1024}")
    a(f"s_lshr_b32 s66, s{sHEAD}, 2")
    a("s_lshl_b32 s67, s66, 11")
    a(f"s_lshl_b32 s68, s{sQB}, 8")
    a("s_add_u32 s68, s68, s67")
    a(f"s_add_u32 s67, s67, {8*2048}")
    a(f"s_lshr_b32 s66, s{sHEAD}, 3")
    a("s_lshl_b32 s66, s66, 13")
    a(f"s_add_u32 s66, s66, {2*2048}")
    a("v_add_u32 v70, s67, v4")
    a("v_add_u32 v71, s66, v4")
    a("v_and_b32 v72, 1, v2")
    a("v_lshl_add_u32 v72, v72, 7, s68")
    a("v_cmp_gt_u32 vcc, 32, v2")
    a("v_cndmask_b32 v71, v72, v71, vcc")
    a("v_cmp_gt_u32 vcc, 16, v2")
    a("v_cndmask_b32 v70, v71, v70, vcc")
    def lda(): a(f"buffer_load_dwordx2 v[72:73], v70, {WSR}, s86 offen{ST}")
    def cmpa():
        a("v_xor_b32 v72, v72, v16")
        a("v_xor_b32 v73, v73, v17")
        a("v_or_b32 v72, v72, v73")
        a("v_cmp_ne_u32 vcc, 0, v72" if "1" not in ENV("WI", "") else "v_cmp_ne_u32 vcc, v72, v72")
    a(f"v_mov_b32 v7, {LCNT}")
    SIDE1, SIDE2 = [int(x) for x in ENV("SIDE", "19,26").split(",")]
    def side_out():
        wait_tag(("S", 0))
        for nl in range(2):
            for j in range(2): a(f"ds_read_b64_tr_b16 {vr(HP+4*nl+2*j,2)}, v{18+nl} offset:{j*1024}")
        a("v_mov_b32 v64, 0")
        a("v_mov_b32 v65, 0")
        for i in range(4):
            a(f"v_dot2_f32_bf16 v64, v{48+i}, v{56+i}, v64")
            a(f"v_dot2_f32_bf16 v65, v{52+i}, v{56+i}, v65")
        a("v_cmp_eq_u32 vcc, 0, v2")
        a("s_waitcnt lgkmcnt(0)")
        for mod in ("quad_perm:[1,0,3,2]", "quad_perm:[2,3,0,1]", "row_half_mirror", "row_mirror"):
            for r in (64, 65): a(f"v_add_f32_dpp v{r}, v{r}, v{r} {mod} row_mask:0xf bank_mask:0xf")
        for r, sb in ((64, 66), (65, 56)):
            for q in range(4): a(f"v_readlane_b32 s{sb+q}, v{r}, {16*q}")
        a("v_mov_b32 v66, s66")
        a("v_mov_b32 v67, s56")
        for q in range(1, 4):
            a(f"v_add_f32 v66, s{66+q}, v66")
            a(f"v_add_f32 v67, s{56+q}, v67")
        a("v_cndmask_b32 v66, v67, v66, vcc")
        a(f"v_mul_f32 v66, {f32(-LOG2E)}, v66")
        a("v_exp_f32 v66, v66")
        a("v_lshlrev_b32 v68, 2, v2")
        a("v_add_f32 v66, 1.0, v66")
        a("v_rcp_f32 v66, v66")
        a("s_lshl_b32 s71, s71, 2")
        a(f"s_add_u32 s71, s71, {WS_G}")
        one_lane(a, f"buffer_store_dword v66, v68, {WSR}, s71 offen{ST}", 3)
        issued.append(("S", 1))
    for s in range(LASTB + 1):
        E0 = int(ENV("EARLY", "-100"))
        if s in (4, 10, 16, 24) and E0 < 0: stamp(a, {4: 4, 10: 5, 16: 6, 24: 7}[s], VS)
        if 0 <= s - E0 < 6: stamp(a, [4, 7, 24, 27, 21, 30][s - E0], VS)
        if s == LASTB:
            assert not queue
            wait_stage(31)
        else: wait_stage(s + 1)
        if 0 <= s - E0 < 6: stamp(a, [5, 8, 25, 28, 22, 31][s - E0], VS)
        if s < 16 or "B" not in ENV("X2", ""): a("s_barrier")
        if 0 <= s - E0 < 5: stamp(a, [6, 9, 26, 29, 23][s - E0], VS)
        issue(PER1 if s < PSW else PER2, s)
        if s == 3:
            wait_tag(("T", 1))
            if ENV("FIX0"):
                a("v_mov_b32 v80, s96")
                one_lane(a, f"buffer_store_dword v80, v5, {SR(S_DBG)}, s83 offen offset:8{ST}")
                issued.append(("T", 2))
            one_lane(a, f"buffer_store_dword v14, v5, {SR(S_DBG)}, s83 offen{ST}")
            issued.append(("T", 2))
        if s == int(ENV("PFB", "5")) and (PF or PFK):
            prefetch([(16, 7168, 0, 56, 0, 0), None, (12, 7168, 0, 32, 16, 1536), (14, 7168, 0, 32, 16, 1536)])
        if s == int(ENV("PFB", "5")) and PFX: prefetch_x2()
        if s == int(ENV("PF2", "-1")):
            a("s_lshr_b32 s66, s2, 3")
            a("s_and_b32 s66, s66, 7")
            a("s_lshl_b32 s66, s66, 6")
            a("s_lshr_b32 s67, s65, 1")
            a("s_lshl_b32 s67, s67, 5")
            a("s_add_u32 s66, s66, s67")
            a("v_and_b32 v27, 31, v2")
            a("v_add_u32 v27, s66, v27")
            a("v_mul_u32_u24 v29, 3584, v27")
            a("v_add_u32 v29, s70, v29")
            a("s_bitcmp1_b32 s65, 0")
            a("s_cselect_b32 s94, s14, s12")
            a("s_cselect_b32 s95, s15, s13")
            a("s_mov_b64 exec, 0xffffffff")
            a("global_load_dword v30, v29, s[94:95]")
            a("s_mov_b64 exec, -1")
            a(f"s_mul_i32 s66, s{sHEAD}, 3")
            a("s_add_u32 s66, s66, s65")
            a(f"s_add_u32 s67, s{sHEAD}, 96")
            a("s_cmp_eq_u32 s65, 3")
            a("s_cselect_b32 s66, s67, s66")
            a("s_min_u32 s66, s66, 111")
            a("s_lshl_b32 s66, s66, 14")
            a(f"s_lshl_b32 s67, s{sQB}, 7")
            a("s_add_u32 s66, s66, s67")
            a("v_lshl_add_u32 v29, v2, 10, s66")
            a("s_mov_b64 exec, 0xffff")
            a("global_load_dword v30, v29, s[16:17]")
            a("s_mov_b64 exec, -1")
            issued.extend([("P", 0)] * 2)
        if s == 9:
            a("s_cmp_lg_u32 s65, 0")
            a("s_cbranch_scc1 L_nowo2")
            for nl in range(2):
                for j in range(2): a(f"ds_read_b64_tr_b16 {vr(36+4*nl+2*j,2)}, v{18+nl} offset:{LRO - LRD + j*1024}")
            a("s_lshr_b32 s66, s2, 3")
            a("s_and_b32 s67, s2, 7")
            a(f"s_mul_i32 s67, s67, {2*144*1024}")
            a("s_lshl_b32 s66, s66, 10")
            a("s_add_u32 s66, s66, s67")
            a(f"s_add_u32 s66, s66, {WS_WF}")
            a(f"s_add_u32 s67, s66, {144*1024}")
            a(f"s_lshl_b32 s68, s{sMB}, 11")
            a(f"s_lshl_b32 s76, s{sNB}, 7")
            a("s_add_u32 s68, s68, s76")
            a(f"s_add_u32 s68, s68, {WS_F2}")
            a(f"s_lshl_b32 s76, s{sQB}, 12")
            a(f"s_lshl_b32 s77, s{sHEAD}, 7")
            a("s_add_u32 s76, s76, s77")
            a(f"s_add_u32 s76, s76, {WS_F3}")
            zero(a, 44, 4)
            a("s_waitcnt lgkmcnt(0)")
            a(f"buffer_store_dwordx4 v[36:39], v3, {WSR}, s66 offen{STS}")
            a(f"buffer_store_dwordx4 v[40:43], v3, {WSR}, s67 offen{STS}")
            a("s_mov_b64 exec, 1")
            a(f"buffer_store_dwordx4 v[44:47], v3, {WSR}, s68 offen{STS}")
            a(f"buffer_store_dword v44, v3, {WSR}, s76 offen{ST}")
            a("s_mov_b64 exec, -1")
            a.label("L_nowo2")
        if s == SIDE1:
            srd(a, S_RD, 16, 17, 1792 * 1024)
            srd(a, S_GW, 18, 19, 1024)
            a(f"s_mul_i32 s66, s{sHEAD}, 3")
            a("s_add_u32 s66, s66, s65")
            a(f"s_add_u32 s67, s{sHEAD}, 96")
            a("s_cmp_eq_u32 s65, 3")
            a("s_cselect_b32 s66, s67, s66")
            a("s_lshl_b32 s69, s66, 14")
            a(f"s_lshl_b32 s68, s{sQB}, 7")
            a("s_mov_b32 m0, s78")
            a("s_add_u32 s69, s69, s68")
            a(f"buffer_load_dwordx4 v15, {SR(S_RD)}, s69 offen{PNT} lds")
            a("s_add_u32 m0, s78, 1024")
            a("s_add_u32 s69, s69, 8192")
            a(f"buffer_load_dwordx4 v15, {SR(S_RD)}, s69 offen{PNT} lds")
            a(f"s_mul_i32 s79, s{sQB}, {2*144*1024}")
            a("s_lshl_b32 s67, s66, 10")
            a("s_add_u32 s79, s79, s67")
            a(f"s_add_u32 s79, s79, {WS_WF + 32*1024}")
            a("s_cmp_lt_u32 s66, 112")
            a(f"s_cselect_b32 s79, s79, {OOB:#x}")
            a(f"s_add_u32 s80, s79, {144*1024}")
            a(f"s_lshl_b32 s71, s{sMB}, 7")
            a(f"s_lshl_b32 s67, s{sNB}, 3")
            a("s_add_u32 s71, s71, s67")
            a("s_lshl_b32 s67, s65, 1")
            a("s_add_u32 s71, s71, s67")
            a("s_lshl_b32 s67, s71, 10")
            a(f"buffer_load_dwordx4 v[48:51], v3, {SR(S_X)}, s67 offen")
            a(f"buffer_load_dwordx4 v[52:55], v3, {SR(S_X)}, s67 offen offset:1024")
            a(f"buffer_load_dwordx4 v[56:59], v3, {SR(S_GW)}, 0 offen")
            issued.extend([("S", 0)] * 5)
        if s == SIDE2:
            side_out()
            if LEARLY:
                ltable(68, (79, 80, 66, 67))
                for n, r in enumerate((79, 80, 66, 67)): a(f"buffer_store_dwordx4 {vr(HP+4*n)}, v3, {WSR}, s{r} offen{STS}")
                issued.extend([("S", 1)] * 4)
        if s == 14:
            a(f"buffer_load_dword v16, v5, {SR(S_DBG)}, s85 offen{ST}")
            issued.append(("T", 3))
        if s == min(PUBS, PUBC) - 1:
            a("s_cmp_lg_u32 s65, 0")
            a("s_cbranch_scc1 L_tagdone")
            wait_tag(("T", 3))
            a("v_cmp_eq_u32 vcc, 0, v16")
            a("s_cbranch_vccz L_pt_ok")
            poll(a, "L_pt", lambda: a(f"buffer_load_dword v16, v5, {SR(S_DBG)}, 0 offen{ST}"), lambda: a("v_cmp_eq_u32 vcc, 0, v16"))
            a("v_not_b32 v17, v16")
            a.label("L_tagdone")
        for typ, at in ((0, PUBS), (1, PUBC)):
            if s == at:
                a(f"s_lshl_b32 s66, s65, 1")
                a(f"s_add_u32 s66, s66, s{sVC}")
                a(f"s_cmp_lg_u32 s66, {typ}")
                a(f"s_cbranch_scc1 L_f1done{typ}")
                one_lane(a, f"buffer_store_dwordx2 v[16:17], v5, {WSR}, s82 offen{ST}")
                a.label(f"L_f1done{typ}")
        if s == LASTB - 1:
            lda(); issued.append(("F", 0))
    a("s_cmp_ge_u32 s65, 2")
    a("s_cbranch_scc1 L_nocs")
    const_setup(a, 9, 32, 8)
    const_write(a, 9, 32)
    a.label("L_nocs")
    if E0 < 0: stamp(a, 8, VS)
    a("s_cmp_lg_u32 s65, 0")
    a("s_cbranch_scc1 L_wl")
    a("s_waitcnt vmcnt(0)")
    cmpa()
    a("s_cbranch_vccz L_ps1_ok")
    poll(a, "L_ps1", lda, cmpa)
    a("ds_write_b32 v7, v6")
    a("s_branch L_wl_ok")
    a.label("L_wl")
    a(f"s_mov_b32 s98, {SPIN*8}")
    a.label("L_wl2")
    a("ds_read_b32 v8, v7")
    a("s_waitcnt lgkmcnt(0)")
    a("v_cmp_ne_u32 vcc, 1, v8")
    a("s_cbranch_vccz L_wl_ok")
    a("s_sleep 1")
    a("s_sub_u32 s98, s98, 1")
    a("s_cmp_lg_u32 s98, 0")
    a("s_cbranch_scc1 L_wl2")
    a.label("L_wl_ok")
    if E0 < 0: stamp(a, 9, VS)
    a(f"s_lshl_b32 s56, s{sHEAD}, 16")
    a(f"s_lshl_b32 s67, s{sQB}, 13")
    a("s_lshl_b32 s57, s65, 11")
    a("s_add_u32 s59, s67, s57")
    a("s_add_u32 s67, s59, s56")
    a(f"s_add_u32 m0, s57, {LQI}")
    a(f"s_add_u32 s67, s67, {WS_QK}")
    for i in range(2): a(f"buffer_load_dwordx4 v3, {WSR}, s67 offen offset:{i*1024}{ST} lds")
    a(f"s_mul_i32 s58, s65, {2*VST}")
    kv8(a, 0)
    a(f"s_mov_b32 s{DT}, s79")
    a(f"s_mov_b32 s{DT+1}, s80")
    ltable(68, (DT, DT+1, DT+2, DT+3))
    a(f"v_mov_b32 v{WO}, v16")
    a(f"v_mov_b32 v{WO+1}, v17")
    a("s_branch L_attn")

def kv8(a, p0):
    a(f"s_add_u32 s94, s59, {p0*1024}")
    a("s_and_b32 s94, s94, 0xffff")
    a("s_add_u32 s94, s94, s56")
    a(f"s_add_u32 m0, s57, {LK + p0*1024}")
    a(f"s_add_u32 s67, s94, {WS_QK + 32*65536}")
    for i in range(2): a(f"buffer_load_dwordx4 v3, {WSR}, s67 offen offset:{i*1024}{ST} lds")
    a(f"s_add_u32 s67, s94, {WS_V}")
    for i in range(2):
        a(f"s_add_u32 m0, s58, {LV + (p0+i)*VST - i*1024}")
        a(f"buffer_load_dwordx4 v3, {WSR}, s67 offen offset:{i*1024}{ST} lds")

LEARLY = False
def const_setup(a, va, vd, t):
    a(f"v_and_b32 v{t}, 255, v0")
    a(f"v_lshrrev_b32 v{va}, 2, v{t}")
    a(f"v_mul_u32_u24 v{va}, {VST}, v{va}")
    a(f"v_and_b32 v{t}, 3, v{t}")
    a(f"v_mul_u32_u24 v{t}, v{t}, v{t}")
    a(f"v_min_u32 v{t}, 4, v{t}")
    a(f"v_lshl_add_u32 v{va}, v{t}, 4, v{va}")
    a(f"v_add_u32 v{va}, {LV + 1024}, v{va}")
    a(f"v_mov_b32 v{vd}, 0x3f803f80")
    if ONE_ROW:
        a(f"v_cmp_eq_u32 vcc, 0, v{t}")
        a(f"v_cndmask_b32 v{vd}, 0, v{vd}, vcc")
    a(f"v_mov_b32 v{vd+1}, v{vd}")
def const_write(a, va, vd):
    a(f"ds_write_b64 v{va}, {vr(vd,2)}")
    a(f"ds_write_b64 v{va}, {vr(vd,2)} offset:8")

def attn(a):
    a.label("L_attn")
    a(f"s_and_b32 s65, s{sWAVE}, 3")
    a(f"s_lshr_b32 s66, s{sWAVE}, 2")
    a("s_lshl_b32 s67, s66, 10")
    a(f"v_add_u32 v{VK}, s67, v3")
    a(f"v_add_u32 v8, {VROT}, v2")
    a("v_and_b32 v8, 15, v8")
    a("v_lshrrev_b32 v9, 5, v2")
    a("v_lshl_or_b32 v8, v9, 4, v8")
    a("v_lshlrev_b32 v8, 4, v8")
    a("v_add_u32 v9, 512, v8")
    a("v_and_b32 v10, 31, v2")
    a("v_subrev_u32 v11, 20, v10")
    a("v_cmp_gt_u32 vcc, 8, v11")
    a("v_mov_b32 v11, 1040")
    a("v_mov_b32 v12, 1088")
    a("v_cndmask_b32 v11, v11, v12, vcc")
    a("v_cmp_eq_u32 vcc, 16, v10")
    a("v_mov_b32 v12, 1024")
    a("v_cndmask_b32 v11, v11, v12, vcc")
    a("v_cmp_gt_u32 vcc, 16, v10")
    a("v_cndmask_b32 v8, v11, v8, vcc")
    a("v_cndmask_b32 v9, v11, v9, vcc")
    a(f"s_mul_i32 s67, s66, {VST}")
    a(f"s_add_u32 s67, s67, {LV}")
    a(f"v_add_u32 v{VV0}, s67, v8")
    a(f"v_add_u32 v{VV1}, s67, v9")
    a("s_lshl_b32 s67, s65, 11")
    a(f"s_add_u32 s67, s67, {LQI}")
    a("v_add_u32 v20, s67, v3")
    zero(a, OA, 32); zero(a, V1, 4); zero(a, GACC, 32)
    T0 = GFR + 36
    a(f"s_lshl_b32 s73, s{sMB}, 11")
    a(f"s_lshl_b32 s74, s{sNB}, 7")
    a("s_add_u32 s73, s73, s74")
    a(f"s_add_u32 s73, s73, {WS_F2}")
    a(f"s_lshl_b32 s74, s{sQB}, 12")
    a(f"s_lshl_b32 s75, s{sHEAD}, 7")
    a("s_add_u32 s74, s74, s75")
    a(f"s_add_u32 s74, s74, {WS_F3}")
    a(f"v_mov_b32 v{T0+2}, s73")
    a(f"v_writelane_b32 v{T0+2}, s74, 1")
    a(f"v_mov_b32 v{T0+3}, 1")
    a(f"v_mov_b32 v{T0+4}, {LCNT+4}")
    g = T0 + 5
    a(f"v_and_b32 v{g+2}, 15, v2")
    a(f"v_lshlrev_b32 v{g+2}, 7, v{g+2}")
    a(f"s_lshr_b32 s74, s{sHEAD}, 1")
    a("s_lshl_b32 s74, s74, 11")
    a(f"s_add_u32 s74, s74, {WS_F2}")
    a(f"s_lshl_b32 s88, s{sQB}, 12")
    a(f"s_lshr_b32 s89, s{sHEAD}, 2")
    a("s_lshl_b32 s89, s89, 12")
    a("s_sub_u32 s89, s89, 4096")
    a(f"v_mov_b32 v{g}, s88")
    a(f"v_mov_b32 v{g+1}, s89")
    a("v_cmp_gt_u32 vcc, 32, v2")
    a(f"v_cndmask_b32 v{g}, v{g+1}, v{g}, vcc")
    a(f"v_lshl_add_u32 v{g+3}, v2, 7, v{g}")
    a(f"s_mov_b32 s88, {WS_F3}")
    a(f"s_and_b32 s68, s{sWAVE}, 1")
    a(f"s_lshr_b32 s69, s{sWAVE}, 1")
    a(f"s_lshl_b32 s84, s{sHEAD}, 1")
    a("s_add_u32 s84, s84, s68")
    a(f"s_mul_i32 s85, s84, {144*1024}")
    a(f"s_add_u32 s85, s85, {WS_AF}")
    a(f"s_mul_i32 s86, s{sQB}, {2*144*1024}")
    a(f"s_add_u32 s86, s86, {WS_WF}")
    a(f"s_mul_i32 s75, s69, {28*1024}")
    a(f"s_add_u32 s75, s75, {32*1024}")
    a("s_add_u32 s76, s85, s75")
    a("s_add_u32 s77, s86, s75")
    a(f"s_add_u32 s78, s77, {144*1024}")
    a("s_lshl_b32 s75, s69, 13")
    a("s_add_u32 s85, s85, s75")
    a("s_add_u32 s86, s86, s75")
    a(f"v_mov_b32 v{VG}, v3")
    a("s_movk_i32 s87, 4096")
    a(f"s_lshl_b32 s90, s{sHEAD}, 16")
    a(f"s_lshl_b32 s91, s{sWAVE}, 10")
    a(f"s_mul_i32 s92, s{sWAVE}, {VST}")
    a(f"s_lshl_b32 s93, s{sQB}, 13")
    a("s_add_u32 s93, s93, s91")
    const_setup(a, T0+9, T0+10, T0)
    a(f"v_lshlrev_b32 v{WO+2}, 7, v2")
    a(f"s_cmp_lt_u32 s{sWAVE}, 4")
    a("s_cbranch_scc1 L_x1")
    for p0 in (8, 16, 24): kv8(a, p0)
    a("s_waitcnt vmcnt(8)")
    a.label("L_x1")
    a("s_waitcnt lgkmcnt(0)")
    a("s_setprio 3")
    a("s_barrier")
    stamp(a, 10, VS)
    a(f"ds_read_b128 {vr(QA)}, v20")
    a(f"ds_read_b128 {vr(QB)}, v20 offset:1024")
    a(f"ds_read_b128 {vr(V0B)}, v3")
    a(f"ds_read_b128 {vr(KF)}, v{VK}")
    a(f"ds_read_b128 {vr(V0A)}, v{VV0}")
    a(f"s_cmp_lt_u32 s{sWAVE}, 6")
    a("s_cbranch_scc1 L_nocs2")
    const_write(a, T0+9, T0+10)
    a.label("L_nocs2")
    def kvops(groups):
        ops = []
        for p0 in groups:
            ops.append([f"s_add_u32 s94, s93, {p0*1024}", "s_and_b32 s94, s94, 0xffff", "s_add_u32 s94, s94, s90",
                        f"s_add_u32 m0, s91, {LK + p0*1024}", f"s_add_u32 s67, s94, {WS_QK + 32*65536}",
                        f"buffer_load_dwordx4 v3, {WSR}, s67 offen{ST} lds"])
            ops.append([f"s_add_u32 m0, s92, {LV + p0*VST}", f"s_add_u32 s67, s94, {WS_V}",
                        f"buffer_load_dwordx4 v3, {WSR}, s67 offen{ST} lds"])
        return ops
    def burst(young):
        if "H" in ENV("WI", ""): return
        t = "y" if young else "o"
        a(f"s_cmp_{'lt' if young else 'ge'}_u32 s{sWAVE}, 4")
        a(f"s_cbranch_scc1 L_st4{t}")
        for n in range(4): a(f"buffer_store_dwordx4 {vr(HP+4*n)}, v3, {WSR}, s{DT+n} offen{STS}")
        if not young:
            a(f"s_cmp_lg_u32 s{sVC}, 0")
            a(f"s_cbranch_scc1 L_st4{t}")
            for n in range(4, 8): a(f"buffer_store_dwordx4 {vr(HP+4*n)}, v3, {WSR}, s{DT+n} offen{STS}")
        a.label(f"L_st4{t}")
    BURSTK = int(ENV("BURSTK", "2"))
    burst(False)
    if BURSTK < 0: burst(True)
    stamp(a, 21, VS) if not ENV("EARLY") else None
    a("s_waitcnt lgkmcnt(0)")
    a(f"{MF} {vr(SA,16)}, {vr(V0B)}, {vr(QA)}, 0")
    a(f"{MF} {vr(SB,16)}, {vr(V0B)}, {vr(QB)}, 0")
    rowmax(a, SA, T0)
    rowmax(a, SB, T0, acc=True)
    halfmax(a, T0, T0 + 1)
    for i in range(16): a(f"v_sub_f32 v{CC+i}, 0, v{T0}")
    a("s_waitcnt lgkmcnt(0)")
    a(f"{MF} {vr(SA,16)}, {vr(KF)}, {vr(QA)}, {vr(CC,16)}")
    zero(a, SB + 8, 4)
    a("s_nop 9")

    TV = ENV("TV", "0")
    def tile(n, which, extra, extra0=lambda: None, late=lambda: None):
        S, T, O, OT, QT = (SA, SB, OA, OB, QB) if which == 0 else (SB, SA, OB, OA, QA)
        v0 = V0A if n % 2 == 0 else V0B
        v0n = V0B if n % 2 == 0 else V0A
        e = lambda i: a(f"v_exp_f32 v{S+i}, v{S+i}")
        c = lambda i: a(f"v_cvt_pk_bf16_f32 v{S + (i>>2)*8 + (i&3)}, v{S+2*i}, v{S+2*i+1}")
        pv2 = lambda: a(f"{MF} {vr(OT,16)}, {vr(V1)}, {vr(T+8)}, {vr(OT,16)}")
        qk = lambda: a(f"{MF} {vr(T,16)}, {vr(KF)}, {vr(QT)}, {vr(CC,16)}")
        pv1 = lambda: a(f"{MF} {vr(O,16)}, {vr(v0)}, {vr(S)}, {vr(O,16)}")
        def rdv():
            if which == 0:
                a(f"ds_read_b128 {vr(V1)}, v{VV1} offset:{2*n*VST}")
                a(f"ds_read_b128 {vr(v0n)}, v{VV0} offset:{2*(n+1)*VST}")
        def rdk():
            if which == 0: a(f"ds_read_b128 {vr(KF)}, v{VK} offset:{2*(n+1)*1024}")
        if TV == "0":
            e(0); e(1)
            if which == 1: a("s_waitcnt lgkmcnt(0)")
            pv2(); rdv()
            e(2); e(3); e(4); e(5)
            qk(); rdk()
            e(6); e(7); e(8)
            extra0()
            for i in range(4): c(i)
            e(9); e(10)
            pv1()
            e(11); e(12); e(13); e(14)
            extra()
            e(15)
            for i in range(4, 8): c(i)
            late()
        elif TV == "1":
            e(0); e(1)
            if which == 1: a("s_waitcnt lgkmcnt(0)")
            pv2(); rdv()
            e(2); e(3); e(4); e(5); e(6)
            qk(); rdk()
            e(7); c(0); c(1); c(2); extra0(); c(3); e(8); e(9)
            pv1()
            e(10); e(11); e(12); e(13); e(14)
            extra()
            e(15)
            for i in range(4, 8): c(i)
            late()
        elif TV == "2":
            e(0); e(1)
            if which == 1: a("s_waitcnt lgkmcnt(0)")
            pv2(); rdv()
            e(2); c(0); e(3); e(4); c(1); e(5)
            qk(); rdk()
            e(6); c(2); e(7); e(8); extra0(); c(3); e(9); e(10)
            pv1()
            c(4); e(11); e(12); c(5); e(13); e(14)
            extra()
            c(6); e(15); late(); a("s_nop 0") if False else None
            c(7)
    def bump(n):
        a(f"v_add_u32 v{VK}, {2*n*1024}, v{VK}")
        a(f"v_add_u32 v{VV0}, {2*n*VST}, v{VV0}")
        a(f"v_add_u32 v{VV1}, {2*n*VST}, v{VV1}")
    PRIO = ENV("PRIO", "1") == "1"
    DPER, DRAIN = int(ENV("DPER", "1")), int(ENV("DRAIN", "10"))
    wo = list(range(16))
    g = T0 + 5
    def ld2():
        a(f"buffer_load_dword v{g}, v{g+2}, {WSR}, s74 offen{ST}")
        a(f"buffer_load_dword v{g+1}, v{g+3}, {WSR}, s88 offen{ST}")
    def cmp2():
        a(f"v_and_b32 v{g}, v{g}, v{g+1}")
        a(f"v_cmp_ne_u32 vcc, 1, v{g}" if "2" not in ENV("WI", "") else f"v_cmp_ne_u32 vcc, v{g}, v{g}")
    def ldswait(name, off, val):
        a(f"s_mov_b32 s98, {SPIN*8}")
        a.label(name)
        a(f"ds_read_b32 v{T0}, v{T0+1} offset:{off}")
        a("s_waitcnt lgkmcnt(0)")
        a(f"v_cmp_ne_u32 vcc, {val}, v{T0}")
        a(f"s_cbranch_vccz {name}_ok")
        a("s_sleep 1")
        a("s_sub_u32 s98, s98, 1")
        a("s_cmp_lg_u32 s98, 0")
        a(f"s_cbranch_scc1 {name}")
        a.label(f"{name}_ok")
    a(f"v_mov_b32 v{T0+1}, {LCNT}")
    S2W = int(ENV('S2WAVE', '0'))
    S2AT = int(ENV('S2AT', '14'))
    def ldwo(i):
        if "W" in ENV("WI", "") and i >= 2: return
        if i % 4 == 0: a(f"s_add_u32 s71, s86, {(i>>3)*144*1024 + (i&7)*1024}")
        a(f"buffer_load_dwordx4 {vr(WO + 4*i)}, v3, {WSR}, s71 offen offset:{(i&3)*1024}{'' if 'O' in ENV('XG', 'Q') else ST}")
    PK = [int(x) for x in ENV("PK", "3,7,12").split(",")]
    ops = kvops((32, 40, 48, 56))
    ops = [(lambda l=l: [a(x) for x in l]) for l in ops]
    def ldb():
        for i in range(4):
            a(f"s_mov_b32 s70, {WS_F1 + i*8192}")
            a(f"buffer_load_dwordx2 {vr(WO+4+2*i,2)}, v{WO+2}, {WSR}, s70 offen{ST}")
    def cmpb():
        b = WO + 4
        for i in range(4):
            a(f"v_xor_b32 v{b+2*i}, v{b+2*i}, v{WO}")
            a(f"v_xor_b32 v{b+2*i+1}, v{b+2*i+1}, v{WO+1}")
        a(f"v_or3_b32 v{b}, v{b}, v{b+1}, v{b+2}")
        a(f"v_or3_b32 v{b+3}, v{b+3}, v{b+4}, v{b+5}")
        a(f"v_or3_b32 v{b}, v{b}, v{b+6}, v{b+7}")
        a(f"v_or_b32 v{b}, v{b}, v{b+3}")
        a(f"v_cmp_ne_u32 vcc, 0, v{b}")
    DRAIN = int(ENV("DRAIN", "5"))
    KVW = int(ENV("KVW", "10"))
    nkv = 8
    slots = 2 * (15 - DRAIN) - 1
    def emit_ops():
        nonlocal slots
        n = -(-len(ops) // slots); slots -= 1
        n = min(n, len(ops)) if slots % 2 == 0 else 0
        for _ in range(n): ops.pop(0)()
    for k in range(16):
        if PRIO and k in PK: a(f"s_setprio {2 - PK.index(k)}")
        kcur = k
        if k == KVW: ldswait("L_kvw", 4, 8)
        if k == S2AT:
            a(f"s_cmp_lg_u32 s{sWAVE}, {S2W}")
            a("s_cbranch_scc1 L_s2a")
            ld2()
            a.label("L_s2a")
        def extra():
            if k == BURSTK: burst(True)
            if k == DRAIN - 2:
                a(f"s_cmp_lg_u32 s{sWAVE}, 4")
                a("s_cbranch_scc1 L_s1b0")
                ldb()
                a.label("L_s1b0")
            if k == DRAIN:
                stamp(a, 23, VS) if not ENV("EARLY") else None
                a("s_waitcnt vmcnt(0)")
                stamp(a, 24, VS) if not ENV("EARLY") else None
                a(f"s_cmp_lg_u32 s{sWAVE}, 4")
                a("s_cbranch_scc1 L_ps1b_ok")
                cmpb()
                a("s_cbranch_vccz L_ps1b_ok")
                poll(a, "L_ps1b", ldb, cmpb)
                one_lane(a, f"ds_add_rtn_u32 v{T0+4}, v{T0+4}, v{T0+3}")
            if k > DRAIN: emit_ops()
        def extra0():
            if k == DRAIN + 1:
                a("s_waitcnt lgkmcnt(0)")
                a(f"v_readfirstlane_b32 s70, v{T0+4}")
                a("s_cmp_eq_u32 s70, 7")
                a(f"s_cselect_b32 s70, 0, {OOB:#x}")
                one_lane(a, f"buffer_store_dword v{T0+3}, v{T0+2}, {WSR}, s70 offen{ST}", 3)
            if k > DRAIN + 1: emit_ops()
        nleft = len(ops)
        if k == S2AT: after_s2 = nleft
        tile(k >> 1, k & 1, extra, extra0)
    assert not ops
    stamp(a, 11, VS)
    a(f"s_cmp_lg_u32 s{sWAVE}, {S2W}")
    a("s_cbranch_scc1 L_s2b")
    a(f"s_waitcnt vmcnt({after_s2})")
    cmp2()
    a("s_cbranch_vccz L_ps2_ok")
    poll(a, "L_ps2", ld2, cmp2)
    a(f"ds_write_b32 v{T0+1}, v{T0+3} offset:8")
    a("s_waitcnt lgkmcnt(0)")
    a("s_branch L_s2w_ok")
    a.label("L_s2b")
    ldswait("L_s2w", 8, 1)
    stamp(a, 16, VS)
    if PRIO: a("s_setprio 3")
    bump(8)
    def gld(buf, q, off): a(f"buffer_load_dwordx4 {vr(GFR + 12*buf + 4*q)}, v{VG}, {WSR}, s{76+q} offen offset:{off}{'' if ('P' in ENV('XG', 'Q') or ('Q' in ENV('XG', 'Q') and q)) else ST}")
    def gm(buf, j):
        d = vr(GACC + 16*j, 16)
        a(f"{MF} {d}, {vr(GFR + 12*buf + 4 + 4*j)}, {vr(GFR + 12*buf)}, {d}")
    vq = []
    def gl(kt, q):
        gld(kt & 3, q, (kt & 3) * 1024); vq.append(("g", kt))
    def vneed(tag):
        n = len(vq) - 1 - max(i for i, e in enumerate(vq) if e == tag)
        a(f"s_waitcnt vmcnt({n})")
    for kt in range(4):
        for q in (1, 0, 2): gl(kt, q)
    a(f"v_mov_b32 v0, {LCNT}")
    a("v_mov_b32 v2, 1")
    PU = [int(x) for x in ENV("PU", "40,52,60").split(",")]
    wo = list(range(16))
    base = 8
    for k in range(16, 64):
        n, kt, j = k >> 1, (k - 16) >> 1, k & 1
        if k == 40: bump(12); base = 20
        if PRIO and k in PU: a(f"s_setprio {2 - PU.index(k)}")
        if k == 30:
            a(f"s_mov_b32 s98, {SPIN*8}")
            a.label("L_kv2")
            a("ds_read_b32 v2, v0 offset:12")
            a("s_waitcnt lgkmcnt(0)")
            a("v_cmp_ne_u32 vcc, 8, v2")
            a("s_cbranch_vccz L_kv2_ok")
            a("s_sleep 1")
            a("s_sub_u32 s98, s98, 1")
            a("s_cmp_lg_u32 s98, 0")
            a("s_cbranch_scc1 L_kv2")
            a.label("L_kv2_ok")
        def extra():
            if j == 0:
                if kt % 4 == 0: a(f"v_add_u32 v{VG}, 4096, v{VG}")
                vneed(("g", kt))
            gm(kt & 3, j)
            if j == 0: gl(kt + 4, 1)
            else: gl(kt + 4, 0); gl(kt + 4, 2)
        def extra0():
            if k == 17: one_lane(a, "ds_add_u32 v0, v2 offset:12")
            if k % 3 == 1 and wo: ldwo(wo.pop(0)); vq.append(("wo", 0))
        tile(n - base, j, extra, extra0)
    assert not wo
    bump(12)
    a("v_lshrrev_b32 v2, 4, v3")
    if STAMP: a(f"v_lshl_add_u32 v0, s{sWAVE}, 6, v2")
    a(f"{MF} {vr(OB,16)}, {vr(V1)}, {vr(SB+8)}, {vr(OB,16)}")
    stamp(a, 17, VS)
    a(f"s_mul_i32 s79, s{sWAVE}, 2304")
    a(f"s_add_u32 s79, s79, {LQ}")
    a(f"s_xor_b32 s80, s{sWAVE}, 4")
    a("s_mul_i32 s80, s80, 2304")
    a(f"s_add_u32 s80, s80, {LQ}")
    a(f"v_add_u32 v{KF}, s79, v3")
    a(f"v_add_u32 v{KF+1}, s80, v3")
    a(f"v_lshl_add_u32 v{KF+2}, v2, 2, s79")
    a(f"v_lshl_add_u32 v{KF+3}, v2, 2, s80")
    a(f"v_and_b32 v{V0A}, 31, v2")
    a(f"v_lshlrev_b32 v{V0A}, 2, v{V0A}")
    a("s_lshl_b32 s79, s84, 7")
    a(f"s_add_u32 s79, s79, {WS_G}")
    VGT = V0B
    a(f"buffer_load_dword v{VGT}, v{V0A}, {WSR}, s79 offen{ST}")
    a("s_cmp_eq_u32 s66, 0")
    a("s_cbranch_scc1 L_keepA")
    a(f"ds_write_b128 v{KF}, {vr(OA)}")
    a(f"ds_write_b128 v{KF}, {vr(OA+4)} offset:1024")
    a(f"ds_write_b32 v{KF+2}, v{OA+8} offset:2048")
    for i in range(9): a(f"v_mov_b32 v{OA+i}, v{OB+i}")
    for i in range(4): a(f"v_mov_b32 v{QA+i}, v{QB+i}")
    a("s_branch L_sent")
    a.label("L_keepA")
    a(f"ds_write_b128 v{KF}, {vr(OB)}")
    a(f"ds_write_b128 v{KF}, {vr(OB+4)} offset:1024")
    a(f"ds_write_b32 v{KF+2}, v{OB+8} offset:2048")
    a.label("L_sent")
    a(f"s_lshl_b32 s79, s{sQB}, 3")
    a("s_lshl_b32 s80, s65, 1")
    a("s_add_u32 s79, s79, s80")
    a("s_add_u32 s79, s79, s66")
    a(f"s_mul_i32 s81, s79, {144*1024}")
    a(f"s_lshl_b32 s80, s{sHEAD}, 10")
    a("s_add_u32 s81, s81, s80")
    a(f"s_add_u32 s81, s81, {WS_AF}")
    a("s_waitcnt lgkmcnt(0)")
    a("s_barrier")
    a(f"ds_read_b128 {vr(OB)}, v{KF+1}")
    a(f"ds_read_b128 {vr(OB+4)}, v{KF+1} offset:1024")
    a(f"ds_read_b32 v{OB+8}, v{KF+3} offset:2048")
    a("s_waitcnt lgkmcnt(0)")
    for i in range(9): a(f"v_add_f32 v{OA+i}, v{OA+i}, v{OB+i}")
    def lbcast():
        if ONE_ROW:
            a(f"v_mov_b32 v{OB}, v{OA+8}")
            a(f"v_permlane32_swap_b32 v{OA+8}, v{OB}")
    lbcast()
    a(f"v_cmp_nge_f32 vcc, {f32(2.0**60)}, v{OA+8}")
    a("s_mov_b64 s[82:83], vcc")
    a(f"v_cmp_nle_f32 vcc, {f32(2.0**-60)}, v{OA+8}")
    a("s_or_b64 vcc, vcc, s[82:83]")
    a("s_cbranch_vccnz L_redo")
    a.label("L_aok")
    a(f"v_rcp_f32 v12, v{OA+8}")
    for i in range(8): a(f"v_mul_f32 v{OA+i}, v12, v{OA+i}")
    for i in range(4): a(f"v_cvt_pk_bf16_f32 v{SA+i}, v{OA+2*i}, v{OA+2*i+1}")
    for i in range(4): a(f"v_min_u32 v{SA+i}, -2, v{SA+i}")
    a(f"buffer_store_dwordx4 {vr(SA)}, v3, {WSR}, s81 offen{STS}")
    stamp(a, 18, VS)
    srd(a, S_OUT, 20, 21, 2048 * 1024)
    a("s_lshl_b32 s79, s68, 15")
    a("v_add_u32 v14, s79, v3")
    a("s_lshl_b32 s80, s69, 13")
    a("s_add_u32 s80, s80, s79")
    a("v_add_u32 v15, s80, v3")
    a("v_and_b32 v12, 31, v2")
    a("v_lshlrev_b32 v12, 10, v12")
    a("v_lshrrev_b32 v13, 5, v2")
    a("v_lshl_or_b32 v11, v13, 4, v12")
    a("s_lshl_b32 s79, s84, 15")
    a(f"s_lshl_b32 s80, s{sQB}, 7")
    a("s_add_u32 s79, s79, s80")
    a("s_lshl_b32 s80, s69, 5")
    a("s_add_u32 s79, s79, s80")
    a("s_add_u32 s87, s85, 4096")
    a("s_barrier")
    TE = ENV("TE", "0")
    if TE != "2":
        a("s_waitcnt vmcnt(1)")
        for b in range(4): gm(b, 0); gm(b, 1)
    if TE == "0": a("s_waitcnt vmcnt(0)")
    stamp(a, 19, VS)
    OF, A2 = 16, 64
    def ldO():
        for i in range(8): a(f"buffer_load_dwordx4 {vr(OF+4*i)}, v3, {WSR}, s{85 if i < 4 else 87} offen offset:{(i&3)*1024}{ST}")
    def cmpO():
        for i in range(8):
            a(f"s_waitcnt vmcnt({7-i})")
            for j in range(2):
                d = vr(A2 + 16*j, 16)
                a(f"{MF} {d}, {vr(WO + 32*j + 4*i)}, {vr(OF+4*i)}, {'0' if i == 0 else d}")
            r = OF + 4*i
            if i == 0: a(f"v_max_u32 v12, v{r}, v{r+1}")
            else: a(f"v_max3_u32 v12, v{r}, v{r+1}, v12")
            a(f"v_max3_u32 v12, v{r+2}, v{r+3}, v12")
        a("v_cmp_eq_u32 vcc, -1, v12" if "3" not in ENV("WI", "") else "v_cmp_ne_u32 vcc, v12, v12")
    ldO()
    if TE == "2":
        a("s_waitcnt vmcnt(9)")
        for b in range(4): gm(b, 0); gm(b, 1)
    a(f"v_sub_f32 v10, 1.0, v{VGT}")
    for r in range(32): a(f"v_mul_f32 v{GACC+r}, v10, v{GACC+r}")
    a(f"s_mov_b32 s98, {SPIN}")
    a("s_branch L_ps3c")
    def ldO2():
        ldO(); a.label("L_ps3c")
    poll(a, "L_ps3", ldO2, cmpO, wait=False, slp=int(ENV("SLP3", "4")))
    stamp(a, 20, VS)
    for kq in range(4):
        if kq < 3:
            a(f"s_cmp_lg_u32 s69, {kq}")
            a(f"s_cbranch_scc1 L_red{kq+1}")
        for sl in [x for x in range(4) if x != kq] + [kq]:
            for r in range(8*sl, 8*sl + 8):
                if sl == kq: a(f"v_fma_f32 v{OF + r - 8*sl}, v{VGT}, v{A2+r}, v{GACC+r}")
                else: a(f"v_fmac_f32 v{GACC+r}, v{VGT}, v{A2+r}")
            if sl != kq:
                for k in range(2): a(f"ds_write_b128 v14, {vr(GACC + 8*sl + 4*k)} offset:{sl*8192 + ((kq - sl - 1) & 3)*2048 + k*1024}")
        if kq < 3:
            a("s_branch L_redw")
            a.label(f"L_red{kq+1}")
    a.label("L_redw")
    a("s_waitcnt lgkmcnt(0)")
    a("s_barrier")
    for q in range(3):
        for k in range(2): a(f"ds_read_b128 {vr(OF + 8 + 8*q + 4*k)}, v15 offset:{q*2048 + k*1024}")
    a("s_waitcnt lgkmcnt(4)")
    for r in range(0, 8, 2): a(f"v_pk_add_f32 {vr(OF+r,2)}, {vr(OF+r,2)}, {vr(OF+8+r,2)}")
    a("s_waitcnt lgkmcnt(0)")
    for r in range(0, 8, 2): a(f"v_pk_add_f32 {vr(OF+16+r,2)}, {vr(OF+16+r,2)}, {vr(OF+24+r,2)}")
    for r in range(0, 8, 2): a(f"v_pk_add_f32 {vr(OF+r,2)}, {vr(OF+r,2)}, {vr(OF+16+r,2)}")
    for i in range(4): a(f"v_cvt_pk_bf16_f32 v{48+i}, v{OF+2*i}, v{OF+2*i+1}")
    a("v_permlane32_swap_b32 v48, v50")
    a("v_permlane32_swap_b32 v49, v51")
    a(f"buffer_store_dwordx4 v[48:51], v11, {SR(S_OUT)}, s79 offen{ENV('OUTMOD', '').replace('_', ' ')}")
    if ENV("FIXT"):
        if ENV("FIX0"):
            a("v_mov_b32 v80, 0")
            a(f"buffer_load_dword v81, v80, {SR(S_DBG)}, 0 offen offset:8{ST}")
            a("s_waitcnt vmcnt(0)")
            a("v_readfirstlane_b32 s96, v81")
        a.label("L_fixt")
        a("s_memrealtime s[100:101]")
        a("s_waitcnt lgkmcnt(0)")
        a("s_sub_u32 s100, s100, s96")
        a(f"s_cmp_lt_u32 s100, {int(ENV('FIXT'))}")
        a("s_cbranch_scc1 L_fixt")
    if STAMP: a("s_waitcnt vmcnt(0)")
    stamp_out(a, 0, S_WS, VS, 14)
    if STAMP and ENV("DBGOUT"):
        a(f"s_lshl_b32 s66, s{sWAVE}, 8")
        a("s_or_b32 s66, s66, s2")
        a(f"s_cmp_lg_u32 s66, {int(ENV('DBGOUT'))}")
        a("s_cbranch_scc1 L_exit")
        a(f"v_readlane_b32 s67, v{VS}, 1")
        for k, idx in enumerate((3, 4, 5, 6, 7, 10, 11, 16, 17, 18, 19, 20, 14)):
            a(f"v_readlane_b32 s66, v{VS}, {32+idx}")
            a("s_sub_u32 s66, s66, s67")
            a(f"v_writelane_b32 v14, s66, {k}")
        a(f"v_readlane_b32 s66, v{VS}, 14")
        a(f"v_readlane_b32 s67, v{VS}, 0")
        a("s_sub_u32 s66, s66, s67")
        a("v_writelane_b32 v14, s66, 13")
        a("v_lshlrev_b32 v15, 2, v2")
        one_lane(a, f"buffer_store_dword v14, v15, {SR(S_DBG)}, 0 offen offset:4", "0x3fff")
    a("s_endpgm")
    a.label("L_redo")
    a(f"s_mul_i32 s79, s66, {VST}")
    a(f"s_add_u32 s79, s79, {64*VST}")
    a(f"v_subrev_u32 v{VV0}, s79, v{VV0}")
    a(f"v_subrev_u32 v{VV1}, s79, v{VV1}")
    a(f"v_mov_b32 v{VK}, v3")
    a("v_mov_b32 v12, 0xff800000")
    a("s_mov_b32 s80, 0")
    a.label("L_fmax")
    a(f"ds_read_b128 {vr(KF)}, v{VK}")
    a("s_waitcnt lgkmcnt(0)")
    a(f"{MF} {vr(SA,16)}, {vr(KF)}, {vr(QA)}, 0")
    a(f"v_add_u32 v{VK}, 1024, v{VK}")
    rowmax(a, SA, 12, acc=True)
    a("s_add_u32 s80, s80, 1")
    a("s_cmp_lt_u32 s80, 64")
    a("s_cbranch_scc1 L_fmax")
    halfmax(a, 12, 13)
    for i in range(16): a(f"v_sub_f32 v{CC+i}, 0, v12")
    zero(a, OA, 16)
    a(f"v_mov_b32 v{VK}, v3")
    a("s_mov_b32 s80, 0")
    a.label("L_fslow")
    a(f"ds_read_b128 {vr(KF)}, v{VK}")
    a(f"ds_read_b128 {vr(V0A)}, v{VV0}")
    a(f"ds_read_b128 {vr(V1)}, v{VV1}")
    a("s_waitcnt lgkmcnt(0)")
    a(f"{MF} {vr(SA,16)}, {vr(KF)}, {vr(QA)}, {vr(CC,16)}")
    a(f"v_add_u32 v{VK}, 1024, v{VK}")
    a(f"v_add_u32 v{VV0}, {VST}, v{VV0}")
    a(f"v_add_u32 v{VV1}, {VST}, v{VV1}")
    for i in range(16): a(f"v_exp_f32 v{SA+i}, v{SA+i}")
    for i in range(8): a(f"v_cvt_pk_bf16_f32 v{SB+i}, v{SA+2*i}, v{SA+2*i+1}")
    a(f"{MF} {vr(OA,16)}, {vr(V0A)}, {vr(SB)}, {vr(OA,16)}")
    a(f"{MF} {vr(OA,16)}, {vr(V1)}, {vr(SB+4)}, {vr(OA,16)}")
    a("s_add_u32 s80, s80, 1")
    a("s_cmp_lt_u32 s80, 64")
    a("s_cbranch_scc1 L_fslow")
    a("s_nop 9")
    lbcast()
    a("s_branch L_aok")

def build():
    a = Asm()
    head(a)
    p1_loader(a)
    p1_compute(a)
    attn(a)
    a.label("L_exit")
    a("s_endpgm")
    n = a.fix(verbose="-v" in sys.argv)
    print("instructions:", len(a.lines), "nop states inserted:", n, "lds", LDS_BYTES, file=sys.stderr)
    name = NAME + "_kernel"
    hdr = open("cdna_kernels/" + NAME + ".s.ref").read().split("; Override launch")[0]
    out = hdr + f"; @launch grid=(256,1,1) block=(512,1,1) lds={LDS_BYTES}\n"
    out += '.amdgcn_target "amdgcn-amd-amdhsa--gfx950"\n.text\n'
    out += f".globl {name}\n.p2align 8\n.type {name},@function\n{name}:\n" + a.text()
    out += '.section .rodata,"a"\n' + kd(name)
    dst = sys.argv[1] if len(sys.argv) > 1 and not sys.argv[1].startswith("-") else "cdna_kernels/" + NAME + ".s"
    open(dst, "w").write(out)
if __name__ == "__main__": build()
```

```python
import os, sys
from common import *

MF = "v_mfma_f32_32x32x16_bf16"
ST = " sc1"
STS = " sc1 nt" if os.environ.get("SNT") else " sc1"
ENV = os.environ.get
WS_F1 = 0x1480000
WS_F2 = 0x1490000
WS_F3 = 0x1498000
WS_TAG = 0x14a0000
SPIN = 1 << 17

S_DBG, S_WS, S_X, S_G, S_U, S_WA, S_WB, S_WC = 24, 28, 32, 36, 40, 44, 48, 52
S_RO, S_RD, S_GW = 56, 44, 48
S_OUT = 32
sWAVE, sMB, sNB, sVC = 3, 60, 61, 62
sHEAD, sQB = 63, 64
WSR = f"s[{S_WS}:{S_WS+3}]"
def SR(n): return f"s[{n}:{n+3}]"
VS = 1

NXS = 6
LX, XSLOT = 0, 16384
LW = NXS * XSLOT
NW1, WS1 = 5, 12288
NW2, WS2, LW2 = 6, 8192, LW + 12288
LRD = LW
LRO = LW + NW1 * WS1
LDS_BYTES = 163840
LCNT = LDS_BYTES - 16
LC2 = LDS_BYTES - 32
assert LRO + 2048 <= LCNT and (16 % NW1) * WS1 == LW2 - LW and LW2 + NW2 * WS2 <= LRO
KROT = 8 - NXS
def wslot(s): return (LW + (s % NW1) * WS1, WS1) if s < 16 else (LW2 + ((s - 16) % NW2) * WS2, WS2)
def acc(tt, ct): return 96 + (tt * 4 + ct) * 16 if ct < 4 else 224 + tt * 16
HP = 224
DT = 36
FR0, FR1 = 16, 36
VXA, VW = 56, 60
ONE_ROW = not ENV("ALLONES")
VST, VROT = 1104, 0
LK, LV = 0, 65536
LQ = LV + 64 * VST
LQI = 143360
LASTB = 28
QA, QB, CC, OA, OB, SA, SB, KF, V0A, V0B, V1 = 8, 12, 16, 32, 48, 64, 80, 96, 100, 104, 108
VK, VV0, VV1, VG = 4, 5, 6, 7
GACC, GFR, WO = 112, 144, 192

class Lgkm:
    def __init__(s, a): s.a = a; s.q = []
    def rd(s, tag, text): s.a(text); s.q.append(tag)
    def need(s, *tags):
        idx = [i for i, t in enumerate(s.q) if t in tags]
        if not idx: return
        n = len(s.q) - 1 - max(idx)
        assert n <= 15
        s.a(f"s_waitcnt lgkmcnt({n})")
        s.q = s.q[max(idx) + 1:]
    def all(s, extra=""):
        s.a("s_waitcnt " + extra + "lgkmcnt(0)")
        s.q = []

def poll(a, name, load, cmp, wait=True, slp=None):
    a(f"s_mov_b32 s98, {SPIN}")
    a.label(name)
    load()
    if wait: a("s_waitcnt vmcnt(0)")
    cmp()
    a(f"s_cbranch_vccz {name}_ok")
    a(f"s_sleep {int(ENV('SLEEP', '4')) if slp is None else slp}")
    a("s_sub_u32 s98, s98, 1")
    a("s_cmp_lg_u32 s98, 0")
    a(f"s_cbranch_scc1 {name}")
    a.label(f"{name}_ok")

def rowmax(a, S, dst, acc=False):
    if acc: a(f"v_max3_f32 v{dst}, v{S}, v{S+1}, v{dst}")
    else: a(f"v_max_f32 v{dst}, v{S}, v{S+1}")
    for k in range(2, 16, 2): a(f"v_max3_f32 v{dst}, v{S+k}, v{S+k+1}, v{dst}")
def halfmax(a, dst, tmp):
    a(f"v_mov_b32 v{tmp}, v{dst}")
    a(f"v_permlane32_swap_b32 v{tmp}, v{dst}")
    a(f"v_max_f32 v{dst}, v{tmp}, v{dst}")
def zero(a, b, n):
    for r in range(0, n, 2): a(f"v_pk_mul_f32 {vr(b+r,2)}, 0, 0")
def one_lane(a, text, mask=1):
    a(f"s_mov_b64 exec, {mask}"); a(text); a("s_mov_b64 exec, -1")

def head(a):
    a("s_cmp_ge_u32 s2, 256")
    a("s_cbranch_scc1 L_exit")
    a("s_load_dwordx16 s[4:19], s[0:1], 0")
    a("s_load_dwordx4 s[20:23], s[0:1], 64")
    a(f"s_load_dwordx2 s[{S_WS}:{S_WS+1}], s[0:1], 80")
    if ENV("CODEPF", "2") == "2":
        a("s_getpc_b64 s[84:85]")
        a.label("L_pc")
        a("v_lshlrev_b32 v61, 7, v0")
        a("v_min_u32 v61, L_exit-L_pc, v61")
        a("global_load_dword v61, v61, s[84:85]")
    if ENV("FIXT"):
        a("s_memrealtime s[96:97]")
    if STAMP: a(f"v_mov_b32 v{VS}, 0")
    stamp(a, 0, VS); stamp(a, 1, VS, real=True)
    a("v_lshrrev_b32 v3, 6, v0")
    a("v_and_b32 v2, 63, v0")
    a(f"v_readfirstlane_b32 s{sWAVE}, v3")
    a("s_and_b32 s65, s2, 7")
    a("s_lshr_b32 s66, s2, 3")
    a("s_and_b32 s67, s65, 1")
    a("s_lshl_b32 s67, s67, 3")
    a("s_and_b32 s68, s66, 7")
    a(f"s_add_u32 s{sMB}, s67, s68")
    a("s_lshr_b32 s67, s65, 1")
    a("s_lshl_b32 s67, s67, 2")
    a("s_lshr_b32 s68, s66, 3")
    if ENV("CFIRST", "1") == "1": a("s_sub_u32 s68, 3, s68")
    a(f"s_add_u32 s{sNB}, s67, s68")
    a("s_cmp_eq_u32 s68, 3")
    a(f"s_cselect_b32 s{sVC}, 1, 0")
    a("s_lshl_b32 s67, s65, 2")
    a("s_and_b32 s68, s66, 3")
    a(f"s_add_u32 s{sHEAD}, s67, s68")
    a(f"s_lshr_b32 s{sQB}, s66, 2")
    a("v_lshlrev_b32 v3, 4, v2")
    a(f"s_mov_b32 s{S_WS+2}, {WS_SIZE:#x}")
    a(f"s_mov_b32 s{S_WS+3}, 0x00020000")
    a(f"s_lshr_b32 s67, s{sNB}, 2")
    a(f"s_sub_u32 s81, s{sNB}, s67")
    a("s_add_u32 s81, s81, 16")
    a(f"s_lshl_b32 s82, s{sNB}, 11")
    a(f"s_lshl_b32 s67, s{sMB}, 7")
    a("s_add_u32 s82, s82, s67")
    a(f"s_add_u32 s82, s82, {WS_F1}")
    a("v_lshrrev_b32 v8, 3, v2")
    a("v_and_b32 v4, 7, v2")
    a("v_bfe_u32 v5, v2, 4, 1")
    a("v_lshlrev_b32 v5, 2, v5")
    a("v_xor_b32 v5, v5, v4")
    a("v_lshlrev_b32 v9, 4, v5")
    a(f"s_cmp_lt_u32 s{sWAVE}, 4")
    a("s_waitcnt lgkmcnt(0)")
    srd(a, S_X, 4, 5, 2048 * 1024)
    srd(a, S_DBG, 22, 23, 256)
    a("s_cbranch_scc1 L_compute")

def p1_compute(a):
    a.label("L_compute")
    if ENV("INV"): a("buffer_inv sc1")
    a(f"s_and_b32 s65, s{sWAVE}, 1")
    a(f"s_lshr_b32 s66, s{sWAVE}, 1")
    if ENV("CODEPF", "2") == "1":
        a("s_getpc_b64 s[84:85]")
        a.label("L_pc")
        a("s_sub_u32 s84, s84, L_pc-L_loader")
        a("s_subb_u32 s85, s85, 0")
        a("v_lshlrev_b32 v11, 7, v0")
        a("v_min_u32 v11, L_exit-L_loader, v11")
        a("global_load_dword v61, v11, s[84:85]")
        a("v_lshlrev_b32 v11, 7, v0")
        a("v_add_u32 v11, 0x8000, v11")
        a("v_min_u32 v11, L_exit-L_loader, v11")
        a("global_load_dword v62, v11, s[84:85]")
    a("v_and_b32 v8, 31, v2")
    a("v_lshrrev_b32 v4, 5, v2")
    a("v_bfe_u32 v5, v2, 1, 3")
    a("v_xor_b32 v5, v5, v4")
    a("s_lshl_b32 s67, s65, 13")
    a("v_lshl_add_u32 v6, v8, 7, s67")
    for ks in range(4):
        a(f"v_xor_b32 v7, {2*ks}, v5")
        a(f"v_lshl_add_u32 v{VXA+ks}, v7, 4, v6")
    a("v_bfe_u32 v5, v2, 2, 2")
    a("v_and_b32 v6, 3, v2")
    a("v_bfe_u32 v7, v2, 4, 1")
    a("v_lshlrev_b32 v6, 3, v6")
    a("v_lshl_or_b32 v6, v7, 5, v6")
    a("v_lshrrev_b32 v7, 1, v5")
    a("v_lshl_or_b32 v6, v7, 6, v6")
    a("v_lshl_or_b32 v6, v5, 7, v6")
    a("v_lshl_or_b32 v6, v4, 10, v6")
    a("s_lshl_b32 s67, s66, 6")
    a("v_xor_b32 v6, s67, v6")
    a(f"v_add_u32 v{VW}, {LW}, v6")
    zero(a, 96, 160)
    a(f"v_mov_b32 v5, {LCNT}")
    a("ds_write_b128 v5, v[96:99]")

    a(f"s_mov_b32 s78, {(-(NW1-1)*WS1) & 0xffffffff:#x}")
    a(f"s_mov_b32 s79, {(-(NXS-1)*XSLOT) & 0xffffffff:#x}")
    a("s_mov_b32 s73, 0")
    a("s_mov_b32 s74, 0")
    a("s_mov_b32 s75, 8")
    a("s_waitcnt lgkmcnt(0)")
    def reads(fs, ks, nu):
        kk = ks & 1
        X = lambda t: f"ds_read_b128 {vr(fs+4*t)}, v{VXA+ks} offset:{t*4096}"
        W = lambda u, j: f"ds_read_b64_tr_b16 {vr(fs+8+4*u+2*j, 2)}, v{VW} offset:{u*4096 + kk*2048 + j*512}"
        l = [X(0), W(0,0), W(0,1), X(1)]
        for u in range(1, nu): l += [W(u,0), W(u,1)]
        return l
    def loop(name, cts, swap, nu_next_last, hook=None):
        nu = len(cts)
        NWS, WSLOT = (NW1, WS1) if nu == 3 else (NW2, WS2)
        a.label(name)
        for ks in range(4):
            kk = ks & 1
            cur, nxt = (FR0, FR1) if kk == 0 else (FR1, FR0)
            mms = []
            for u, ct in enumerate(cts):
                for t in range(2):
                    d = vr(acc(t, ct), 16); w = vr(cur + 8 + 4*u); x = vr(cur + 4*t)
                    mms.append(f"{MF} {d}, {x}, {w}, {d}" if (swap and ct < 4) else f"{MF} {d}, {w}, {x}, {d}")
            if ENV("FAKE16"):
                mms = []
                for u, ct in enumerate(cts):
                    for t in range(2):
                        w = vr(cur + 8 + 4*u); x = vr(cur + 4*t)
                        d0, d1 = vr(acc(t, ct) + 8*kk, 4), vr(acc(t, ct) + 8*kk + 4, 4)
                        x2 = vr(cur + 4*(1-t))
                        mms.append(f"v_mfma_f32_16x16x32_bf16 {d0}, {w}, {x}, {d0}")
                        mms.append(f"v_mfma_f32_16x16x32_bf16 {d1}, {x2}, {w}, {d1}")
            rd = reads(nxt, (ks + 1) & 3, nu)
            post = []
            if kk == 0:
                post += ["s_add_u32 s73, s73, 1", f"s_cmp_eq_u32 s73, {NWS}", f"s_cselect_b32 s76, s78, {WSLOT}", "s_cselect_b32 s73, 0, s73", f"v_add_u32 v{VW}, s76, v{VW}"]
                if ks == 2:
                    post += ["s_add_u32 s74, s74, 1", f"s_cmp_eq_u32 s74, {NXS}", f"s_cselect_b32 s77, s79, {XSLOT}", "s_cselect_b32 s74, 0, s74", f"v_add_u32 v{VXA}, s77, v{VXA}"]
            elif ks == 3:
                post += [f"v_add_u32 v{VXA+i}, s77, v{VXA+i}" for i in range(1, 4)] + ["s_sub_u32 s75, s75, 1", "s_cmp_lg_u32 s75, 0"]
            if ks == 3 and hook: hook()
            a("s_waitcnt lgkmcnt(0)")
            if kk == 1:
                a(mms.pop(0))
                a("s_barrier")
            other = rd + post
            per = 3 if not ENV('FAKE16') else 2
            while mms:
                if kk == 0 or len(mms) < 2*nu - 1 or True:
                    pass
                if kk == 0: a(mms.pop(0))
                for _ in range(per):
                    if other: a(other.pop(0))
                if kk == 1: a(mms.pop(0))
            for o in other: a(o)
        a(f"s_cbranch_scc1 {name}")
    a(f"s_lshl_b32 s68, s{sMB}, 2")
    a("s_lshl_b32 s69, s65, 1")
    a("s_add_u32 s69, s68, s69")
    a(f"v_add_u32 v9, {VROT}, v2")
    a("v_and_b32 v9, 15, v9")
    a("v_lshl_or_b32 v9, v4, 4, v9")
    a("v_lshlrev_b32 v9, 4, v9")
    a("v_bfe_u32 v10, v2, 4, 1")
    a("v_lshl_or_b32 v9, v10, 16, v9")
    a(f"s_lshr_b32 s70, s{sNB}, 2")
    a("s_lshl_b32 s70, s70, 19")
    a("s_lshl_b32 s71, s66, 17")
    a("s_add_u32 s70, s70, s71")
    a("s_lshl_b32 s71, s69, 10")
    a("s_add_u32 s70, s70, s71")
    a(f"s_add_u32 s70, s70, {WS_V}")
    a(f"s_add_u32 s71, s70, {4*65536}")
    a(f"s_cmp_lt_u32 s{sNB}, 8")
    a(f"s_cselect_b32 s86, {f32(QSCALE)}, 1.0")
    a(f"s_lshl_b32 s67, s{sNB}, 2")
    a("s_lshl_b32 s68, s66, 1")
    a("s_add_u32 s67, s67, s68")
    a("s_lshl_b32 s67, s67, 16")
    a("s_lshl_b32 s68, s69, 10")
    a("s_add_u32 s67, s67, s68")
    a(f"s_add_u32 s88, s67, {WS_QK}")
    a("s_add_u32 s89, s88, 0x10000")
    a(f"s_mul_i32 s67, s69, {144*1024}")
    a("s_lshl_b32 s68, s66, 11")
    a("s_add_u32 s67, s67, s68")
    a(f"s_add_u32 s67, s67, {WS_AF + 32*1024}")
    for i in (1, 0):
        a(f"s_lshl_b32 s68, s{sNB if i else 81}, 12")
        a("s_add_u32 s68, s67, s68")
        for n in range(4): a(f"s_add_u32 s{DT + (1-i)*4 + n}, s68, {(n>>1)*144*1024 + (n&1)*1024}")
    a(f"v_mov_b32 v10, {f32(-GK1*0.044715)}")
    a(f"v_mov_b32 v11, {f32(-GK1*0.044715)}")
    a(f"v_mov_b32 v12, {f32(-GK1)}")
    a(f"v_mov_b32 v13, {f32(-GK1)}")
    stamp(a, 2, VS)
    a("s_barrier")
    stamp(a, 3, VS)
    for l in reads(FR0, 0, 3): a(l)

    def f_qk():
        l = []
        for t in range(2):
            b = acc(t, 4)
            for hh in range(2):
                l += [f"v_mul_f32 v{b+8*hh+i}, s86, v{b+8*hh+i}" for i in range(8)]
                l += [f"v_cvt_pk_bf16_f32 v{b+8*hh+i}, v{b+8*hh+2*i}, v{b+8*hh+2*i+1}" for i in range(4)]
                l.append(f"buffer_store_dwordx4 {vr(b+8*hh)}, v3, {WSR}, s{88+hh} offen offset:{t*1024}{STS}")
        return l
    def f_v():
        l = []
        for j in range(2):
            for t in range(2):
                b = acc(t, 2*j)
                for hh in range(2):
                    l += [f"v_cvt_pk_bf16_f32 v{b+8*hh+i}, v{b+8*hh+2*i}, v{b+8*hh+2*i+1}" for i in range(4)]
                    l.append(f"buffer_store_dwordx4 {vr(b+8*hh)}, v9, {WSR}, s{70+j} offen offset:{t*1024 + hh*512}{STS}")
        return l
    def f_gelu1():
        l = []
        for t in range(2):
            for q in range(4):
                G, U, T = acc(t, 0) + 4*q, acc(t, 2) + 4*q, 64 + (q & 1) * 4
                l += [f"v_mul_f32 v{T+p}, v{G+p}, v{G+p}" for p in range(4)]
                l += [f"v_fma_f32 v{T+p}, v{T+p}, v10, v12" for p in range(4)]
                l += [f"v_mul_f32 v{T+p}, v{T+p}, v{G+p}" for p in range(4)]
                for p in range(4): l += [f"v_exp_f32 v{T+p}, v{T+p}", f"v_mul_f32 v{U+p}, v{U+p}, v{G+p}"]
                l += [f"v_add_f32 v{T+p}, 1.0, v{T+p}" for p in range(4)]
                l += [f"v_rcp_f32 v{T+p}, v{T+p}" for p in range(4)]
                l += [f"v_mul_f32 v{U+p}, v{U+p}, v{T+p}" for p in range(4)]
                o = HP + 16 + t*8 + q*2
                l += [f"v_cvt_pk_bf16_f32 v{o+p}, v{U+2*p}, v{U+2*p+1}" for p in range(2)]
        return l
    SPK = int(ENV("SPK", "4"))
    def pass2(fill, PUBS, gap):
        cost = lambda x: 8 if x.startswith(("v_exp", "v_rcp")) else 4
        X2 = ENV("X2", "")
        if "F" in X2: fill = [x for x in fill if False]
        if "S" in X2: fill = [x for x in fill if not x.startswith("buffer_store")]
        if "G" in X2: fill = fill[:52]
        FS = (FR0, FR1, 72)
        lg = Lgkm(a)
        lg.q = [(0, i) for i in range(6)] + [("junk", 0)] * 2
        def rds(m):
            fs = FS[m % 3]
            wo_ = wslot(16 + (m >> 1))[0] - LW2 + (m & 1) * 2048
            X = lambda t: f"ds_read_b128 {vr(fs+4*t)}, v{VXA + (m & 3)} offset:{t*4096}"
            W = lambda u, j: f"ds_read_b64_tr_b16 {vr(fs+8+4*u+2*j, 2)}, v{VW} offset:{wo_ + u*4096 + j*512}"
            l = [((m, i), x) for i, x in enumerate([X(0), W(0,0), W(0,1), X(1), W(1,0), W(1,1)])]
            j = 8 + (m >> 2)
            if m < 28:
                dx = (((j + 1) % NXS) - (j % NXS)) * XSLOT & 0xffffffff
                l.append((None, f"v_add_u32 v{VXA + (m & 3)}, {dx:#x}, v{VXA + (m & 3)}"))
            return l
        def put(e):
            if e[0] is None: a(e[1])
            else: lg.rd(e[0], e[1])
        nxt_store = 0
        put(rds(0)[-1])
        for e in rds(1): put(e)
        for n in range(32):
            kk, st = n & 1, 16 + (n >> 1)
            cur = FS[n % 3]
            rd = rds(n + 2) if n + 2 < 32 else []
            nst = 0
            for g, (u, t) in enumerate(((0, 0), (0, 1), (1, 0), (1, 1))):
                ct = (1, 3)[u]
                before = len(a.lines)
                lg.need(*[(n, i) for i in range(6)])
                bud = 24 - 4 * (len(a.lines) - before)
                a(f"{MF} {vr(acc(t, ct), 16)}, {vr(cur + 8 + 4*u)}, {vr(cur + 4*t)}, {vr(acc(t, ct), 16)}")
                if g == 0 and kk == 0 and st <= LASTB:
                    if st == PUBS:
                        assert not any(x.startswith("buffer_store") for x in fill)
                        a("s_waitcnt vmcnt(0)"); bud -= 4
                    if "B" not in X2: a("s_barrier"); bud -= 4
                for _ in range(2):
                    if rd and len(lg.q) < 15: put(rd.pop(0)); bud -= 4
                while n >= 1 and fill and bud >= cost(fill[0]):
                    if fill[0].startswith("buffer_store"):
                        if 4*n + g < nxt_store: break
                        nxt_store = 4*n + g + gap
                    bud -= cost(fill[0]); a(fill.pop(0))
            assert not rd
        for x in fill: a(x)
        print("pass-2 filler left over:", len(fill), file=sys.stderr)
    a(f"s_cmp_eq_u32 s{sVC}, 1")
    a("s_cbranch_scc1 L_p1loopV")
    loop("L_p1loopA", (0, 2, 4), False, 2)
    stamp(a, 4, VS)
    pass2(f_qk() + f_gelu1(), PUBS, int(ENV('GAPA', '1')))
    a("s_branch L_p2done")
    loop("L_p1loopV", (0, 2, 4), True, 2)
    stamp(a, 4, VS)
    pass2(f_v() + f_qk(), PUBC, int(ENV('GAPC', '1')))
    a.label("L_p2done")
    stamp(a, 6, VS)
    n = 0
    for t in range(2):
        g, u = acc(t, 1), acc(t, 3)
        for hh in range(2):
            T = 16 + (n & 1) * 8; n += 1
            G, U = g + 8*hh, u + 8*hh
            for p in range(4): a(f"v_pk_mul_f32 {vr(T+2*p,2)}, {vr(G+2*p,2)}, {vr(G+2*p,2)}")
            for p in range(4): a(f"v_pk_fma_f32 {vr(T+2*p,2)}, {vr(T+2*p,2)}, v[10:11], v[12:13]")
            for p in range(4): a(f"v_pk_mul_f32 {vr(T+2*p,2)}, {vr(T+2*p,2)}, {vr(G+2*p,2)}")
            for p in range(8): a(f"v_exp_f32 v{T+p}, v{T+p}")
            for p in range(4): a(f"v_pk_mul_f32 {vr(U+2*p,2)}, {vr(U+2*p,2)}, {vr(G+2*p,2)}")
            for p in range(4): a(f"v_pk_add_f32 {vr(T+2*p,2)}, {vr(T+2*p,2)}, 1.0 op_sel_hi:[1,0]")
            for p in range(8): a(f"v_rcp_f32 v{T+p}, v{T+p}")
            for p in range(4): a(f"v_pk_mul_f32 {vr(U+2*p,2)}, {vr(U+2*p,2)}, {vr(T+2*p,2)}")
            o = HP + (t*2 + hh) * 4
            for p in range(4): a(f"v_cvt_pk_bf16_f32 v{o+p}, v{U+2*p}, v{U+2*p+1}")
    stamp(a, 7, VS)

PUBC = int(ENV("PUBC", "22"))
PUBS = int(ENV("PUBS", "22"))

def p1_loader(a):
    a.label("L_loader")
    if ENV("LPRIO", "1") == "1": a("s_setprio 3")
    a(f"s_sub_u32 s65, s{sWAVE}, 4")
    a("s_lshl_b32 s66, s65, 3")
    a("v_add_u32 v8, s66, v8")
    a("v_lshrrev_b32 v5, 4, v2")
    a("s_and_b32 s66, s65, 1")
    a("s_lshl_b32 s66, s66, 2")
    a("v_add_u32 v5, s66, v5")
    a("v_xor_b32 v5, v5, v4")
    a("v_lshlrev_b32 v5, 4, v5")
    a("v_lshl_add_u32 v12, v8, 10, v5")
    a(f"s_lshl_b32 s74, s{sMB}, 17")
    a("s_lshl_b32 s75, s65, 10")
    a(f"s_lshl_b32 s90, s{sNB}, 1")
    a(f"s_add_u32 s90, s90, s{sMB}")
    if ENV("ROT", "1") == "2":
        a(f"s_lshr_b32 s91, s{sNB}, 2")
        a("s_add_u32 s90, s90, s91")
    if ENV("ROT", "1") == "0": a("s_mov_b32 s90, 0")
    if ENV("ROT", "1") == "5": a(f"s_mov_b32 s90, s{sMB}")
    if ENV("ROT", "1") == "6": a(f"s_lshl_b32 s90, s{sNB}, 1")
    if ENV("ROT", "1") == "7":
        a(f"s_lshl_b32 s90, s{sNB}, 2")
        a(f"s_add_u32 s90, s90, s{sMB}")
    if ENV("ROT", "1") in ("3", "4"):
        a(f"s_add_u32 s90, s{sNB}, s{sMB}")
        a(f"s_lshl_b32 s90, s90, {1 if ENV('ROT') == '3' else 2}")
    a("s_lshl_b32 s91, s90, 1")
    issued = []
    DNT = " nt" if ENV("DNT") else ""
    PNT = " nt" if ENV("PNT") else ""
    def dma(voff, srdn, soff, m0val, pre):
        a(f"s_add_u32 m0, s75, {m0val}")
        a(pre)
        if "D" in ENV("X2", "") and voff == 10: a("s_nop 0")
        else: a(f"buffer_load_dwordx4 v{voff}, {SR(srdn)}, s{soff} offen{DNT} lds")
    def itemsW(s):
        base, size = wslot(s)
        free = max([-1] + [p + (p >= 16) for p in range(s) if wslot(p)[0] < base + size and base < wslot(p)[0] + wslot(p)[1]])
        def f(u):
            def g():
                if u == 0:
                    a(f"s_add_u32 s92, s91, {s if s < 16 else s + 2*KROT}")
                    a("s_and_b32 s92, s92, 15")
                    if s < 16:
                        a(f"s_mul_i32 s93, s92, {32*3072}")
                        a("s_mul_i32 s92, s92, s73")
                    else: a(f"s_mul_i32 s92, s92, {32*3584}")
                if s < 16:
                    if u == 0: dma(13, S_WA, 76, base, "s_add_u32 s76, s71, s92")
                    if u == 1: dma(13, S_WB, 76, base + 4096, "s_add_u32 s76, s69, s92")
                    if u == 2: dma(11, S_WC, 76, base + 8192, "s_add_u32 s76, s70, s93")
                else:
                    dma(10, (S_G, S_U)[u], 76, base + 4096*u, "s_add_u32 s76, s70, s92")
                issued.append(("W", s))
            return g
        return [(free, f(u)) for u in range(3 if s < 16 else 2)]
    def itemsX(j):
        base = LX + (j % NXS) * XSLOT
        def f(m):
            def g():
                if m == 0:
                    a(f"s_add_u32 s99, s90, {j if j < 8 else j + KROT}")
                    a("s_and_b32 s99, s99, 7")
                    a("s_lshl_b32 s99, s99, 7")
                    a("s_add_u32 s99, s99, s74")
                dma(12, S_X, 76, base + m*4096, f"s_add_u32 s76, s99, {m*32768}")
                issued.append(("X", j))
            return g
        if 8 <= j < 8 + NXS: return []
        return [(2*(j-NXS) + 1 + (j - NXS >= 8), f(m)) for m in range(4)]
    queue = []
    for j in range(16): queue += itemsX(j) + itemsW(2*j) + itemsW(2*j+1)
    def issue(nmax, bar):
        n = 0
        while queue and n < nmax and queue[0][0] <= bar:
            queue.pop(0)[1](); n += 1
    def wait_stage(s):
        assert sum(e == ("W", s) for e in issued) == (3 if s < 16 else 2) and sum(e == ("X", s // 2) for e in issued) == (0 if 8 <= s // 2 < 8 + NXS else 4), s
        last = max(k for k, e in enumerate(issued) if e == ("W", s) or e == ("X", s // 2))
        n = len(issued) - 1 - last
        assert n <= 63
        a(f"s_waitcnt vmcnt({n})")
    def wait_tag(tag):
        n = len(issued) - 1 - max(k for k, e in enumerate(issued) if e == tag)
        assert n <= 63
        a(f"s_waitcnt vmcnt({n})")
    stamp(a, 22, VS)
    issue(4, -1)
    a("s_lshl_b32 s66, s65, 8")
    a("s_or_b32 s66, s66, s2")
    a(f"s_cselect_b32 s83, {OOB:#x}, 0")
    a(f"s_add_u32 s84, s83, {WS_TAG}")
    a("v_mov_b32 v5, 0")
    a(f"buffer_load_dword v14, v5, {WSR}, s84 offen{ST}")
    issued.append(("T", 0))
    srd(a, S_G, 12, 13, 512 * 3584)
    srd(a, S_U, 14, 15, 512 * 3584)
    srd(a, S_WC, 6, 7, 512 * 3072)
    a(f"s_cmp_eq_u32 s{sVC}, 1")
    a(f"s_cselect_b32 s{S_WA}, s6, s12")
    a(f"s_cselect_b32 s{S_WA+1}, s7, s13")
    a(f"s_cselect_b32 s{S_WA+2}, s{S_WC+2}, s{S_G+2}")
    a(f"s_mov_b32 s{S_WA+3}, 0x00020000")
    a(f"s_cselect_b32 s{S_WB}, s6, s14")
    a(f"s_cselect_b32 s{S_WB+1}, s7, s15")
    a(f"s_mov_b32 s{S_WB+2}, s{S_WA+2}")
    a(f"s_mov_b32 s{S_WB+3}, 0x00020000")
    a("s_movk_i32 s66, 3072")
    a("s_cselect_b32 s66, s66, 3584")
    a("v_mul_u32_u24 v6, 3584, v8")
    a("v_add_u32 v10, v6, v9")
    a("v_mul_u32_u24 v6, 3072, v8")
    a("v_add_u32 v11, v6, v9")
    a("v_mul_u32_u24 v6, s66, v8")
    a("v_add_u32 v13, v6, v9")
    a("s_lshl_b32 s73, s66, 5")
    a("s_lshl_b32 s67, s81, 7")
    a(f"s_lshr_b32 s68, s{sNB}, 2")
    a("s_lshl_b32 s68, s68, 8")
    a("s_add_u32 s68, s68, 2048")
    a("s_add_u32 s69, s68, 128")
    a(f"s_cmp_eq_u32 s{sVC}, 1")
    a("s_cselect_b32 s71, s68, s67")
    a("s_cselect_b32 s69, s69, s67")
    a("s_mov_b32 s94, s71")
    a("s_mov_b32 s95, s69")
    a(f"s_lshl_b32 s70, s{sNB}, 7")
    PFK = ENV("PF", "0") == "4"
    if PFK:
        issue(3, -1)
        a("s_lshr_b32 s66, s2, 1")
        a("s_and_b32 s67, s2, 1")
        a("s_mul_i32 s68, s66, 3072")
        a("s_mul_i32 s76, s67, 1536")
        a("s_add_u32 s68, s68, s76")
        a("s_mul_i32 s66, s66, 3584")
        a("s_mul_i32 s67, s67, 768")
        a("s_add_u32 s66, s66, s67")
        a("s_add_u32 s66, s66, 2048")
        a("s_lshl_b32 s67, s2, 13")
        a("s_cmp_eq_u32 s65, 1")
        a("s_cselect_b32 s66, s68, s66")
        a("s_cselect_b32 s76, 11, 5")
        a(f"s_mov_b32 s77, {128*3584}")
        a(f"s_cselect_b32 s77, {128*3072}, s77")
        a("s_cselect_b32 s94, s6, s12")
        a("s_cselect_b32 s95, s7, s13")
        a("s_cmp_eq_u32 s65, 3")
        a("s_cselect_b32 s94, s14, s94")
        a("s_cselect_b32 s95, s15, s95")
        a("v_min_u32 v28, s76, v2")
        a("v_lshl_add_u32 v28, v28, 7, s66")
        a("v_bfe_u32 v29, v2, 1, 3")
        a("v_lshl_add_u32 v29, v29, 10, s67")
        a("v_and_b32 v27, 1, v2")
        a("v_lshl_add_u32 v29, v27, 7, v29")
        a("s_cmp_eq_u32 s65, 0")
        a("s_cselect_b32 s94, s4, s94")
        a("s_cselect_b32 s95, s5, s95")
        a("s_cselect_b32 s77, 256, s77")
        a("s_cselect_b64 vcc, -1, 0")
        a("v_cndmask_b32 v28, v28, v29, vcc")
        for n in [int(x) for x in ENV("PFPOS", "0,3,7,3").split(",")]:
            issue(n, -1)
            a("s_mov_b64 exec, 0xffff")
            a("global_load_dword v30, v28, s[94:95]")
            a("s_mov_b64 exec, -1")
            a("v_add_u32 v28, s77, v28")
            issued.append(("P", 0))
    else:
        issue(int(ENV("FIRST", "10")), -1)
    def prefetch(kinds):
        a("s_mov_b32 s94, s4"); a("s_mov_b32 s95, s5")
        for r in (66, 67, 68, 76): a(f"s_mov_b32 s{r}, 0")
        a("s_mov_b32 s77, 0")
        for lw, k in enumerate(kinds):
            if k is None: continue
            p, per, first, n, T, J = k
            a(f"s_cmp_eq_u32 s65, {lw}")
            a(f"s_cselect_b32 s94, s{p}, s94")
            a(f"s_cselect_b32 s95, s{p+1}, s95")
            a(f"s_cselect_b32 s66, {per}, s66")
            a(f"s_cselect_b32 s67, {first}, s67")
            a(f"s_cselect_b32 s68, {n-1}, s68")
            a(f"s_cselect_b32 s76, {T}, s76")
            a(f"s_cselect_b32 s77, {J}, s77")
        a("s_mul_i32 s66, s66, s2")
        a("s_add_u32 s66, s66, s67")
        a("v_min_u32 v28, s68, v2")
        a("v_mov_b32 v29, s77")
        a("v_cmp_le_u32 vcc, s76, v28")
        a("v_lshl_add_u32 v28, v28, 7, s66")
        a("v_cndmask_b32 v29, 0, v29, vcc")
        a("v_add_u32 v28, v28, v29")
        a("global_load_dword v30, v28, s[94:95]")
        issued.append(("P", 0))
    PF = ENV("PF", "0") in ("1", "3")
    PFX = ENV("PF", "0") in ("2", "3")
    def prefetch_x1():
        a("s_lshr_b32 s66, s2, 3")
        a("s_and_b32 s67, s2, 1")
        a("s_lshl_b32 s67, s67, 20")
        a("s_lshl_b32 s68, s66, 15")
        a("s_add_u32 s67, s67, s68")
        a("s_lshl_b32 s68, s65, 13")
        a("s_add_u32 s67, s67, s68")
        a("v_lshlrev_b32 v28, 7, v2")
        a("s_and_b32 s66, s66, 7")
        a("s_lshl_b32 s66, s66, 6")
        a("v_add_u32 v27, s66, v2")
        a("s_lshr_b32 s68, s73, 5")
        a("v_mul_u32_u24 v29, s68, v27")
        a("v_mul_u32_u24 v26, 3072, v27")
        a("s_cmp_eq_u32 s65, 0")
        a(f"s_cselect_b32 s66, s94, {OOB:#x}")
        a(f"buffer_load_dword v30, v29, {SR(S_WA)}, s66 offen{PNT}")
        a("s_cmp_eq_u32 s65, 1")
        a(f"s_cselect_b32 s66, s95, {OOB:#x}")
        a(f"buffer_load_dword v30, v29, {SR(S_WB)}, s66 offen{PNT}")
        a(f"s_lshl_b32 s66, s{sNB}, 7")
        a("s_cmp_eq_u32 s65, 2")
        a(f"s_cselect_b32 s66, s66, {OOB:#x}")
        a(f"buffer_load_dword v30, v26, {SR(S_WC)}, s66 offen{PNT}")
        a(f"buffer_load_dword v30, v28, {SR(S_X)}, s67 offen{PNT}")
        issued.extend([("P", 0)] * 4)
    def prefetch_x2():
        a("v_mul_u32_u24 v29, 3584, v27")
        a(f"s_lshl_b32 s67, s{sNB}, 7")
        a("s_cmp_eq_u32 s65, 1")
        a(f"s_cselect_b32 s66, s67, {OOB:#x}")
        a(f"buffer_load_dword v30, v29, {SR(S_G)}, s66 offen{PNT}")
        a("s_cmp_eq_u32 s65, 2")
        a(f"s_cselect_b32 s66, s67, {OOB:#x}")
        a(f"buffer_load_dword v30, v29, {SR(S_U)}, s66 offen{PNT}")
        issued.extend([("P", 0)] * 2)
    if PFX and not PF: prefetch_x1()
    if PF: prefetch([(4, 8192, 0, 64, 0, 0), (6, 6144, 0, 48, 0, 0), (12, 7168, 2048, 24, 12, 2048), (14, 7168, 2048, 24, 12, 2048)])
    srd(a, S_RO, 8, 9, 512 * 1024)
    a("v_and_b32 v15, 7, v8")
    a("v_lshl_add_u32 v15, v15, 10, v9")
    a("s_lshl_b32 s78, s65, 11")
    a(f"s_add_u32 s78, s78, {LRD}")
    a("s_lshr_b32 s66, s2, 3")
    a("s_and_b32 s67, s2, 7")
    a("s_lshl_b32 s66, s66, 14")
    a("s_lshl_b32 s67, s67, 7")
    a("s_add_u32 s66, s66, s67")
    a("s_and_b32 s67, s65, 1")
    a("s_lshl_b32 s68, s67, 13")
    a("s_lshl_b32 s67, s67, 10")
    a(f"s_add_u32 m0, s67, {LRO}")
    a("s_add_u32 s66, s66, s68")
    a(f"buffer_load_dwordx4 v15, {SR(S_RO)}, s66 offen{PNT} lds")
    issued.append(("P", 1))
    issue(int(ENV("BURST", "0")), -1)
    a("v_bfe_u32 v18, v2, 2, 2")
    a("v_and_b32 v31, 3, v2")
    a("v_bfe_u32 v19, v2, 4, 1")
    a("v_lshlrev_b32 v31, 3, v31")
    a("v_lshl_or_b32 v31, v19, 5, v31")
    a("v_lshrrev_b32 v19, 1, v18")
    a("v_lshl_or_b32 v31, v19, 6, v31")
    a("v_lshl_or_b32 v31, v18, 7, v31")
    a("v_lshrrev_b32 v19, 5, v2")
    a("v_lshl_or_b32 v31, v19, 9, v31")
    a("v_add_u32 v18, s78, v31")
    a("v_xor_b32 v19, 64, v18")
    a("s_cmp_eq_u32 s65, 0")
    a(f"s_cselect_b32 s82, s82, {OOB:#x}")
    a(f"s_cselect_b32 s85, 0, {OOB:#x}")
    a("v_mov_b32 v6, 1")
    a("v_lshlrev_b32 v4, 7, v2")
    for i in range(4): a(f"s_add_u32 s{86+i}, s85, {WS_F1 + i*8192}")
    stamp(a, 2, VS)
    wait_stage(0)
    stamp(a, 3, VS)
    a("s_barrier")
    a("v_add_u32 v14, 1, v14")
    a("v_max_u32 v14, 1, v14")
    one_lane(a, f"buffer_store_dword v14, v5, {WSR}, s84 offen{ST}")
    issued.append(("T", 1))
    def ld1():
        for i in range(4): a(f"buffer_load_dwordx2 {vr(20+2*i,2)}, v4, {WSR}, s{86+i} offen{ST}")
    PER1, PER2, PSW = [int(x) for x in ENV("PER", "6,4,12").split(",")]
    issue(int(ENV("PER0", "6")), -1)
    def cmp1():
        for i in range(4):
            a(f"v_xor_b32 v{20+2*i}, v{20+2*i}, v16")
            a(f"v_xor_b32 v{21+2*i}, v{21+2*i}, v17")
        a("v_or3_b32 v20, v20, v21, v22")
        a("v_or3_b32 v23, v23, v24, v25")
        a("v_or3_b32 v20, v20, v26, v27")
        a("v_or_b32 v20, v20, v23")
        a("v_cmp_ne_u32 vcc, 0, v20")
    def ltable(t, regs):
        for i in range(8): a(f"v_mov_b32 v{HP+8+i}, -1")
        r = regs[2]
        a(f"s_lshl_b32 s{r}, s{sQB}, 3")
        a(f"s_lshl_b32 s{t}, s65, 1")
        a(f"s_add_u32 s{r}, s{r}, s{t}")
        a(f"s_mul_i32 s{r}, s{r}, {144*1024}")
        a(f"s_lshl_b32 s{t}, s{sHEAD}, 10")
        a(f"s_add_u32 s{r}, s{r}, s{t}")
        a(f"s_add_u32 s{r}, s{r}, {WS_AF}")
        a(f"s_add_u32 s{regs[3]}, s{r}, {144*1024}")
    a(f"s_lshr_b32 s66, s{sHEAD}, 2")
    a("s_lshl_b32 s67, s66, 11")
    a(f"s_lshl_b32 s68, s{sQB}, 8")
    a("s_add_u32 s68, s68, s67")
    a(f"s_add_u32 s67, s67, {8*2048}")
    a(f"s_lshr_b32 s66, s{sHEAD}, 3")
    a("s_lshl_b32 s66, s66, 13")
    a(f"s_add_u32 s66, s66, {2*2048}")
    a("v_add_u32 v70, s67, v4")
    a("v_add_u32 v71, s66, v4")
    a("v_and_b32 v72, 1, v2")
    a("v_lshl_add_u32 v72, v72, 7, s68")
    a("v_cmp_gt_u32 vcc, 32, v2")
    a("v_cndmask_b32 v71, v72, v71, vcc")
    a("v_cmp_gt_u32 vcc, 16, v2")
    a("v_cndmask_b32 v70, v71, v70, vcc")
    def lda(): a(f"buffer_load_dwordx2 v[72:73], v70, {WSR}, s86 offen{ST}")
    def cmpa():
        a("v_xor_b32 v72, v72, v16")
        a("v_xor_b32 v73, v73, v17")
        a("v_or_b32 v72, v72, v73")
        a("v_cmp_ne_u32 vcc, 0, v72" if "1" not in ENV("WI", "") else "v_cmp_ne_u32 vcc, v72, v72")
    a(f"v_mov_b32 v7, {LCNT}")
    SIDE1, SIDE2 = [int(x) for x in ENV("SIDE", "19,26").split(",")]
    def side_out():
        wait_tag(("S", 0))
        for nl in range(2):
            for j in range(2): a(f"ds_read_b64_tr_b16 {vr(HP+4*nl+2*j,2)}, v{18+nl} offset:{j*1024}")
        a("v_mov_b32 v64, 0")
        a("v_mov_b32 v65, 0")
        for i in range(4):
            a(f"v_dot2_f32_bf16 v64, v{48+i}, v{56+i}, v64")
            a(f"v_dot2_f32_bf16 v65, v{52+i}, v{56+i}, v65")
        a("v_cmp_eq_u32 vcc, 0, v2")
        a("s_waitcnt lgkmcnt(0)")
        for mod in ("quad_perm:[1,0,3,2]", "quad_perm:[2,3,0,1]", "row_half_mirror", "row_mirror"):
            for r in (64, 65): a(f"v_add_f32_dpp v{r}, v{r}, v{r} {mod} row_mask:0xf bank_mask:0xf")
        for r, sb in ((64, 66), (65, 56)):
            for q in range(4): a(f"v_readlane_b32 s{sb+q}, v{r}, {16*q}")
        a("v_mov_b32 v66, s66")
        a("v_mov_b32 v67, s56")
        for q in range(1, 4):
            a(f"v_add_f32 v66, s{66+q}, v66")
            a(f"v_add_f32 v67, s{56+q}, v67")
        a("v_cndmask_b32 v66, v67, v66, vcc")
        a(f"v_mul_f32 v66, {f32(-LOG2E)}, v66")
        a("v_exp_f32 v66, v66")
        a("v_lshlrev_b32 v68, 2, v2")
        a("v_add_f32 v66, 1.0, v66")
        a("v_rcp_f32 v66, v66")
        a("s_lshl_b32 s71, s71, 2")
        a(f"s_add_u32 s71, s71, {WS_G}")
        one_lane(a, f"buffer_store_dword v66, v68, {WSR}, s71 offen{ST}", 3)
        issued.append(("S", 1))
    for s in range(LASTB + 1):
        E0 = int(ENV("EARLY", "-100"))
        if s in (4, 10, 16, 24) and E0 < 0: stamp(a, {4: 4, 10: 5, 16: 6, 24: 7}[s], VS)
        if 0 <= s - E0 < 6: stamp(a, [4, 7, 24, 27, 21, 30][s - E0], VS)
        if s == LASTB:
            assert not queue
            wait_stage(31)
        else: wait_stage(s + 1)
        if 0 <= s - E0 < 6: stamp(a, [5, 8, 25, 28, 22, 31][s - E0], VS)
        if s < 16 or "B" not in ENV("X2", ""): a("s_barrier")
        if 0 <= s - E0 < 5: stamp(a, [6, 9, 26, 29, 23][s - E0], VS)
        issue(PER1 if s < PSW else PER2, s)
        if s == 3:
            wait_tag(("T", 1))
            if ENV("FIX0"):
                a("v_mov_b32 v80, s96")
                one_lane(a, f"buffer_store_dword v80, v5, {SR(S_DBG)}, s83 offen offset:8{ST}")
                issued.append(("T", 2))
            one_lane(a, f"buffer_store_dword v14, v5, {SR(S_DBG)}, s83 offen{ST}")
            issued.append(("T", 2))
        if s == int(ENV("PFB", "5")) and (PF or PFK):
            prefetch([(16, 7168, 0, 56, 0, 0), None, (12, 7168, 0, 32, 16, 1536), (14, 7168, 0, 32, 16, 1536)])
        if s == int(ENV("PFB", "5")) and PFX: prefetch_x2()
        if s == int(ENV("PF2", "-1")):
            a("s_lshr_b32 s66, s2, 3")
            a("s_and_b32 s66, s66, 7")
            a("s_lshl_b32 s66, s66, 6")
            a("s_lshr_b32 s67, s65, 1")
            a("s_lshl_b32 s67, s67, 5")
            a("s_add_u32 s66, s66, s67")
            a("v_and_b32 v27, 31, v2")
            a("v_add_u32 v27, s66, v27")
            a("v_mul_u32_u24 v29, 3584, v27")
            a("v_add_u32 v29, s70, v29")
            a("s_bitcmp1_b32 s65, 0")
            a("s_cselect_b32 s94, s14, s12")
            a("s_cselect_b32 s95, s15, s13")
            a("s_mov_b64 exec, 0xffffffff")
            a("global_load_dword v30, v29, s[94:95]")
            a("s_mov_b64 exec, -1")
            a(f"s_mul_i32 s66, s{sHEAD}, 3")
            a("s_add_u32 s66, s66, s65")
            a(f"s_add_u32 s67, s{sHEAD}, 96")
            a("s_cmp_eq_u32 s65, 3")
            a("s_cselect_b32 s66, s67, s66")
            a("s_min_u32 s66, s66, 111")
            a("s_lshl_b32 s66, s66, 14")
            a(f"s_lshl_b32 s67, s{sQB}, 7")
            a("s_add_u32 s66, s66, s67")
            a("v_lshl_add_u32 v29, v2, 10, s66")
            a("s_mov_b64 exec, 0xffff")
            a("global_load_dword v30, v29, s[16:17]")
            a("s_mov_b64 exec, -1")
            issued.extend([("P", 0)] * 2)
        if s == 9:
            a("s_cmp_lg_u32 s65, 0")
            a("s_cbranch_scc1 L_nowo2")
            for nl in range(2):
                for j in range(2): a(f"ds_read_b64_tr_b16 {vr(36+4*nl+2*j,2)}, v{18+nl} offset:{LRO - LRD + j*1024}")
            a("s_lshr_b32 s66, s2, 3")
            a("s_and_b32 s67, s2, 7")
            a(f"s_mul_i32 s67, s67, {2*144*1024}")
            a("s_lshl_b32 s66, s66, 10")
            a("s_add_u32 s66, s66, s67")
            a(f"s_add_u32 s66, s66, {WS_WF}")
            a(f"s_add_u32 s67, s66, {144*1024}")
            a(f"s_lshl_b32 s68, s{sMB}, 11")
            a(f"s_lshl_b32 s76, s{sNB}, 7")
            a("s_add_u32 s68, s68, s76")
            a(f"s_add_u32 s68, s68, {WS_F2}")
            a(f"s_lshl_b32 s76, s{sQB}, 12")
            a(f"s_lshl_b32 s77, s{sHEAD}, 7")
            a("s_add_u32 s76, s76, s77")
            a(f"s_add_u32 s76, s76, {WS_F3}")
            zero(a, 44, 4)
            a("s_waitcnt lgkmcnt(0)")
            a(f"buffer_store_dwordx4 v[36:39], v3, {WSR}, s66 offen{STS}")
            a(f"buffer_store_dwordx4 v[40:43], v3, {WSR}, s67 offen{STS}")
            a("s_mov_b64 exec, 1")
            a(f"buffer_store_dwordx4 v[44:47], v3, {WSR}, s68 offen{STS}")
            a(f"buffer_store_dword v44, v3, {WSR}, s76 offen{ST}")
            a("s_mov_b64 exec, -1")
            a.label("L_nowo2")
        if s == SIDE1:
            srd(a, S_RD, 16, 17, 1792 * 1024)
            srd(a, S_GW, 18, 19, 1024)
            a(f"s_mul_i32 s66, s{sHEAD}, 3")
            a("s_add_u32 s66, s66, s65")
            a(f"s_add_u32 s67, s{sHEAD}, 96")
            a("s_cmp_eq_u32 s65, 3")
            a("s_cselect_b32 s66, s67, s66")
            a("s_lshl_b32 s69, s66, 14")
            a(f"s_lshl_b32 s68, s{sQB}, 7")
            a("s_mov_b32 m0, s78")
            a("s_add_u32 s69, s69, s68")
            a(f"buffer_load_dwordx4 v15, {SR(S_RD)}, s69 offen{PNT} lds")
            a("s_add_u32 m0, s78, 1024")
            a("s_add_u32 s69, s69, 8192")
            a(f"buffer_load_dwordx4 v15, {SR(S_RD)}, s69 offen{PNT} lds")
            a(f"s_mul_i32 s79, s{sQB}, {2*144*1024}")
            a("s_lshl_b32 s67, s66, 10")
            a("s_add_u32 s79, s79, s67")
            a(f"s_add_u32 s79, s79, {WS_WF + 32*1024}")
            a("s_cmp_lt_u32 s66, 112")
            a(f"s_cselect_b32 s79, s79, {OOB:#x}")
            a(f"s_add_u32 s80, s79, {144*1024}")
            a(f"s_lshl_b32 s71, s{sMB}, 7")
            a(f"s_lshl_b32 s67, s{sNB}, 3")
            a("s_add_u32 s71, s71, s67")
            a("s_lshl_b32 s67, s65, 1")
            a("s_add_u32 s71, s71, s67")
            a("s_lshl_b32 s67, s71, 10")
            a(f"buffer_load_dwordx4 v[48:51], v3, {SR(S_X)}, s67 offen")
            a(f"buffer_load_dwordx4 v[52:55], v3, {SR(S_X)}, s67 offen offset:1024")
            a(f"buffer_load_dwordx4 v[56:59], v3, {SR(S_GW)}, 0 offen")
            issued.extend([("S", 0)] * 5)
        if s == SIDE2:
            side_out()
            if LEARLY:
                ltable(68, (79, 80, 66, 67))
                for n, r in enumerate((79, 80, 66, 67)): a(f"buffer_store_dwordx4 {vr(HP+4*n)}, v3, {WSR}, s{r} offen{STS}")
                issued.extend([("S", 1)] * 4)
        if s == 14:
            a(f"buffer_load_dword v16, v5, {SR(S_DBG)}, s85 offen{ST}")
            issued.append(("T", 3))
        if s == min(PUBS, PUBC) - 1:
            a("s_cmp_lg_u32 s65, 0")
            a("s_cbranch_scc1 L_tagdone")
            wait_tag(("T", 3))
            a("v_cmp_eq_u32 vcc, 0, v16")
            a("s_cbranch_vccz L_pt_ok")
            poll(a, "L_pt", lambda: a(f"buffer_load_dword v16, v5, {SR(S_DBG)}, 0 offen{ST}"), lambda: a("v_cmp_eq_u32 vcc, 0, v16"))
            a("v_not_b32 v17, v16")
            a.label("L_tagdone")
        for typ, at in ((0, PUBS), (1, PUBC)):
            if s == at:
                a(f"s_lshl_b32 s66, s65, 1")
                a(f"s_add_u32 s66, s66, s{sVC}")
                a(f"s_cmp_lg_u32 s66, {typ}")
                a(f"s_cbranch_scc1 L_f1done{typ}")
                one_lane(a, f"buffer_store_dwordx2 v[16:17], v5, {WSR}, s82 offen{ST}")
                a.label(f"L_f1done{typ}")
        if s == LASTB - 1:
            lda(); issued.append(("F", 0))
    a("s_cmp_ge_u32 s65, 2")
    a("s_cbranch_scc1 L_nocs")
    const_setup(a, 9, 32, 8)
    const_write(a, 9, 32)
    a.label("L_nocs")
    if E0 < 0: stamp(a, 8, VS)
    a("s_cmp_lg_u32 s65, 0")
    a("s_cbranch_scc1 L_wl")
    a("s_waitcnt vmcnt(0)")
    cmpa()
    a("s_cbranch_vccz L_ps1_ok")
    poll(a, "L_ps1", lda, cmpa)
    a("ds_write_b32 v7, v6")
    a("s_branch L_wl_ok")
    a.label("L_wl")
    a(f"s_mov_b32 s98, {SPIN*8}")
    a.label("L_wl2")
    a("ds_read_b32 v8, v7")
    a("s_waitcnt lgkmcnt(0)")
    a("v_cmp_ne_u32 vcc, 1, v8")
    a("s_cbranch_vccz L_wl_ok")
    a("s_sleep 1")
    a("s_sub_u32 s98, s98, 1")
    a("s_cmp_lg_u32 s98, 0")
    a("s_cbranch_scc1 L_wl2")
    a.label("L_wl_ok")
    if E0 < 0: stamp(a, 9, VS)
    a(f"s_lshl_b32 s56, s{sHEAD}, 16")
    a(f"s_lshl_b32 s67, s{sQB}, 13")
    a("s_lshl_b32 s57, s65, 11")
    a("s_add_u32 s59, s67, s57")
    a("s_add_u32 s67, s59, s56")
    a(f"s_add_u32 m0, s57, {LQI}")
    a(f"s_add_u32 s67, s67, {WS_QK}")
    for i in range(2): a(f"buffer_load_dwordx4 v3, {WSR}, s67 offen offset:{i*1024}{ST} lds")
    a(f"s_mul_i32 s58, s65, {2*VST}")
    kv8(a, 0)
    a(f"s_mov_b32 s{DT}, s79")
    a(f"s_mov_b32 s{DT+1}, s80")
    ltable(68, (DT, DT+1, DT+2, DT+3))
    a(f"v_mov_b32 v{WO}, v16")
    a(f"v_mov_b32 v{WO+1}, v17")
    a("s_branch L_attn")

def kv8(a, p0):
    a(f"s_add_u32 s94, s59, {p0*1024}")
    a("s_and_b32 s94, s94, 0xffff")
    a("s_add_u32 s94, s94, s56")
    a(f"s_add_u32 m0, s57, {LK + p0*1024}")
    a(f"s_add_u32 s67, s94, {WS_QK + 32*65536}")
    for i in range(2): a(f"buffer_load_dwordx4 v3, {WSR}, s67 offen offset:{i*1024}{ST} lds")
    a(f"s_add_u32 s67, s94, {WS_V}")
    for i in range(2):
        a(f"s_add_u32 m0, s58, {LV + (p0+i)*VST - i*1024}")
        a(f"buffer_load_dwordx4 v3, {WSR}, s67 offen offset:{i*1024}{ST} lds")

LEARLY = False
def const_setup(a, va, vd, t):
    a(f"v_and_b32 v{t}, 255, v0")
    a(f"v_lshrrev_b32 v{va}, 2, v{t}")
    a(f"v_mul_u32_u24 v{va}, {VST}, v{va}")
    a(f"v_and_b32 v{t}, 3, v{t}")
    a(f"v_mul_u32_u24 v{t}, v{t}, v{t}")
    a(f"v_min_u32 v{t}, 4, v{t}")
    a(f"v_lshl_add_u32 v{va}, v{t}, 4, v{va}")
    a(f"v_add_u32 v{va}, {LV + 1024}, v{va}")
    a(f"v_mov_b32 v{vd}, 0x3f803f80")
    if ONE_ROW:
        a(f"v_cmp_eq_u32 vcc, 0, v{t}")
        a(f"v_cndmask_b32 v{vd}, 0, v{vd}, vcc")
    a(f"v_mov_b32 v{vd+1}, v{vd}")
def const_write(a, va, vd):
    a(f"ds_write_b64 v{va}, {vr(vd,2)}")
    a(f"ds_write_b64 v{va}, {vr(vd,2)} offset:8")

def attn(a):
    a.label("L_attn")
    a(f"s_and_b32 s65, s{sWAVE}, 3")
    a(f"s_lshr_b32 s66, s{sWAVE}, 2")
    a("s_lshl_b32 s67, s66, 10")
    a(f"v_add_u32 v{VK}, s67, v3")
    a(f"v_add_u32 v8, {VROT}, v2")
    a("v_and_b32 v8, 15, v8")
    a("v_lshrrev_b32 v9, 5, v2")
    a("v_lshl_or_b32 v8, v9, 4, v8")
    a("v_lshlrev_b32 v8, 4, v8")
    a("v_add_u32 v9, 512, v8")
    a("v_and_b32 v10, 31, v2")
    a("v_subrev_u32 v11, 20, v10")
    a("v_cmp_gt_u32 vcc, 8, v11")
    a("v_mov_b32 v11, 1040")
    a("v_mov_b32 v12, 1088")
    a("v_cndmask_b32 v11, v11, v12, vcc")
    a("v_cmp_eq_u32 vcc, 16, v10")
    a("v_mov_b32 v12, 1024")
    a("v_cndmask_b32 v11, v11, v12, vcc")
    a("v_cmp_gt_u32 vcc, 16, v10")
    a("v_cndmask_b32 v8, v11, v8, vcc")
    a("v_cndmask_b32 v9, v11, v9, vcc")
    a(f"s_mul_i32 s67, s66, {VST}")
    a(f"s_add_u32 s67, s67, {LV}")
    a(f"v_add_u32 v{VV0}, s67, v8")
    a(f"v_add_u32 v{VV1}, s67, v9")
    a("s_lshl_b32 s67, s65, 11")
    a(f"s_add_u32 s67, s67, {LQI}")
    a("v_add_u32 v20, s67, v3")
    zero(a, OA, 32); zero(a, V1, 4); zero(a, GACC, 32)
    T0 = GFR + 36
    a(f"s_lshl_b32 s73, s{sMB}, 11")
    a(f"s_lshl_b32 s74, s{sNB}, 7")
    a("s_add_u32 s73, s73, s74")
    a(f"s_add_u32 s73, s73, {WS_F2}")
    a(f"s_lshl_b32 s74, s{sQB}, 12")
    a(f"s_lshl_b32 s75, s{sHEAD}, 7")
    a("s_add_u32 s74, s74, s75")
    a(f"s_add_u32 s74, s74, {WS_F3}")
    a(f"v_mov_b32 v{T0+2}, s73")
    a(f"v_writelane_b32 v{T0+2}, s74, 1")
    a(f"v_mov_b32 v{T0+3}, 1")
    a(f"v_mov_b32 v{T0+4}, {LCNT+4}")
    g = T0 + 5
    a(f"v_and_b32 v{g+2}, 15, v2")
    a(f"v_lshlrev_b32 v{g+2}, 7, v{g+2}")
    a(f"s_lshr_b32 s74, s{sHEAD}, 1")
    a("s_lshl_b32 s74, s74, 11")
    a(f"s_add_u32 s74, s74, {WS_F2}")
    a(f"s_lshl_b32 s88, s{sQB}, 12")
    a(f"s_lshr_b32 s89, s{sHEAD}, 2")
    a("s_lshl_b32 s89, s89, 12")
    a("s_sub_u32 s89, s89, 4096")
    a(f"v_mov_b32 v{g}, s88")
    a(f"v_mov_b32 v{g+1}, s89")
    a("v_cmp_gt_u32 vcc, 32, v2")
    a(f"v_cndmask_b32 v{g}, v{g+1}, v{g}, vcc")
    a(f"v_lshl_add_u32 v{g+3}, v2, 7, v{g}")
    a(f"s_mov_b32 s88, {WS_F3}")
    a(f"s_and_b32 s68, s{sWAVE}, 1")
    a(f"s_lshr_b32 s69, s{sWAVE}, 1")
    a(f"s_lshl_b32 s84, s{sHEAD}, 1")
    a("s_add_u32 s84, s84, s68")
    a(f"s_mul_i32 s85, s84, {144*1024}")
    a(f"s_add_u32 s85, s85, {WS_AF}")
    a(f"s_mul_i32 s86, s{sQB}, {2*144*1024}")
    a(f"s_add_u32 s86, s86, {WS_WF}")
    a(f"s_mul_i32 s75, s69, {28*1024}")
    a(f"s_add_u32 s75, s75, {32*1024}")
    a("s_add_u32 s76, s85, s75")
    a("s_add_u32 s77, s86, s75")
    a(f"s_add_u32 s78, s77, {144*1024}")
    a("s_lshl_b32 s75, s69, 13")
    a("s_add_u32 s85, s85, s75")
    a("s_add_u32 s86, s86, s75")
    a(f"v_mov_b32 v{VG}, v3")
    a("s_movk_i32 s87, 4096")
    a(f"s_lshl_b32 s90, s{sHEAD}, 16")
    a(f"s_lshl_b32 s91, s{sWAVE}, 10")
    a(f"s_mul_i32 s92, s{sWAVE}, {VST}")
    a(f"s_lshl_b32 s93, s{sQB}, 13")
    a("s_add_u32 s93, s93, s91")
    const_setup(a, T0+9, T0+10, T0)
    a(f"v_lshlrev_b32 v{WO+2}, 7, v2")
    a(f"s_cmp_lt_u32 s{sWAVE}, 4")
    a("s_cbranch_scc1 L_x1")
    for p0 in (8, 16, 24): kv8(a, p0)
    a("s_waitcnt vmcnt(8)")
    a.label("L_x1")
    a("s_waitcnt lgkmcnt(0)")
    a("s_setprio 3")
    a("s_barrier")
    stamp(a, 10, VS)
    a(f"ds_read_b128 {vr(QA)}, v20")
    a(f"ds_read_b128 {vr(QB)}, v20 offset:1024")
    a(f"ds_read_b128 {vr(V0B)}, v3")
    a(f"ds_read_b128 {vr(KF)}, v{VK}")
    a(f"ds_read_b128 {vr(V0A)}, v{VV0}")
    a(f"s_cmp_lt_u32 s{sWAVE}, 6")
    a("s_cbranch_scc1 L_nocs2")
    const_write(a, T0+9, T0+10)
    a.label("L_nocs2")
    def kvops(groups):
        ops = []
        for p0 in groups:
            ops.append([f"s_add_u32 s94, s93, {p0*1024}", "s_and_b32 s94, s94, 0xffff", "s_add_u32 s94, s94, s90",
                        f"s_add_u32 m0, s91, {LK + p0*1024}", f"s_add_u32 s67, s94, {WS_QK + 32*65536}",
                        f"buffer_load_dwordx4 v3, {WSR}, s67 offen{ST} lds"])
            ops.append([f"s_add_u32 m0, s92, {LV + p0*VST}", f"s_add_u32 s67, s94, {WS_V}",
                        f"buffer_load_dwordx4 v3, {WSR}, s67 offen{ST} lds"])
        return ops
    def burst(young):
        if "H" in ENV("WI", ""): return
        t = "y" if young else "o"
        a(f"s_cmp_{'lt' if young else 'ge'}_u32 s{sWAVE}, 4")
        a(f"s_cbranch_scc1 L_st4{t}")
        for n in range(4): a(f"buffer_store_dwordx4 {vr(HP+4*n)}, v3, {WSR}, s{DT+n} offen{STS}")
        if not young:
            a(f"s_cmp_lg_u32 s{sVC}, 0")
            a(f"s_cbranch_scc1 L_st4{t}")
            for n in range(4, 8): a(f"buffer_store_dwordx4 {vr(HP+4*n)}, v3, {WSR}, s{DT+n} offen{STS}")
        a.label(f"L_st4{t}")
    BURSTK = int(ENV("BURSTK", "2"))
    burst(False)
    if BURSTK < 0: burst(True)
    stamp(a, 21, VS) if not ENV("EARLY") else None
    a("s_waitcnt lgkmcnt(0)")
    a(f"{MF} {vr(SA,16)}, {vr(V0B)}, {vr(QA)}, 0")
    a(f"{MF} {vr(SB,16)}, {vr(V0B)}, {vr(QB)}, 0")
    rowmax(a, SA, T0)
    rowmax(a, SB, T0, acc=True)
    halfmax(a, T0, T0 + 1)
    for i in range(16): a(f"v_sub_f32 v{CC+i}, 0, v{T0}")
    a("s_waitcnt lgkmcnt(0)")
    a(f"{MF} {vr(SA,16)}, {vr(KF)}, {vr(QA)}, {vr(CC,16)}")
    zero(a, SB + 8, 4)
    a("s_nop 9")

    TV = ENV("TV", "0")
    def tile(n, which, extra, extra0=lambda: None, late=lambda: None):
        S, T, O, OT, QT = (SA, SB, OA, OB, QB) if which == 0 else (SB, SA, OB, OA, QA)
        v0 = V0A if n % 2 == 0 else V0B
        v0n = V0B if n % 2 == 0 else V0A
        e = lambda i: a(f"v_exp_f32 v{S+i}, v{S+i}")
        c = lambda i: a(f"v_cvt_pk_bf16_f32 v{S + (i>>2)*8 + (i&3)}, v{S+2*i}, v{S+2*i+1}")
        pv2 = lambda: a(f"{MF} {vr(OT,16)}, {vr(V1)}, {vr(T+8)}, {vr(OT,16)}")
        qk = lambda: a(f"{MF} {vr(T,16)}, {vr(KF)}, {vr(QT)}, {vr(CC,16)}")
        pv1 = lambda: a(f"{MF} {vr(O,16)}, {vr(v0)}, {vr(S)}, {vr(O,16)}")
        def rdv():
            if which == 0:
                a(f"ds_read_b128 {vr(V1)}, v{VV1} offset:{2*n*VST}")
                a(f"ds_read_b128 {vr(v0n)}, v{VV0} offset:{2*(n+1)*VST}")
        def rdk():
            if which == 0: a(f"ds_read_b128 {vr(KF)}, v{VK} offset:{2*(n+1)*1024}")
        if TV == "0":
            e(0); e(1)
            if which == 1: a("s_waitcnt lgkmcnt(0)")
            pv2(); rdv()
            e(2); e(3); e(4); e(5)
            qk(); rdk()
            e(6); e(7); e(8)
            extra0()
            for i in range(4): c(i)
            e(9); e(10)
            pv1()
            e(11); e(12); e(13); e(14)
            extra()
            e(15)
            for i in range(4, 8): c(i)
            late()
        elif TV == "1":
            e(0); e(1)
            if which == 1: a("s_waitcnt lgkmcnt(0)")
            pv2(); rdv()
            e(2); e(3); e(4); e(5); e(6)
            qk(); rdk()
            e(7); c(0); c(1); c(2); extra0(); c(3); e(8); e(9)
            pv1()
            e(10); e(11); e(12); e(13); e(14)
            extra()
            e(15)
            for i in range(4, 8): c(i)
            late()
        elif TV == "2":
            e(0); e(1)
            if which == 1: a("s_waitcnt lgkmcnt(0)")
            pv2(); rdv()
            e(2); c(0); e(3); e(4); c(1); e(5)
            qk(); rdk()
            e(6); c(2); e(7); e(8); extra0(); c(3); e(9); e(10)
            pv1()
            c(4); e(11); e(12); c(5); e(13); e(14)
            extra()
            c(6); e(15); late(); a("s_nop 0") if False else None
            c(7)
    def bump(n):
        a(f"v_add_u32 v{VK}, {2*n*1024}, v{VK}")
        a(f"v_add_u32 v{VV0}, {2*n*VST}, v{VV0}")
        a(f"v_add_u32 v{VV1}, {2*n*VST}, v{VV1}")
    PRIO = ENV("PRIO", "1") == "1"
    DPER, DRAIN = int(ENV("DPER", "1")), int(ENV("DRAIN", "10"))
    wo = list(range(16))
    g = T0 + 5
    def ld2():
        a(f"buffer_load_dword v{g}, v{g+2}, {WSR}, s74 offen{ST}")
        a(f"buffer_load_dword v{g+1}, v{g+3}, {WSR}, s88 offen{ST}")
    def cmp2():
        a(f"v_and_b32 v{g}, v{g}, v{g+1}")
        a(f"v_cmp_ne_u32 vcc, 1, v{g}" if "2" not in ENV("WI", "") else f"v_cmp_ne_u32 vcc, v{g}, v{g}")
    def ldswait(name, off, val):
        a(f"s_mov_b32 s98, {SPIN*8}")
        a.label(name)
        a(f"ds_read_b32 v{T0}, v{T0+1} offset:{off}")
        a("s_waitcnt lgkmcnt(0)")
        a(f"v_cmp_ne_u32 vcc, {val}, v{T0}")
        a(f"s_cbranch_vccz {name}_ok")
        a("s_sleep 1")
        a("s_sub_u32 s98, s98, 1")
        a("s_cmp_lg_u32 s98, 0")
        a(f"s_cbranch_scc1 {name}")
        a.label(f"{name}_ok")
    a(f"v_mov_b32 v{T0+1}, {LCNT}")
    S2W = int(ENV('S2WAVE', '0'))
    S2AT = int(ENV('S2AT', '14'))
    def ldwo(i):
        if "W" in ENV("WI", "") and i >= 2: return
        if i % 4 == 0: a(f"s_add_u32 s71, s86, {(i>>3)*144*1024 + (i&7)*1024}")
        a(f"buffer_load_dwordx4 {vr(WO + 4*i)}, v3, {WSR}, s71 offen offset:{(i&3)*1024}{'' if 'O' in ENV('XG', 'Q') else ST}")
    PK = [int(x) for x in ENV("PK", "3,7,12").split(",")]
    ops = kvops((32, 40, 48, 56))
    ops = [(lambda l=l: [a(x) for x in l]) for l in ops]
    def ldb():
        for i in range(4):
            a(f"s_mov_b32 s70, {WS_F1 + i*8192}")
            a(f"buffer_load_dwordx2 {vr(WO+4+2*i,2)}, v{WO+2}, {WSR}, s70 offen{ST}")
    def cmpb():
        b = WO + 4
        for i in range(4):
            a(f"v_xor_b32 v{b+2*i}, v{b+2*i}, v{WO}")
            a(f"v_xor_b32 v{b+2*i+1}, v{b+2*i+1}, v{WO+1}")
        a(f"v_or3_b32 v{b}, v{b}, v{b+1}, v{b+2}")
        a(f"v_or3_b32 v{b+3}, v{b+3}, v{b+4}, v{b+5}")
        a(f"v_or3_b32 v{b}, v{b}, v{b+6}, v{b+7}")
        a(f"v_or_b32 v{b}, v{b}, v{b+3}")
        a(f"v_cmp_ne_u32 vcc, 0, v{b}")
    DRAIN = int(ENV("DRAIN", "5"))
    KVW = int(ENV("KVW", "10"))
    nkv = 8
    slots = 2 * (15 - DRAIN) - 1
    def emit_ops():
        nonlocal slots
        n = -(-len(ops) // slots); slots -= 1
        n = min(n, len(ops)) if slots % 2 == 0 else 0
        for _ in range(n): ops.pop(0)()
    for k in range(16):
        if PRIO and k in PK: a(f"s_setprio {2 - PK.index(k)}")
        kcur = k
        if k == KVW: ldswait("L_kvw", 4, 8)
        if k == S2AT:
            a(f"s_cmp_lg_u32 s{sWAVE}, {S2W}")
            a("s_cbranch_scc1 L_s2a")
            ld2()
            a.label("L_s2a")
        def extra():
            if k == BURSTK: burst(True)
            if k == DRAIN - 2:
                a(f"s_cmp_lg_u32 s{sWAVE}, 4")
                a("s_cbranch_scc1 L_s1b0")
                ldb()
                a.label("L_s1b0")
            if k == DRAIN:
                stamp(a, 23, VS) if not ENV("EARLY") else None
                a("s_waitcnt vmcnt(0)")
                stamp(a, 24, VS) if not ENV("EARLY") else None
                a(f"s_cmp_lg_u32 s{sWAVE}, 4")
                a("s_cbranch_scc1 L_ps1b_ok")
                cmpb()
                a("s_cbranch_vccz L_ps1b_ok")
                poll(a, "L_ps1b", ldb, cmpb)
                one_lane(a, f"ds_add_rtn_u32 v{T0+4}, v{T0+4}, v{T0+3}")
            if k > DRAIN: emit_ops()
        def extra0():
            if k == DRAIN + 1:
                a("s_waitcnt lgkmcnt(0)")
                a(f"v_readfirstlane_b32 s70, v{T0+4}")
                a("s_cmp_eq_u32 s70, 7")
                a(f"s_cselect_b32 s70, 0, {OOB:#x}")
                one_lane(a, f"buffer_store_dword v{T0+3}, v{T0+2}, {WSR}, s70 offen{ST}", 3)
            if k > DRAIN + 1: emit_ops()
        nleft = len(ops)
        if k == S2AT: after_s2 = nleft
        tile(k >> 1, k & 1, extra, extra0)
    assert not ops
    stamp(a, 11, VS)
    a(f"s_cmp_lg_u32 s{sWAVE}, {S2W}")
    a("s_cbranch_scc1 L_s2b")
    a(f"s_waitcnt vmcnt({after_s2})")
    cmp2()
    a("s_cbranch_vccz L_ps2_ok")
    poll(a, "L_ps2", ld2, cmp2)
    a(f"ds_write_b32 v{T0+1}, v{T0+3} offset:8")
    a("s_waitcnt lgkmcnt(0)")
    a("s_branch L_s2w_ok")
    a.label("L_s2b")
    ldswait("L_s2w", 8, 1)
    stamp(a, 16, VS)
    if PRIO: a("s_setprio 3")
    bump(8)
    def gld(buf, q, off): a(f"buffer_load_dwordx4 {vr(GFR + 12*buf + 4*q)}, v{VG}, {WSR}, s{76+q} offen offset:{off}{'' if ('P' in ENV('XG', 'Q') or ('Q' in ENV('XG', 'Q') and q)) else ST}")
    def gm(buf, j):
        d = vr(GACC + 16*j, 16)
        a(f"{MF} {d}, {vr(GFR + 12*buf + 4 + 4*j)}, {vr(GFR + 12*buf)}, {d}")
    vq = []
    def gl(kt, q):
        gld(kt & 3, q, (kt & 3) * 1024); vq.append(("g", kt))
    def vneed(tag):
        n = len(vq) - 1 - max(i for i, e in enumerate(vq) if e == tag)
        a(f"s_waitcnt vmcnt({n})")
    for kt in range(4):
        for q in (1, 0, 2): gl(kt, q)
    a(f"v_mov_b32 v0, {LCNT}")
    a("v_mov_b32 v2, 1")
    PU = [int(x) for x in ENV("PU", "40,52,60").split(",")]
    wo = list(range(16))
    base = 8
    for k in range(16, 64):
        n, kt, j = k >> 1, (k - 16) >> 1, k & 1
        if k == 40: bump(12); base = 20
        if PRIO and k in PU: a(f"s_setprio {2 - PU.index(k)}")
        if k == 30:
            a(f"s_mov_b32 s98, {SPIN*8}")
            a.label("L_kv2")
            a("ds_read_b32 v2, v0 offset:12")
            a("s_waitcnt lgkmcnt(0)")
            a("v_cmp_ne_u32 vcc, 8, v2")
            a("s_cbranch_vccz L_kv2_ok")
            a("s_sleep 1")
            a("s_sub_u32 s98, s98, 1")
            a("s_cmp_lg_u32 s98, 0")
            a("s_cbranch_scc1 L_kv2")
            a.label("L_kv2_ok")
        def extra():
            if j == 0:
                if kt % 4 == 0: a(f"v_add_u32 v{VG}, 4096, v{VG}")
                vneed(("g", kt))
            gm(kt & 3, j)
            if j == 0: gl(kt + 4, 1)
            else: gl(kt + 4, 0); gl(kt + 4, 2)
        def extra0():
            if k == 17: one_lane(a, "ds_add_u32 v0, v2 offset:12")
            if k % 3 == 1 and wo: ldwo(wo.pop(0)); vq.append(("wo", 0))
        tile(n - base, j, extra, extra0)
    assert not wo
    bump(12)
    a("v_lshrrev_b32 v2, 4, v3")
    if STAMP: a(f"v_lshl_add_u32 v0, s{sWAVE}, 6, v2")
    a(f"{MF} {vr(OB,16)}, {vr(V1)}, {vr(SB+8)}, {vr(OB,16)}")
    stamp(a, 17, VS)
    a(f"s_mul_i32 s79, s{sWAVE}, 2304")
    a(f"s_add_u32 s79, s79, {LQ}")
    a(f"s_xor_b32 s80, s{sWAVE}, 4")
    a("s_mul_i32 s80, s80, 2304")
    a(f"s_add_u32 s80, s80, {LQ}")
    a(f"v_add_u32 v{KF}, s79, v3")
    a(f"v_add_u32 v{KF+1}, s80, v3")
    a(f"v_lshl_add_u32 v{KF+2}, v2, 2, s79")
    a(f"v_lshl_add_u32 v{KF+3}, v2, 2, s80")
    a(f"v_and_b32 v{V0A}, 31, v2")
    a(f"v_lshlrev_b32 v{V0A}, 2, v{V0A}")
    a("s_lshl_b32 s79, s84, 7")
    a(f"s_add_u32 s79, s79, {WS_G}")
    VGT = V0B
    a(f"buffer_load_dword v{VGT}, v{V0A}, {WSR}, s79 offen{ST}")
    a("s_cmp_eq_u32 s66, 0")
    a("s_cbranch_scc1 L_keepA")
    a(f"ds_write_b128 v{KF}, {vr(OA)}")
    a(f"ds_write_b128 v{KF}, {vr(OA+4)} offset:1024")
    a(f"ds_write_b32 v{KF+2}, v{OA+8} offset:2048")
    for i in range(9): a(f"v_mov_b32 v{OA+i}, v{OB+i}")
    for i in range(4): a(f"v_mov_b32 v{QA+i}, v{QB+i}")
    a("s_branch L_sent")
    a.label("L_keepA")
    a(f"ds_write_b128 v{KF}, {vr(OB)}")
    a(f"ds_write_b128 v{KF}, {vr(OB+4)} offset:1024")
    a(f"ds_write_b32 v{KF+2}, v{OB+8} offset:2048")
    a.label("L_sent")
    a(f"s_lshl_b32 s79, s{sQB}, 3")
    a("s_lshl_b32 s80, s65, 1")
    a("s_add_u32 s79, s79, s80")
    a("s_add_u32 s79, s79, s66")
    a(f"s_mul_i32 s81, s79, {144*1024}")
    a(f"s_lshl_b32 s80, s{sHEAD}, 10")
    a("s_add_u32 s81, s81, s80")
    a(f"s_add_u32 s81, s81, {WS_AF}")
    a("s_waitcnt lgkmcnt(0)")
    a("s_barrier")
    a(f"ds_read_b128 {vr(OB)}, v{KF+1}")
    a(f"ds_read_b128 {vr(OB+4)}, v{KF+1} offset:1024")
    a(f"ds_read_b32 v{OB+8}, v{KF+3} offset:2048")
    a("s_waitcnt lgkmcnt(0)")
    for i in range(9): a(f"v_add_f32 v{OA+i}, v{OA+i}, v{OB+i}")
    def lbcast():
        if ONE_ROW:
            a(f"v_mov_b32 v{OB}, v{OA+8}")
            a(f"v_permlane32_swap_b32 v{OA+8}, v{OB}")
    lbcast()
    a(f"v_cmp_nge_f32 vcc, {f32(2.0**60)}, v{OA+8}")
    a("s_mov_b64 s[82:83], vcc")
    a(f"v_cmp_nle_f32 vcc, {f32(2.0**-60)}, v{OA+8}")
    a("s_or_b64 vcc, vcc, s[82:83]")
    a("s_cbranch_vccnz L_redo")
    a.label("L_aok")
    a(f"v_rcp_f32 v12, v{OA+8}")
    for i in range(8): a(f"v_mul_f32 v{OA+i}, v12, v{OA+i}")
    for i in range(4): a(f"v_cvt_pk_bf16_f32 v{SA+i}, v{OA+2*i}, v{OA+2*i+1}")
    for i in range(4): a(f"v_min_u32 v{SA+i}, -2, v{SA+i}")
    a(f"buffer_store_dwordx4 {vr(SA)}, v3, {WSR}, s81 offen{STS}")
    stamp(a, 18, VS)
    srd(a, S_OUT, 20, 21, 2048 * 1024)
    a("s_lshl_b32 s79, s68, 15")
    a("v_add_u32 v14, s79, v3")
    a("s_lshl_b32 s80, s69, 13")
    a("s_add_u32 s80, s80, s79")
    a("v_add_u32 v15, s80, v3")
    a("v_and_b32 v12, 31, v2")
    a("v_lshlrev_b32 v12, 10, v12")
    a("v_lshrrev_b32 v13, 5, v2")
    a("v_lshl_or_b32 v11, v13, 4, v12")
    a("s_lshl_b32 s79, s84, 15")
    a(f"s_lshl_b32 s80, s{sQB}, 7")
    a("s_add_u32 s79, s79, s80")
    a("s_lshl_b32 s80, s69, 5")
    a("s_add_u32 s79, s79, s80")
    a("s_add_u32 s87, s85, 4096")
    a("s_barrier")
    TE = ENV("TE", "0")
    if TE != "2":
        a("s_waitcnt vmcnt(1)")
        for b in range(4): gm(b, 0); gm(b, 1)
    if TE == "0": a("s_waitcnt vmcnt(0)")
    stamp(a, 19, VS)
    OF, A2 = 16, 64
    def ldO():
        for i in range(8): a(f"buffer_load_dwordx4 {vr(OF+4*i)}, v3, {WSR}, s{85 if i < 4 else 87} offen offset:{(i&3)*1024}{ST}")
    def cmpO():
        for i in range(8):
            a(f"s_waitcnt vmcnt({7-i})")
            for j in range(2):
                d = vr(A2 + 16*j, 16)
                a(f"{MF} {d}, {vr(WO + 32*j + 4*i)}, {vr(OF+4*i)}, {'0' if i == 0 else d}")
            r = OF + 4*i
            if i == 0: a(f"v_max_u32 v12, v{r}, v{r+1}")
            else: a(f"v_max3_u32 v12, v{r}, v{r+1}, v12")
            a(f"v_max3_u32 v12, v{r+2}, v{r+3}, v12")
        a("v_cmp_eq_u32 vcc, -1, v12" if "3" not in ENV("WI", "") else "v_cmp_ne_u32 vcc, v12, v12")
    ldO()
    if TE == "2":
        a("s_waitcnt vmcnt(9)")
        for b in range(4): gm(b, 0); gm(b, 1)
    a(f"v_sub_f32 v10, 1.0, v{VGT}")
    for r in range(32): a(f"v_mul_f32 v{GACC+r}, v10, v{GACC+r}")
    a(f"s_mov_b32 s98, {SPIN}")
    a("s_branch L_ps3c")
    def ldO2():
        ldO(); a.label("L_ps3c")
    poll(a, "L_ps3", ldO2, cmpO, wait=False, slp=int(ENV("SLP3", "4")))
    stamp(a, 20, VS)
    for kq in range(4):
        if kq < 3:
            a(f"s_cmp_lg_u32 s69, {kq}")
            a(f"s_cbranch_scc1 L_red{kq+1}")
        for sl in [x for x in range(4) if x != kq] + [kq]:
            for r in range(8*sl, 8*sl + 8):
                if sl == kq: a(f"v_fma_f32 v{OF + r - 8*sl}, v{VGT}, v{A2+r}, v{GACC+r}")
                else: a(f"v_fmac_f32 v{GACC+r}, v{VGT}, v{A2+r}")
            if sl != kq:
                for k in range(2): a(f"ds_write_b128 v14, {vr(GACC + 8*sl + 4*k)} offset:{sl*8192 + ((kq - sl - 1) & 3)*2048 + k*1024}")
        if kq < 3:
            a("s_branch L_redw")
            a.label(f"L_red{kq+1}")
    a.label("L_redw")
    a("s_waitcnt lgkmcnt(0)")
    a("s_barrier")
    for q in range(3):
        for k in range(2): a(f"ds_read_b128 {vr(OF + 8 + 8*q + 4*k)}, v15 offset:{q*2048 + k*1024}")
    a("s_waitcnt lgkmcnt(4)")
    for r in range(0, 8, 2): a(f"v_pk_add_f32 {vr(OF+r,2)}, {vr(OF+r,2)}, {vr(OF+8+r,2)}")
    a("s_waitcnt lgkmcnt(0)")
    for r in range(0, 8, 2): a(f"v_pk_add_f32 {vr(OF+16+r,2)}, {vr(OF+16+r,2)}, {vr(OF+24+r,2)}")
    for r in range(0, 8, 2): a(f"v_pk_add_f32 {vr(OF+r,2)}, {vr(OF+r,2)}, {vr(OF+16+r,2)}")
    for i in range(4): a(f"v_cvt_pk_bf16_f32 v{48+i}, v{OF+2*i}, v{OF+2*i+1}")
    a("v_permlane32_swap_b32 v48, v50")
    a("v_permlane32_swap_b32 v49, v51")
    a(f"buffer_store_dwordx4 v[48:51], v11, {SR(S_OUT)}, s79 offen{ENV('OUTMOD', '').replace('_', ' ')}")
    if ENV("FIXT"):
        if ENV("FIX0"):
            a("v_mov_b32 v80, 0")
            a(f"buffer_load_dword v81, v80, {SR(S_DBG)}, 0 offen offset:8{ST}")
            a("s_waitcnt vmcnt(0)")
            a("v_readfirstlane_b32 s96, v81")
        a.label("L_fixt")
        a("s_memrealtime s[100:101]")
        a("s_waitcnt lgkmcnt(0)")
        a("s_sub_u32 s100, s100, s96")
        a(f"s_cmp_lt_u32 s100, {int(ENV('FIXT'))}")
        a("s_cbranch_scc1 L_fixt")
    if STAMP: a("s_waitcnt vmcnt(0)")
    stamp_out(a, 0, S_WS, VS, 14)
    if STAMP and ENV("DBGOUT"):
        a(f"s_lshl_b32 s66, s{sWAVE}, 8")
        a("s_or_b32 s66, s66, s2")
        a(f"s_cmp_lg_u32 s66, {int(ENV('DBGOUT'))}")
        a("s_cbranch_scc1 L_exit")
        a(f"v_readlane_b32 s67, v{VS}, 1")
        for k, idx in enumerate((3, 4, 5, 6, 7, 10, 11, 16, 17, 18, 19, 20, 14)):
            a(f"v_readlane_b32 s66, v{VS}, {32+idx}")
            a("s_sub_u32 s66, s66, s67")
            a(f"v_writelane_b32 v14, s66, {k}")
        a(f"v_readlane_b32 s66, v{VS}, 14")
        a(f"v_readlane_b32 s67, v{VS}, 0")
        a("s_sub_u32 s66, s66, s67")
        a("v_writelane_b32 v14, s66, 13")
        a("v_lshlrev_b32 v15, 2, v2")
        one_lane(a, f"buffer_store_dword v14, v15, {SR(S_DBG)}, 0 offen offset:4", "0x3fff")
    a("s_endpgm")
    a.label("L_redo")
    a(f"s_mul_i32 s79, s66, {VST}")
    a(f"s_add_u32 s79, s79, {64*VST}")
    a(f"v_subrev_u32 v{VV0}, s79, v{VV0}")
    a(f"v_subrev_u32 v{VV1}, s79, v{VV1}")
    a(f"v_mov_b32 v{VK}, v3")
    a("v_mov_b32 v12, 0xff800000")
    a("s_mov_b32 s80, 0")
    a.label("L_fmax")
    a(f"ds_read_b128 {vr(KF)}, v{VK}")
    a("s_waitcnt lgkmcnt(0)")
    a(f"{MF} {vr(SA,16)}, {vr(KF)}, {vr(QA)}, 0")
    a(f"v_add_u32 v{VK}, 1024, v{VK}")
    rowmax(a, SA, 12, acc=True)
    a("s_add_u32 s80, s80, 1")
    a("s_cmp_lt_u32 s80, 64")
    a("s_cbranch_scc1 L_fmax")
    halfmax(a, 12, 13)
    for i in range(16): a(f"v_sub_f32 v{CC+i}, 0, v12")
    zero(a, OA, 16)
    a(f"v_mov_b32 v{VK}, v3")
    a("s_mov_b32 s80, 0")
    a.label("L_fslow")
    a(f"ds_read_b128 {vr(KF)}, v{VK}")
    a(f"ds_read_b128 {vr(V0A)}, v{VV0}")
    a(f"ds_read_b128 {vr(V1)}, v{VV1}")
    a("s_waitcnt lgkmcnt(0)")
    a(f"{MF} {vr(SA,16)}, {vr(KF)}, {vr(QA)}, {vr(CC,16)}")
    a(f"v_add_u32 v{VK}, 1024, v{VK}")
    a(f"v_add_u32 v{VV0}, {VST}, v{VV0}")
    a(f"v_add_u32 v{VV1}, {VST}, v{VV1}")
    for i in range(16): a(f"v_exp_f32 v{SA+i}, v{SA+i}")
    for i in range(8): a(f"v_cvt_pk_bf16_f32 v{SB+i}, v{SA+2*i}, v{SA+2*i+1}")
    a(f"{MF} {vr(OA,16)}, {vr(V0A)}, {vr(SB)}, {vr(OA,16)}")
    a(f"{MF} {vr(OA,16)}, {vr(V1)}, {vr(SB+4)}, {vr(OA,16)}")
    a("s_add_u32 s80, s80, 1")
    a("s_cmp_lt_u32 s80, 64")
    a("s_cbranch_scc1 L_fslow")
    a("s_nop 9")
    lbcast()
    a("s_branch L_aok")

def build():
    a = Asm()
    head(a)
    p1_loader(a)
    p1_compute(a)
    attn(a)
    a.label("L_exit")
    a("s_endpgm")
    n = a.fix(verbose="-v" in sys.argv)
    print("instructions:", len(a.lines), "nop states inserted:", n, "lds", LDS_BYTES, file=sys.stderr)
    name = NAME + "_kernel"
    hdr = open("cdna_kernels/" + NAME + ".s.ref").read().split("; Override launch")[0]
    out = hdr + f"; @launch grid=(256,1,1) block=(512,1,1) lds={LDS_BYTES}\n"
    out += '.amdgcn_target "amdgcn-amd-amdhsa--gfx950"\n.text\n'
    out += f".globl {name}\n.p2align 8\n.type {name},@function\n{name}:\n" + a.text()
    out += '.section .rodata,"a"\n' + kd(name)
    dst = sys.argv[1] if len(sys.argv) > 1 and not sys.argv[1].startswith("-") else "cdna_kernels/" + NAME + ".s"
    open(dst, "w").write(out)
if __name__ == "__main__": build()
```

```python
import os, sys
from common import *

MF = "v_mfma_f32_32x32x16_bf16"
ST = " sc1"
STS = " sc1 nt" if os.environ.get("SNT") else " sc1"
ENV = os.environ.get
WS_F1 = 0x1480000
WS_F2 = 0x1490000
WS_F3 = 0x1498000
WS_TAG = 0x14a0000
SPIN = 1 << 17

S_DBG, S_WS, S_X, S_G, S_U, S_WA, S_WB, S_WC = 24, 28, 32, 36, 40, 44, 48, 52
S_RO, S_RD, S_GW = 56, 44, 48
S_OUT = 32
sWAVE, sMB, sNB, sVC = 3, 60, 61, 62
sHEAD, sQB = 63, 64
WSR = f"s[{S_WS}:{S_WS+3}]"
def SR(n): return f"s[{n}:{n+3}]"
VS = 1

NXS = 6
LX, XSLOT = 0, 16384
LW = NXS * XSLOT
NW1, WS1 = 5, 12288
NW2, WS2, LW2 = 6, 8192, LW + 12288
LRD = LW
LRO = LW + NW1 * WS1
LDS_BYTES = 163840
LCNT = LDS_BYTES - 16
LC2 = LDS_BYTES - 32
assert LRO + 2048 <= LCNT and (16 % NW1) * WS1 == LW2 - LW and LW2 + NW2 * WS2 <= LRO
KROT = 8 - NXS
def wslot(s): return (LW + (s % NW1) * WS1, WS1) if s < 16 else (LW2 + ((s - 16) % NW2) * WS2, WS2)
def acc(tt, ct): return 96 + (tt * 4 + ct) * 16 if ct < 4 else 224 + tt * 16
HP = 224
DT = 36
FR0, FR1 = 16, 36
VXA, VW = 56, 60
ONE_ROW = not ENV("ALLONES")
VST, VROT = 1104, 0
LK, LV = 0, 65536
LQ = LV + 64 * VST
LQI = 143360
LASTB = 28
QA, QB, CC, OA, OB, SA, SB, KF, V0A, V0B, V1 = 8, 12, 16, 32, 48, 64, 80, 96, 100, 104, 108
VK, VV0, VV1, VG = 4, 5, 6, 7
GACC, GFR, WO = 112, 144, 192

class Lgkm:
    def __init__(s, a): s.a = a; s.q = []
    def rd(s, tag, text): s.a(text); s.q.append(tag)
    def need(s, *tags):
        idx = [i for i, t in enumerate(s.q) if t in tags]
        if not idx: return
        n = len(s.q) - 1 - max(idx)
        assert n <= 15
        s.a(f"s_waitcnt lgkmcnt({n})")
        s.q = s.q[max(idx) + 1:]
    def all(s, extra=""):
        s.a("s_waitcnt " + extra + "lgkmcnt(0)")
        s.q = []

def poll(a, name, load, cmp, wait=True, slp=None):
    a(f"s_mov_b32 s98, {SPIN}")
    a.label(name)
    load()
    if wait: a("s_waitcnt vmcnt(0)")
    cmp()
    a(f"s_cbranch_vccz {name}_ok")
    a(f"s_sleep {int(ENV('SLEEP', '4')) if slp is None else slp}")
    a("s_sub_u32 s98, s98, 1")
    a("s_cmp_lg_u32 s98, 0")
    a(f"s_cbranch_scc1 {name}")
    a.label(f"{name}_ok")

def rowmax(a, S, dst, acc=False):
    if acc: a(f"v_max3_f32 v{dst}, v{S}, v{S+1}, v{dst}")
    else: a(f"v_max_f32 v{dst}, v{S}, v{S+1}")
    for k in range(2, 16, 2): a(f"v_max3_f32 v{dst}, v{S+k}, v{S+k+1}, v{dst}")
def halfmax(a, dst, tmp):
    a(f"v_mov_b32 v{tmp}, v{dst}")
    a(f"v_permlane32_swap_b32 v{tmp}, v{dst}")
    a(f"v_max_f32 v{dst}, v{tmp}, v{dst}")
def zero(a, b, n):
    for r in range(0, n, 2): a(f"v_pk_mul_f32 {vr(b+r,2)}, 0, 0")
def one_lane(a, text, mask=1):
    a(f"s_mov_b64 exec, {mask}"); a(text); a("s_mov_b64 exec, -1")

def padat(a, where):
    p = ENV("PADAT", "")
    if p.startswith(where + ":"):
        a.label("L_pad")
        a("s_memrealtime s[100:101]")
        a("s_waitcnt lgkmcnt(0)")
        a("s_sub_u32 s100, s100, s96")
        a(f"s_cmp_lt_u32 s100, {int(p.split(':')[1])}")
        a("s_cbranch_scc1 L_pad")

def head(a):
    a("s_cmp_ge_u32 s2, 256")
    a("s_cbranch_scc1 L_exit")
    a("s_load_dwordx16 s[4:19], s[0:1], 0")
    a("s_load_dwordx4 s[20:23], s[0:1], 64")
    a(f"s_load_dwordx2 s[{S_WS}:{S_WS+1}], s[0:1], 80")
    if ENV("CODEPF", "2") == "2":
        a("s_getpc_b64 s[84:85]")
        a.label("L_pc")
        a("v_lshlrev_b32 v61, 7, v0")
        a("v_min_u32 v61, L_exit-L_pc, v61")
        a("global_load_dword v61, v61, s[84:85]")
    if ENV("FIXT") or ENV("PADAT"):
        a("s_memrealtime s[96:97]")
    if STAMP: a(f"v_mov_b32 v{VS}, 0")
    stamp(a, 0, VS); stamp(a, 1, VS, real=True)
    a("v_lshrrev_b32 v3, 6, v0")
    a("v_and_b32 v2, 63, v0")
    a(f"v_readfirstlane_b32 s{sWAVE}, v3")
    a("s_and_b32 s65, s2, 7")
    a("s_lshr_b32 s66, s2, 3")
    a("s_and_b32 s67, s65, 1")
    a("s_lshl_b32 s67, s67, 3")
    a("s_and_b32 s68, s66, 7")
    a(f"s_add_u32 s{sMB}, s67, s68")
    a("s_lshr_b32 s67, s65, 1")
    a("s_lshl_b32 s67, s67, 2")
    a("s_lshr_b32 s68, s66, 3")
    if ENV("CFIRST", "1") == "1": a("s_sub_u32 s68, 3, s68")
    a(f"s_add_u32 s{sNB}, s67, s68")
    a("s_cmp_eq_u32 s68, 3")
    a(f"s_cselect_b32 s{sVC}, 1, 0")
    a("s_lshl_b32 s67, s65, 2")
    a("s_and_b32 s68, s66, 3")
    a(f"s_add_u32 s{sHEAD}, s67, s68")
    a(f"s_lshr_b32 s{sQB}, s66, 2")
    a("v_lshlrev_b32 v3, 4, v2")
    a(f"s_mov_b32 s{S_WS+2}, {WS_SIZE:#x}")
    a(f"s_mov_b32 s{S_WS+3}, 0x00020000")
    a(f"s_lshr_b32 s67, s{sNB}, 2")
    a(f"s_sub_u32 s81, s{sNB}, s67")
    a("s_add_u32 s81, s81, 16")
    a(f"s_lshl_b32 s82, s{sNB}, 11")
    a(f"s_lshl_b32 s67, s{sMB}, 7")
    a("s_add_u32 s82, s82, s67")
    a(f"s_add_u32 s82, s82, {WS_F1}")
    a("v_lshrrev_b32 v8, 3, v2")
    a("v_and_b32 v4, 7, v2")
    a("v_bfe_u32 v5, v2, 4, 1")
    a("v_lshlrev_b32 v5, 2, v5")
    a("v_xor_b32 v5, v5, v4")
    a("v_lshlrev_b32 v9, 4, v5")
    a(f"s_cmp_lt_u32 s{sWAVE}, 4")
    a("s_waitcnt lgkmcnt(0)")
    srd(a, S_X, 4, 5, 2048 * 1024)
    srd(a, S_DBG, 22, 23, 256)
    a("s_cbranch_scc1 L_compute")

def p1_compute(a):
    a.label("L_compute")
    if ENV("INV"): a("buffer_inv sc1")
    a(f"s_and_b32 s65, s{sWAVE}, 1")
    a(f"s_lshr_b32 s66, s{sWAVE}, 1")
    if ENV("CODEPF", "2") == "1":
        a("s_getpc_b64 s[84:85]")
        a.label("L_pc")
        a("s_sub_u32 s84, s84, L_pc-L_loader")
        a("s_subb_u32 s85, s85, 0")
        a("v_lshlrev_b32 v11, 7, v0")
        a("v_min_u32 v11, L_exit-L_loader, v11")
        a("global_load_dword v61, v11, s[84:85]")
        a("v_lshlrev_b32 v11, 7, v0")
        a("v_add_u32 v11, 0x8000, v11")
        a("v_min_u32 v11, L_exit-L_loader, v11")
        a("global_load_dword v62, v11, s[84:85]")
    a("v_and_b32 v8, 31, v2")
    a("v_lshrrev_b32 v4, 5, v2")
    a("v_bfe_u32 v5, v2, 1, 3")
    a("v_xor_b32 v5, v5, v4")
    a("s_lshl_b32 s67, s65, 13")
    a("v_lshl_add_u32 v6, v8, 7, s67")
    for ks in range(4):
        a(f"v_xor_b32 v7, {2*ks}, v5")
        a(f"v_lshl_add_u32 v{VXA+ks}, v7, 4, v6")
    a("v_bfe_u32 v5, v2, 2, 2")
    a("v_and_b32 v6, 3, v2")
    a("v_bfe_u32 v7, v2, 4, 1")
    a("v_lshlrev_b32 v6, 3, v6")
    a("v_lshl_or_b32 v6, v7, 5, v6")
    a("v_lshrrev_b32 v7, 1, v5")
    a("v_lshl_or_b32 v6, v7, 6, v6")
    a("v_lshl_or_b32 v6, v5, 7, v6")
    a("v_lshl_or_b32 v6, v4, 10, v6")
    a("s_lshl_b32 s67, s66, 6")
    a("v_xor_b32 v6, s67, v6")
    a(f"v_add_u32 v{VW}, {LW}, v6")
    zero(a, 96, 160)
    a(f"v_mov_b32 v5, {LCNT}")
    a("ds_write_b128 v5, v[96:99]")

    a(f"s_mov_b32 s78, {(-(NW1-1)*WS1) & 0xffffffff:#x}")
    a(f"s_mov_b32 s79, {(-(NXS-1)*XSLOT) & 0xffffffff:#x}")
    a("s_mov_b32 s73, 0")
    a("s_mov_b32 s74, 0")
    a("s_mov_b32 s75, 8")
    a("s_waitcnt lgkmcnt(0)")
    def reads(fs, ks, nu):
        kk = ks & 1
        X = lambda t: f"ds_read_b128 {vr(fs+4*t)}, v{VXA+ks} offset:{t*4096}"
        W = lambda u, j: f"ds_read_b64_tr_b16 {vr(fs+8+4*u+2*j, 2)}, v{VW} offset:{u*4096 + kk*2048 + j*512}"
        l = [X(0), W(0,0), W(0,1), X(1)]
        for u in range(1, nu): l += [W(u,0), W(u,1)]
        return l
    def loop(name, cts, swap, nu_next_last, hook=None):
        nu = len(cts)
        NWS, WSLOT = (NW1, WS1) if nu == 3 else (NW2, WS2)
        a.label(name)
        for ks in range(4):
            kk = ks & 1
            cur, nxt = (FR0, FR1) if kk == 0 else (FR1, FR0)
            mms = []
            for u, ct in enumerate(cts):
                for t in range(2):
                    d = vr(acc(t, ct), 16); w = vr(cur + 8 + 4*u); x = vr(cur + 4*t)
                    mms.append(f"{MF} {d}, {x}, {w}, {d}" if (swap and ct < 4) else f"{MF} {d}, {w}, {x}, {d}")
            if ENV("FAKE16"):
                mms = []
                for u, ct in enumerate(cts):
                    for t in range(2):
                        w = vr(cur + 8 + 4*u); x = vr(cur + 4*t)
                        d0, d1 = vr(acc(t, ct) + 8*kk, 4), vr(acc(t, ct) + 8*kk + 4, 4)
                        x2 = vr(cur + 4*(1-t))
                        mms.append(f"v_mfma_f32_16x16x32_bf16 {d0}, {w}, {x}, {d0}")
                        mms.append(f"v_mfma_f32_16x16x32_bf16 {d1}, {x2}, {w}, {d1}")
            rd = reads(nxt, (ks + 1) & 3, nu)
            post = []
            if kk == 0:
                post += ["s_add_u32 s73, s73, 1", f"s_cmp_eq_u32 s73, {NWS}", f"s_cselect_b32 s76, s78, {WSLOT}", "s_cselect_b32 s73, 0, s73", f"v_add_u32 v{VW}, s76, v{VW}"]
                if ks == 2:
                    post += ["s_add_u32 s74, s74, 1", f"s_cmp_eq_u32 s74, {NXS}", f"s_cselect_b32 s77, s79, {XSLOT}", "s_cselect_b32 s74, 0, s74", f"v_add_u32 v{VXA}, s77, v{VXA}"]
            elif ks == 3:
                post += [f"v_add_u32 v{VXA+i}, s77, v{VXA+i}" for i in range(1, 4)] + ["s_sub_u32 s75, s75, 1", "s_cmp_lg_u32 s75, 0"]
            if ks == 3 and hook: hook()
            a("s_waitcnt lgkmcnt(0)")
            if kk == 1:
                a(mms.pop(0))
                a("s_barrier")
            other = rd + post
            per = 3 if not ENV('FAKE16') else 2
            while mms:
                if kk == 0 or len(mms) < 2*nu - 1 or True:
                    pass
                if kk == 0: a(mms.pop(0))
                for _ in range(per):
                    if other: a(other.pop(0))
                if kk == 1: a(mms.pop(0))
            for o in other: a(o)
        a(f"s_cbranch_scc1 {name}")
    a(f"s_lshl_b32 s68, s{sMB}, 2")
    a("s_lshl_b32 s69, s65, 1")
    a("s_add_u32 s69, s68, s69")
    a(f"v_add_u32 v9, {VROT}, v2")
    a("v_and_b32 v9, 15, v9")
    a("v_lshl_or_b32 v9, v4, 4, v9")
    a("v_lshlrev_b32 v9, 4, v9")
    a("v_bfe_u32 v10, v2, 4, 1")
    a("v_lshl_or_b32 v9, v10, 16, v9")
    a(f"s_lshr_b32 s70, s{sNB}, 2")
    a("s_lshl_b32 s70, s70, 19")
    a("s_lshl_b32 s71, s66, 17")
    a("s_add_u32 s70, s70, s71")
    a("s_lshl_b32 s71, s69, 10")
    a("s_add_u32 s70, s70, s71")
    a(f"s_add_u32 s70, s70, {WS_V}")
    a(f"s_add_u32 s71, s70, {4*65536}")
    a(f"s_cmp_lt_u32 s{sNB}, 8")
    a(f"s_cselect_b32 s86, {f32(QSCALE)}, 1.0")
    a(f"s_lshl_b32 s67, s{sNB}, 2")
    a("s_lshl_b32 s68, s66, 1")
    a("s_add_u32 s67, s67, s68")
    a("s_lshl_b32 s67, s67, 16")
    a("s_lshl_b32 s68, s69, 10")
    a("s_add_u32 s67, s67, s68")
    a(f"s_add_u32 s88, s67, {WS_QK}")
    a("s_add_u32 s89, s88, 0x10000")
    a(f"s_mul_i32 s67, s69, {144*1024}")
    a("s_lshl_b32 s68, s66, 11")
    a("s_add_u32 s67, s67, s68")
    a(f"s_add_u32 s67, s67, {WS_AF + 32*1024}")
    for i in (1, 0):
        a(f"s_lshl_b32 s68, s{sNB if i else 81}, 12")
        a("s_add_u32 s68, s67, s68")
        for n in range(4): a(f"s_add_u32 s{DT + (1-i)*4 + n}, s68, {(n>>1)*144*1024 + (n&1)*1024}")
    a(f"v_mov_b32 v10, {f32(-GK1*0.044715)}")
    a(f"v_mov_b32 v11, {f32(-GK1*0.044715)}")
    a(f"v_mov_b32 v12, {f32(-GK1)}")
    a(f"v_mov_b32 v13, {f32(-GK1)}")
    padat(a, "init")
    stamp(a, 2, VS)
    a("s_barrier")
    stamp(a, 3, VS)
    for l in reads(FR0, 0, 3): a(l)

    def f_qk():
        l = []
        for t in range(2):
            b = acc(t, 4)
            for hh in range(2):
                l += [f"v_mul_f32 v{b+8*hh+i}, s86, v{b+8*hh+i}" for i in range(8)]
                l += [f"v_cvt_pk_bf16_f32 v{b+8*hh+i}, v{b+8*hh+2*i}, v{b+8*hh+2*i+1}" for i in range(4)]
                l.append(f"buffer_store_dwordx4 {vr(b+8*hh)}, v3, {WSR}, s{88+hh} offen offset:{t*1024}{STS}")
        return l
    def f_v():
        l = []
        for j in range(2):
            for t in range(2):
                b = acc(t, 2*j)
                for hh in range(2):
                    l += [f"v_cvt_pk_bf16_f32 v{b+8*hh+i}, v{b+8*hh+2*i}, v{b+8*hh+2*i+1}" for i in range(4)]
                    l.append(f"buffer_store_dwordx4 {vr(b+8*hh)}, v9, {WSR}, s{70+j} offen offset:{t*1024 + hh*512}{STS}")
        return l
    def f_gelu1():
        l = []
        for t in range(2):
            for q in range(4):
                G, U, T = acc(t, 0) + 4*q, acc(t, 2) + 4*q, 64 + (q & 1) * 4
                l += [f"v_mul_f32 v{T+p}, v{G+p}, v{G+p}" for p in range(4)]
                l += [f"v_fma_f32 v{T+p}, v{T+p}, v10, v12" for p in range(4)]
                l += [f"v_mul_f32 v{T+p}, v{T+p}, v{G+p}" for p in range(4)]
                for p in range(4): l += [f"v_exp_f32 v{T+p}, v{T+p}", f"v_mul_f32 v{U+p}, v{U+p}, v{G+p}"]
                l += [f"v_add_f32 v{T+p}, 1.0, v{T+p}" for p in range(4)]
                l += [f"v_rcp_f32 v{T+p}, v{T+p}" for p in range(4)]
                l += [f"v_mul_f32 v{U+p}, v{U+p}, v{T+p}" for p in range(4)]
                o = HP + 16 + t*8 + q*2
                l += [f"v_cvt_pk_bf16_f32 v{o+p}, v{U+2*p}, v{U+2*p+1}" for p in range(2)]
        return l
    SPK = int(ENV("SPK", "4"))
    def pass2(fill, PUBS, gap):
        cost = lambda x: 8 if x.startswith(("v_exp", "v_rcp")) else 4
        X2 = ENV("X2", "")
        if "F" in X2: fill = [x for x in fill if False]
        if "S" in X2: fill = [x for x in fill if not x.startswith("buffer_store")]
        if "G" in X2: fill = fill[:52]
        FS = (FR0, FR1, 72)
        lg = Lgkm(a)
        lg.q = [(0, i) for i in range(6)] + [("junk", 0)] * 2
        def rds(m):
            fs = FS[m % 3]
            wo_ = wslot(16 + (m >> 1))[0] - LW2 + (m & 1) * 2048
            X = lambda t: f"ds_read_b128 {vr(fs+4*t)}, v{VXA + (m & 3)} offset:{t*4096}"
            W = lambda u, j: f"ds_read_b64_tr_b16 {vr(fs+8+4*u+2*j, 2)}, v{VW} offset:{wo_ + u*4096 + j*512}"
            l = [((m, i), x) for i, x in enumerate([X(0), W(0,0), W(0,1), X(1), W(1,0), W(1,1)])]
            j = 8 + (m >> 2)
            if m < 28:
                dx = (((j + 1) % NXS) - (j % NXS)) * XSLOT & 0xffffffff
                l.append((None, f"v_add_u32 v{VXA + (m & 3)}, {dx:#x}, v{VXA + (m & 3)}"))
            return l
        def put(e):
            if e[0] is None: a(e[1])
            else: lg.rd(e[0], e[1])
        nxt_store = 0
        put(rds(0)[-1])
        for e in rds(1): put(e)
        for n in range(32):
            kk, st = n & 1, 16 + (n >> 1)
            cur = FS[n % 3]
            rd = rds(n + 2) if n + 2 < 32 else []
            nst = 0
            for g, (u, t) in enumerate(((0, 0), (0, 1), (1, 0), (1, 1))):
                ct = (1, 3)[u]
                before = len(a.lines)
                lg.need(*[(n, i) for i in range(6)])
                bud = 24 - 4 * (len(a.lines) - before)
                a(f"{MF} {vr(acc(t, ct), 16)}, {vr(cur + 8 + 4*u)}, {vr(cur + 4*t)}, {vr(acc(t, ct), 16)}")
                if g == 0 and kk == 0 and st <= LASTB:
                    if st == PUBS:
                        assert not any(x.startswith("buffer_store") for x in fill)
                        a("s_waitcnt vmcnt(0)"); bud -= 4
                    if "B" not in X2: a("s_barrier"); bud -= 4
                for _ in range(2):
                    if rd and len(lg.q) < 15: put(rd.pop(0)); bud -= 4
                while n >= 1 and fill and bud >= cost(fill[0]):
                    if fill[0].startswith("buffer_store"):
                        if 4*n + g < nxt_store: break
                        nxt_store = 4*n + g + gap
                    bud -= cost(fill[0]); a(fill.pop(0))
            assert not rd
        for x in fill: a(x)
        print("pass-2 filler left over:", len(fill), file=sys.stderr)
    a(f"s_cmp_eq_u32 s{sVC}, 1")
    a("s_cbranch_scc1 L_p1loopV")
    loop("L_p1loopA", (0, 2, 4), False, 2)
    stamp(a, 4, VS)
    pass2(f_qk() + f_gelu1(), PUBS, int(ENV('GAPA', '1')))
    a("s_branch L_p2done")
    loop("L_p1loopV", (0, 2, 4), True, 2)
    stamp(a, 4, VS)
    pass2(f_v() + f_qk(), PUBC, int(ENV('GAPC', '1')))
    a.label("L_p2done")
    stamp(a, 6, VS)
    n = 0
    for t in range(2):
        g, u = acc(t, 1), acc(t, 3)
        for hh in range(2):
            T = 16 + (n & 1) * 8; n += 1
            G, U = g + 8*hh, u + 8*hh
            for p in range(4): a(f"v_pk_mul_f32 {vr(T+2*p,2)}, {vr(G+2*p,2)}, {vr(G+2*p,2)}")
            for p in range(4): a(f"v_pk_fma_f32 {vr(T+2*p,2)}, {vr(T+2*p,2)}, v[10:11], v[12:13]")
            for p in range(4): a(f"v_pk_mul_f32 {vr(T+2*p,2)}, {vr(T+2*p,2)}, {vr(G+2*p,2)}")
            for p in range(8): a(f"v_exp_f32 v{T+p}, v{T+p}")
            for p in range(4): a(f"v_pk_mul_f32 {vr(U+2*p,2)}, {vr(U+2*p,2)}, {vr(G+2*p,2)}")
            for p in range(4): a(f"v_pk_add_f32 {vr(T+2*p,2)}, {vr(T+2*p,2)}, 1.0 op_sel_hi:[1,0]")
            for p in range(8): a(f"v_rcp_f32 v{T+p}, v{T+p}")
            for p in range(4): a(f"v_pk_mul_f32 {vr(U+2*p,2)}, {vr(U+2*p,2)}, {vr(T+2*p,2)}")
            o = HP + (t*2 + hh) * 4
            for p in range(4): a(f"v_cvt_pk_bf16_f32 v{o+p}, v{U+2*p}, v{U+2*p+1}")
    stamp(a, 7, VS)

PUBC = int(ENV("PUBC", "22"))
PUBS = int(ENV("PUBS", "22"))

def p1_loader(a):
    a.label("L_loader")
    if ENV("LPRIO", "1") == "1": a("s_setprio 3")
    a(f"s_sub_u32 s65, s{sWAVE}, 4")
    a("s_lshl_b32 s66, s65, 3")
    a("v_add_u32 v8, s66, v8")
    a("v_lshrrev_b32 v5, 4, v2")
    a("s_and_b32 s66, s65, 1")
    a("s_lshl_b32 s66, s66, 2")
    a("v_add_u32 v5, s66, v5")
    a("v_xor_b32 v5, v5, v4")
    a("v_lshlrev_b32 v5, 4, v5")
    a("v_lshl_add_u32 v12, v8, 10, v5")
    a(f"s_lshl_b32 s74, s{sMB}, 17")
    a("s_lshl_b32 s75, s65, 10")
    a(f"s_lshl_b32 s90, s{sNB}, 1")
    a(f"s_add_u32 s90, s90, s{sMB}")
    if ENV("ROT", "1") == "2":
        a(f"s_lshr_b32 s91, s{sNB}, 2")
        a("s_add_u32 s90, s90, s91")
    if ENV("ROT", "1") == "0": a("s_mov_b32 s90, 0")
    if ENV("ROT", "1") == "5": a(f"s_mov_b32 s90, s{sMB}")
    if ENV("ROT", "1") == "6": a(f"s_lshl_b32 s90, s{sNB}, 1")
    if ENV("ROT", "1") == "7":
        a(f"s_lshl_b32 s90, s{sNB}, 2")
        a(f"s_add_u32 s90, s90, s{sMB}")
    if ENV("ROT", "1") in ("3", "4"):
        a(f"s_add_u32 s90, s{sNB}, s{sMB}")
        a(f"s_lshl_b32 s90, s90, {1 if ENV('ROT') == '3' else 2}")
    a("s_lshl_b32 s91, s90, 1")
    issued = []
    DNT = " nt" if ENV("DNT") else ""
    PNT = " nt" if ENV("PNT") else ""
    def dma(voff, srdn, soff, m0val, pre):
        a(f"s_add_u32 m0, s75, {m0val}")
        a(pre)
        if "D" in ENV("X2", "") and voff == 10: a("s_nop 0")
        else: a(f"buffer_load_dwordx4 v{voff}, {SR(srdn)}, s{soff} offen{DNT} lds")
    def itemsW(s):
        base, size = wslot(s)
        free = max([-1] + [p + (p >= 16) for p in range(s) if wslot(p)[0] < base + size and base < wslot(p)[0] + wslot(p)[1]])
        def f(u):
            def g():
                if u == 0:
                    a(f"s_add_u32 s92, s91, {s if s < 16 else s + 2*KROT}")
                    a("s_and_b32 s92, s92, 15")
                    if s < 16:
                        a(f"s_mul_i32 s93, s92, {32*3072}")
                        a("s_mul_i32 s92, s92, s73")
                    else: a(f"s_mul_i32 s92, s92, {32*3584}")
                if s < 16:
                    if u == 0: dma(13, S_WA, 76, base, "s_add_u32 s76, s71, s92")
                    if u == 1: dma(13, S_WB, 76, base + 4096, "s_add_u32 s76, s69, s92")
                    if u == 2: dma(11, S_WC, 76, base + 8192, "s_add_u32 s76, s70, s93")
                else:
                    dma(10, (S_G, S_U)[u], 76, base + 4096*u, "s_add_u32 s76, s70, s92")
                issued.append(("W", s))
            return g
        return [(free, f(u)) for u in range(3 if s < 16 else 2)]
    def itemsX(j):
        base = LX + (j % NXS) * XSLOT
        def f(m):
            def g():
                if m == 0:
                    a(f"s_add_u32 s99, s90, {j if j < 8 else j + KROT}")
                    a("s_and_b32 s99, s99, 7")
                    a("s_lshl_b32 s99, s99, 7")
                    a("s_add_u32 s99, s99, s74")
                dma(12, S_X, 76, base + m*4096, f"s_add_u32 s76, s99, {m*32768}")
                issued.append(("X", j))
            return g
        if 8 <= j < 8 + NXS: return []
        return [(2*(j-NXS) + 1 + (j - NXS >= 8), f(m)) for m in range(4)]
    queue = []
    for j in range(16): queue += itemsX(j) + itemsW(2*j) + itemsW(2*j+1)
    def issue(nmax, bar):
        n = 0
        while queue and n < nmax and queue[0][0] <= bar:
            queue.pop(0)[1](); n += 1
    def wait_stage(s):
        assert sum(e == ("W", s) for e in issued) == (3 if s < 16 else 2) and sum(e == ("X", s // 2) for e in issued) == (0 if 8 <= s // 2 < 8 + NXS else 4), s
        last = max(k for k, e in enumerate(issued) if e == ("W", s) or e == ("X", s // 2))
        n = len(issued) - 1 - last
        assert n <= 63
        a(f"s_waitcnt vmcnt({n})")
    def wait_tag(tag):
        n = len(issued) - 1 - max(k for k, e in enumerate(issued) if e == tag)
        assert n <= 63
        a(f"s_waitcnt vmcnt({n})")
    stamp(a, 22, VS)
    issue(4, -1)
    a("s_lshl_b32 s66, s65, 8")
    a("s_or_b32 s66, s66, s2")
    a(f"s_cselect_b32 s83, {OOB:#x}, 0")
    a(f"s_add_u32 s84, s83, {WS_TAG}")
    a("v_mov_b32 v5, 0")
    a(f"buffer_load_dword v14, v5, {WSR}, s84 offen{ST}")
    issued.append(("T", 0))
    srd(a, S_G, 12, 13, 512 * 3584)
    srd(a, S_U, 14, 15, 512 * 3584)
    srd(a, S_WC, 6, 7, 512 * 3072)
    a(f"s_cmp_eq_u32 s{sVC}, 1")
    a(f"s_cselect_b32 s{S_WA}, s6, s12")
    a(f"s_cselect_b32 s{S_WA+1}, s7, s13")
    a(f"s_cselect_b32 s{S_WA+2}, s{S_WC+2}, s{S_G+2}")
    a(f"s_mov_b32 s{S_WA+3}, 0x00020000")
    a(f"s_cselect_b32 s{S_WB}, s6, s14")
    a(f"s_cselect_b32 s{S_WB+1}, s7, s15")
    a(f"s_mov_b32 s{S_WB+2}, s{S_WA+2}")
    a(f"s_mov_b32 s{S_WB+3}, 0x00020000")
    a("s_movk_i32 s66, 3072")
    a("s_cselect_b32 s66, s66, 3584")
    a("v_mul_u32_u24 v6, 3584, v8")
    a("v_add_u32 v10, v6, v9")
    a("v_mul_u32_u24 v6, 3072, v8")
    a("v_add_u32 v11, v6, v9")
    a("v_mul_u32_u24 v6, s66, v8")
    a("v_add_u32 v13, v6, v9")
    a("s_lshl_b32 s73, s66, 5")
    a("s_lshl_b32 s67, s81, 7")
    a(f"s_lshr_b32 s68, s{sNB}, 2")
    a("s_lshl_b32 s68, s68, 8")
    a("s_add_u32 s68, s68, 2048")
    a("s_add_u32 s69, s68, 128")
    a(f"s_cmp_eq_u32 s{sVC}, 1")
    a("s_cselect_b32 s71, s68, s67")
    a("s_cselect_b32 s69, s69, s67")
    a("s_mov_b32 s94, s71")
    a("s_mov_b32 s95, s69")
    a(f"s_lshl_b32 s70, s{sNB}, 7")
    PFK = ENV("PF", "0") == "4"
    if PFK:
        issue(3, -1)
        a("s_lshr_b32 s66, s2, 1")
        a("s_and_b32 s67, s2, 1")
        a("s_mul_i32 s68, s66, 3072")
        a("s_mul_i32 s76, s67, 1536")
        a("s_add_u32 s68, s68, s76")
        a("s_mul_i32 s66, s66, 3584")
        a("s_mul_i32 s67, s67, 768")
        a("s_add_u32 s66, s66, s67")
        a("s_add_u32 s66, s66, 2048")
        a("s_lshl_b32 s67, s2, 13")
        a("s_cmp_eq_u32 s65, 1")
        a("s_cselect_b32 s66, s68, s66")
        a("s_cselect_b32 s76, 11, 5")
        a(f"s_mov_b32 s77, {128*3584}")
        a(f"s_cselect_b32 s77, {128*3072}, s77")
        a("s_cselect_b32 s94, s6, s12")
        a("s_cselect_b32 s95, s7, s13")
        a("s_cmp_eq_u32 s65, 3")
        a("s_cselect_b32 s94, s14, s94")
        a("s_cselect_b32 s95, s15, s95")
        a("v_min_u32 v28, s76, v2")
        a("v_lshl_add_u32 v28, v28, 7, s66")
        a("v_bfe_u32 v29, v2, 1, 3")
        a("v_lshl_add_u32 v29, v29, 10, s67")
        a("v_and_b32 v27, 1, v2")
        a("v_lshl_add_u32 v29, v27, 7, v29")
        a("s_cmp_eq_u32 s65, 0")
        a("s_cselect_b32 s94, s4, s94")
        a("s_cselect_b32 s95, s5, s95")
        a("s_cselect_b32 s77, 256, s77")
        a("s_cselect_b64 vcc, -1, 0")
        a("v_cndmask_b32 v28, v28, v29, vcc")
        for n in [int(x) for x in ENV("PFPOS", "0,3,7,3").split(",")]:
            issue(n, -1)
            a("s_mov_b64 exec, 0xffff")
            a("global_load_dword v30, v28, s[94:95]")
            a("s_mov_b64 exec, -1")
            a("v_add_u32 v28, s77, v28")
            issued.append(("P", 0))
    else:
        issue(int(ENV("FIRST", "10")), -1)
    def prefetch(kinds):
        a("s_mov_b32 s94, s4"); a("s_mov_b32 s95, s5")
        for r in (66, 67, 68, 76): a(f"s_mov_b32 s{r}, 0")
        a("s_mov_b32 s77, 0")
        for lw, k in enumerate(kinds):
            if k is None: continue
            p, per, first, n, T, J = k
            a(f"s_cmp_eq_u32 s65, {lw}")
            a(f"s_cselect_b32 s94, s{p}, s94")
            a(f"s_cselect_b32 s95, s{p+1}, s95")
            a(f"s_cselect_b32 s66, {per}, s66")
            a(f"s_cselect_b32 s67, {first}, s67")
            a(f"s_cselect_b32 s68, {n-1}, s68")
            a(f"s_cselect_b32 s76, {T}, s76")
            a(f"s_cselect_b32 s77, {J}, s77")
        a("s_mul_i32 s66, s66, s2")
        a("s_add_u32 s66, s66, s67")
        a("v_min_u32 v28, s68, v2")
        a("v_mov_b32 v29, s77")
        a("v_cmp_le_u32 vcc, s76, v28")
        a("v_lshl_add_u32 v28, v28, 7, s66")
        a("v_cndmask_b32 v29, 0, v29, vcc")
        a("v_add_u32 v28, v28, v29")
        a("global_load_dword v30, v28, s[94:95]")
        issued.append(("P", 0))
    PF = ENV("PF", "0") in ("1", "3")
    PFX = ENV("PF", "0") in ("2", "3")
    def prefetch_x1():
        a("s_lshr_b32 s66, s2, 3")
        a("s_and_b32 s67, s2, 1")
        a("s_lshl_b32 s67, s67, 20")
        a("s_lshl_b32 s68, s66, 15")
        a("s_add_u32 s67, s67, s68")
        a("s_lshl_b32 s68, s65, 13")
        a("s_add_u32 s67, s67, s68")
        a("v_lshlrev_b32 v28, 7, v2")
        a("s_and_b32 s66, s66, 7")
        a("s_lshl_b32 s66, s66, 6")
        a("v_add_u32 v27, s66, v2")
        a("s_lshr_b32 s68, s73, 5")
        a("v_mul_u32_u24 v29, s68, v27")
        a("v_mul_u32_u24 v26, 3072, v27")
        a("s_cmp_eq_u32 s65, 0")
        a(f"s_cselect_b32 s66, s94, {OOB:#x}")
        a(f"buffer_load_dword v30, v29, {SR(S_WA)}, s66 offen{PNT}")
        a("s_cmp_eq_u32 s65, 1")
        a(f"s_cselect_b32 s66, s95, {OOB:#x}")
        a(f"buffer_load_dword v30, v29, {SR(S_WB)}, s66 offen{PNT}")
        a(f"s_lshl_b32 s66, s{sNB}, 7")
        a("s_cmp_eq_u32 s65, 2")
        a(f"s_cselect_b32 s66, s66, {OOB:#x}")
        a(f"buffer_load_dword v30, v26, {SR(S_WC)}, s66 offen{PNT}")
        a(f"buffer_load_dword v30, v28, {SR(S_X)}, s67 offen{PNT}")
        issued.extend([("P", 0)] * 4)
    def prefetch_x2():
        a("v_mul_u32_u24 v29, 3584, v27")
        a(f"s_lshl_b32 s67, s{sNB}, 7")
        a("s_cmp_eq_u32 s65, 1")
        a(f"s_cselect_b32 s66, s67, {OOB:#x}")
        a(f"buffer_load_dword v30, v29, {SR(S_G)}, s66 offen{PNT}")
        a("s_cmp_eq_u32 s65, 2")
        a(f"s_cselect_b32 s66, s67, {OOB:#x}")
        a(f"buffer_load_dword v30, v29, {SR(S_U)}, s66 offen{PNT}")
        issued.extend([("P", 0)] * 2)
    if PFX and not PF: prefetch_x1()
    if PF: prefetch([(4, 8192, 0, 64, 0, 0), (6, 6144, 0, 48, 0, 0), (12, 7168, 2048, 24, 12, 2048), (14, 7168, 2048, 24, 12, 2048)])
    srd(a, S_RO, 8, 9, 512 * 1024)
    a("v_and_b32 v15, 7, v8")
    a("v_lshl_add_u32 v15, v15, 10, v9")
    a("s_lshl_b32 s78, s65, 11")
    a(f"s_add_u32 s78, s78, {LRD}")
    a("s_lshr_b32 s66, s2, 3")
    a("s_and_b32 s67, s2, 7")
    a("s_lshl_b32 s66, s66, 14")
    a("s_lshl_b32 s67, s67, 7")
    a("s_add_u32 s66, s66, s67")
    a("s_and_b32 s67, s65, 1")
    a("s_lshl_b32 s68, s67, 13")
    a("s_lshl_b32 s67, s67, 10")
    a(f"s_add_u32 m0, s67, {LRO}")
    a("s_add_u32 s66, s66, s68")
    a(f"buffer_load_dwordx4 v15, {SR(S_RO)}, s66 offen{PNT} lds")
    issued.append(("P", 1))
    issue(int(ENV("BURST", "0")), -1)
    a("v_bfe_u32 v18, v2, 2, 2")
    a("v_and_b32 v31, 3, v2")
    a("v_bfe_u32 v19, v2, 4, 1")
    a("v_lshlrev_b32 v31, 3, v31")
    a("v_lshl_or_b32 v31, v19, 5, v31")
    a("v_lshrrev_b32 v19, 1, v18")
    a("v_lshl_or_b32 v31, v19, 6, v31")
    a("v_lshl_or_b32 v31, v18, 7, v31")
    a("v_lshrrev_b32 v19, 5, v2")
    a("v_lshl_or_b32 v31, v19, 9, v31")
    a("v_add_u32 v18, s78, v31")
    a("v_xor_b32 v19, 64, v18")
    a("s_cmp_eq_u32 s65, 0")
    a(f"s_cselect_b32 s82, s82, {OOB:#x}")
    a(f"s_cselect_b32 s85, 0, {OOB:#x}")
    a("v_mov_b32 v6, 1")
    a("v_lshlrev_b32 v4, 7, v2")
    for i in range(4): a(f"s_add_u32 s{86+i}, s85, {WS_F1 + i*8192}")
    stamp(a, 2, VS)
    wait_stage(0)
    stamp(a, 3, VS)
    a("s_barrier")
    a("v_add_u32 v14, 1, v14")
    a("v_max_u32 v14, 1, v14")
    one_lane(a, f"buffer_store_dword v14, v5, {WSR}, s84 offen{ST}")
    issued.append(("T", 1))
    def ld1():
        for i in range(4): a(f"buffer_load_dwordx2 {vr(20+2*i,2)}, v4, {WSR}, s{86+i} offen{ST}")
    PER1, PER2, PSW = [int(x) for x in ENV("PER", "6,4,12").split(",")]
    issue(int(ENV("PER0", "6")), -1)
    def cmp1():
        for i in range(4):
            a(f"v_xor_b32 v{20+2*i}, v{20+2*i}, v16")
            a(f"v_xor_b32 v{21+2*i}, v{21+2*i}, v17")
        a("v_or3_b32 v20, v20, v21, v22")
        a("v_or3_b32 v23, v23, v24, v25")
        a("v_or3_b32 v20, v20, v26, v27")
        a("v_or_b32 v20, v20, v23")
        a("v_cmp_ne_u32 vcc, 0, v20")
    def ltable(t, regs):
        for i in range(8): a(f"v_mov_b32 v{HP+8+i}, -1")
        r = regs[2]
        a(f"s_lshl_b32 s{r}, s{sQB}, 3")
        a(f"s_lshl_b32 s{t}, s65, 1")
        a(f"s_add_u32 s{r}, s{r}, s{t}")
        a(f"s_mul_i32 s{r}, s{r}, {144*1024}")
        a(f"s_lshl_b32 s{t}, s{sHEAD}, 10")
        a(f"s_add_u32 s{r}, s{r}, s{t}")
        a(f"s_add_u32 s{r}, s{r}, {WS_AF}")
        a(f"s_add_u32 s{regs[3]}, s{r}, {144*1024}")
    a(f"s_lshr_b32 s66, s{sHEAD}, 2")
    a("s_lshl_b32 s67, s66, 11")
    a(f"s_lshl_b32 s68, s{sQB}, 8")
    a("s_add_u32 s68, s68, s67")
    a(f"s_add_u32 s67, s67, {8*2048}")
    a(f"s_lshr_b32 s66, s{sHEAD}, 3")
    a("s_lshl_b32 s66, s66, 13")
    a(f"s_add_u32 s66, s66, {2*2048}")
    a("v_add_u32 v70, s67, v4")
    a("v_add_u32 v71, s66, v4")
    a("v_and_b32 v72, 1, v2")
    a("v_lshl_add_u32 v72, v72, 7, s68")
    a("v_cmp_gt_u32 vcc, 32, v2")
    a("v_cndmask_b32 v71, v72, v71, vcc")
    a("v_cmp_gt_u32 vcc, 16, v2")
    a("v_cndmask_b32 v70, v71, v70, vcc")
    def lda(): a(f"buffer_load_dwordx2 v[72:73], v70, {WSR}, s86 offen{ST}")
    def cmpa():
        a("v_xor_b32 v72, v72, v16")
        a("v_xor_b32 v73, v73, v17")
        a("v_or_b32 v72, v72, v73")
        a("v_cmp_ne_u32 vcc, 0, v72" if "1" not in ENV("WI", "") else "v_cmp_ne_u32 vcc, v72, v72")
    a(f"v_mov_b32 v7, {LCNT}")
    SIDE1, SIDE2 = [int(x) for x in ENV("SIDE", "19,26").split(",")]
    def side_out():
        wait_tag(("S", 0))
        for nl in range(2):
            for j in range(2): a(f"ds_read_b64_tr_b16 {vr(HP+4*nl+2*j,2)}, v{18+nl} offset:{j*1024}")
        a("v_mov_b32 v64, 0")
        a("v_mov_b32 v65, 0")
        for i in range(4):
            a(f"v_dot2_f32_bf16 v64, v{48+i}, v{56+i}, v64")
            a(f"v_dot2_f32_bf16 v65, v{52+i}, v{56+i}, v65")
        a("v_cmp_eq_u32 vcc, 0, v2")
        a("s_waitcnt lgkmcnt(0)")
        for mod in ("quad_perm:[1,0,3,2]", "quad_perm:[2,3,0,1]", "row_half_mirror", "row_mirror"):
            for r in (64, 65): a(f"v_add_f32_dpp v{r}, v{r}, v{r} {mod} row_mask:0xf bank_mask:0xf")
        for r, sb in ((64, 66), (65, 56)):
            for q in range(4): a(f"v_readlane_b32 s{sb+q}, v{r}, {16*q}")
        a("v_mov_b32 v66, s66")
        a("v_mov_b32 v67, s56")
        for q in range(1, 4):
            a(f"v_add_f32 v66, s{66+q}, v66")
            a(f"v_add_f32 v67, s{56+q}, v67")
        a("v_cndmask_b32 v66, v67, v66, vcc")
        a(f"v_mul_f32 v66, {f32(-LOG2E)}, v66")
        a("v_exp_f32 v66, v66")
        a("v_lshlrev_b32 v68, 2, v2")
        a("v_add_f32 v66, 1.0, v66")
        a("v_rcp_f32 v66, v66")
        a("s_lshl_b32 s71, s71, 2")
        a(f"s_add_u32 s71, s71, {WS_G}")
        one_lane(a, f"buffer_store_dword v66, v68, {WSR}, s71 offen{ST}", 3)
        issued.append(("S", 1))
    for s in range(LASTB + 1):
        E0 = int(ENV("EARLY", "-100"))
        if s in (4, 10, 16, 24) and E0 < 0: stamp(a, {4: 4, 10: 5, 16: 6, 24: 7}[s], VS)
        if 0 <= s - E0 < 6: stamp(a, [4, 7, 24, 27, 21, 30][s - E0], VS)
        if s == LASTB:
            assert not queue
            wait_stage(31)
        else: wait_stage(s + 1)
        if 0 <= s - E0 < 6: stamp(a, [5, 8, 25, 28, 22, 31][s - E0], VS)
        if s < 16 or "B" not in ENV("X2", ""): a("s_barrier")
        if 0 <= s - E0 < 5: stamp(a, [6, 9, 26, 29, 23][s - E0], VS)
        issue(PER1 if s < PSW else PER2, s)
        if s == 3:
            wait_tag(("T", 1))
            if ENV("FIX0"):
                a("v_mov_b32 v80, s96")
                one_lane(a, f"buffer_store_dword v80, v5, {SR(S_DBG)}, s83 offen offset:8{ST}")
                issued.append(("T", 2))
            one_lane(a, f"buffer_store_dword v14, v5, {SR(S_DBG)}, s83 offen{ST}")
            issued.append(("T", 2))
        if s == int(ENV("PFB", "5")) and (PF or PFK):
            prefetch([(16, 7168, 0, 56, 0, 0), None, (12, 7168, 0, 32, 16, 1536), (14, 7168, 0, 32, 16, 1536)])
        if s == int(ENV("PFB", "5")) and PFX: prefetch_x2()
        if s == int(ENV("PF2", "-1")):
            a("s_lshr_b32 s66, s2, 3")
            a("s_and_b32 s66, s66, 7")
            a("s_lshl_b32 s66, s66, 6")
            a("s_lshr_b32 s67, s65, 1")
            a("s_lshl_b32 s67, s67, 5")
            a("s_add_u32 s66, s66, s67")
            a("v_and_b32 v27, 31, v2")
            a("v_add_u32 v27, s66, v27")
            a("v_mul_u32_u24 v29, 3584, v27")
            a("v_add_u32 v29, s70, v29")
            a("s_bitcmp1_b32 s65, 0")
            a("s_cselect_b32 s94, s14, s12")
            a("s_cselect_b32 s95, s15, s13")
            a("s_mov_b64 exec, 0xffffffff")
            a("global_load_dword v30, v29, s[94:95]")
            a("s_mov_b64 exec, -1")
            a(f"s_mul_i32 s66, s{sHEAD}, 3")
            a("s_add_u32 s66, s66, s65")
            a(f"s_add_u32 s67, s{sHEAD}, 96")
            a("s_cmp_eq_u32 s65, 3")
            a("s_cselect_b32 s66, s67, s66")
            a("s_min_u32 s66, s66, 111")
            a("s_lshl_b32 s66, s66, 14")
            a(f"s_lshl_b32 s67, s{sQB}, 7")
            a("s_add_u32 s66, s66, s67")
            a("v_lshl_add_u32 v29, v2, 10, s66")
            a("s_mov_b64 exec, 0xffff")
            a("global_load_dword v30, v29, s[16:17]")
            a("s_mov_b64 exec, -1")
            issued.extend([("P", 0)] * 2)
        if s == 9:
            a("s_cmp_lg_u32 s65, 0")
            a("s_cbranch_scc1 L_nowo2")
            for nl in range(2):
                for j in range(2): a(f"ds_read_b64_tr_b16 {vr(36+4*nl+2*j,2)}, v{18+nl} offset:{LRO - LRD + j*1024}")
            a("s_lshr_b32 s66, s2, 3")
            a("s_and_b32 s67, s2, 7")
            a(f"s_mul_i32 s67, s67, {2*144*1024}")
            a("s_lshl_b32 s66, s66, 10")
            a("s_add_u32 s66, s66, s67")
            a(f"s_add_u32 s66, s66, {WS_WF}")
            a(f"s_add_u32 s67, s66, {144*1024}")
            a(f"s_lshl_b32 s68, s{sMB}, 11")
            a(f"s_lshl_b32 s76, s{sNB}, 7")
            a("s_add_u32 s68, s68, s76")
            a(f"s_add_u32 s68, s68, {WS_F2}")
            a(f"s_lshl_b32 s76, s{sQB}, 12")
            a(f"s_lshl_b32 s77, s{sHEAD}, 7")
            a("s_add_u32 s76, s76, s77")
            a(f"s_add_u32 s76, s76, {WS_F3}")
            zero(a, 44, 4)
            a("s_waitcnt lgkmcnt(0)")
            a(f"buffer_store_dwordx4 v[36:39], v3, {WSR}, s66 offen{STS}")
            a(f"buffer_store_dwordx4 v[40:43], v3, {WSR}, s67 offen{STS}")
            a("s_mov_b64 exec, 1")
            a(f"buffer_store_dwordx4 v[44:47], v3, {WSR}, s68 offen{STS}")
            a(f"buffer_store_dword v44, v3, {WSR}, s76 offen{ST}")
            a("s_mov_b64 exec, -1")
            a.label("L_nowo2")
        if s == SIDE1:
            srd(a, S_RD, 16, 17, 1792 * 1024)
            srd(a, S_GW, 18, 19, 1024)
            a(f"s_mul_i32 s66, s{sHEAD}, 3")
            a("s_add_u32 s66, s66, s65")
            a(f"s_add_u32 s67, s{sHEAD}, 96")
            a("s_cmp_eq_u32 s65, 3")
            a("s_cselect_b32 s66, s67, s66")
            a("s_lshl_b32 s69, s66, 14")
            a(f"s_lshl_b32 s68, s{sQB}, 7")
            a("s_mov_b32 m0, s78")
            a("s_add_u32 s69, s69, s68")
            a(f"buffer_load_dwordx4 v15, {SR(S_RD)}, s69 offen{PNT} lds")
            a("s_add_u32 m0, s78, 1024")
            a("s_add_u32 s69, s69, 8192")
            a(f"buffer_load_dwordx4 v15, {SR(S_RD)}, s69 offen{PNT} lds")
            a(f"s_mul_i32 s79, s{sQB}, {2*144*1024}")
            a("s_lshl_b32 s67, s66, 10")
            a("s_add_u32 s79, s79, s67")
            a(f"s_add_u32 s79, s79, {WS_WF + 32*1024}")
            a("s_cmp_lt_u32 s66, 112")
            a(f"s_cselect_b32 s79, s79, {OOB:#x}")
            a(f"s_add_u32 s80, s79, {144*1024}")
            a(f"s_lshl_b32 s71, s{sMB}, 7")
            a(f"s_lshl_b32 s67, s{sNB}, 3")
            a("s_add_u32 s71, s71, s67")
            a("s_lshl_b32 s67, s65, 1")
            a("s_add_u32 s71, s71, s67")
            a("s_lshl_b32 s67, s71, 10")
            a(f"buffer_load_dwordx4 v[48:51], v3, {SR(S_X)}, s67 offen")
            a(f"buffer_load_dwordx4 v[52:55], v3, {SR(S_X)}, s67 offen offset:1024")
            a(f"buffer_load_dwordx4 v[56:59], v3, {SR(S_GW)}, 0 offen")
            issued.extend([("S", 0)] * 5)
        if s == SIDE2:
            side_out()
            if LEARLY:
                ltable(68, (79, 80, 66, 67))
                for n, r in enumerate((79, 80, 66, 67)): a(f"buffer_store_dwordx4 {vr(HP+4*n)}, v3, {WSR}, s{r} offen{STS}")
                issued.extend([("S", 1)] * 4)
        if s == 14:
            a(f"buffer_load_dword v16, v5, {SR(S_DBG)}, s85 offen{ST}")
            issued.append(("T", 3))
        if s == min(PUBS, PUBC) - 1:
            a("s_cmp_lg_u32 s65, 0")
            a("s_cbranch_scc1 L_tagdone")
            wait_tag(("T", 3))
            a("v_cmp_eq_u32 vcc, 0, v16")
            a("s_cbranch_vccz L_pt_ok")
            poll(a, "L_pt", lambda: a(f"buffer_load_dword v16, v5, {SR(S_DBG)}, 0 offen{ST}"), lambda: a("v_cmp_eq_u32 vcc, 0, v16"))
            a("v_not_b32 v17, v16")
            a.label("L_tagdone")
        for typ, at in ((0, PUBS), (1, PUBC)):
            if s == at:
                a(f"s_lshl_b32 s66, s65, 1")
                a(f"s_add_u32 s66, s66, s{sVC}")
                a(f"s_cmp_lg_u32 s66, {typ}")
                a(f"s_cbranch_scc1 L_f1done{typ}")
                one_lane(a, f"buffer_store_dwordx2 v[16:17], v5, {WSR}, s82 offen{ST}")
                a.label(f"L_f1done{typ}")
        if s == LASTB - 1:
            lda(); issued.append(("F", 0))
    a("s_cmp_ge_u32 s65, 2")
    a("s_cbranch_scc1 L_nocs")
    const_setup(a, 9, 32, 8)
    const_write(a, 9, 32)
    a.label("L_nocs")
    if E0 < 0: stamp(a, 8, VS)
    a("s_cmp_lg_u32 s65, 0")
    a("s_cbranch_scc1 L_wl")
    a("s_waitcnt vmcnt(0)")
    cmpa()
    a("s_cbranch_vccz L_ps1_ok")
    poll(a, "L_ps1", lda, cmpa)
    a("ds_write_b32 v7, v6")
    a("s_branch L_wl_ok")
    a.label("L_wl")
    a(f"s_mov_b32 s98, {SPIN*8}")
    a.label("L_wl2")
    a("ds_read_b32 v8, v7")
    a("s_waitcnt lgkmcnt(0)")
    a("v_cmp_ne_u32 vcc, 1, v8")
    a("s_cbranch_vccz L_wl_ok")
    a("s_sleep 1")
    a("s_sub_u32 s98, s98, 1")
    a("s_cmp_lg_u32 s98, 0")
    a("s_cbranch_scc1 L_wl2")
    a.label("L_wl_ok")
    if E0 < 0: stamp(a, 9, VS)
    a(f"s_lshl_b32 s56, s{sHEAD}, 16")
    a(f"s_lshl_b32 s67, s{sQB}, 13")
    a("s_lshl_b32 s57, s65, 11")
    a("s_add_u32 s59, s67, s57")
    a("s_add_u32 s67, s59, s56")
    a(f"s_add_u32 m0, s57, {LQI}")
    a(f"s_add_u32 s67, s67, {WS_QK}")
    for i in range(2): a(f"buffer_load_dwordx4 v3, {WSR}, s67 offen offset:{i*1024}{ST} lds")
    a(f"s_mul_i32 s58, s65, {2*VST}")
    kv8(a, 0)
    a(f"s_mov_b32 s{DT}, s79")
    a(f"s_mov_b32 s{DT+1}, s80")
    ltable(68, (DT, DT+1, DT+2, DT+3))
    a(f"v_mov_b32 v{WO}, v16")
    a(f"v_mov_b32 v{WO+1}, v17")
    a("s_branch L_attn")

def kv8(a, p0):
    a(f"s_add_u32 s94, s59, {p0*1024}")
    a("s_and_b32 s94, s94, 0xffff")
    a("s_add_u32 s94, s94, s56")
    a(f"s_add_u32 m0, s57, {LK + p0*1024}")
    a(f"s_add_u32 s67, s94, {WS_QK + 32*65536}")
    for i in range(2): a(f"buffer_load_dwordx4 v3, {WSR}, s67 offen offset:{i*1024}{ST} lds")
    a(f"s_add_u32 s67, s94, {WS_V}")
    for i in range(2):
        a(f"s_add_u32 m0, s58, {LV + (p0+i)*VST - i*1024}")
        a(f"buffer_load_dwordx4 v3, {WSR}, s67 offen offset:{i*1024}{ST} lds")

LEARLY = False
def const_setup(a, va, vd, t):
    a(f"v_and_b32 v{t}, 255, v0")
    a(f"v_lshrrev_b32 v{va}, 2, v{t}")
    a(f"v_mul_u32_u24 v{va}, {VST}, v{va}")
    a(f"v_and_b32 v{t}, 3, v{t}")
    a(f"v_mul_u32_u24 v{t}, v{t}, v{t}")
    a(f"v_min_u32 v{t}, 4, v{t}")
    a(f"v_lshl_add_u32 v{va}, v{t}, 4, v{va}")
    a(f"v_add_u32 v{va}, {LV + 1024}, v{va}")
    a(f"v_mov_b32 v{vd}, 0x3f803f80")
    if ONE_ROW:
        a(f"v_cmp_eq_u32 vcc, 0, v{t}")
        a(f"v_cndmask_b32 v{vd}, 0, v{vd}, vcc")
    a(f"v_mov_b32 v{vd+1}, v{vd}")
def const_write(a, va, vd):
    a(f"ds_write_b64 v{va}, {vr(vd,2)}")
    a(f"ds_write_b64 v{va}, {vr(vd,2)} offset:8")

def attn(a):
    a.label("L_attn")
    a(f"s_and_b32 s65, s{sWAVE}, 3")
    a(f"s_lshr_b32 s66, s{sWAVE}, 2")
    a("s_lshl_b32 s67, s66, 10")
    a(f"v_add_u32 v{VK}, s67, v3")
    a(f"v_add_u32 v8, {VROT}, v2")
    a("v_and_b32 v8, 15, v8")
    a("v_lshrrev_b32 v9, 5, v2")
    a("v_lshl_or_b32 v8, v9, 4, v8")
    a("v_lshlrev_b32 v8, 4, v8")
    a("v_add_u32 v9, 512, v8")
    a("v_and_b32 v10, 31, v2")
    a("v_subrev_u32 v11, 20, v10")
    a("v_cmp_gt_u32 vcc, 8, v11")
    a("v_mov_b32 v11, 1040")
    a("v_mov_b32 v12, 1088")
    a("v_cndmask_b32 v11, v11, v12, vcc")
    a("v_cmp_eq_u32 vcc, 16, v10")
    a("v_mov_b32 v12, 1024")
    a("v_cndmask_b32 v11, v11, v12, vcc")
    a("v_cmp_gt_u32 vcc, 16, v10")
    a("v_cndmask_b32 v8, v11, v8, vcc")
    a("v_cndmask_b32 v9, v11, v9, vcc")
    a(f"s_mul_i32 s67, s66, {VST}")
    a(f"s_add_u32 s67, s67, {LV}")
    a(f"v_add_u32 v{VV0}, s67, v8")
    a(f"v_add_u32 v{VV1}, s67, v9")
    a("s_lshl_b32 s67, s65, 11")
    a(f"s_add_u32 s67, s67, {LQI}")
    a("v_add_u32 v20, s67, v3")
    zero(a, OA, 32); zero(a, V1, 4); zero(a, GACC, 32)
    T0 = GFR + 36
    a(f"s_lshl_b32 s73, s{sMB}, 11")
    a(f"s_lshl_b32 s74, s{sNB}, 7")
    a("s_add_u32 s73, s73, s74")
    a(f"s_add_u32 s73, s73, {WS_F2}")
    a(f"s_lshl_b32 s74, s{sQB}, 12")
    a(f"s_lshl_b32 s75, s{sHEAD}, 7")
    a("s_add_u32 s74, s74, s75")
    a(f"s_add_u32 s74, s74, {WS_F3}")
    a(f"v_mov_b32 v{T0+2}, s73")
    a(f"v_writelane_b32 v{T0+2}, s74, 1")
    a(f"v_mov_b32 v{T0+3}, 1")
    a(f"v_mov_b32 v{T0+4}, {LCNT+4}")
    g = T0 + 5
    a(f"v_and_b32 v{g+2}, 15, v2")
    a(f"v_lshlrev_b32 v{g+2}, 7, v{g+2}")
    a(f"s_lshr_b32 s74, s{sHEAD}, 1")
    a("s_lshl_b32 s74, s74, 11")
    a(f"s_add_u32 s74, s74, {WS_F2}")
    a(f"s_lshl_b32 s88, s{sQB}, 12")
    a(f"s_lshr_b32 s89, s{sHEAD}, 2")
    a("s_lshl_b32 s89, s89, 12")
    a("s_sub_u32 s89, s89, 4096")
    a(f"v_mov_b32 v{g}, s88")
    a(f"v_mov_b32 v{g+1}, s89")
    a("v_cmp_gt_u32 vcc, 32, v2")
    a(f"v_cndmask_b32 v{g}, v{g+1}, v{g}, vcc")
    a(f"v_lshl_add_u32 v{g+3}, v2, 7, v{g}")
    a(f"s_mov_b32 s88, {WS_F3}")
    a(f"s_and_b32 s68, s{sWAVE}, 1")
    a(f"s_lshr_b32 s69, s{sWAVE}, 1")
    a(f"s_lshl_b32 s84, s{sHEAD}, 1")
    a("s_add_u32 s84, s84, s68")
    a(f"s_mul_i32 s85, s84, {144*1024}")
    a(f"s_add_u32 s85, s85, {WS_AF}")
    a(f"s_mul_i32 s86, s{sQB}, {2*144*1024}")
    a(f"s_add_u32 s86, s86, {WS_WF}")
    a(f"s_mul_i32 s75, s69, {28*1024}")
    a(f"s_add_u32 s75, s75, {32*1024}")
    a("s_add_u32 s76, s85, s75")
    a("s_add_u32 s77, s86, s75")
    a(f"s_add_u32 s78, s77, {144*1024}")
    a("s_lshl_b32 s75, s69, 13")
    a("s_add_u32 s85, s85, s75")
    a("s_add_u32 s86, s86, s75")
    a(f"v_mov_b32 v{VG}, v3")
    a("s_movk_i32 s87, 4096")
    a(f"s_lshl_b32 s90, s{sHEAD}, 16")
    a(f"s_lshl_b32 s91, s{sWAVE}, 10")
    a(f"s_mul_i32 s92, s{sWAVE}, {VST}")
    a(f"s_lshl_b32 s93, s{sQB}, 13")
    a("s_add_u32 s93, s93, s91")
    const_setup(a, T0+9, T0+10, T0)
    a(f"v_lshlrev_b32 v{WO+2}, 7, v2")
    a(f"s_cmp_lt_u32 s{sWAVE}, 4")
    a("s_cbranch_scc1 L_x1")
    for p0 in (8, 16, 24): kv8(a, p0)
    a("s_waitcnt vmcnt(8)")
    a.label("L_x1")
    a("s_waitcnt lgkmcnt(0)")
    padat(a, "x1")
    a("s_setprio 3")
    a("s_barrier")
    stamp(a, 10, VS)
    a(f"ds_read_b128 {vr(QA)}, v20")
    a(f"ds_read_b128 {vr(QB)}, v20 offset:1024")
    a(f"ds_read_b128 {vr(V0B)}, v3")
    a(f"ds_read_b128 {vr(KF)}, v{VK}")
    a(f"ds_read_b128 {vr(V0A)}, v{VV0}")
    a(f"s_cmp_lt_u32 s{sWAVE}, 6")
    a("s_cbranch_scc1 L_nocs2")
    const_write(a, T0+9, T0+10)
    a.label("L_nocs2")
    def kvops(groups):
        ops = []
        for p0 in groups:
            ops.append([f"s_add_u32 s94, s93, {p0*1024}", "s_and_b32 s94, s94, 0xffff", "s_add_u32 s94, s94, s90",
                        f"s_add_u32 m0, s91, {LK + p0*1024}", f"s_add_u32 s67, s94, {WS_QK + 32*65536}",
                        f"buffer_load_dwordx4 v3, {WSR}, s67 offen{ST} lds"])
            ops.append([f"s_add_u32 m0, s92, {LV + p0*VST}", f"s_add_u32 s67, s94, {WS_V}",
                        f"buffer_load_dwordx4 v3, {WSR}, s67 offen{ST} lds"])
        return ops
    def burst(young):
        if "H" in ENV("WI", ""): return
        t = "y" if young else "o"
        a(f"s_cmp_{'lt' if young else 'ge'}_u32 s{sWAVE}, 4")
        a(f"s_cbranch_scc1 L_st4{t}")
        for n in range(4): a(f"buffer_store_dwordx4 {vr(HP+4*n)}, v3, {WSR}, s{DT+n} offen{STS}")
        if not young:
            a(f"s_cmp_lg_u32 s{sVC}, 0")
            a(f"s_cbranch_scc1 L_st4{t}")
            for n in range(4, 8): a(f"buffer_store_dwordx4 {vr(HP+4*n)}, v3, {WSR}, s{DT+n} offen{STS}")
        a.label(f"L_st4{t}")
    BURSTK = int(ENV("BURSTK", "2"))
    burst(False)
    if BURSTK < 0: burst(True)
    stamp(a, 21, VS) if not ENV("EARLY") else None
    a("s_waitcnt lgkmcnt(0)")
    a(f"{MF} {vr(SA,16)}, {vr(V0B)}, {vr(QA)}, 0")
    a(f"{MF} {vr(SB,16)}, {vr(V0B)}, {vr(QB)}, 0")
    rowmax(a, SA, T0)
    rowmax(a, SB, T0, acc=True)
    halfmax(a, T0, T0 + 1)
    for i in range(16): a(f"v_sub_f32 v{CC+i}, 0, v{T0}")
    a("s_waitcnt lgkmcnt(0)")
    a(f"{MF} {vr(SA,16)}, {vr(KF)}, {vr(QA)}, {vr(CC,16)}")
    zero(a, SB + 8, 4)
    a("s_nop 9")

    TV = ENV("TV", "0")
    def tile(n, which, extra, extra0=lambda: None, late=lambda: None):
        S, T, O, OT, QT = (SA, SB, OA, OB, QB) if which == 0 else (SB, SA, OB, OA, QA)
        v0 = V0A if n % 2 == 0 else V0B
        v0n = V0B if n % 2 == 0 else V0A
        e = lambda i: a(f"v_exp_f32 v{S+i}, v{S+i}")
        c = lambda i: a(f"v_cvt_pk_bf16_f32 v{S + (i>>2)*8 + (i&3)}, v{S+2*i}, v{S+2*i+1}")
        pv2 = lambda: a(f"{MF} {vr(OT,16)}, {vr(V1)}, {vr(T+8)}, {vr(OT,16)}")
        qk = lambda: a(f"{MF} {vr(T,16)}, {vr(KF)}, {vr(QT)}, {vr(CC,16)}")
        pv1 = lambda: a(f"{MF} {vr(O,16)}, {vr(v0)}, {vr(S)}, {vr(O,16)}")
        def rdv():
            if which == 0:
                a(f"ds_read_b128 {vr(V1)}, v{VV1} offset:{2*n*VST}")
                a(f"ds_read_b128 {vr(v0n)}, v{VV0} offset:{2*(n+1)*VST}")
        def rdk():
            if which == 0: a(f"ds_read_b128 {vr(KF)}, v{VK} offset:{2*(n+1)*1024}")
        if TV == "0":
            e(0); e(1)
            if which == 1: a("s_waitcnt lgkmcnt(0)")
            pv2(); rdv()
            e(2); e(3); e(4); e(5)
            qk(); rdk()
            e(6); e(7); e(8)
            extra0()
            for i in range(4): c(i)
            e(9); e(10)
            pv1()
            e(11); e(12); e(13); e(14)
            extra()
            e(15)
            for i in range(4, 8): c(i)
            late()
        elif TV == "1":
            e(0); e(1)
            if which == 1: a("s_waitcnt lgkmcnt(0)")
            pv2(); rdv()
            e(2); e(3); e(4); e(5); e(6)
            qk(); rdk()
            e(7); c(0); c(1); c(2); extra0(); c(3); e(8); e(9)
            pv1()
            e(10); e(11); e(12); e(13); e(14)
            extra()
            e(15)
            for i in range(4, 8): c(i)
            late()
        elif TV == "2":
            e(0); e(1)
            if which == 1: a("s_waitcnt lgkmcnt(0)")
            pv2(); rdv()
            e(2); c(0); e(3); e(4); c(1); e(5)
            qk(); rdk()
            e(6); c(2); e(7); e(8); extra0(); c(3); e(9); e(10)
            pv1()
            c(4); e(11); e(12); c(5); e(13); e(14)
            extra()
            c(6); e(15); late(); a("s_nop 0") if False else None
            c(7)
    def bump(n):
        a(f"v_add_u32 v{VK}, {2*n*1024}, v{VK}")
        a(f"v_add_u32 v{VV0}, {2*n*VST}, v{VV0}")
        a(f"v_add_u32 v{VV1}, {2*n*VST}, v{VV1}")
    PRIO = ENV("PRIO", "1") == "1"
    DPER, DRAIN = int(ENV("DPER", "1")), int(ENV("DRAIN", "10"))
    wo = list(range(16))
    g = T0 + 5
    def ld2():
        a(f"buffer_load_dword v{g}, v{g+2}, {WSR}, s74 offen{ST}")
        a(f"buffer_load_dword v{g+1}, v{g+3}, {WSR}, s88 offen{ST}")
    def cmp2():
        a(f"v_and_b32 v{g}, v{g}, v{g+1}")
        a(f"v_cmp_ne_u32 vcc, 1, v{g}" if "2" not in ENV("WI", "") else f"v_cmp_ne_u32 vcc, v{g}, v{g}")
    def ldswait(name, off, val):
        a(f"s_mov_b32 s98, {SPIN*8}")
        a.label(name)
        a(f"ds_read_b32 v{T0}, v{T0+1} offset:{off}")
        a("s_waitcnt lgkmcnt(0)")
        a(f"v_cmp_ne_u32 vcc, {val}, v{T0}")
        a(f"s_cbranch_vccz {name}_ok")
        a("s_sleep 1")
        a("s_sub_u32 s98, s98, 1")
        a("s_cmp_lg_u32 s98, 0")
        a(f"s_cbranch_scc1 {name}")
        a.label(f"{name}_ok")
    a(f"v_mov_b32 v{T0+1}, {LCNT}")
    S2W = int(ENV('S2WAVE', '0'))
    S2AT = int(ENV('S2AT', '14'))
    def ldwo(i):
        if "W" in ENV("WI", "") and i >= 2: return
        if i % 4 == 0: a(f"s_add_u32 s71, s86, {(i>>3)*144*1024 + (i&7)*1024}")
        a(f"buffer_load_dwordx4 {vr(WO + 4*i)}, v3, {WSR}, s71 offen offset:{(i&3)*1024}{'' if 'O' in ENV('XG', 'Q') else ST}")
    PK = [int(x) for x in ENV("PK", "3,7,12").split(",")]
    ops = kvops((32, 40, 48, 56))
    ops = [(lambda l=l: [a(x) for x in l]) for l in ops]
    def ldb():
        for i in range(4):
            a(f"s_mov_b32 s70, {WS_F1 + i*8192}")
            a(f"buffer_load_dwordx2 {vr(WO+4+2*i,2)}, v{WO+2}, {WSR}, s70 offen{ST}")
    def cmpb():
        b = WO + 4
        for i in range(4):
            a(f"v_xor_b32 v{b+2*i}, v{b+2*i}, v{WO}")
            a(f"v_xor_b32 v{b+2*i+1}, v{b+2*i+1}, v{WO+1}")
        a(f"v_or3_b32 v{b}, v{b}, v{b+1}, v{b+2}")
        a(f"v_or3_b32 v{b+3}, v{b+3}, v{b+4}, v{b+5}")
        a(f"v_or3_b32 v{b}, v{b}, v{b+6}, v{b+7}")
        a(f"v_or_b32 v{b}, v{b}, v{b+3}")
        a(f"v_cmp_ne_u32 vcc, 0, v{b}")
    DRAIN = int(ENV("DRAIN", "5"))
    KVW = int(ENV("KVW", "10"))
    nkv = 8
    slots = 2 * (15 - DRAIN) - 1
    def emit_ops():
        nonlocal slots
        n = -(-len(ops) // slots); slots -= 1
        n = min(n, len(ops)) if slots % 2 == 0 else 0
        for _ in range(n): ops.pop(0)()
    for k in range(16):
        if PRIO and k in PK: a(f"s_setprio {2 - PK.index(k)}")
        kcur = k
        if k == KVW: ldswait("L_kvw", 4, 8)
        if k == S2AT:
            a(f"s_cmp_lg_u32 s{sWAVE}, {S2W}")
            a("s_cbranch_scc1 L_s2a")
            ld2()
            a.label("L_s2a")
        def extra():
            if k == BURSTK: burst(True)
            if k == DRAIN - 2:
                a(f"s_cmp_lg_u32 s{sWAVE}, 4")
                a("s_cbranch_scc1 L_s1b0")
                ldb()
                a.label("L_s1b0")
            if k == DRAIN:
                stamp(a, 23, VS) if not ENV("EARLY") else None
                a("s_waitcnt vmcnt(0)")
                stamp(a, 24, VS) if not ENV("EARLY") else None
                a(f"s_cmp_lg_u32 s{sWAVE}, 4")
                a("s_cbranch_scc1 L_ps1b_ok")
                cmpb()
                a("s_cbranch_vccz L_ps1b_ok")
                poll(a, "L_ps1b", ldb, cmpb)
                one_lane(a, f"ds_add_rtn_u32 v{T0+4}, v{T0+4}, v{T0+3}")
            if k > DRAIN: emit_ops()
        def extra0():
            if k == DRAIN + 1:
                a("s_waitcnt lgkmcnt(0)")
                a(f"v_readfirstlane_b32 s70, v{T0+4}")
                a("s_cmp_eq_u32 s70, 7")
                a(f"s_cselect_b32 s70, 0, {OOB:#x}")
                one_lane(a, f"buffer_store_dword v{T0+3}, v{T0+2}, {WSR}, s70 offen{ST}", 3)
            if k > DRAIN + 1: emit_ops()
        nleft = len(ops)
        if k == S2AT: after_s2 = nleft
        tile(k >> 1, k & 1, extra, extra0)
    assert not ops
    stamp(a, 11, VS)
    a(f"s_cmp_lg_u32 s{sWAVE}, {S2W}")
    a("s_cbranch_scc1 L_s2b")
    a(f"s_waitcnt vmcnt({after_s2})")
    cmp2()
    a("s_cbranch_vccz L_ps2_ok")
    poll(a, "L_ps2", ld2, cmp2)
    a(f"ds_write_b32 v{T0+1}, v{T0+3} offset:8")
    a("s_waitcnt lgkmcnt(0)")
    a("s_branch L_s2w_ok")
    a.label("L_s2b")
    ldswait("L_s2w", 8, 1)
    stamp(a, 16, VS)
    if PRIO: a("s_setprio 3")
    bump(8)
    def gld(buf, q, off): a(f"buffer_load_dwordx4 {vr(GFR + 12*buf + 4*q)}, v{VG}, {WSR}, s{76+q} offen offset:{off}{'' if ('P' in ENV('XG', 'Q') or ('Q' in ENV('XG', 'Q') and q)) else ST}")
    def gm(buf, j):
        d = vr(GACC + 16*j, 16)
        a(f"{MF} {d}, {vr(GFR + 12*buf + 4 + 4*j)}, {vr(GFR + 12*buf)}, {d}")
    vq = []
    def gl(kt, q):
        gld(kt & 3, q, (kt & 3) * 1024); vq.append(("g", kt))
    def vneed(tag):
        n = len(vq) - 1 - max(i for i, e in enumerate(vq) if e == tag)
        a(f"s_waitcnt vmcnt({n})")
    for kt in range(4):
        for q in (1, 0, 2): gl(kt, q)
    a(f"v_mov_b32 v0, {LCNT}")
    a("v_mov_b32 v2, 1")
    PU = [int(x) for x in ENV("PU", "40,52,60").split(",")]
    wo = list(range(16))
    base = 8
    for k in range(16, 64):
        n, kt, j = k >> 1, (k - 16) >> 1, k & 1
        if k == 40: bump(12); base = 20
        if PRIO and k in PU: a(f"s_setprio {2 - PU.index(k)}")
        if k == 30:
            a(f"s_mov_b32 s98, {SPIN*8}")
            a.label("L_kv2")
            a("ds_read_b32 v2, v0 offset:12")
            a("s_waitcnt lgkmcnt(0)")
            a("v_cmp_ne_u32 vcc, 8, v2")
            a("s_cbranch_vccz L_kv2_ok")
            a("s_sleep 1")
            a("s_sub_u32 s98, s98, 1")
            a("s_cmp_lg_u32 s98, 0")
            a("s_cbranch_scc1 L_kv2")
            a.label("L_kv2_ok")
        def extra():
            if j == 0:
                if kt % 4 == 0: a(f"v_add_u32 v{VG}, 4096, v{VG}")
                vneed(("g", kt))
            gm(kt & 3, j)
            if j == 0: gl(kt + 4, 1)
            else: gl(kt + 4, 0); gl(kt + 4, 2)
        def extra0():
            if k == 17: one_lane(a, "ds_add_u32 v0, v2 offset:12")
            if k % 3 == 1 and wo: ldwo(wo.pop(0)); vq.append(("wo", 0))
        tile(n - base, j, extra, extra0)
    assert not wo
    bump(12)
    a("v_lshrrev_b32 v2, 4, v3")
    if STAMP: a(f"v_lshl_add_u32 v0, s{sWAVE}, 6, v2")
    a(f"{MF} {vr(OB,16)}, {vr(V1)}, {vr(SB+8)}, {vr(OB,16)}")
    stamp(a, 17, VS)
    a(f"s_mul_i32 s79, s{sWAVE}, 2304")
    a(f"s_add_u32 s79, s79, {LQ}")
    a(f"s_xor_b32 s80, s{sWAVE}, 4")
    a("s_mul_i32 s80, s80, 2304")
    a(f"s_add_u32 s80, s80, {LQ}")
    a(f"v_add_u32 v{KF}, s79, v3")
    a(f"v_add_u32 v{KF+1}, s80, v3")
    a(f"v_lshl_add_u32 v{KF+2}, v2, 2, s79")
    a(f"v_lshl_add_u32 v{KF+3}, v2, 2, s80")
    a(f"v_and_b32 v{V0A}, 31, v2")
    a(f"v_lshlrev_b32 v{V0A}, 2, v{V0A}")
    a("s_lshl_b32 s79, s84, 7")
    a(f"s_add_u32 s79, s79, {WS_G}")
    VGT = V0B
    a(f"buffer_load_dword v{VGT}, v{V0A}, {WSR}, s79 offen{ST}")
    a("s_cmp_eq_u32 s66, 0")
    a("s_cbranch_scc1 L_keepA")
    a(f"ds_write_b128 v{KF}, {vr(OA)}")
    a(f"ds_write_b128 v{KF}, {vr(OA+4)} offset:1024")
    a(f"ds_write_b32 v{KF+2}, v{OA+8} offset:2048")
    for i in range(9): a(f"v_mov_b32 v{OA+i}, v{OB+i}")
    for i in range(4): a(f"v_mov_b32 v{QA+i}, v{QB+i}")
    a("s_branch L_sent")
    a.label("L_keepA")
    a(f"ds_write_b128 v{KF}, {vr(OB)}")
    a(f"ds_write_b128 v{KF}, {vr(OB+4)} offset:1024")
    a(f"ds_write_b32 v{KF+2}, v{OB+8} offset:2048")
    a.label("L_sent")
    a(f"s_lshl_b32 s79, s{sQB}, 3")
    a("s_lshl_b32 s80, s65, 1")
    a("s_add_u32 s79, s79, s80")
    a("s_add_u32 s79, s79, s66")
    a(f"s_mul_i32 s81, s79, {144*1024}")
    a(f"s_lshl_b32 s80, s{sHEAD}, 10")
    a("s_add_u32 s81, s81, s80")
    a(f"s_add_u32 s81, s81, {WS_AF}")
    a("s_waitcnt lgkmcnt(0)")
    a("s_barrier")
    a(f"ds_read_b128 {vr(OB)}, v{KF+1}")
    a(f"ds_read_b128 {vr(OB+4)}, v{KF+1} offset:1024")
    a(f"ds_read_b32 v{OB+8}, v{KF+3} offset:2048")
    a("s_waitcnt lgkmcnt(0)")
    for i in range(9): a(f"v_add_f32 v{OA+i}, v{OA+i}, v{OB+i}")
    def lbcast():
        if ONE_ROW:
            a(f"v_mov_b32 v{OB}, v{OA+8}")
            a(f"v_permlane32_swap_b32 v{OA+8}, v{OB}")
    lbcast()
    a(f"v_cmp_nge_f32 vcc, {f32(2.0**60)}, v{OA+8}")
    a("s_mov_b64 s[82:83], vcc")
    a(f"v_cmp_nle_f32 vcc, {f32(2.0**-60)}, v{OA+8}")
    a("s_or_b64 vcc, vcc, s[82:83]")
    a("s_cbranch_vccnz L_redo")
    a.label("L_aok")
    a(f"v_rcp_f32 v12, v{OA+8}")
    for i in range(8): a(f"v_mul_f32 v{OA+i}, v12, v{OA+i}")
    for i in range(4): a(f"v_cvt_pk_bf16_f32 v{SA+i}, v{OA+2*i}, v{OA+2*i+1}")
    for i in range(4): a(f"v_min_u32 v{SA+i}, -2, v{SA+i}")
    a(f"buffer_store_dwordx4 {vr(SA)}, v3, {WSR}, s81 offen{STS}")
    stamp(a, 18, VS)
    srd(a, S_OUT, 20, 21, 2048 * 1024)
    a("s_lshl_b32 s79, s68, 15")
    a("v_add_u32 v14, s79, v3")
    a("s_lshl_b32 s80, s69, 13")
    a("s_add_u32 s80, s80, s79")
    a("v_add_u32 v15, s80, v3")
    a("v_and_b32 v12, 31, v2")
    a("v_lshlrev_b32 v12, 10, v12")
    a("v_lshrrev_b32 v13, 5, v2")
    a("v_lshl_or_b32 v11, v13, 4, v12")
    a("s_lshl_b32 s79, s84, 15")
    a(f"s_lshl_b32 s80, s{sQB}, 7")
    a("s_add_u32 s79, s79, s80")
    a("s_lshl_b32 s80, s69, 5")
    a("s_add_u32 s79, s79, s80")
    a("s_add_u32 s87, s85, 4096")
    a("s_barrier")
    TE = ENV("TE", "0")
    if TE != "2":
        a("s_waitcnt vmcnt(1)")
        for b in range(4): gm(b, 0); gm(b, 1)
    if TE == "0": a("s_waitcnt vmcnt(0)")
    stamp(a, 19, VS)
    OF, A2 = 16, 64
    def ldO():
        for i in range(8): a(f"buffer_load_dwordx4 {vr(OF+4*i)}, v3, {WSR}, s{85 if i < 4 else 87} offen offset:{(i&3)*1024}{ST}")
    def cmpO():
        for i in range(8):
            a(f"s_waitcnt vmcnt({7-i})")
            for j in range(2):
                d = vr(A2 + 16*j, 16)
                a(f"{MF} {d}, {vr(WO + 32*j + 4*i)}, {vr(OF+4*i)}, {'0' if i == 0 else d}")
            r = OF + 4*i
            if i == 0: a(f"v_max_u32 v12, v{r}, v{r+1}")
            else: a(f"v_max3_u32 v12, v{r}, v{r+1}, v12")
            a(f"v_max3_u32 v12, v{r+2}, v{r+3}, v12")
        a("v_cmp_eq_u32 vcc, -1, v12" if "3" not in ENV("WI", "") else "v_cmp_ne_u32 vcc, v12, v12")
    ldO()
    if TE == "2":
        a("s_waitcnt vmcnt(9)")
        for b in range(4): gm(b, 0); gm(b, 1)
    a(f"v_sub_f32 v10, 1.0, v{VGT}")
    for r in range(32): a(f"v_mul_f32 v{GACC+r}, v10, v{GACC+r}")
    a(f"s_mov_b32 s98, {SPIN}")
    a("s_branch L_ps3c")
    def ldO2():
        ldO(); a.label("L_ps3c")
    poll(a, "L_ps3", ldO2, cmpO, wait=False, slp=int(ENV("SLP3", "4")))
    stamp(a, 20, VS)
    for kq in range(4):
        if kq < 3:
            a(f"s_cmp_lg_u32 s69, {kq}")
            a(f"s_cbranch_scc1 L_red{kq+1}")
        for sl in [x for x in range(4) if x != kq] + [kq]:
            for r in range(8*sl, 8*sl + 8):
                if sl == kq: a(f"v_fma_f32 v{OF + r - 8*sl}, v{VGT}, v{A2+r}, v{GACC+r}")
                else: a(f"v_fmac_f32 v{GACC+r}, v{VGT}, v{A2+r}")
            if sl != kq:
                for k in range(2): a(f"ds_write_b128 v14, {vr(GACC + 8*sl + 4*k)} offset:{sl*8192 + ((kq - sl - 1) & 3)*2048 + k*1024}")
        if kq < 3:
            a("s_branch L_redw")
            a.label(f"L_red{kq+1}")
    a.label("L_redw")
    a("s_waitcnt lgkmcnt(0)")
    a("s_barrier")
    for q in range(3):
        for k in range(2): a(f"ds_read_b128 {vr(OF + 8 + 8*q + 4*k)}, v15 offset:{q*2048 + k*1024}")
    a("s_waitcnt lgkmcnt(4)")
    for r in range(0, 8, 2): a(f"v_pk_add_f32 {vr(OF+r,2)}, {vr(OF+r,2)}, {vr(OF+8+r,2)}")
    a("s_waitcnt lgkmcnt(0)")
    for r in range(0, 8, 2): a(f"v_pk_add_f32 {vr(OF+16+r,2)}, {vr(OF+16+r,2)}, {vr(OF+24+r,2)}")
    for r in range(0, 8, 2): a(f"v_pk_add_f32 {vr(OF+r,2)}, {vr(OF+r,2)}, {vr(OF+16+r,2)}")
    for i in range(4): a(f"v_cvt_pk_bf16_f32 v{48+i}, v{OF+2*i}, v{OF+2*i+1}")
    a("v_permlane32_swap_b32 v48, v50")
    a("v_permlane32_swap_b32 v49, v51")
    a(f"buffer_store_dwordx4 v[48:51], v11, {SR(S_OUT)}, s79 offen{ENV('OUTMOD', '').replace('_', ' ')}")
    if ENV("FIXT"):
        if ENV("FIX0"):
            a("v_mov_b32 v80, 0")
            a(f"buffer_load_dword v81, v80, {SR(S_DBG)}, 0 offen offset:8{ST}")
            a("s_waitcnt vmcnt(0)")
            a("v_readfirstlane_b32 s96, v81")
        a.label("L_fixt")
        a("s_memrealtime s[100:101]")
        a("s_waitcnt lgkmcnt(0)")
        a("s_sub_u32 s100, s100, s96")
        a(f"s_cmp_lt_u32 s100, {int(ENV('FIXT'))}")
        a("s_cbranch_scc1 L_fixt")
    if STAMP: a("s_waitcnt vmcnt(0)")
    stamp_out(a, 0, S_WS, VS, 14)
    if STAMP and ENV("DBGOUT"):
        a(f"s_lshl_b32 s66, s{sWAVE}, 8")
        a("s_or_b32 s66, s66, s2")
        a(f"s_cmp_lg_u32 s66, {int(ENV('DBGOUT'))}")
        a("s_cbranch_scc1 L_exit")
        a(f"v_readlane_b32 s67, v{VS}, 1")
        for k, idx in enumerate((3, 4, 5, 6, 7, 10, 11, 16, 17, 18, 19, 20, 14)):
            a(f"v_readlane_b32 s66, v{VS}, {32+idx}")
            a("s_sub_u32 s66, s66, s67")
            a(f"v_writelane_b32 v14, s66, {k}")
        a(f"v_readlane_b32 s66, v{VS}, 14")
        a(f"v_readlane_b32 s67, v{VS}, 0")
        a("s_sub_u32 s66, s66, s67")
        a("v_writelane_b32 v14, s66, 13")
        a("v_lshlrev_b32 v15, 2, v2")
        one_lane(a, f"buffer_store_dword v14, v15, {SR(S_DBG)}, 0 offen offset:4", "0x3fff")
    a("s_endpgm")
    a.label("L_redo")
    a(f"s_mul_i32 s79, s66, {VST}")
    a(f"s_add_u32 s79, s79, {64*VST}")
    a(f"v_subrev_u32 v{VV0}, s79, v{VV0}")
    a(f"v_subrev_u32 v{VV1}, s79, v{VV1}")
    a(f"v_mov_b32 v{VK}, v3")
    a("v_mov_b32 v12, 0xff800000")
    a("s_mov_b32 s80, 0")
    a.label("L_fmax")
    a(f"ds_read_b128 {vr(KF)}, v{VK}")
    a("s_waitcnt lgkmcnt(0)")
    a(f"{MF} {vr(SA,16)}, {vr(KF)}, {vr(QA)}, 0")
    a(f"v_add_u32 v{VK}, 1024, v{VK}")
    rowmax(a, SA, 12, acc=True)
    a("s_add_u32 s80, s80, 1")
    a("s_cmp_lt_u32 s80, 64")
    a("s_cbranch_scc1 L_fmax")
    halfmax(a, 12, 13)
    for i in range(16): a(f"v_sub_f32 v{CC+i}, 0, v12")
    zero(a, OA, 16)
    a(f"v_mov_b32 v{VK}, v3")
    a("s_mov_b32 s80, 0")
    a.label("L_fslow")
    a(f"ds_read_b128 {vr(KF)}, v{VK}")
    a(f"ds_read_b128 {vr(V0A)}, v{VV0}")
    a(f"ds_read_b128 {vr(V1)}, v{VV1}")
    a("s_waitcnt lgkmcnt(0)")
    a(f"{MF} {vr(SA,16)}, {vr(KF)}, {vr(QA)}, {vr(CC,16)}")
    a(f"v_add_u32 v{VK}, 1024, v{VK}")
    a(f"v_add_u32 v{VV0}, {VST}, v{VV0}")
    a(f"v_add_u32 v{VV1}, {VST}, v{VV1}")
    for i in range(16): a(f"v_exp_f32 v{SA+i}, v{SA+i}")
    for i in range(8): a(f"v_cvt_pk_bf16_f32 v{SB+i}, v{SA+2*i}, v{SA+2*i+1}")
    a(f"{MF} {vr(OA,16)}, {vr(V0A)}, {vr(SB)}, {vr(OA,16)}")
    a(f"{MF} {vr(OA,16)}, {vr(V1)}, {vr(SB+4)}, {vr(OA,16)}")
    a("s_add_u32 s80, s80, 1")
    a("s_cmp_lt_u32 s80, 64")
    a("s_cbranch_scc1 L_fslow")
    a("s_nop 9")
    lbcast()
    a("s_branch L_aok")

def build():
    a = Asm()
    head(a)
    p1_loader(a)
    p1_compute(a)
    attn(a)
    a.label("L_exit")
    a("s_endpgm")
    n = a.fix(verbose="-v" in sys.argv)
    print("instructions:", len(a.lines), "nop states inserted:", n, "lds", LDS_BYTES, file=sys.stderr)
    name = NAME + "_kernel"
    hdr = open("cdna_kernels/" + NAME + ".s.ref").read().split("; Override launch")[0]
    out = hdr + f"; @launch grid=(256,1,1) block=(512,1,1) lds={LDS_BYTES}\n"
    out += '.amdgcn_target "amdgcn-amd-amdhsa--gfx950"\n.text\n'
    out += f".globl {name}\n.p2align 8\n.type {name},@function\n{name}:\n" + a.text()
    out += '.section .rodata,"a"\n' + kd(name)
    dst = sys.argv[1] if len(sys.argv) > 1 and not sys.argv[1].startswith("-") else "cdna_kernels/" + NAME + ".s"
    open(dst, "w").write(out)
if __name__ == "__main__": build()
```

```python
import os, sys
from common import *

MF = "v_mfma_f32_32x32x16_bf16"
ST = " sc1"
STS = " sc1 nt" if os.environ.get("SNT") else " sc1"
ENV = os.environ.get
WS_F1 = 0x1480000
WS_F2 = 0x1490000
WS_F3 = 0x1498000
WS_TAG = 0x14a0000
SPIN = 1 << 17

S_DBG, S_WS, S_X, S_G, S_U, S_WA, S_WB, S_WC = 24, 28, 32, 36, 40, 44, 48, 52
S_RO, S_RD, S_GW = 56, 44, 48
S_OUT = 32
sWAVE, sMB, sNB, sVC = 3, 60, 61, 62
sHEAD, sQB = 63, 64
WSR = f"s[{S_WS}:{S_WS+3}]"
def SR(n): return f"s[{n}:{n+3}]"
VS = 1

NXS = 6
LX, XSLOT = 0, 16384
LW = NXS * XSLOT
NW1, WS1 = 5, 12288
NW2, WS2, LW2 = 6, 8192, LW + 12288
LRD = LW + 4096
LRO = LW + NW1 * WS1
LDS_BYTES = 163840
LCNT = LDS_BYTES - 16
LC2 = LDS_BYTES - 32
LC3 = LDS_BYTES - 64
assert LRO + 2048 <= LCNT and (16 % NW1) * WS1 == LW2 - LW and LW2 + NW2 * WS2 <= LRO
KROT = 8 - NXS
def wslot(s): return (LW + (s % NW1) * WS1, WS1) if s < 16 else (LW2 + ((s - 16) % NW2) * WS2, WS2)
def acc(tt, ct): return 96 + (tt * 4 + ct) * 16 if ct < 4 else 224 + tt * 16
HP = 224
DT = 36
FR0, FR1 = 16, 36
VXA, VW = 56, 60
ONE_ROW = not ENV("ALLONES")
VST, VROT = 1104, 0
LK, LV = 0, 65536
LQ = LV + 64 * VST
LQI = 143360
LASTB = 28
QA, QB, CC, OA, OB, SA, SB, KF, V0A, V0B, V1 = 8, 12, 16, 32, 48, 64, 80, 96, 100, 104, 108
VK, VV0, VV1, VG = 4, 5, 6, 7
GACC, GFR, WO = 112, 144, 192

class Lgkm:
    def __init__(s, a): s.a = a; s.q = []
    def rd(s, tag, text): s.a(text); s.q.append(tag)
    def need(s, *tags):
        idx = [i for i, t in enumerate(s.q) if t in tags]
        if not idx: return
        n = len(s.q) - 1 - max(idx)
        assert n <= 15
        s.a(f"s_waitcnt lgkmcnt({n})")
        s.q = s.q[max(idx) + 1:]
    def all(s, extra=""):
        s.a("s_waitcnt " + extra + "lgkmcnt(0)")
        s.q = []

def poll(a, name, load, cmp, wait=True, slp=None):
    a(f"s_mov_b32 s98, {SPIN}")
    a.label(name)
    load()
    if wait: a("s_waitcnt vmcnt(0)")
    cmp()
    a(f"s_cbranch_vccz {name}_ok")
    a(f"s_sleep {int(ENV('SLEEP', '4')) if slp is None else slp}")
    a("s_sub_u32 s98, s98, 1")
    a("s_cmp_lg_u32 s98, 0")
    a(f"s_cbranch_scc1 {name}")
    a.label(f"{name}_ok")

def rowmax(a, S, dst, acc=False):
    if acc: a(f"v_max3_f32 v{dst}, v{S}, v{S+1}, v{dst}")
    else: a(f"v_max_f32 v{dst}, v{S}, v{S+1}")
    for k in range(2, 16, 2): a(f"v_max3_f32 v{dst}, v{S+k}, v{S+k+1}, v{dst}")
def halfmax(a, dst, tmp):
    a(f"v_mov_b32 v{tmp}, v{dst}")
    a(f"v_permlane32_swap_b32 v{tmp}, v{dst}")
    a(f"v_max_f32 v{dst}, v{tmp}, v{dst}")
def zero(a, b, n):
    for r in range(0, n, 2): a(f"v_pk_mul_f32 {vr(b+r,2)}, 0, 0")
def one_lane(a, text, mask=1):
    a(f"s_mov_b64 exec, {mask}"); a(text); a("s_mov_b64 exec, -1")

def padat(a, where):
    p = ENV("PADAT", "")
    if p.startswith(where + ":"):
        a.label("L_pad")
        a("s_memrealtime s[100:101]")
        a("s_waitcnt lgkmcnt(0)")
        a("s_sub_u32 s100, s100, s96")
        a(f"s_cmp_lt_u32 s100, {int(p.split(':')[1])}")
        a("s_cbranch_scc1 L_pad")

def head(a):
    a("s_cmp_ge_u32 s2, 256")
    a("s_cbranch_scc1 L_exit")
    a("s_load_dwordx16 s[4:19], s[0:1], 0")
    a("s_load_dwordx4 s[20:23], s[0:1], 64")
    a(f"s_load_dwordx2 s[{S_WS}:{S_WS+1}], s[0:1], 80")
    if ENV("CODEPF", "2") == "2":
        a("s_getpc_b64 s[84:85]")
        a.label("L_pc")
        a("v_lshlrev_b32 v61, 7, v0")
        a("v_min_u32 v61, L_exit-L_pc, v61")
        a("global_load_dword v61, v61, s[84:85]")
    if ENV("FIXT") or ENV("PADAT"):
        a("s_memrealtime s[96:97]")
    if STAMP: a(f"v_mov_b32 v{VS}, 0")
    stamp(a, 0, VS); stamp(a, 1, VS, real=True)
    a("v_lshrrev_b32 v3, 6, v0")
    a("v_and_b32 v2, 63, v0")
    a(f"v_readfirstlane_b32 s{sWAVE}, v3")
    a("s_and_b32 s65, s2, 7")
    a("s_lshr_b32 s66, s2, 3")
    a("s_and_b32 s67, s65, 1")
    a("s_lshl_b32 s67, s67, 3")
    a("s_and_b32 s68, s66, 7")
    a(f"s_add_u32 s{sMB}, s67, s68")
    a("s_lshr_b32 s67, s65, 1")
    a("s_lshl_b32 s67, s67, 2")
    a("s_lshr_b32 s68, s66, 3")
    if ENV("CFIRST", "1") == "1": a("s_sub_u32 s68, 3, s68")
    a(f"s_add_u32 s{sNB}, s67, s68")
    a("s_cmp_eq_u32 s68, 3")
    a(f"s_cselect_b32 s{sVC}, 1, 0")
    a("s_lshl_b32 s67, s65, 2")
    a("s_and_b32 s68, s66, 3")
    a(f"s_add_u32 s{sHEAD}, s67, s68")
    a(f"s_lshr_b32 s{sQB}, s66, 2")
    a("v_lshlrev_b32 v3, 4, v2")
    a(f"s_mov_b32 s{S_WS+2}, {WS_SIZE:#x}")
    a(f"s_mov_b32 s{S_WS+3}, 0x00020000")
    a(f"s_lshr_b32 s67, s{sNB}, 2")
    a(f"s_sub_u32 s81, s{sNB}, s67")
    a("s_add_u32 s81, s81, 16")
    a(f"s_lshl_b32 s82, s{sNB}, 11")
    a(f"s_lshl_b32 s67, s{sMB}, 7")
    a("s_add_u32 s82, s82, s67")
    a(f"s_add_u32 s82, s82, {WS_F1}")
    a("v_lshrrev_b32 v8, 3, v2")
    a("v_and_b32 v4, 7, v2")
    a("v_bfe_u32 v5, v2, 4, 1")
    a("v_lshlrev_b32 v5, 2, v5")
    a("v_xor_b32 v5, v5, v4")
    a("v_lshlrev_b32 v9, 4, v5")
    a(f"s_cmp_lt_u32 s{sWAVE}, 4")
    a("s_waitcnt lgkmcnt(0)")
    srd(a, S_X, 4, 5, 2048 * 1024)
    srd(a, S_DBG, 22, 23, 256)
    a("s_cbranch_scc1 L_compute")

def p1_compute(a):
    a.label("L_compute")
    if ENV("INV"): a("buffer_inv sc1")
    a(f"s_and_b32 s65, s{sWAVE}, 1")
    a(f"s_lshr_b32 s66, s{sWAVE}, 1")
    if ENV("CODEPF", "2") == "1":
        a("s_getpc_b64 s[84:85]")
        a.label("L_pc")
        a("s_sub_u32 s84, s84, L_pc-L_loader")
        a("s_subb_u32 s85, s85, 0")
        a("v_lshlrev_b32 v11, 7, v0")
        a("v_min_u32 v11, L_exit-L_loader, v11")
        a("global_load_dword v61, v11, s[84:85]")
        a("v_lshlrev_b32 v11, 7, v0")
        a("v_add_u32 v11, 0x8000, v11")
        a("v_min_u32 v11, L_exit-L_loader, v11")
        a("global_load_dword v62, v11, s[84:85]")
    H4 = 62
    a("v_and_b32 v8, 31, v2")
    a(f"v_lshrrev_b32 v{H4}, 5, v2")
    a("v_bfe_u32 v5, v2, 1, 3")
    a(f"v_xor_b32 v5, v5, v{H4}")
    a("s_lshl_b32 s67, s65, 13")
    a("v_lshl_add_u32 v6, v8, 7, s67")
    for ks in range(4):
        a(f"v_xor_b32 v7, {2*ks}, v5")
        a(f"v_lshl_add_u32 v{VXA+ks}, v7, 4, v6")
    a("v_bfe_u32 v5, v2, 2, 2")
    a("v_and_b32 v6, 3, v2")
    a("v_bfe_u32 v7, v2, 4, 1")
    a("v_lshlrev_b32 v6, 3, v6")
    a("v_lshl_or_b32 v6, v7, 5, v6")
    a("v_lshrrev_b32 v7, 1, v5")
    a("v_lshl_or_b32 v6, v7, 6, v6")
    a("v_lshl_or_b32 v6, v5, 7, v6")
    a(f"v_lshl_or_b32 v6, v{H4}, 10, v6")
    a("s_lshl_b32 s67, s66, 6")
    a("v_xor_b32 v6, s67, v6")
    a(f"v_add_u32 v{VW}, {LW}, v6")
    zero(a, 96, 160)
    a(f"v_mov_b32 v5, {LCNT}")
    a("ds_write_b128 v5, v[96:99]")
    a(f"v_mov_b32 v14, {LC2}")
    a("v_mov_b32 v15, 1")
    a("ds_write_b32 v14, v96")
    a(f"v_mov_b32 v5, {LC3}")
    a("ds_write_b128 v5, v[96:99]")
    a("ds_write_b128 v5, v[96:99] offset:16")

    a(f"s_mov_b32 s51, {(-(NW1-1)*WS1) & 0xffffffff:#x}")
    a(f"s_mov_b32 s52, {(-(NXS-1)*XSLOT) & 0xffffffff:#x}")
    a("s_mov_b32 s46, 0")
    a("s_mov_b32 s47, 0")
    a("s_mov_b32 s48, 8")
    a("s_waitcnt lgkmcnt(0)")
    def reads(fs, ks, nu):
        kk = ks & 1
        X = lambda t: f"ds_read_b128 {vr(fs+4*t)}, v{VXA+ks} offset:{t*4096}"
        W = lambda u, j: f"ds_read_b64_tr_b16 {vr(fs+8+4*u+2*j, 2)}, v{VW} offset:{u*4096 + kk*2048 + j*512}"
        l = [X(0), W(0,0), W(0,1), X(1)]
        for u in range(1, nu): l += [W(u,0), W(u,1)]
        return l
    def loop(name, cts, swap, nu_next_last, hook=None):
        nu = len(cts)
        NWS, WSLOT = (NW1, WS1) if nu == 3 else (NW2, WS2)
        a.label(name)
        for ks in range(4):
            kk = ks & 1
            cur, nxt = (FR0, FR1) if kk == 0 else (FR1, FR0)
            mms = []
            for u, ct in enumerate(cts):
                for t in range(2):
                    d = vr(acc(t, ct), 16); w = vr(cur + 8 + 4*u); x = vr(cur + 4*t)
                    mms.append(f"{MF} {d}, {x}, {w}, {d}" if (swap and ct < 4) else f"{MF} {d}, {w}, {x}, {d}")
            if ENV("FAKE16"):
                mms = []
                for u, ct in enumerate(cts):
                    for t in range(2):
                        w = vr(cur + 8 + 4*u); x = vr(cur + 4*t)
                        d0, d1 = vr(acc(t, ct) + 8*kk, 4), vr(acc(t, ct) + 8*kk + 4, 4)
                        x2 = vr(cur + 4*(1-t))
                        mms.append(f"v_mfma_f32_16x16x32_bf16 {d0}, {w}, {x}, {d0}")
                        mms.append(f"v_mfma_f32_16x16x32_bf16 {d1}, {x2}, {w}, {d1}")
            rd = reads(nxt, (ks + 1) & 3, nu)
            post = []
            if kk == 0:
                post += ["s_add_u32 s46, s46, 1", f"s_cmp_eq_u32 s46, {NWS}", f"s_cselect_b32 s49, s51, {WSLOT}", "s_cselect_b32 s46, 0, s46", f"v_add_u32 v{VW}, s49, v{VW}"]
                if ks == 2:
                    post += ["s_add_u32 s47, s47, 1", f"s_cmp_eq_u32 s47, {NXS}", f"s_cselect_b32 s50, s52, {XSLOT}", "s_cselect_b32 s47, 0, s47", f"v_add_u32 v{VXA}, s50, v{VXA}"]
            elif ks == 3:
                post += [f"v_add_u32 v{VXA+i}, s50, v{VXA+i}" for i in range(1, 4)] + ["s_sub_u32 s48, s48, 1", "s_cmp_lg_u32 s48, 0"]
            if ENV("P1W", "1") == "0":
                a("s_waitcnt lgkmcnt(0)")
                if kk == 1:
                    a(mms.pop(0))
                    a("s_barrier")
                other = rd + post
                per = 3
                while mms:
                    if kk == 0: a(mms.pop(0))
                    for _ in range(per):
                        if other: a(other.pop(0))
                    if kk == 1: a(mms.pop(0))
                for o in other: a(o)
            else:
                lg = Lgkm(a); lg.q = [("c", i) for i in range(8)]
                needs = [2, 3, 5, None, 7, None]
                BAR = int(ENV("P1BAR", "2"))
                for g in range(6):
                    if kk == 1 and g == BAR: lg.all()
                    elif needs[g] is not None: lg.need(("c", needs[g]))
                    a(mms[g])
                    if kk == 1 and g == BAR: a("s_barrier")
                    if kk == 0 or g >= BAR:
                        n = 2 if kk == 0 else -(-8 // (6 - BAR))
                        for _ in range(n):
                            if rd: lg.rd(("n", 0), rd.pop(0))
                    if not rd or (kk == 1 and g < BAR):
                        for _ in range(5 if kk == 0 else 3):
                            if post: a(post.pop(0))
                assert not rd
                for o in post: a(o)
        a(f"s_cbranch_scc1 {name}")
    a(f"s_lshl_b32 s68, s{sMB}, 2")
    a("s_lshl_b32 s69, s65, 1")
    a("s_add_u32 s69, s68, s69")
    a(f"v_add_u32 v9, {VROT}, v2")
    a("v_and_b32 v9, 15, v9")
    a(f"v_lshl_or_b32 v9, v{H4}, 4, v9")
    a("v_lshlrev_b32 v9, 4, v9")
    a("v_bfe_u32 v10, v2, 4, 1")
    a("v_lshl_or_b32 v9, v10, 16, v9")
    a(f"s_lshr_b32 s44, s{sNB}, 2")
    a("s_lshl_b32 s44, s44, 19")
    a("s_lshl_b32 s45, s66, 17")
    a("s_add_u32 s44, s44, s45")
    a("s_lshl_b32 s45, s69, 10")
    a("s_add_u32 s44, s44, s45")
    a(f"s_add_u32 s44, s44, {WS_V}")
    a(f"s_add_u32 s45, s44, {4*65536}")
    a(f"s_cmp_lt_u32 s{sNB}, 8")
    a(f"s_cselect_b32 s53, {f32(QSCALE)}, 1.0")
    a(f"s_lshl_b32 s67, s{sNB}, 2")
    a("s_lshl_b32 s68, s66, 1")
    a("s_add_u32 s67, s67, s68")
    a("s_lshl_b32 s67, s67, 16")
    a("s_lshl_b32 s68, s69, 10")
    a("s_add_u32 s67, s67, s68")
    a(f"s_add_u32 s54, s67, {WS_QK}")
    a("s_add_u32 s55, s54, 0x10000")
    a(f"s_mul_i32 s67, s69, {144*1024}")
    a("s_lshl_b32 s68, s66, 11")
    a("s_add_u32 s67, s67, s68")
    a(f"s_add_u32 s67, s67, {WS_AF + 32*1024}")
    for i in (1, 0):
        a(f"s_lshl_b32 s68, s{sNB if i else 81}, 12")
        a("s_add_u32 s68, s67, s68")
        for n in range(4): a(f"s_add_u32 s{DT + (1-i)*4 + n}, s68, {(n>>1)*144*1024 + (n&1)*1024}")
    a(f"v_mov_b32 v10, {f32(-GK1*0.044715)}")
    a(f"v_mov_b32 v11, {f32(-GK1*0.044715)}")
    a(f"v_mov_b32 v12, {f32(-GK1)}")
    a(f"v_mov_b32 v13, {f32(-GK1)}")
    attn_setup(a, 80)
    padat(a, "init")
    stamp(a, 2, VS)
    a("s_barrier")
    stamp(a, 3, VS)
    for l in reads(FR0, 0, 3): a(l)

    def f_qk():
        l = []
        for t in range(2):
            b = acc(t, 4)
            for hh in range(2):
                l += [f"v_mul_f32 v{b+8*hh+i}, s53, v{b+8*hh+i}" for i in range(8)]
                l += [f"v_cvt_pk_bf16_f32 v{b+8*hh+i}, v{b+8*hh+2*i}, v{b+8*hh+2*i+1}" for i in range(4)]
                l.append(f"buffer_store_dwordx4 {vr(b+8*hh)}, v3, {WSR}, s{54+hh} offen offset:{t*1024}{STS}")
        return l
    def f_v():
        l = []
        for j in range(2):
            for t in range(2):
                b = acc(t, 2*j)
                for hh in range(2):
                    l += [f"v_cvt_pk_bf16_f32 v{b+8*hh+i}, v{b+8*hh+2*i}, v{b+8*hh+2*i+1}" for i in range(4)]
                    l.append(f"buffer_store_dwordx4 {vr(b+8*hh)}, v9, {WSR}, s{44+j} offen offset:{t*1024 + hh*512}{STS}")
        return l
    def f_gelu1():
        l = []
        for t in range(2):
            for q in range(4):
                G, U, T = acc(t, 0) + 4*q, acc(t, 2) + 4*q, 64 + (q & 1) * 4
                l += [f"v_mul_f32 v{T+p}, v{G+p}, v{G+p}" for p in range(4)]
                l += [f"v_fma_f32 v{T+p}, v{T+p}, v10, v12" for p in range(4)]
                l += [f"v_mul_f32 v{T+p}, v{T+p}, v{G+p}" for p in range(4)]
                for p in range(4): l += [f"v_exp_f32 v{T+p}, v{T+p}", f"v_mul_f32 v{U+p}, v{U+p}, v{G+p}"]
                l += [f"v_add_f32 v{T+p}, 1.0, v{T+p}" for p in range(4)]
                l += [f"v_rcp_f32 v{T+p}, v{T+p}" for p in range(4)]
                l += [f"v_mul_f32 v{U+p}, v{U+p}, v{T+p}" for p in range(4)]
                o = HP + 16 + t*8 + q*2
                l += [f"v_cvt_pk_bf16_f32 v{o+p}, v{U+2*p}, v{U+2*p+1}" for p in range(2)]
        return l
    SPK = int(ENV("SPK", "4"))
    def pass2(fill, PUBS, gap):
        cost = lambda x: 8 if x.startswith(("v_exp", "v_rcp")) else 4
        X2 = ENV("X2", "")
        if "F" in X2: fill = [x for x in fill if False]
        if "S" in X2: fill = [x for x in fill if not x.startswith("buffer_store")]
        if "G" in X2: fill = fill[:52]
        FS = (FR0, FR1, 72)
        lg = Lgkm(a)
        lg.q = [(0, i) for i in range(6)] + [("junk", 0)] * 2
        def rds(m):
            fs = FS[m % 3]
            wo_ = wslot(16 + (m >> 1))[0] - LW2 + (m & 1) * 2048
            X = lambda t: f"ds_read_b128 {vr(fs+4*t)}, v{VXA + (m & 3)} offset:{t*4096}"
            W = lambda u, j: f"ds_read_b64_tr_b16 {vr(fs+8+4*u+2*j, 2)}, v{VW} offset:{wo_ + u*4096 + j*512}"
            l = [((m, i), x) for i, x in enumerate([X(0), W(0,0), W(0,1), X(1), W(1,0), W(1,1)])]
            j = 8 + (m >> 2)
            if m < 28:
                dx = (((j + 1) % NXS) - (j % NXS)) * XSLOT & 0xffffffff
                l.append((None, f"v_add_u32 v{VXA + (m & 3)}, {dx:#x}, v{VXA + (m & 3)}"))
            return l
        def put(e):
            if e[0] is None: a(e[1])
            else: lg.rd(e[0], e[1])
        nxt_store = 0
        put(rds(0)[-1])
        for e in rds(1): put(e)
        for n in range(32):
            kk, st = n & 1, 16 + (n >> 1)
            cur = FS[n % 3]
            rd = rds(n + 2) if n + 2 < 32 else []
            nst = 0
            for g, (u, t) in enumerate(((0, 0), (0, 1), (1, 0), (1, 1))):
                ct = (1, 3)[u]
                before = len(a.lines)
                lg.need(*[(n, i) for i in range(6)])
                bud = 24 - 4 * (len(a.lines) - before)
                a(f"{MF} {vr(acc(t, ct), 16)}, {vr(cur + 8 + 4*u)}, {vr(cur + 4*t)}, {vr(acc(t, ct), 16)}")
                if g == 0 and kk == 0 and st <= LASTB:
                    if st == PUBS:
                        assert not any(x.startswith("buffer_store") for x in fill)
                        a("s_waitcnt vmcnt(0)"); bud -= 4
                    if "B" not in X2: a("s_barrier"); bud -= 4
                    if st == LASTB and ENV("CPRIO", "0") == "1": a("s_setprio 3"); bud -= 4
                for _ in range(2):
                    if rd and len(lg.q) < 15: put(rd.pop(0)); bud -= 4
                while n >= 1 and fill and bud >= cost(fill[0]):
                    if fill[0].startswith("buffer_store"):
                        if 4*n + g < nxt_store: break
                        nxt_store = 4*n + g + gap
                    bud -= cost(fill[0]); a(fill.pop(0))
            assert not rd
        for x in fill: a(x)
        print("pass-2 filler left over:", len(fill), file=sys.stderr)
    a(f"s_cmp_eq_u32 s{sVC}, 1")
    a("s_cbranch_scc1 L_p1loopV")
    loop("L_p1loopA", (0, 2, 4), False, 2)
    stamp(a, 4, VS)
    pass2(f_qk() + f_gelu1(), PUBS, int(ENV('GAPA', '1')))
    a("s_branch L_p2done")
    loop("L_p1loopV", (0, 2, 4), True, 2)
    stamp(a, 4, VS)
    pass2(f_v() + f_qk(), PUBC, int(ENV('GAPC', '1')))
    a.label("L_p2done")
    stamp(a, 6, VS)
    n = 0
    for t in range(2):
        g, u = acc(t, 1), acc(t, 3)
        for hh in range(2):
            T = 16 + (n & 1) * 8; n += 1
            G, U = g + 8*hh, u + 8*hh
            for p in range(4): a(f"v_pk_mul_f32 {vr(T+2*p,2)}, {vr(G+2*p,2)}, {vr(G+2*p,2)}")
            for p in range(4): a(f"v_pk_fma_f32 {vr(T+2*p,2)}, {vr(T+2*p,2)}, v[10:11], v[12:13]")
            for p in range(4): a(f"v_pk_mul_f32 {vr(T+2*p,2)}, {vr(T+2*p,2)}, {vr(G+2*p,2)}")
            if n == 1: one_lane(a, "ds_add_u32 v14, v15")
            for p in range(8): a(f"v_exp_f32 v{T+p}, v{T+p}")
            for p in range(4): a(f"v_pk_mul_f32 {vr(U+2*p,2)}, {vr(U+2*p,2)}, {vr(G+2*p,2)}")
            for p in range(4): a(f"v_pk_add_f32 {vr(T+2*p,2)}, {vr(T+2*p,2)}, 1.0 op_sel_hi:[1,0]")
            for p in range(8): a(f"v_rcp_f32 v{T+p}, v{T+p}")
            for p in range(4): a(f"v_pk_mul_f32 {vr(U+2*p,2)}, {vr(U+2*p,2)}, {vr(T+2*p,2)}")
            o = HP + (t*2 + hh) * 4
            for p in range(4): a(f"v_cvt_pk_bf16_f32 v{o+p}, v{U+2*p}, v{U+2*p+1}")
    stamp(a, 7, VS)

PUBC = int(ENV("PUBC", "22"))
PUBS = int(ENV("PUBS", "22"))

def p1_loader(a):
    a.label("L_loader")
    if ENV("LPRIO", "1") == "1": a("s_setprio 3")
    a(f"s_sub_u32 s65, s{sWAVE}, 4")
    a("s_lshl_b32 s66, s65, 3")
    a("v_add_u32 v8, s66, v8")
    a("v_lshrrev_b32 v5, 4, v2")
    a("s_and_b32 s66, s65, 1")
    a("s_lshl_b32 s66, s66, 2")
    a("v_add_u32 v5, s66, v5")
    a("v_xor_b32 v5, v5, v4")
    a("v_lshlrev_b32 v5, 4, v5")
    a("v_lshl_add_u32 v12, v8, 10, v5")
    a(f"s_lshl_b32 s74, s{sMB}, 17")
    a("s_lshl_b32 s75, s65, 10")
    a(f"s_lshl_b32 s90, s{sNB}, 1")
    a(f"s_add_u32 s90, s90, s{sMB}")
    if ENV("ROT", "1") == "2":
        a(f"s_lshr_b32 s91, s{sNB}, 2")
        a("s_add_u32 s90, s90, s91")
    if ENV("ROT", "1") == "0": a("s_mov_b32 s90, 0")
    if ENV("ROT", "1") == "5": a(f"s_mov_b32 s90, s{sMB}")
    if ENV("ROT", "1") == "6": a(f"s_lshl_b32 s90, s{sNB}, 1")
    if ENV("ROT", "1") == "7":
        a(f"s_lshl_b32 s90, s{sNB}, 2")
        a(f"s_add_u32 s90, s90, s{sMB}")
    if ENV("ROT", "1") in ("3", "4"):
        a(f"s_add_u32 s90, s{sNB}, s{sMB}")
        a(f"s_lshl_b32 s90, s90, {1 if ENV('ROT') == '3' else 2}")
    a("s_lshl_b32 s91, s90, 1")
    issued = []
    DNT = " nt" if ENV("DNT") else ""
    PNT = " nt" if ENV("PNT") else ""
    def dma(voff, srdn, soff, m0val, pre):
        a(f"s_add_u32 m0, s75, {m0val}")
        a(pre)
        if "D" in ENV("X2", "") and voff == 10: a("s_nop 0")
        else: a(f"buffer_load_dwordx4 v{voff}, {SR(srdn)}, s{soff} offen{DNT} lds")
    def itemsW(s):
        base, size = wslot(s)
        free = max([-1] + [p + (p >= 16) for p in range(s) if wslot(p)[0] < base + size and base < wslot(p)[0] + wslot(p)[1]])
        def f(u):
            def g():
                if u == 0:
                    a(f"s_add_u32 s92, s91, {s if s < 16 else s + 2*KROT}")
                    a("s_and_b32 s92, s92, 15")
                    if s < 16:
                        a(f"s_mul_i32 s93, s92, {32*3072}")
                        a("s_mul_i32 s92, s92, s73")
                    else: a(f"s_mul_i32 s92, s92, {32*3584}")
                if s < 16:
                    if u == 0: dma(13, S_WA, 76, base, "s_add_u32 s76, s71, s92")
                    if u == 1: dma(13, S_WB, 76, base + 4096, "s_add_u32 s76, s69, s92")
                    if u == 2: dma(11, S_WC, 76, base + 8192, "s_add_u32 s76, s70, s93")
                else:
                    dma(10, (S_G, S_U)[u], 76, base + 4096*u, "s_add_u32 s76, s70, s92")
                issued.append(("W", s))
            return g
        return [(free, f(u)) for u in range(3 if s < 16 else 2)]
    def itemsX(j):
        base = LX + (j % NXS) * XSLOT
        def f(m):
            def g():
                if m == 0:
                    a(f"s_add_u32 s99, s90, {j if j < 8 else j + KROT}")
                    a("s_and_b32 s99, s99, 7")
                    a("s_lshl_b32 s99, s99, 7")
                    a("s_add_u32 s99, s99, s74")
                dma(12, S_X, 76, base + m*4096, f"s_add_u32 s76, s99, {m*32768}")
                issued.append(("X", j))
            return g
        if 8 <= j < 8 + NXS: return []
        return [(2*(j-NXS) + 1 + (j - NXS >= 8), f(m)) for m in range(4)]
    queue = []
    for j in range(16): queue += itemsX(j) + itemsW(2*j) + itemsW(2*j+1)
    def issue(nmax, bar):
        n = 0
        while queue and n < nmax and queue[0][0] <= bar:
            queue.pop(0)[1](); n += 1
    def wait_stage(s):
        assert sum(e == ("W", s) for e in issued) == (3 if s < 16 else 2) and sum(e == ("X", s // 2) for e in issued) == (0 if 8 <= s // 2 < 8 + NXS else 4), s
        last = max(k for k, e in enumerate(issued) if e == ("W", s) or e == ("X", s // 2))
        n = len(issued) - 1 - last
        assert n <= 63
        a(f"s_waitcnt vmcnt({n})")
    def wait_tag(tag):
        n = len(issued) - 1 - max(k for k, e in enumerate(issued) if e == tag)
        assert n <= 63
        a(f"s_waitcnt vmcnt({n})")
    stamp(a, 22, VS)
    issue(4, -1)
    a("s_lshl_b32 s66, s65, 8")
    a("s_or_b32 s66, s66, s2")
    a(f"s_cselect_b32 s83, {OOB:#x}, 0")
    a(f"s_add_u32 s84, s83, {WS_TAG}")
    a("v_mov_b32 v5, 0")
    a(f"buffer_load_dword v14, v5, {WSR}, s84 offen{ST}")
    issued.append(("T", 0))
    srd(a, S_G, 12, 13, 512 * 3584)
    srd(a, S_U, 14, 15, 512 * 3584)
    srd(a, S_WC, 6, 7, 512 * 3072)
    a(f"s_cmp_eq_u32 s{sVC}, 1")
    a(f"s_cselect_b32 s{S_WA}, s6, s12")
    a(f"s_cselect_b32 s{S_WA+1}, s7, s13")
    a(f"s_cselect_b32 s{S_WA+2}, s{S_WC+2}, s{S_G+2}")
    a(f"s_mov_b32 s{S_WA+3}, 0x00020000")
    a(f"s_cselect_b32 s{S_WB}, s6, s14")
    a(f"s_cselect_b32 s{S_WB+1}, s7, s15")
    a(f"s_mov_b32 s{S_WB+2}, s{S_WA+2}")
    a(f"s_mov_b32 s{S_WB+3}, 0x00020000")
    a("s_movk_i32 s66, 3072")
    a("s_cselect_b32 s66, s66, 3584")
    a("v_mul_u32_u24 v6, 3584, v8")
    a("v_add_u32 v10, v6, v9")
    a("v_mul_u32_u24 v6, 3072, v8")
    a("v_add_u32 v11, v6, v9")
    a("v_mul_u32_u24 v6, s66, v8")
    a("v_add_u32 v13, v6, v9")
    a("s_lshl_b32 s73, s66, 5")
    a("s_lshl_b32 s67, s81, 7")
    a(f"s_lshr_b32 s68, s{sNB}, 2")
    a("s_lshl_b32 s68, s68, 8")
    a("s_add_u32 s68, s68, 2048")
    a("s_add_u32 s69, s68, 128")
    a(f"s_cmp_eq_u32 s{sVC}, 1")
    a("s_cselect_b32 s71, s68, s67")
    a("s_cselect_b32 s69, s69, s67")
    a("s_mov_b32 s94, s71")
    a("s_mov_b32 s95, s69")
    a(f"s_lshl_b32 s70, s{sNB}, 7")
    PFK = ENV("PF", "0") == "4"
    if PFK:
        issue(3, -1)
        a("s_lshr_b32 s66, s2, 1")
        a("s_and_b32 s67, s2, 1")
        a("s_mul_i32 s68, s66, 3072")
        a("s_mul_i32 s76, s67, 1536")
        a("s_add_u32 s68, s68, s76")
        a("s_mul_i32 s66, s66, 3584")
        a("s_mul_i32 s67, s67, 768")
        a("s_add_u32 s66, s66, s67")
        a("s_add_u32 s66, s66, 2048")
        a("s_lshl_b32 s67, s2, 13")
        a("s_cmp_eq_u32 s65, 1")
        a("s_cselect_b32 s66, s68, s66")
        a("s_cselect_b32 s76, 11, 5")
        a(f"s_mov_b32 s77, {128*3584}")
        a(f"s_cselect_b32 s77, {128*3072}, s77")
        a("s_cselect_b32 s94, s6, s12")
        a("s_cselect_b32 s95, s7, s13")
        a("s_cmp_eq_u32 s65, 3")
        a("s_cselect_b32 s94, s14, s94")
        a("s_cselect_b32 s95, s15, s95")
        a("v_min_u32 v28, s76, v2")
        a("v_lshl_add_u32 v28, v28, 7, s66")
        a("v_bfe_u32 v29, v2, 1, 3")
        a("v_lshl_add_u32 v29, v29, 10, s67")
        a("v_and_b32 v27, 1, v2")
        a("v_lshl_add_u32 v29, v27, 7, v29")
        a("s_cmp_eq_u32 s65, 0")
        a("s_cselect_b32 s94, s4, s94")
        a("s_cselect_b32 s95, s5, s95")
        a("s_cselect_b32 s77, 256, s77")
        a("s_cselect_b64 vcc, -1, 0")
        a("v_cndmask_b32 v28, v28, v29, vcc")
        for n in [int(x) for x in ENV("PFPOS", "0,3,7,3").split(",")]:
            issue(n, -1)
            a("s_mov_b64 exec, 0xffff")
            a("global_load_dword v30, v28, s[94:95]")
            a("s_mov_b64 exec, -1")
            a("v_add_u32 v28, s77, v28")
            issued.append(("P", 0))
    else:
        issue(int(ENV("FIRST", "10")), -1)
    def prefetch(kinds):
        a("s_mov_b32 s94, s4"); a("s_mov_b32 s95, s5")
        for r in (66, 67, 68, 76): a(f"s_mov_b32 s{r}, 0")
        a("s_mov_b32 s77, 0")
        for lw, k in enumerate(kinds):
            if k is None: continue
            p, per, first, n, T, J = k
            a(f"s_cmp_eq_u32 s65, {lw}")
            a(f"s_cselect_b32 s94, s{p}, s94")
            a(f"s_cselect_b32 s95, s{p+1}, s95")
            a(f"s_cselect_b32 s66, {per}, s66")
            a(f"s_cselect_b32 s67, {first}, s67")
            a(f"s_cselect_b32 s68, {n-1}, s68")
            a(f"s_cselect_b32 s76, {T}, s76")
            a(f"s_cselect_b32 s77, {J}, s77")
        a("s_mul_i32 s66, s66, s2")
        a("s_add_u32 s66, s66, s67")
        a("v_min_u32 v28, s68, v2")
        a("v_mov_b32 v29, s77")
        a("v_cmp_le_u32 vcc, s76, v28")
        a("v_lshl_add_u32 v28, v28, 7, s66")
        a("v_cndmask_b32 v29, 0, v29, vcc")
        a("v_add_u32 v28, v28, v29")
        a("global_load_dword v30, v28, s[94:95]")
        issued.append(("P", 0))
    PF = ENV("PF", "0") in ("1", "3")
    PFX = ENV("PF", "0") in ("2", "3")
    def prefetch_x1():
        a("s_lshr_b32 s66, s2, 3")
        a("s_and_b32 s67, s2, 1")
        a("s_lshl_b32 s67, s67, 20")
        a("s_lshl_b32 s68, s66, 15")
        a("s_add_u32 s67, s67, s68")
        a("s_lshl_b32 s68, s65, 13")
        a("s_add_u32 s67, s67, s68")
        a("v_lshlrev_b32 v28, 7, v2")
        a("s_and_b32 s66, s66, 7")
        a("s_lshl_b32 s66, s66, 6")
        a("v_add_u32 v27, s66, v2")
        a("s_lshr_b32 s68, s73, 5")
        a("v_mul_u32_u24 v29, s68, v27")
        a("v_mul_u32_u24 v26, 3072, v27")
        a("s_cmp_eq_u32 s65, 0")
        a(f"s_cselect_b32 s66, s94, {OOB:#x}")
        a(f"buffer_load_dword v30, v29, {SR(S_WA)}, s66 offen{PNT}")
        a("s_cmp_eq_u32 s65, 1")
        a(f"s_cselect_b32 s66, s95, {OOB:#x}")
        a(f"buffer_load_dword v30, v29, {SR(S_WB)}, s66 offen{PNT}")
        a(f"s_lshl_b32 s66, s{sNB}, 7")
        a("s_cmp_eq_u32 s65, 2")
        a(f"s_cselect_b32 s66, s66, {OOB:#x}")
        a(f"buffer_load_dword v30, v26, {SR(S_WC)}, s66 offen{PNT}")
        a(f"buffer_load_dword v30, v28, {SR(S_X)}, s67 offen{PNT}")
        issued.extend([("P", 0)] * 4)
    def prefetch_x2():
        a("v_mul_u32_u24 v29, 3584, v27")
        a(f"s_lshl_b32 s67, s{sNB}, 7")
        a("s_cmp_eq_u32 s65, 1")
        a(f"s_cselect_b32 s66, s67, {OOB:#x}")
        a(f"buffer_load_dword v30, v29, {SR(S_G)}, s66 offen{PNT}")
        a("s_cmp_eq_u32 s65, 2")
        a(f"s_cselect_b32 s66, s67, {OOB:#x}")
        a(f"buffer_load_dword v30, v29, {SR(S_U)}, s66 offen{PNT}")
        issued.extend([("P", 0)] * 2)
    if PFX and not PF: prefetch_x1()
    if PF: prefetch([(4, 8192, 0, 64, 0, 0), (6, 6144, 0, 48, 0, 0), (12, 7168, 2048, 24, 12, 2048), (14, 7168, 2048, 24, 12, 2048)])
    srd(a, S_RO, 8, 9, 512 * 1024)
    a("v_and_b32 v15, 7, v8")
    a("v_lshl_add_u32 v15, v15, 10, v9")
    a("s_lshl_b32 s78, s65, 11")
    a(f"s_add_u32 s78, s78, {LRD}")
    a("s_lshr_b32 s66, s2, 3")
    a("s_and_b32 s67, s2, 7")
    a("s_lshl_b32 s66, s66, 14")
    a("s_lshl_b32 s67, s67, 7")
    a("s_add_u32 s66, s66, s67")
    a("s_and_b32 s67, s65, 1")
    a("s_lshl_b32 s68, s67, 13")
    a("s_lshl_b32 s67, s67, 10")
    a(f"s_add_u32 m0, s67, {LRO}")
    a("s_add_u32 s66, s66, s68")
    a(f"buffer_load_dwordx4 v15, {SR(S_RO)}, s66 offen{PNT} lds")
    issued.append(("P", 1))
    issue(int(ENV("BURST", "0")), -1)
    a("v_bfe_u32 v18, v2, 2, 2")
    a("v_and_b32 v31, 3, v2")
    a("v_bfe_u32 v19, v2, 4, 1")
    a("v_lshlrev_b32 v31, 3, v31")
    a("v_lshl_or_b32 v31, v19, 5, v31")
    a("v_lshrrev_b32 v19, 1, v18")
    a("v_lshl_or_b32 v31, v19, 6, v31")
    a("v_lshl_or_b32 v31, v18, 7, v31")
    a("v_lshrrev_b32 v19, 5, v2")
    a("v_lshl_or_b32 v31, v19, 9, v31")
    a("v_add_u32 v18, s78, v31")
    a("v_xor_b32 v19, 64, v18")
    a("s_cmp_eq_u32 s65, 0")
    a(f"s_cselect_b32 s82, s82, {OOB:#x}")
    a(f"s_cselect_b32 s85, 0, {OOB:#x}")
    a("v_mov_b32 v6, 1")
    a("v_lshlrev_b32 v4, 7, v2")
    for i in range(4): a(f"s_add_u32 s{86+i}, s85, {WS_F1 + i*8192}")
    stamp(a, 2, VS)
    wait_stage(0)
    stamp(a, 3, VS)
    a("s_barrier")
    a("v_add_u32 v14, 1, v14")
    a("v_max_u32 v14, 1, v14")
    one_lane(a, f"buffer_store_dword v14, v5, {WSR}, s84 offen{ST}")
    issued.append(("T", 1))
    def ld1():
        for i in range(4): a(f"buffer_load_dwordx2 {vr(20+2*i,2)}, v4, {WSR}, s{86+i} offen{ST}")
    PER1, PER2, PSW = [int(x) for x in ENV("PER", "6,4,12").split(",")]
    issue(int(ENV("PER0", "6")), -1)
    def cmp1():
        for i in range(4):
            a(f"v_xor_b32 v{20+2*i}, v{20+2*i}, v16")
            a(f"v_xor_b32 v{21+2*i}, v{21+2*i}, v17")
        a("v_or3_b32 v20, v20, v21, v22")
        a("v_or3_b32 v23, v23, v24, v25")
        a("v_or3_b32 v20, v20, v26, v27")
        a("v_or_b32 v20, v20, v23")
        a("v_cmp_ne_u32 vcc, 0, v20")
    def ltable(t, regs):
        for i in range(8): a(f"v_mov_b32 v{HP+8+i}, -1")
        r = regs[2]
        a(f"s_lshl_b32 s{r}, s{sQB}, 3")
        a(f"s_lshl_b32 s{t}, s65, 1")
        a(f"s_add_u32 s{r}, s{r}, s{t}")
        a(f"s_mul_i32 s{r}, s{r}, {144*1024}")
        a(f"s_lshl_b32 s{t}, s{sHEAD}, 10")
        a(f"s_add_u32 s{r}, s{r}, s{t}")
        a(f"s_add_u32 s{r}, s{r}, {WS_AF}")
        a(f"s_add_u32 s{regs[3]}, s{r}, {144*1024}")
    a(f"s_lshr_b32 s66, s{sHEAD}, 2")
    a("s_lshl_b32 s67, s66, 11")
    a(f"s_lshl_b32 s68, s{sQB}, 8")
    a("s_add_u32 s68, s68, s67")
    a(f"s_add_u32 s67, s67, {8*2048}")
    a(f"s_lshr_b32 s66, s{sHEAD}, 3")
    a("s_lshl_b32 s66, s66, 13")
    a(f"s_add_u32 s66, s66, {2*2048}")
    a(f"v_add_u32 v{WO+3}, s67, v4")
    a("v_add_u32 v71, s66, v4")
    a("v_and_b32 v72, 1, v2")
    a("v_lshl_add_u32 v72, v72, 7, s68")
    a("v_cmp_gt_u32 vcc, 32, v2")
    a("v_cndmask_b32 v71, v72, v71, vcc")
    a("v_cmp_gt_u32 vcc, 16, v2")
    a(f"v_cndmask_b32 v{WO+3}, v71, v{WO+3}, vcc")
    a(f"v_mov_b32 v7, {LCNT}")
    SIDE1, SIDE2 = [int(x) for x in ENV("SIDE", "23,26").split(",")]
    LATE_SIDE = ENV("LATE_SIDE", "1") == "1"
    def side_out():
        wait_tag(("S", 0))
        for nl in range(2):
            for j in range(2): a(f"ds_read_b64_tr_b16 {vr(HP+4*nl+2*j,2)}, v{18+nl} offset:{j*1024}")
        a("v_mov_b32 v64, 0")
        a("v_mov_b32 v65, 0")
        for i in range(4):
            a(f"v_dot2_f32_bf16 v64, v{48+i}, v{56+i}, v64")
            a(f"v_dot2_f32_bf16 v65, v{52+i}, v{56+i}, v65")
        a("v_cmp_eq_u32 vcc, 0, v2")
        a("s_waitcnt lgkmcnt(0)")
        for mod in ("quad_perm:[1,0,3,2]", "quad_perm:[2,3,0,1]", "row_half_mirror", "row_mirror"):
            for r in (64, 65): a(f"v_add_f32_dpp v{r}, v{r}, v{r} {mod} row_mask:0xf bank_mask:0xf")
        for r, sb in ((64, 66), (65, 52)):
            for q in range(4): a(f"v_readlane_b32 s{sb+q}, v{r}, {16*q}")
        a("v_mov_b32 v66, s66")
        a("v_mov_b32 v67, s52")
        for q in range(1, 4):
            a(f"v_add_f32 v66, s{66+q}, v66")
            a(f"v_add_f32 v67, s{52+q}, v67")
        a("v_cndmask_b32 v66, v67, v66, vcc")
        a(f"v_mul_f32 v66, {f32(-LOG2E)}, v66")
        a("v_exp_f32 v66, v66")
        a("v_lshlrev_b32 v68, 2, v2")
        a("v_add_f32 v66, 1.0, v66")
        a("v_rcp_f32 v66, v66")
        a("s_lshl_b32 s71, s71, 2")
        a(f"s_add_u32 s71, s71, {WS_G}")
        one_lane(a, f"buffer_store_dword v66, v68, {WSR}, s71 offen{ST}", 3)
        issued.append(("S", 1))
    for s in range(LASTB + 1):
        E0 = int(ENV("EARLY", "-100"))
        if s in (4, 10, 16, 24) and E0 < 0: stamp(a, {4: 4, 10: 5, 16: 6, 24: 7}[s], VS)
        if 0 <= s - E0 < 6: stamp(a, [4, 7, 24, 27, 21, 30][s - E0], VS)
        if s == LASTB:
            assert not queue
            wait_stage(31)
        else: wait_stage(s + 1)
        if 0 <= s - E0 < 6: stamp(a, [5, 8, 25, 28, 22, 31][s - E0], VS)
        if s < 16 or "B" not in ENV("X2", ""): a("s_barrier")
        if 0 <= s - E0 < 5: stamp(a, [6, 9, 26, 29, 23][s - E0], VS)
        issue(PER1 if s < PSW else PER2, s)
        if s == 3:
            wait_tag(("T", 1))
            if ENV("FIX0"):
                a("v_mov_b32 v80, s96")
                one_lane(a, f"buffer_store_dword v80, v5, {SR(S_DBG)}, s83 offen offset:8{ST}")
                issued.append(("T", 2))
            one_lane(a, f"buffer_store_dword v14, v5, {SR(S_DBG)}, s83 offen{ST}")
            issued.append(("T", 2))
        if s == int(ENV("PFB", "5")) and (PF or PFK):
            prefetch([(16, 7168, 0, 56, 0, 0), None, (12, 7168, 0, 32, 16, 1536), (14, 7168, 0, 32, 16, 1536)])
        if s == int(ENV("PFB", "5")) and PFX: prefetch_x2()
        if s == int(ENV("PF2", "-1")):
            a("s_lshr_b32 s66, s2, 3")
            a("s_and_b32 s66, s66, 7")
            a("s_lshl_b32 s66, s66, 6")
            a("s_lshr_b32 s67, s65, 1")
            a("s_lshl_b32 s67, s67, 5")
            a("s_add_u32 s66, s66, s67")
            a("v_and_b32 v27, 31, v2")
            a("v_add_u32 v27, s66, v27")
            a("v_mul_u32_u24 v29, 3584, v27")
            a("v_add_u32 v29, s70, v29")
            a("s_bitcmp1_b32 s65, 0")
            a("s_cselect_b32 s94, s14, s12")
            a("s_cselect_b32 s95, s15, s13")
            a("s_mov_b64 exec, 0xffffffff")
            a("global_load_dword v30, v29, s[94:95]")
            a("s_mov_b64 exec, -1")
            a(f"s_mul_i32 s66, s{sHEAD}, 3")
            a("s_add_u32 s66, s66, s65")
            a(f"s_add_u32 s67, s{sHEAD}, 96")
            a("s_cmp_eq_u32 s65, 3")
            a("s_cselect_b32 s66, s67, s66")
            a("s_min_u32 s66, s66, 111")
            a("s_lshl_b32 s66, s66, 14")
            a(f"s_lshl_b32 s67, s{sQB}, 7")
            a("s_add_u32 s66, s66, s67")
            a("v_lshl_add_u32 v29, v2, 10, s66")
            a("s_mov_b64 exec, 0xffff")
            a("global_load_dword v30, v29, s[16:17]")
            a("s_mov_b64 exec, -1")
            issued.extend([("P", 0)] * 2)
        if s == 9:
            a("s_cmp_lg_u32 s65, 0")
            a("s_cbranch_scc1 L_nowo2")
            for nl in range(2):
                for j in range(2): a(f"ds_read_b64_tr_b16 {vr(36+4*nl+2*j,2)}, v{18+nl} offset:{LRO - LRD + j*1024}")
            a("s_lshr_b32 s66, s2, 3")
            a("s_and_b32 s67, s2, 7")
            a(f"s_mul_i32 s67, s67, {2*144*1024}")
            a("s_lshl_b32 s66, s66, 10")
            a("s_add_u32 s66, s66, s67")
            a(f"s_add_u32 s66, s66, {WS_WF}")
            a(f"s_add_u32 s67, s66, {144*1024}")
            a(f"s_lshl_b32 s68, s{sMB}, 11")
            a(f"s_lshl_b32 s76, s{sNB}, 7")
            a("s_add_u32 s68, s68, s76")
            a(f"s_add_u32 s68, s68, {WS_F2}")
            a(f"s_lshl_b32 s76, s{sQB}, 12")
            a(f"s_lshl_b32 s77, s{sHEAD}, 7")
            a("s_add_u32 s76, s76, s77")
            a(f"s_add_u32 s76, s76, {WS_F3}")
            zero(a, 44, 4)
            a("s_waitcnt lgkmcnt(0)")
            a(f"buffer_store_dwordx4 v[36:39], v3, {WSR}, s66 offen{STS}")
            a(f"buffer_store_dwordx4 v[40:43], v3, {WSR}, s67 offen{STS}")
            a("s_mov_b64 exec, 1")
            a(f"buffer_store_dwordx4 v[44:47], v3, {WSR}, s68 offen{STS}")
            a(f"buffer_store_dword v44, v3, {WSR}, s76 offen{ST}")
            a("s_mov_b64 exec, -1")
            a.label("L_nowo2")
        if s == SIDE1:
            srd(a, S_RD, 16, 17, 1792 * 1024)
            srd(a, S_GW, 18, 19, 1024)
            a(f"s_mul_i32 s66, s{sHEAD}, 3")
            a("s_add_u32 s66, s66, s65")
            a(f"s_add_u32 s67, s{sHEAD}, 96")
            a("s_cmp_eq_u32 s65, 3")
            a("s_cselect_b32 s66, s67, s66")
            a("s_lshl_b32 s69, s66, 14")
            a(f"s_lshl_b32 s68, s{sQB}, 7")
            a("s_mov_b32 m0, s78")
            a("s_add_u32 s69, s69, s68")
            a(f"buffer_load_dwordx4 v15, {SR(S_RD)}, s69 offen{PNT} lds")
            a("s_add_u32 m0, s78, 1024")
            a("s_add_u32 s69, s69, 8192")
            a(f"buffer_load_dwordx4 v15, {SR(S_RD)}, s69 offen{PNT} lds")
            a(f"s_mul_i32 s79, s{sQB}, {2*144*1024}")
            a("s_lshl_b32 s67, s66, 10")
            a("s_add_u32 s79, s79, s67")
            a(f"s_add_u32 s79, s79, {WS_WF + 32*1024}")
            a("s_cmp_lt_u32 s66, 112")
            a(f"s_cselect_b32 s79, s79, {OOB:#x}")
            a(f"s_add_u32 s80, s79, {144*1024}")
            a(f"s_lshl_b32 s71, s{sMB}, 7")
            a(f"s_lshl_b32 s67, s{sNB}, 3")
            a("s_add_u32 s71, s71, s67")
            a("s_lshl_b32 s67, s65, 1")
            a("s_add_u32 s71, s71, s67")
            a("s_lshl_b32 s67, s71, 10")
            a(f"buffer_load_dwordx4 v[48:51], v3, {SR(S_X)}, s67 offen")
            a(f"buffer_load_dwordx4 v[52:55], v3, {SR(S_X)}, s67 offen offset:1024")
            a(f"buffer_load_dwordx4 v[56:59], v3, {SR(S_GW)}, 0 offen")
            issued.extend([("S", 0)] * 5)
        if False:
            pass
            if LEARLY:
                ltable(68, (79, 80, 66, 67))
                for n, r in enumerate((79, 80, 66, 67)): a(f"buffer_store_dwordx4 {vr(HP+4*n)}, v3, {WSR}, s{r} offen{STS}")
                issued.extend([("S", 1)] * 4)
        if s == 14:
            a(f"buffer_load_dword v16, v5, {SR(S_DBG)}, s85 offen{ST}")
            issued.append(("T", 3))
        if s == min(PUBS, PUBC) - 1:
            a("s_cmp_lg_u32 s65, 0")
            a("s_cbranch_scc1 L_tagdone")
            wait_tag(("T", 3))
            a("v_cmp_eq_u32 vcc, 0, v16")
            a("s_cbranch_vccz L_pt_ok")
            poll(a, "L_pt", lambda: a(f"buffer_load_dword v16, v5, {SR(S_DBG)}, 0 offen{ST}"), lambda: a("v_cmp_eq_u32 vcc, 0, v16"))
            a("v_not_b32 v17, v16")
            a.label("L_tagdone")
        for typ, at in ((0, PUBS), (1, PUBC)):
            if s == at:
                a(f"s_lshl_b32 s66, s65, 1")
                a(f"s_add_u32 s66, s66, s{sVC}")
                a(f"s_cmp_lg_u32 s66, {typ}")
                a(f"s_cbranch_scc1 L_f1done{typ}")
                one_lane(a, f"buffer_store_dwordx2 v[16:17], v5, {WSR}, s82 offen{ST}")
                a.label(f"L_f1done{typ}")
        if s == LASTB - 1:
            lda(a, 86); issued.append(("F", 0))
    a("s_cmp_ge_u32 s65, 2")
    a("s_cbranch_scc1 L_nocs")
    const_setup(a, 9, 32, 8)
    const_write(a, 9, 32)
    a.label("L_nocs")
    if E0 < 0: stamp(a, 8, VS)
    a(f"s_lshl_b32 s56, s{sHEAD}, 16")
    a(f"s_lshl_b32 s67, s{sQB}, 13")
    a("s_lshl_b32 s57, s65, 11")
    a("s_add_u32 s59, s67, s57")
    a(f"s_mul_i32 s58, s65, {2*VST}")
    a(f"v_mov_b32 v{WO}, v16")
    a(f"v_mov_b32 v{WO+1}, v17")
    a("s_cmp_lg_u32 s65, 0")
    a("s_cbranch_scc1 L_wl")
    a("s_waitcnt vmcnt(0)")
    cmpa(a)
    a("s_cbranch_vccz L_ps1_ok")
    poll(a, "L_ps1", lambda: lda(a, 86), lambda: cmpa(a))
    a("ds_write_b32 v7, v6")
    a("s_branch L_wl_ok")
    a.label("L_wl")
    a(f"s_mov_b32 s98, {SPIN*8}")
    a.label("L_wl2")
    a("ds_read_b32 v8, v7")
    a("s_waitcnt lgkmcnt(0)")
    a("v_cmp_ne_u32 vcc, 1, v8")
    a("s_cbranch_vccz L_wl_ok")
    a("s_sleep 1")
    a("s_sub_u32 s98, s98, 1")
    a("s_cmp_lg_u32 s98, 0")
    a("s_cbranch_scc1 L_wl2")
    a.label("L_wl_ok")
    if E0 < 0: stamp(a, 9, VS)
    a("s_add_u32 s67, s59, s56")
    a(f"s_add_u32 m0, s57, {LQI}")
    a(f"s_add_u32 s67, s67, {WS_QK}")
    for i in range(2): a(f"buffer_load_dwordx4 v3, {WSR}, s67 offen offset:{i*1024}{ST} lds")
    for p0 in KVA: kv8(a, p0)
    issued.extend([("K", 0)] * (2 + 4*len(KVA)))
    stamp(a, 25, VS)
    side_out()
    a(f"s_mov_b32 s{DT}, s79")
    a(f"s_mov_b32 s{DT+1}, s80")
    ltable(68, (DT, DT+1, DT+2, DT+3))
    stamp(a, 26, VS)
    attn_setup(a, 80)
    const_setup(a, GFR+45, GFR+46, 80)
    a("s_branch L_attn")

KVA = (0, 8, 16, 24)[:int(ENV("KVA", "2"))]
def lda(a, sb): a(f"buffer_load_dwordx2 {vr(WO+12,2)}, v{WO+3}, {WSR}, s{sb} offen{ST}")
def cmpa(a):
    a(f"v_xor_b32 v{WO+12}, v{WO+12}, v{WO}")
    a(f"v_xor_b32 v{WO+13}, v{WO+13}, v{WO+1}")
    a(f"v_or_b32 v{WO+12}, v{WO+12}, v{WO+13}")
    a(f"v_cmp_ne_u32 vcc, 0, v{WO+12}")

def kv8(a, p0):
    a(f"s_add_u32 s94, s59, {p0*1024}")
    a("s_and_b32 s94, s94, 0xffff")
    a("s_add_u32 s94, s94, s56")
    a(f"s_add_u32 m0, s57, {LK + p0*1024}")
    a(f"s_add_u32 s67, s94, {WS_QK + 32*65536}")
    for i in range(2): a(f"buffer_load_dwordx4 v3, {WSR}, s67 offen offset:{i*1024}{ST} lds")
    a(f"s_add_u32 s67, s94, {WS_V}")
    for i in range(2):
        a(f"s_add_u32 m0, s58, {LV + (p0+i)*VST - i*1024}")
        a(f"buffer_load_dwordx4 v3, {WSR}, s67 offen offset:{i*1024}{ST} lds")

LEARLY = False
def const_setup(a, va, vd, t):
    a(f"v_and_b32 v{t}, 255, v0")
    a(f"v_lshrrev_b32 v{va}, 2, v{t}")
    a(f"v_mul_u32_u24 v{va}, {VST}, v{va}")
    a(f"v_and_b32 v{t}, 3, v{t}")
    a(f"v_mul_u32_u24 v{t}, v{t}, v{t}")
    a(f"v_min_u32 v{t}, 4, v{t}")
    a(f"v_lshl_add_u32 v{va}, v{t}, 4, v{va}")
    a(f"v_add_u32 v{va}, {LV + 1024}, v{va}")
    a(f"v_mov_b32 v{vd}, 0x3f803f80")
    if ONE_ROW:
        a(f"v_cmp_eq_u32 vcc, 0, v{t}")
        a(f"v_cndmask_b32 v{vd}, 0, v{vd}, vcc")
    a(f"v_mov_b32 v{vd+1}, v{vd}")
def const_write(a, va, vd):
    a(f"ds_write_b64 v{va}, {vr(vd,2)}")
    a(f"ds_write_b64 v{va}, {vr(vd,2)} offset:8")

VQ = 8
def attn_setup(a, t):
    a(f"s_and_b32 s65, s{sWAVE}, 3")
    a(f"s_lshr_b32 s66, s{sWAVE}, 2")
    a("s_lshl_b32 s67, s66, 10")
    a(f"v_add_u32 v{VK}, s67, v3")
    a(f"v_add_u32 v{t+0}, {VROT}, v2")
    a(f"v_and_b32 v{t+0}, 15, v{t+0}")
    a(f"v_lshrrev_b32 v{t+1}, 5, v2")
    a(f"v_lshl_or_b32 v{t+0}, v{t+1}, 4, v{t+0}")
    a(f"v_lshlrev_b32 v{t+0}, 4, v{t+0}")
    a(f"v_add_u32 v{t+1}, 512, v{t+0}")
    a(f"v_and_b32 v{t+2}, 31, v2")
    a(f"v_subrev_u32 v{t+3}, 20, v{t+2}")
    a(f"v_cmp_gt_u32 vcc, 8, v{t+3}")
    a(f"v_mov_b32 v{t+3}, 1040")
    a(f"v_mov_b32 v{t+4}, 1088")
    a(f"v_cndmask_b32 v{t+3}, v{t+3}, v{t+4}, vcc")
    a(f"v_cmp_eq_u32 vcc, 16, v{t+2}")
    a(f"v_mov_b32 v{t+4}, 1024")
    a(f"v_cndmask_b32 v{t+3}, v{t+3}, v{t+4}, vcc")
    a(f"v_cmp_gt_u32 vcc, 16, v{t+2}")
    a(f"v_cndmask_b32 v{t+0}, v{t+3}, v{t+0}, vcc")
    a(f"v_cndmask_b32 v{t+1}, v{t+3}, v{t+1}, vcc")
    a(f"s_mul_i32 s67, s66, {VST}")
    a(f"s_add_u32 s67, s67, {LV}")
    a(f"v_add_u32 v{VV0}, s67, v{t+0}")
    a(f"v_add_u32 v{VV1}, s67, v{t+1}")
    a("s_lshl_b32 s67, s65, 11")
    a(f"s_add_u32 s67, s67, {LQI}")
    a(f"v_add_u32 v{VQ}, s67, v3")
    a(f"s_lshl_b32 s73, s{sMB}, 11")
    a(f"s_lshl_b32 s74, s{sNB}, 7")
    a("s_add_u32 s73, s73, s74")
    a(f"s_add_u32 s73, s73, {WS_F2}")
    a(f"s_lshl_b32 s72, s{sQB}, 12")
    a(f"s_lshl_b32 s75, s{sHEAD}, 7")
    a("s_add_u32 s72, s72, s75")
    a(f"s_add_u32 s72, s72, {WS_F3}")
    a(f"s_lshr_b32 s74, s{sHEAD}, 1")
    a("s_lshl_b32 s74, s74, 11")
    a(f"s_add_u32 s74, s74, {WS_F2}")
    a(f"s_lshl_b32 s95, s{sQB}, 12")
    a(f"s_lshr_b32 s89, s{sHEAD}, 2")
    a("s_lshl_b32 s89, s89, 12")
    a("s_sub_u32 s89, s89, 4096")
    a(f"s_mov_b32 s88, {WS_F3}")
    a(f"s_and_b32 s68, s{sWAVE}, 1")
    a(f"s_lshr_b32 s69, s{sWAVE}, 1")
    a(f"s_lshl_b32 s84, s{sHEAD}, 1")
    a("s_add_u32 s84, s84, s68")
    a(f"s_mul_i32 s85, s84, {144*1024}")
    a(f"s_add_u32 s85, s85, {WS_AF}")
    a(f"s_mul_i32 s86, s{sQB}, {2*144*1024}")
    a(f"s_add_u32 s86, s86, {WS_WF}")
    a(f"s_mul_i32 s75, s69, {28*1024}")
    a(f"s_add_u32 s75, s75, {32*1024}")
    a("s_add_u32 s76, s85, s75")
    a("s_add_u32 s77, s86, s75")
    a(f"s_add_u32 s78, s77, {144*1024}")
    a("s_lshl_b32 s75, s69, 13")
    a("s_add_u32 s85, s85, s75")
    a("s_add_u32 s86, s86, s75")
    a(f"v_mov_b32 v{VG}, v3")
    a(f"s_lshl_b32 s79, s{sQB}, 3")
    a("s_lshl_b32 s80, s65, 1")
    a("s_add_u32 s79, s79, s80")
    a("s_add_u32 s79, s79, s66")
    a(f"s_mul_i32 s81, s79, {144*1024}")
    a(f"s_lshl_b32 s80, s{sHEAD}, 10")
    a("s_add_u32 s81, s81, s80")
    a(f"s_add_u32 s81, s81, {WS_AF}")
    a("s_lshl_b32 s87, s84, 7")
    a(f"s_add_u32 s87, s87, {WS_G}")
    a(f"s_mul_i32 s79, s{sWAVE}, 2304")
    a(f"s_add_u32 s79, s79, {LQ}")
    a(f"s_xor_b32 s80, s{sWAVE}, 4")
    a(f"s_lshl_b32 s82, s{sWAVE}, 2")
    a("s_lshl_b32 s83, s80, 2")
    a("s_mul_i32 s80, s80, 2304")
    a(f"s_add_u32 s80, s80, {LQ}")
    a(f"s_add_u32 s82, s82, {LC3}")
    a(f"s_add_u32 s83, s83, {LC3}")
    a(f"s_lshl_b32 s90, s{sHEAD}, 16")
    a(f"s_lshl_b32 s91, s{sWAVE}, 10")
    a(f"s_mul_i32 s92, s{sWAVE}, {VST}")
    a(f"s_lshl_b32 s93, s{sQB}, 13")
    a("s_add_u32 s93, s93, s91")

def attn(a):
    a.label("L_attn")
    T0 = GFR + 36
    a(f"v_mov_b32 v{T0+2}, s73")
    a(f"v_writelane_b32 v{T0+2}, s72, 1")
    a(f"v_mov_b32 v{T0+3}, 1")
    a(f"v_mov_b32 v{T0+4}, {LCNT+4}")
    g = T0 + 5
    a(f"v_and_b32 v{g+2}, 15, v2")
    a(f"v_lshlrev_b32 v{g+2}, 7, v{g+2}")
    a(f"v_mov_b32 v{g}, s95")
    a(f"v_mov_b32 v{g+1}, s89")
    a("v_cmp_gt_u32 vcc, 32, v2")
    a(f"v_cndmask_b32 v{g}, v{g+1}, v{g}, vcc")
    a(f"v_lshl_add_u32 v{g+3}, v2, 7, v{g}")
    a(f"v_lshlrev_b32 v{WO+2}, 7, v2")
    stamp(a, 27, VS)
    a(f"v_mov_b32 v{T0+1}, {LCNT}")
    def ldswait(name, off, val):
        a(f"s_mov_b32 s98, {SPIN*8}")
        a.label(name)
        a(f"ds_read_b32 v{T0}, v{T0+1} offset:{off}")
        a("s_waitcnt lgkmcnt(0)")
        a(f"v_cmp_ne_u32 vcc, {val}, v{T0}")
        a(f"s_cbranch_vccz {name}_ok")
        a("s_sleep 1")
        a("s_sub_u32 s98, s98, 1")
        a("s_cmp_lg_u32 s98, 0")
        a(f"s_cbranch_scc1 {name}")
        a.label(f"{name}_ok")
    a(f"s_cmp_lt_u32 s{sWAVE}, 4")
    a("s_cbranch_scc1 L_x1")
    for p0 in (0, 8, 16, 24)[len(KVA):]: kv8(a, p0)
    stamp(a, 28, VS)
    a(f"s_waitcnt vmcnt({8 + (1 if len(KVA) >= 2 else 0)}) lgkmcnt(0)")
    stamp(a, 29, VS)
    one_lane(a, f"ds_add_u32 v{T0+1}, v{T0+3} offset:8")
    a.label("L_x1")
    padat(a, "x1")
    a("s_setprio 3")
    ldswait("L_x1w", 8, 4)
    stamp(a, 10, VS)
    a(f"ds_read_b128 {vr(QB)}, v{VQ} offset:1024")
    a(f"ds_read_b128 {vr(QA)}, v{VQ}")
    a(f"ds_read_b128 {vr(V0B)}, v3")
    a(f"ds_read_b128 {vr(KF)}, v{VK}")
    a(f"ds_read_b128 {vr(V0A)}, v{VV0}")
    def kvops(groups):
        ops = []
        for p0 in groups:
            ops.append([f"s_add_u32 s94, s93, {p0*1024}", "s_and_b32 s94, s94, 0xffff", "s_add_u32 s94, s94, s90",
                        f"s_add_u32 m0, s91, {LK + p0*1024}", f"s_add_u32 s67, s94, {WS_QK + 32*65536}",
                        f"buffer_load_dwordx4 v3, {WSR}, s67 offen{ST} lds"])
            ops.append([f"s_add_u32 m0, s92, {LV + p0*VST}", f"s_add_u32 s67, s94, {WS_V}",
                        f"buffer_load_dwordx4 v3, {WSR}, s67 offen{ST} lds"])
        return ops
    def burst(young):
        if "H" in ENV("WI", ""): return
        t = "y" if young else "o"
        a(f"s_cmp_{'lt' if young else 'ge'}_u32 s{sWAVE}, 4")
        a(f"s_cbranch_scc1 L_st4{t}")
        for n in range(4): a(f"buffer_store_dwordx4 {vr(HP+4*n)}, v3, {WSR}, s{DT+n} offen{STS}")
        if not young:
            a(f"s_cmp_lg_u32 s{sVC}, 0")
            a(f"s_cbranch_scc1 L_st4{t}")
            for n in range(4, 8): a(f"buffer_store_dwordx4 {vr(HP+4*n)}, v3, {WSR}, s{DT+n} offen{STS}")
        a.label(f"L_st4{t}")
    BURSTK = int(ENV("BURSTK", "2"))
    burst(False)
    if BURSTK < 0: burst(True)
    stamp(a, 21, VS) if not ENV("EARLY") else None
    a("s_waitcnt lgkmcnt(0)")
    a(f"{MF} {vr(SA,16)}, {vr(V0B)}, {vr(QA)}, 0")
    a(f"{MF} {vr(SB,16)}, {vr(V0B)}, {vr(QB)}, 0")
    m4 = [V1, V1+1, V1+2, V1+3]
    for c, (S, o) in enumerate(((SA, 0), (SA, 8), (SB, 0), (SB, 8))): a(f"v_max3_f32 v{m4[c]}, v{S+o}, v{S+o+1}, v{S+o+2}")
    for r in (3, 5):
        for c, (S, o) in enumerate(((SA, 0), (SA, 8), (SB, 0), (SB, 8))): a(f"v_max3_f32 v{m4[c]}, v{S+o+r}, v{S+o+r+1}, v{m4[c]}")
    a(f"v_max3_f32 v{V1}, v{SA+7}, v{SA+15}, v{V1}")
    a(f"v_max3_f32 v{V1+2}, v{SB+7}, v{SB+15}, v{V1+2}")
    a(f"v_max3_f32 v{V1}, v{V1}, v{V1+1}, v{V1+3}")
    a(f"v_max_f32 v{V1}, v{V1}, v{V1+2}")
    halfmax(a, V1, V1 + 1)
    for i in range(16): a(f"v_sub_f32 v{CC+i}, 0, v{V1}")
    a("s_waitcnt lgkmcnt(0)")
    a(f"{MF} {vr(SA,16)}, {vr(KF)}, {vr(QA)}, {vr(CC,16)}")

    TV = ENV("TV", "0")
    def tile(n, which, extra, extra0=lambda: None, late=lambda: None, k=9):
        S, T, O, OT, QT = (SA, SB, OA, OB, QB) if which == 0 else (SB, SA, OB, OA, QA)
        v0 = V0A if n % 2 == 0 else V0B
        v0n = V0B if n % 2 == 0 else V0A
        e = lambda i: a(f"v_exp_f32 v{S+i}, v{S+i}")
        c = lambda i: a(f"v_cvt_pk_bf16_f32 v{S + (i>>2)*8 + (i&3)}, v{S+2*i}, v{S+2*i+1}")
        pv2 = lambda: a(f"{MF} {vr(OT,16)}, {vr(V1)}, {vr(T+8)}, {vr(OT,16)}") if k > 0 else None
        qk = lambda: a(f"{MF} {vr(T,16)}, {vr(KF)}, {vr(QT)}, {vr(CC,16)}") if k < 63 else None
        pv1 = lambda: a(f"{MF} {vr(O,16)}, {vr(v0)}, {vr(S)}, {vr(O,16) if k > 1 else 0}")
        def rdv():
            if which == 0:
                a(f"ds_read_b128 {vr(V1)}, v{VV1} offset:{2*n*VST}")
                if k < 62: a(f"ds_read_b128 {vr(v0n)}, v{VV0} offset:{2*(n+1)*VST}")
        def rdk():
            if which == 0 and k < 62: a(f"ds_read_b128 {vr(KF)}, v{VK} offset:{2*(n+1)*1024}")
        if TV == "0":
            e(0); e(1)
            if which == 1: a("s_waitcnt lgkmcnt(0)")
            pv2(); rdv()
            e(2); e(3); e(4); e(5)
            qk(); rdk()
            e(6); e(7); e(8)
            extra0()
            for i in range(4): c(i)
            e(9); e(10)
            pv1()
            e(11); e(12); e(13); e(14)
            extra()
            e(15)
            for i in range(4, 8): c(i)
            late()
        elif TV == "1":
            e(0); e(1)
            if which == 1: a("s_waitcnt lgkmcnt(0)")
            pv2(); rdv()
            e(2); e(3); e(4); e(5); e(6)
            qk(); rdk()
            e(7); c(0); c(1); c(2); extra0(); c(3); e(8); e(9)
            pv1()
            e(10); e(11); e(12); e(13); e(14)
            extra()
            e(15)
            for i in range(4, 8): c(i)
            late()
        elif TV == "2":
            e(0); e(1)
            if which == 1: a("s_waitcnt lgkmcnt(0)")
            pv2(); rdv()
            e(2); c(0); e(3); e(4); c(1); e(5)
            qk(); rdk()
            e(6); c(2); e(7); e(8); extra0(); c(3); e(9); e(10)
            pv1()
            c(4); e(11); e(12); c(5); e(13); e(14)
            extra()
            c(6); e(15); late(); a("s_nop 0") if False else None
            c(7)
    def bump(n):
        a(f"v_add_u32 v{VK}, {2*n*1024}, v{VK}")
        a(f"v_add_u32 v{VV0}, {2*n*VST}, v{VV0}")
        a(f"v_add_u32 v{VV1}, {2*n*VST}, v{VV1}")
    PRIO = ENV("PRIO", "1") == "1"
    DPER, DRAIN = int(ENV("DPER", "1")), int(ENV("DRAIN", "10"))
    wo = list(range(16))
    g = T0 + 5
    def ld2():
        a(f"buffer_load_dword v{g}, v{g+2}, {WSR}, s74 offen{ST}")
        a(f"buffer_load_dword v{g+1}, v{g+3}, {WSR}, s88 offen{ST}")
    def cmp2():
        a(f"v_and_b32 v{g}, v{g}, v{g+1}")
        a(f"v_cmp_ne_u32 vcc, 1, v{g}" if "2" not in ENV("WI", "") else f"v_cmp_ne_u32 vcc, v{g}, v{g}")
    S2W = int(ENV('S2WAVE', '0'))
    S2AT = int(ENV('S2AT', '14'))
    def ldwo(i):
        if "W" in ENV("WI", "") and i >= 2: return
        if i % 4 == 0: a(f"s_add_u32 s71, s86, {(i>>3)*144*1024 + (i&7)*1024}")
        a(f"buffer_load_dwordx4 {vr(WO + 4*i)}, v3, {WSR}, s71 offen offset:{(i&3)*1024}{'' if 'O' in ENV('XG', 'Q') else ST}")
    ops = kvops((32, 40, 48, 56))
    ops = [(lambda l=l: [a(x) for x in l]) for l in ops]
    def ldb():
        for i in range(4):
            a(f"s_mov_b32 s70, {WS_F1 + i*8192}")
            a(f"buffer_load_dwordx2 {vr(WO+4+2*i,2)}, v{WO+2}, {WSR}, s70 offen{ST}")
    def cmpb():
        b = WO + 4
        for i in range(4):
            a(f"v_xor_b32 v{b+2*i}, v{b+2*i}, v{WO}")
            a(f"v_xor_b32 v{b+2*i+1}, v{b+2*i+1}, v{WO+1}")
        a(f"v_or3_b32 v{b}, v{b}, v{b+1}, v{b+2}")
        a(f"v_or3_b32 v{b+3}, v{b+3}, v{b+4}, v{b+5}")
        a(f"v_or3_b32 v{b}, v{b}, v{b+6}, v{b+7}")
        a(f"v_or_b32 v{b}, v{b}, v{b+3}")
        a(f"v_cmp_ne_u32 vcc, 0, v{b}")
    DRAIN = int(ENV("DRAIN", "5"))
    KVW = int(ENV("KVW", "12"))
    K0 = int(ENV("K0", "22"))
    assert KVW <= 14 and K0 <= 30 and K0 % 2 == 0
    def gld(buf, q, off): a(f"buffer_load_dwordx4 {vr(GFR + 12*buf + 4*q)}, v{VG}, {WSR}, s{76+q} offen offset:{off}{'' if ('P' in ENV('XG', 'Q') or ('Q' in ENV('XG', 'Q') and q)) else ST}")
    def gm(buf, j, first=False):
        d = vr(GACC + 16*j, 16)
        a(f"{MF} {d}, {vr(GFR + 12*buf + 4 + 4*j)}, {vr(GFR + 12*buf)}, {0 if first else d}")
    vq = []
    def gl(kt, q):
        gld(kt & 3, q, (kt & 3) * 1024); vq.append(("g", kt))
    def vneed(tag):
        n = len(vq) - 1 - max(i for i, e in enumerate(vq) if e == tag)
        a(f"s_waitcnt vmcnt({n})")
    PK = [int(x) for x in ENV("PK", "4,10,17").split(",")]
    PU = [int(x) for x in ENV("PU", "42,54,60").split(",")]
    wo = list(range(16))
    pre = [(kt, q) for kt in range(4) for q in (1, 0, 2)]
    M0 = K0 + 3
    ntile = 64 - M0
    sched = {}
    extra_n = 48 - ntile
    m = 0
    for i in range(ntile):
        if extra_n > 0 and (i + 1) * extra_n // ntile > i * extra_n // ntile:
            sched[(M0 + i, 0)] = m; m += 1
        if m < 48: sched[(M0 + i, 1)] = m; m += 1
    assert m == 48
    def gstep(m):
        kt, j = m >> 1, m & 1
        if j == 0:
            if kt % 4 == 0: a(f"v_add_u32 v{VG}, 4096, v{VG}")
            vneed(("g", kt))
        gm(kt & 3, j, kt == 0)
        if j == 0: gl(kt + 4, 1)
        else: gl(kt + 4, 0); gl(kt + 4, 2)
    def xaddr():
        a(f"v_add_u32 v{KF}, s79, v3")
        a(f"v_add_u32 v{KF+1}, s80, v3")
        a(f"v_lshl_add_u32 v{KF+2}, v2, 2, s79")
        a(f"v_lshl_add_u32 v{KF+3}, v2, 2, s80")
        a(f"v_mov_b32 v{V0A}, s82")
        a(f"v_mov_b32 v{V0A+1}, s83")
        a(f"v_and_b32 v{V0A+2}, 31, v2")
        a(f"v_lshlrev_b32 v{V0A+2}, 2, v{V0A+2}")
    def xsend(O):
        a(f"ds_write_b128 v{KF}, {vr(O)}")
        a(f"ds_write_b128 v{KF}, {vr(O+4)} offset:1024")
        a(f"ds_write_b32 v{KF+2}, v{O+8} offset:2048")
        a(f"ds_write_b32 v{V0A}, v{V0A}")
    base = 0
    KV2 = DRAIN + 11
    assert KV2 < K0
    for k in range(64):
        if k == 32: bump(16); base = 16
        if PRIO and k in PK: a(f"s_setprio {2 - PK.index(k)}")
        if PRIO and k in PU: a(f"s_setprio {2 - PU.index(k)}")
        if k == DRAIN + 1:
            a(f"v_mov_b32 v{T0+1}, {LC2}")
            ldswait("L_free", 0, 4)
            a(f"v_mov_b32 v{T0+1}, {LCNT}")
            a(f"s_cmp_lt_u32 s{sWAVE}, 6")
            a("s_cbranch_scc1 L_nocs2")
            const_write(a, T0+9, T0+10)
            a.label("L_nocs2")
        if k == KVW: ldswait("L_kvw", 4, 8)
        if k == K0 - 4:
            a(f"s_cmp_lg_u32 s{sWAVE}, {S2W}")
            a("s_cbranch_scc1 L_s2a")
            ld2()
            a.label("L_s2a")
            mark = len(vq)
        if k == K0 - 1:
            a(f"s_cmp_lg_u32 s{sWAVE}, {S2W}")
            a("s_cbranch_scc1 L_s2b")
            a(f"s_waitcnt vmcnt({len(vq) - mark})")
            cmp2()
            a("s_cbranch_vccz L_ps2_ok")
            poll(a, "L_ps2", ld2, cmp2)
            one_lane(a, f"ds_add_u32 v{T0+1}, v{T0+3} offset:12")
            a.label("L_s2b")
        if k == K0:
            stamp(a, 11, VS)
            ldswait("L_s2w", 12, 9)
            stamp(a, 16, VS)
            if PRIO: a("s_setprio 3")
        def slot(i):
            if (k, i) in sched: gstep(sched[(k, i)])
            elif k >= K0 and pre:
                for _ in range(3): gl(*pre.pop(0))
            elif k >= max(KVW, DRAIN + 9) and wo and i == 0 and (k < K0 or k % 2 == 0):
                ldwo(wo.pop(0)); vq.append(("wo", 0))
        def extra():
            if k == BURSTK: burst(True)
            if k == DRAIN - 2:
                a(f"s_cmp_lg_u32 s{sWAVE}, 4")
                a("s_cbranch_scc1 L_s1b0")
                ldb()
                a.label("L_s1b0")
            if k == DRAIN:
                stamp(a, 23, VS) if not ENV("EARLY") else None
                a("s_waitcnt vmcnt(0)")
                stamp(a, 24, VS) if not ENV("EARLY") else None
                a(f"s_cmp_lg_u32 s{sWAVE}, 4")
                a("s_cbranch_scc1 L_ps1b_ok")
                cmpb()
                a("s_cbranch_vccz L_ps1b_ok")
                poll(a, "L_ps1b", ldb, cmpb)
                one_lane(a, f"ds_add_rtn_u32 v{T0+4}, v{T0+4}, v{T0+3}")
            if k > DRAIN and ops:
                ops.pop(0)(); vq.append(("kv", 0))
            if k == KV2:
                assert not ops
                vneed(("kv", 0))
                one_lane(a, f"ds_add_u32 v{T0+1}, v{T0+3} offset:12")
            if k == 63:
                a("s_cmp_eq_u32 s66, 0")
                a("s_cbranch_scc1 L_x63")
                xsend(OA)
                a.label("L_x63")
            slot(1)
        def extra0():
            if k == DRAIN + 1:
                a("s_waitcnt lgkmcnt(0)")
                a(f"v_readfirstlane_b32 s70, v{T0+4}")
                a("s_cmp_eq_u32 s70, 7")
                a(f"s_cselect_b32 s70, 0, {OOB:#x}")
                one_lane(a, f"buffer_store_dword v{T0+3}, v{T0+2}, {WSR}, s70 offen{ST}", 3)
            if k == 63: xaddr()
            slot(0)
        tile((k >> 1) - base, k & 1, extra, extra0, k=k)
    assert not wo and not pre and not ops
    a(f"{MF} {vr(OB,16)}, {vr(V1)}, {vr(SB+8)}, {vr(OB,16)}")
    stamp(a, 17, VS)
    VGT = CC + 15
    a(f"buffer_load_dword v{VG}, v{V0A+2}, {WSR}, s87 offen{ST}")
    VGT = VG
    a("s_cmp_lg_u32 s66, 0")
    a("s_cbranch_scc1 L_sent")
    xsend(OB)
    a.label("L_sent")
    a(f"s_mov_b32 s98, {SPIN*8}")
    a.label("L_xw")
    a(f"ds_read_b32 v{V0A+3}, v{V0A+1}")
    a(f"ds_read_b128 {vr(SA)}, v{KF+1}")
    a(f"ds_read_b128 {vr(SA+4)}, v{KF+1} offset:1024")
    a(f"ds_read_b32 v{SA+8}, v{KF+3} offset:2048")
    a("s_waitcnt lgkmcnt(0)")
    a(f"v_cmp_eq_u32 vcc, 0, v{V0A+3}")
    a("s_cbranch_vccz L_xw_ok")
    a("s_sleep 1")
    a("s_sub_u32 s98, s98, 1")
    a("s_cmp_lg_u32 s98, 0")
    a("s_cbranch_scc1 L_xw")
    a.label("L_xw_ok")
    a("s_cmp_lg_u32 s66, 0")
    a("s_cbranch_scc1 L_keepB")
    for i in range(9): a(f"v_add_f32 v{OA+i}, v{OA+i}, v{SA+i}")
    a("s_branch L_kept")
    a.label("L_keepB")
    for i in range(9): a(f"v_add_f32 v{OA+i}, v{OB+i}, v{SA+i}")
    a.label("L_kept")
    def lbcast():
        if ONE_ROW:
            a(f"v_mov_b32 v{OB}, v{OA+8}")
            a(f"v_permlane32_swap_b32 v{OA+8}, v{OB}")
    lbcast()
    a(f"v_cmp_nge_f32 vcc, {f32(2.0**60)}, v{OA+8}")
    a("s_mov_b64 s[82:83], vcc")
    a(f"v_cmp_nle_f32 vcc, {f32(2.0**-60)}, v{OA+8}")
    a("s_or_b64 vcc, vcc, s[82:83]")
    a("s_cbranch_vccnz L_redo")
    a.label("L_aok")
    a(f"v_rcp_f32 v12, v{OA+8}")
    for i in range(8): a(f"v_mul_f32 v{OA+i}, v12, v{OA+i}")
    for i in range(4): a(f"v_cvt_pk_bf16_f32 v{SA+i}, v{OA+2*i}, v{OA+2*i+1}")
    for i in range(4): a(f"v_min_u32 v{SA+i}, -2, v{SA+i}")
    a(f"buffer_store_dwordx4 {vr(SA)}, v3, {WSR}, s81 offen{STS}")
    stamp(a, 18, VS)
    srd(a, S_OUT, 20, 21, 2048 * 1024)
    a("s_lshl_b32 s79, s68, 15")
    a("v_add_u32 v14, s79, v3")
    a("s_lshl_b32 s80, s69, 13")
    a("s_add_u32 s80, s80, s79")
    a("v_add_u32 v15, s80, v3")
    a("v_and_b32 v12, 31, v2")
    a("v_lshlrev_b32 v12, 10, v12")
    a("v_lshrrev_b32 v13, 5, v2")
    a("v_lshl_or_b32 v11, v13, 4, v12")
    a("s_lshl_b32 s79, s84, 15")
    a(f"s_lshl_b32 s80, s{sQB}, 7")
    a("s_add_u32 s79, s79, s80")
    a("s_lshl_b32 s80, s69, 5")
    a("s_add_u32 s79, s79, s80")
    a("s_add_u32 s87, s85, 4096")
    a("s_barrier")
    TE = ENV("TE", "0")
    if TE != "2":
        a("s_waitcnt vmcnt(1)")
        for b in range(4): gm(b, 0); gm(b, 1)
    if TE == "0": a("s_waitcnt vmcnt(0)")
    stamp(a, 19, VS)
    OF, A2 = 16, 64
    def ldO():
        for i in range(8): a(f"buffer_load_dwordx4 {vr(OF+4*i)}, v3, {WSR}, s{85 if i < 4 else 87} offen offset:{(i&3)*1024}{ST}")
    def cmpO():
        for i in range(8):
            a(f"s_waitcnt vmcnt({7-i})")
            for j in range(2):
                d = vr(A2 + 16*j, 16)
                a(f"{MF} {d}, {vr(WO + 32*j + 4*i)}, {vr(OF+4*i)}, {'0' if i == 0 else d}")
            r = OF + 4*i
            if i == 0: a(f"v_max_u32 v12, v{r}, v{r+1}")
            else: a(f"v_max3_u32 v12, v{r}, v{r+1}, v12")
            a(f"v_max3_u32 v12, v{r+2}, v{r+3}, v12")
        a("v_cmp_eq_u32 vcc, -1, v12" if "3" not in ENV("WI", "") else "v_cmp_ne_u32 vcc, v12, v12")
    ldO()
    if TE == "2":
        a("s_waitcnt vmcnt(9)")
        for b in range(4): gm(b, 0); gm(b, 1)
    a(f"v_sub_f32 v10, 1.0, v{VGT}")
    for r in range(32): a(f"v_mul_f32 v{GACC+r}, v10, v{GACC+r}")
    a(f"s_mov_b32 s98, {SPIN}")
    a("s_branch L_ps3c")
    def ldO2():
        ldO(); a.label("L_ps3c")
    poll(a, "L_ps3", ldO2, cmpO, wait=False, slp=int(ENV("SLP3", "4")))
    stamp(a, 20, VS)
    for kq in range(4):
        if kq < 3:
            a(f"s_cmp_lg_u32 s69, {kq}")
            a(f"s_cbranch_scc1 L_red{kq+1}")
        for sl in [x for x in range(4) if x != kq] + [kq]:
            for r in range(8*sl, 8*sl + 8):
                if sl == kq: a(f"v_fma_f32 v{OF + r - 8*sl}, v{VGT}, v{A2+r}, v{GACC+r}")
                else: a(f"v_fmac_f32 v{GACC+r}, v{VGT}, v{A2+r}")
            if sl != kq:
                for k in range(2): a(f"ds_write_b128 v14, {vr(GACC + 8*sl + 4*k)} offset:{sl*8192 + ((kq - sl - 1) & 3)*2048 + k*1024}")
        if kq < 3:
            a("s_branch L_redw")
            a.label(f"L_red{kq+1}")
    a.label("L_redw")
    a("s_waitcnt lgkmcnt(0)")
    a("s_barrier")
    for q in range(3):
        for k in range(2): a(f"ds_read_b128 {vr(OF + 8 + 8*q + 4*k)}, v15 offset:{q*2048 + k*1024}")
    a("s_waitcnt lgkmcnt(4)")
    for r in range(0, 8, 2): a(f"v_pk_add_f32 {vr(OF+r,2)}, {vr(OF+r,2)}, {vr(OF+8+r,2)}")
    a("s_waitcnt lgkmcnt(0)")
    for r in range(0, 8, 2): a(f"v_pk_add_f32 {vr(OF+16+r,2)}, {vr(OF+16+r,2)}, {vr(OF+24+r,2)}")
    for r in range(0, 8, 2): a(f"v_pk_add_f32 {vr(OF+r,2)}, {vr(OF+r,2)}, {vr(OF+16+r,2)}")
    for i in range(4): a(f"v_cvt_pk_bf16_f32 v{48+i}, v{OF+2*i}, v{OF+2*i+1}")
    a("v_permlane32_swap_b32 v48, v50")
    a("v_permlane32_swap_b32 v49, v51")
    a(f"buffer_store_dwordx4 v[48:51], v11, {SR(S_OUT)}, s79 offen{ENV('OUTMOD', '').replace('_', ' ')}")
    if ENV("FIXT"):
        if ENV("FIX0"):
            a("v_mov_b32 v80, 0")
            a(f"buffer_load_dword v81, v80, {SR(S_DBG)}, 0 offen offset:8{ST}")
            a("s_waitcnt vmcnt(0)")
            a("v_readfirstlane_b32 s96, v81")
        a.label("L_fixt")
        a("s_memrealtime s[100:101]")
        a("s_waitcnt lgkmcnt(0)")
        a("s_sub_u32 s100, s100, s96")
        a(f"s_cmp_lt_u32 s100, {int(ENV('FIXT'))}")
        a("s_cbranch_scc1 L_fixt")
    if STAMP: a("s_waitcnt vmcnt(0)")
    stamp_out(a, 0, S_WS, VS, 14)
    if STAMP and ENV("DBGOUT"):
        a(f"s_lshl_b32 s66, s{sWAVE}, 8")
        a("s_or_b32 s66, s66, s2")
        a(f"s_cmp_lg_u32 s66, {int(ENV('DBGOUT'))}")
        a("s_cbranch_scc1 L_exit")
        a(f"v_readlane_b32 s67, v{VS}, 1")
        for k, idx in enumerate((3, 4, 5, 6, 7, 10, 11, 16, 17, 18, 19, 20, 14)):
            a(f"v_readlane_b32 s66, v{VS}, {32+idx}")
            a("s_sub_u32 s66, s66, s67")
            a(f"v_writelane_b32 v14, s66, {k}")
        a(f"v_readlane_b32 s66, v{VS}, 14")
        a(f"v_readlane_b32 s67, v{VS}, 0")
        a("s_sub_u32 s66, s66, s67")
        a("v_writelane_b32 v14, s66, 13")
        a("v_lshlrev_b32 v15, 2, v2")
        one_lane(a, f"buffer_store_dword v14, v15, {SR(S_DBG)}, 0 offen offset:4", "0x3fff")
    a("s_endpgm")
    a.label("L_redo")
    a("s_cmp_eq_u32 s66, 0")
    a("s_cbranch_scc1 L_redoA")
    for i in range(4): a(f"v_mov_b32 v{QA+i}, v{QB+i}")
    a.label("L_redoA")
    a(f"s_mul_i32 s79, s66, {VST}")
    a(f"s_add_u32 s79, s79, {32*VST}")
    a(f"v_subrev_u32 v{VV0}, s79, v{VV0}")
    a(f"v_subrev_u32 v{VV1}, s79, v{VV1}")
    a(f"v_mov_b32 v{VK}, v3")
    a("v_mov_b32 v12, 0xff800000")
    a("s_mov_b32 s80, 0")
    a.label("L_fmax")
    a(f"ds_read_b128 {vr(KF)}, v{VK}")
    a("s_waitcnt lgkmcnt(0)")
    a(f"{MF} {vr(SA,16)}, {vr(KF)}, {vr(QA)}, 0")
    a(f"v_add_u32 v{VK}, 1024, v{VK}")
    rowmax(a, SA, 12, acc=True)
    a("s_add_u32 s80, s80, 1")
    a("s_cmp_lt_u32 s80, 64")
    a("s_cbranch_scc1 L_fmax")
    halfmax(a, 12, 13)
    for i in range(16): a(f"v_sub_f32 v{CC+i}, 0, v12")
    zero(a, OA, 16)
    a(f"v_mov_b32 v{VK}, v3")
    a("s_mov_b32 s80, 0")
    a.label("L_fslow")
    a(f"ds_read_b128 {vr(KF)}, v{VK}")
    a(f"ds_read_b128 {vr(V0A)}, v{VV0}")
    a(f"ds_read_b128 {vr(V1)}, v{VV1}")
    a("s_waitcnt lgkmcnt(0)")
    a(f"{MF} {vr(SA,16)}, {vr(KF)}, {vr(QA)}, {vr(CC,16)}")
    a(f"v_add_u32 v{VK}, 1024, v{VK}")
    a(f"v_add_u32 v{VV0}, {VST}, v{VV0}")
    a(f"v_add_u32 v{VV1}, {VST}, v{VV1}")
    for i in range(16): a(f"v_exp_f32 v{SA+i}, v{SA+i}")
    for i in range(8): a(f"v_cvt_pk_bf16_f32 v{SB+i}, v{SA+2*i}, v{SA+2*i+1}")
    a(f"{MF} {vr(OA,16)}, {vr(V0A)}, {vr(SB)}, {vr(OA,16)}")
    a(f"{MF} {vr(OA,16)}, {vr(V1)}, {vr(SB+4)}, {vr(OA,16)}")
    a("s_add_u32 s80, s80, 1")
    a("s_cmp_lt_u32 s80, 64")
    a("s_cbranch_scc1 L_fslow")
    a("s_nop 9")
    lbcast()
    a("s_branch L_aok")

DOC = """;
"""
def build():
    a = Asm()
    head(a)
    p1_loader(a)
    p1_compute(a)
    attn(a)
    a.label("L_exit")
    a("s_endpgm")
    n = a.fix(verbose="-v" in sys.argv)
    print("instructions:", len(a.lines), "nop states inserted:", n, "lds", LDS_BYTES, file=sys.stderr)
    name = NAME + "_kernel"
    hdr = open("cdna_kernels/" + NAME + ".s.ref").read().split("; Override launch")[0]
    out = hdr + f"; @launch grid=(256,1,1) block=(512,1,1) lds={LDS_BYTES}\n"
    out += DOC
    out += '.amdgcn_target "amdgcn-amd-amdhsa--gfx950"\n.text\n'
    out += f".globl {name}\n.p2align 8\n.type {name},@function\n{name}:\n" + a.text()
    out += '.section .rodata,"a"\n' + kd(name)
    dst = sys.argv[1] if len(sys.argv) > 1 and not sys.argv[1].startswith("-") else "cdna_kernels/" + NAME + ".s"
    open(dst, "w").write(out)
if __name__ == "__main__": build()
```

```python
import os, sys
from common import *

MF = "v_mfma_f32_32x32x16_bf16"
ST = " sc1"
STS = " sc1 nt" if os.environ.get("SNT") else " sc1"
ENV = os.environ.get
WS_F1 = 0x1480000
WS_F2 = 0x1490000
WS_F3 = 0x1498000
WS_TAG = 0x14a0000
SPIN = 1 << 17

S_DBG, S_WS, S_X, S_G, S_U, S_WA, S_WB, S_WC = 24, 28, 32, 36, 40, 44, 48, 52
S_RO, S_RD, S_GW = 56, 44, 48
S_OUT = 32
sWAVE, sMB, sNB, sVC = 3, 60, 61, 62
sHEAD, sQB = 63, 64
WSR = f"s[{S_WS}:{S_WS+3}]"
def SR(n): return f"s[{n}:{n+3}]"
VS = 1

NXS = 6
LX, XSLOT = 0, 16384
LW = NXS * XSLOT
NW1, WS1 = 5, 12288
NW2, WS2, LW2 = 6, 8192, LW + 12288
LRD = LW + 4096
LRO = LW + NW1 * WS1
LDS_BYTES = 163840
LCNT = LDS_BYTES - 16
LC2 = LDS_BYTES - 32
LC3 = LDS_BYTES - 64
assert LRO + 2048 <= LCNT and (16 % NW1) * WS1 == LW2 - LW and LW2 + NW2 * WS2 <= LRO
KROT = 8 - NXS
def wslot(s): return (LW + (s % NW1) * WS1, WS1) if s < 16 else (LW2 + ((s - 16) % NW2) * WS2, WS2)
def acc(tt, ct): return 96 + (tt * 4 + ct) * 16 if ct < 4 else 224 + tt * 16
HP = 224
DT = 36
FR0, FR1 = 16, 36
VXA, VW = 56, 60
ONE_ROW = not ENV("ALLONES")
VST, VROT = 1104, 0
LK, LV = 0, 65536
LQ = LV + 64 * VST
LQI = 143360
LASTB = 28
QA, QB, CC, OA, OB, SA, SB, KF, V0A, V0B, V1 = 8, 12, 16, 32, 48, 64, 80, 96, 100, 104, 108
VK, VV0, VV1, VG = 4, 5, 6, 7
GACC, GFR, WO = 112, 144, 192

class Lgkm:
    def __init__(s, a): s.a = a; s.q = []
    def rd(s, tag, text): s.a(text); s.q.append(tag)
    def need(s, *tags):
        idx = [i for i, t in enumerate(s.q) if t in tags]
        if not idx: return
        n = len(s.q) - 1 - max(idx)
        assert n <= 15
        s.a(f"s_waitcnt lgkmcnt({n})")
        s.q = s.q[max(idx) + 1:]
    def all(s, extra=""):
        s.a("s_waitcnt " + extra + "lgkmcnt(0)")
        s.q = []

def poll(a, name, load, cmp, wait=True, slp=None):
    a(f"s_mov_b32 s98, {SPIN}")
    a.label(name)
    load()
    if wait: a("s_waitcnt vmcnt(0)")
    cmp()
    a(f"s_cbranch_vccz {name}_ok")
    a(f"s_sleep {int(ENV('SLEEP', '4')) if slp is None else slp}")
    a("s_sub_u32 s98, s98, 1")
    a("s_cmp_lg_u32 s98, 0")
    a(f"s_cbranch_scc1 {name}")
    a.label(f"{name}_ok")

def rowmax(a, S, dst, acc=False):
    if acc: a(f"v_max3_f32 v{dst}, v{S}, v{S+1}, v{dst}")
    else: a(f"v_max_f32 v{dst}, v{S}, v{S+1}")
    for k in range(2, 16, 2): a(f"v_max3_f32 v{dst}, v{S+k}, v{S+k+1}, v{dst}")
def halfmax(a, dst, tmp):
    a(f"v_mov_b32 v{tmp}, v{dst}")
    a(f"v_permlane32_swap_b32 v{tmp}, v{dst}")
    a(f"v_max_f32 v{dst}, v{tmp}, v{dst}")
def zero(a, b, n):
    for r in range(0, n, 2): a(f"v_pk_mul_f32 {vr(b+r,2)}, 0, 0")
def one_lane(a, text, mask=1):
    a(f"s_mov_b64 exec, {mask}"); a(text); a("s_mov_b64 exec, -1")

def padat(a, where):
    p = ENV("PADAT", "")
    if p.startswith(where + ":"):
        a.label("L_pad")
        a("s_memrealtime s[100:101]")
        a("s_waitcnt lgkmcnt(0)")
        a("s_sub_u32 s100, s100, s96")
        a(f"s_cmp_lt_u32 s100, {int(p.split(':')[1])}")
        a("s_cbranch_scc1 L_pad")

def head(a):
    a("s_cmp_ge_u32 s2, 256")
    a("s_cbranch_scc1 L_exit")
    a("s_load_dwordx16 s[4:19], s[0:1], 0")
    a("s_load_dwordx4 s[20:23], s[0:1], 64")
    a(f"s_load_dwordx2 s[{S_WS}:{S_WS+1}], s[0:1], 80")
    if ENV("CODEPF", "2") == "2":
        a("s_getpc_b64 s[84:85]")
        a.label("L_pc")
        a("v_lshlrev_b32 v61, 7, v0")
        a("v_min_u32 v61, L_exit-L_pc, v61")
        a("global_load_dword v61, v61, s[84:85]")
    if ENV("FIXT") or ENV("PADAT"):
        a("s_memrealtime s[96:97]")
    if STAMP: a(f"v_mov_b32 v{VS}, 0")
    stamp(a, 0, VS); stamp(a, 1, VS, real=True)
    a("v_lshrrev_b32 v3, 6, v0")
    a("v_and_b32 v2, 63, v0")
    a(f"v_readfirstlane_b32 s{sWAVE}, v3")
    a("s_and_b32 s65, s2, 7")
    a("s_lshr_b32 s66, s2, 3")
    a("s_and_b32 s67, s65, 1")
    a("s_lshl_b32 s67, s67, 3")
    a("s_and_b32 s68, s66, 7")
    a(f"s_add_u32 s{sMB}, s67, s68")
    a("s_lshr_b32 s67, s65, 1")
    a("s_lshl_b32 s67, s67, 2")
    a("s_lshr_b32 s68, s66, 3")
    if ENV("CFIRST", "1") == "1": a("s_sub_u32 s68, 3, s68")
    a(f"s_add_u32 s{sNB}, s67, s68")
    a("s_cmp_eq_u32 s68, 3")
    a(f"s_cselect_b32 s{sVC}, 1, 0")
    a("s_lshl_b32 s67, s65, 2")
    a("s_and_b32 s68, s66, 3")
    a(f"s_add_u32 s{sHEAD}, s67, s68")
    a(f"s_lshr_b32 s{sQB}, s66, 2")
    a("v_lshlrev_b32 v3, 4, v2")
    a(f"s_mov_b32 s{S_WS+2}, {WS_SIZE:#x}")
    a(f"s_mov_b32 s{S_WS+3}, 0x00020000")
    a(f"s_lshr_b32 s67, s{sNB}, 2")
    a(f"s_sub_u32 s81, s{sNB}, s67")
    a("s_add_u32 s81, s81, 16")
    a(f"s_lshl_b32 s82, s{sNB}, 11")
    a(f"s_lshl_b32 s67, s{sMB}, 7")
    a("s_add_u32 s82, s82, s67")
    a(f"s_add_u32 s82, s82, {WS_F1}")
    a("v_lshrrev_b32 v8, 3, v2")
    a("v_and_b32 v4, 7, v2")
    a("v_bfe_u32 v5, v2, 4, 1")
    a("v_lshlrev_b32 v5, 2, v5")
    a("v_xor_b32 v5, v5, v4")
    a("v_lshlrev_b32 v9, 4, v5")
    a(f"s_cmp_lt_u32 s{sWAVE}, 4")
    a("s_waitcnt lgkmcnt(0)")
    srd(a, S_X, 4, 5, 2048 * 1024)
    srd(a, S_DBG, 22, 23, 256)
    a("s_cbranch_scc1 L_compute")

def p1_compute(a):
    a.label("L_compute")
    if ENV("INV"): a("buffer_inv sc1")
    a(f"s_and_b32 s65, s{sWAVE}, 1")
    a(f"s_lshr_b32 s66, s{sWAVE}, 1")
    if ENV("CODEPF", "2") == "1":
        a("s_getpc_b64 s[84:85]")
        a.label("L_pc")
        a("s_sub_u32 s84, s84, L_pc-L_loader")
        a("s_subb_u32 s85, s85, 0")
        a("v_lshlrev_b32 v11, 7, v0")
        a("v_min_u32 v11, L_exit-L_loader, v11")
        a("global_load_dword v61, v11, s[84:85]")
        a("v_lshlrev_b32 v11, 7, v0")
        a("v_add_u32 v11, 0x8000, v11")
        a("v_min_u32 v11, L_exit-L_loader, v11")
        a("global_load_dword v62, v11, s[84:85]")
    H4 = 62
    a("v_and_b32 v8, 31, v2")
    a(f"v_lshrrev_b32 v{H4}, 5, v2")
    a("v_bfe_u32 v5, v2, 1, 3")
    a(f"v_xor_b32 v5, v5, v{H4}")
    a("s_lshl_b32 s67, s65, 13")
    a("v_lshl_add_u32 v6, v8, 7, s67")
    for ks in range(4):
        a(f"v_xor_b32 v7, {2*ks}, v5")
        a(f"v_lshl_add_u32 v{VXA+ks}, v7, 4, v6")
    a("v_bfe_u32 v5, v2, 2, 2")
    a("v_and_b32 v6, 3, v2")
    a("v_bfe_u32 v7, v2, 4, 1")
    a("v_lshlrev_b32 v6, 3, v6")
    a("v_lshl_or_b32 v6, v7, 5, v6")
    a("v_lshrrev_b32 v7, 1, v5")
    a("v_lshl_or_b32 v6, v7, 6, v6")
    a("v_lshl_or_b32 v6, v5, 7, v6")
    a(f"v_lshl_or_b32 v6, v{H4}, 10, v6")
    a("s_lshl_b32 s67, s66, 6")
    a("v_xor_b32 v6, s67, v6")
    a(f"v_add_u32 v{VW}, {LW}, v6")
    zero(a, 96, 160)
    a(f"v_mov_b32 v5, {LCNT}")
    a("ds_write_b128 v5, v[96:99]")
    a(f"v_mov_b32 v14, {LC2}")
    a("v_mov_b32 v15, 1")
    a("ds_write_b32 v14, v96")
    a(f"v_mov_b32 v5, {LC3}")
    a("ds_write_b128 v5, v[96:99]")
    a("ds_write_b128 v5, v[96:99] offset:16")

    a(f"s_mov_b32 s51, {(-(NW1-1)*WS1) & 0xffffffff:#x}")
    a(f"s_mov_b32 s52, {(-(NXS-1)*XSLOT) & 0xffffffff:#x}")
    a("s_mov_b32 s46, 0")
    a("s_mov_b32 s47, 0")
    a("s_mov_b32 s48, 8")
    a("s_waitcnt lgkmcnt(0)")
    def reads(fs, ks, nu):
        kk = ks & 1
        X = lambda t: f"ds_read_b128 {vr(fs+4*t)}, v{VXA+ks} offset:{t*4096}"
        W = lambda u, j: f"ds_read_b64_tr_b16 {vr(fs+8+4*u+2*j, 2)}, v{VW} offset:{u*4096 + kk*2048 + j*512}"
        l = [X(0), W(0,0), W(0,1), X(1)]
        for u in range(1, nu): l += [W(u,0), W(u,1)]
        return l
    def loop(name, cts, swap, nu_next_last, hook=None):
        nu = len(cts)
        NWS, WSLOT = (NW1, WS1) if nu == 3 else (NW2, WS2)
        a.label(name)
        for ks in range(4):
            kk = ks & 1
            cur, nxt = (FR0, FR1) if kk == 0 else (FR1, FR0)
            mms = []
            for u, ct in enumerate(cts):
                for t in range(2):
                    d = vr(acc(t, ct), 16); w = vr(cur + 8 + 4*u); x = vr(cur + 4*t)
                    mms.append(f"{MF} {d}, {x}, {w}, {d}" if (swap and ct < 4) else f"{MF} {d}, {w}, {x}, {d}")
            if ENV("FAKE16"):
                mms = []
                for u, ct in enumerate(cts):
                    for t in range(2):
                        w = vr(cur + 8 + 4*u); x = vr(cur + 4*t)
                        d0, d1 = vr(acc(t, ct) + 8*kk, 4), vr(acc(t, ct) + 8*kk + 4, 4)
                        x2 = vr(cur + 4*(1-t))
                        mms.append(f"v_mfma_f32_16x16x32_bf16 {d0}, {w}, {x}, {d0}")
                        mms.append(f"v_mfma_f32_16x16x32_bf16 {d1}, {x2}, {w}, {d1}")
            rd = reads(nxt, (ks + 1) & 3, nu)
            post = []
            if kk == 0:
                post += ["s_add_u32 s46, s46, 1", f"s_cmp_eq_u32 s46, {NWS}", f"s_cselect_b32 s49, s51, {WSLOT}", "s_cselect_b32 s46, 0, s46", f"v_add_u32 v{VW}, s49, v{VW}"]
                if ks == 2:
                    post += ["s_add_u32 s47, s47, 1", f"s_cmp_eq_u32 s47, {NXS}", f"s_cselect_b32 s50, s52, {XSLOT}", "s_cselect_b32 s47, 0, s47", f"v_add_u32 v{VXA}, s50, v{VXA}"]
            elif ks == 3:
                post += [f"v_add_u32 v{VXA+i}, s50, v{VXA+i}" for i in range(1, 4)] + ["s_sub_u32 s48, s48, 1", "s_cmp_lg_u32 s48, 0"]
            if ENV("P1W", "1") == "0":
                a("s_waitcnt lgkmcnt(0)")
                if kk == 1:
                    a(mms.pop(0))
                    a("s_barrier")
                other = rd + post
                per = 3
                while mms:
                    if kk == 0: a(mms.pop(0))
                    for _ in range(per):
                        if other: a(other.pop(0))
                    if kk == 1: a(mms.pop(0))
                for o in other: a(o)
            else:
                lg = Lgkm(a); lg.q = [("c", i) for i in range(8)]
                needs = [2, 3, 5, None, 7, None]
                BAR = int(ENV("P1BAR", "2"))
                for g in range(6):
                    if kk == 1 and g == BAR: lg.all()
                    elif needs[g] is not None: lg.need(("c", needs[g]))
                    a(mms[g])
                    if kk == 1 and g == BAR: a("s_barrier")
                    if kk == 0 or g >= BAR:
                        n = 2 if kk == 0 else -(-8 // (6 - BAR))
                        for _ in range(n):
                            if rd: lg.rd(("n", 0), rd.pop(0))
                    if not rd or (kk == 1 and g < BAR):
                        for _ in range(5 if kk == 0 else 3):
                            if post: a(post.pop(0))
                assert not rd
                for o in post: a(o)
        a(f"s_cbranch_scc1 {name}")
    a(f"s_lshl_b32 s68, s{sMB}, 2")
    a("s_lshl_b32 s69, s65, 1")
    a("s_add_u32 s69, s68, s69")
    a(f"v_add_u32 v9, {VROT}, v2")
    a("v_and_b32 v9, 15, v9")
    a(f"v_lshl_or_b32 v9, v{H4}, 4, v9")
    a("v_lshlrev_b32 v9, 4, v9")
    a("v_bfe_u32 v10, v2, 4, 1")
    a("v_lshl_or_b32 v9, v10, 16, v9")
    a(f"s_lshr_b32 s44, s{sNB}, 2")
    a("s_lshl_b32 s44, s44, 19")
    a("s_lshl_b32 s45, s66, 17")
    a("s_add_u32 s44, s44, s45")
    a("s_lshl_b32 s45, s69, 10")
    a("s_add_u32 s44, s44, s45")
    a(f"s_add_u32 s44, s44, {WS_V}")
    a(f"s_add_u32 s45, s44, {4*65536}")
    a(f"s_cmp_lt_u32 s{sNB}, 8")
    a(f"s_cselect_b32 s53, {f32(QSCALE)}, 1.0")
    a(f"s_lshl_b32 s67, s{sNB}, 2")
    a("s_lshl_b32 s68, s66, 1")
    a("s_add_u32 s67, s67, s68")
    a("s_lshl_b32 s67, s67, 16")
    a("s_lshl_b32 s68, s69, 10")
    a("s_add_u32 s67, s67, s68")
    a(f"s_add_u32 s54, s67, {WS_QK}")
    a("s_add_u32 s55, s54, 0x10000")
    a(f"s_mul_i32 s67, s69, {144*1024}")
    a("s_lshl_b32 s68, s66, 11")
    a("s_add_u32 s67, s67, s68")
    a(f"s_add_u32 s67, s67, {WS_AF + 32*1024}")
    for i in (1, 0):
        a(f"s_lshl_b32 s68, s{sNB if i else 81}, 12")
        a("s_add_u32 s68, s67, s68")
        for n in range(4): a(f"s_add_u32 s{DT + (1-i)*4 + n}, s68, {(n>>1)*144*1024 + (n&1)*1024}")
    a(f"v_mov_b32 v10, {f32(-GK1*0.044715)}")
    a(f"v_mov_b32 v11, {f32(-GK1*0.044715)}")
    a(f"v_mov_b32 v12, {f32(-GK1)}")
    a(f"v_mov_b32 v13, {f32(-GK1)}")
    attn_setup(a, 80)
    padat(a, "init")
    stamp(a, 2, VS)
    a("s_barrier")
    stamp(a, 3, VS)
    for l in reads(FR0, 0, 3): a(l)

    def f_qk():
        l = []
        for t in range(2):
            b = acc(t, 4)
            for hh in range(2):
                l += [f"v_mul_f32 v{b+8*hh+i}, s53, v{b+8*hh+i}" for i in range(8)]
                l += [f"v_cvt_pk_bf16_f32 v{b+8*hh+i}, v{b+8*hh+2*i}, v{b+8*hh+2*i+1}" for i in range(4)]
                l.append(f"buffer_store_dwordx4 {vr(b+8*hh)}, v3, {WSR}, s{54+hh} offen offset:{t*1024}{STS}")
        return l
    def f_v():
        l = []
        for j in range(2):
            for t in range(2):
                b = acc(t, 2*j)
                for hh in range(2):
                    l += [f"v_cvt_pk_bf16_f32 v{b+8*hh+i}, v{b+8*hh+2*i}, v{b+8*hh+2*i+1}" for i in range(4)]
                    l.append(f"buffer_store_dwordx4 {vr(b+8*hh)}, v9, {WSR}, s{44+j} offen offset:{t*1024 + hh*512}{STS}")
        return l
    def f_gelu1():
        l = []
        for t in range(2):
            for q in range(4):
                G, U, T = acc(t, 0) + 4*q, acc(t, 2) + 4*q, 64 + (q & 1) * 4
                l += [f"v_mul_f32 v{T+p}, v{G+p}, v{G+p}" for p in range(4)]
                l += [f"v_fma_f32 v{T+p}, v{T+p}, v10, v12" for p in range(4)]
                l += [f"v_mul_f32 v{T+p}, v{T+p}, v{G+p}" for p in range(4)]
                for p in range(4): l += [f"v_exp_f32 v{T+p}, v{T+p}", f"v_mul_f32 v{U+p}, v{U+p}, v{G+p}"]
                l += [f"v_add_f32 v{T+p}, 1.0, v{T+p}" for p in range(4)]
                l += [f"v_rcp_f32 v{T+p}, v{T+p}" for p in range(4)]
                l += [f"v_mul_f32 v{U+p}, v{U+p}, v{T+p}" for p in range(4)]
                o = HP + 16 + t*8 + q*2
                l += [f"v_cvt_pk_bf16_f32 v{o+p}, v{U+2*p}, v{U+2*p+1}" for p in range(2)]
        return l
    SPK = int(ENV("SPK", "4"))
    def pass2(fill, PUBS, gap):
        cost = lambda x: 8 if x.startswith(("v_exp", "v_rcp")) else 4
        X2 = ENV("X2", "")
        if "F" in X2: fill = [x for x in fill if False]
        if "S" in X2: fill = [x for x in fill if not x.startswith("buffer_store")]
        if "G" in X2: fill = fill[:52]
        FS = (FR0, FR1, 72)
        lg = Lgkm(a)
        lg.q = [(0, i) for i in range(6)] + [("junk", 0)] * 2
        def rds(m):
            fs = FS[m % 3]
            wo_ = wslot(16 + (m >> 1))[0] - LW2 + (m & 1) * 2048
            X = lambda t: f"ds_read_b128 {vr(fs+4*t)}, v{VXA + (m & 3)} offset:{t*4096}"
            W = lambda u, j: f"ds_read_b64_tr_b16 {vr(fs+8+4*u+2*j, 2)}, v{VW} offset:{wo_ + u*4096 + j*512}"
            l = [((m, i), x) for i, x in enumerate([X(0), W(0,0), W(0,1), X(1), W(1,0), W(1,1)])]
            j = 8 + (m >> 2)
            if m < 28:
                dx = (((j + 1) % NXS) - (j % NXS)) * XSLOT & 0xffffffff
                l.append((None, f"v_add_u32 v{VXA + (m & 3)}, {dx:#x}, v{VXA + (m & 3)}"))
            return l
        def put(e):
            if e[0] is None: a(e[1])
            else: lg.rd(e[0], e[1])
        nxt_store = 0
        put(rds(0)[-1])
        for e in rds(1): put(e)
        for n in range(32):
            kk, st = n & 1, 16 + (n >> 1)
            cur = FS[n % 3]
            rd = rds(n + 2) if n + 2 < 32 else []
            nst = 0
            for g, (u, t) in enumerate(((0, 0), (0, 1), (1, 0), (1, 1))):
                ct = (1, 3)[u]
                before = len(a.lines)
                lg.need(*[(n, i) for i in range(6)])
                bud = 24 - 4 * (len(a.lines) - before)
                a(f"{MF} {vr(acc(t, ct), 16)}, {vr(cur + 8 + 4*u)}, {vr(cur + 4*t)}, {vr(acc(t, ct), 16)}")
                if g == 0 and kk == 0 and st <= LASTB:
                    if st == PUBS:
                        assert not any(x.startswith("buffer_store") for x in fill)
                        a("s_waitcnt vmcnt(0)"); bud -= 4
                    if "B" not in X2: a("s_barrier"); bud -= 4
                    if st == LASTB and ENV("CPRIO", "0") == "1": a("s_setprio 3"); bud -= 4
                for _ in range(2):
                    if rd and len(lg.q) < 15: put(rd.pop(0)); bud -= 4
                while n >= 1 and fill and bud >= cost(fill[0]):
                    if fill[0].startswith("buffer_store"):
                        if 4*n + g < nxt_store: break
                        nxt_store = 4*n + g + gap
                    bud -= cost(fill[0]); a(fill.pop(0))
            assert not rd
        for x in fill: a(x)
        print("pass-2 filler left over:", len(fill), file=sys.stderr)
    a(f"s_cmp_eq_u32 s{sVC}, 1")
    a("s_cbranch_scc1 L_p1loopV")
    loop("L_p1loopA", (0, 2, 4), False, 2)
    stamp(a, 4, VS)
    pass2(f_qk() + f_gelu1(), PUBS, int(ENV('GAPA', '1')))
    a("s_branch L_p2done")
    loop("L_p1loopV", (0, 2, 4), True, 2)
    stamp(a, 4, VS)
    pass2(f_v() + f_qk(), PUBC, int(ENV('GAPC', '1')))
    a.label("L_p2done")
    stamp(a, 6, VS)
    n = 0
    for t in range(2):
        g, u = acc(t, 1), acc(t, 3)
        for hh in range(2):
            T = 16 + (n & 1) * 8; n += 1
            G, U = g + 8*hh, u + 8*hh
            for p in range(4): a(f"v_pk_mul_f32 {vr(T+2*p,2)}, {vr(G+2*p,2)}, {vr(G+2*p,2)}")
            for p in range(4): a(f"v_pk_fma_f32 {vr(T+2*p,2)}, {vr(T+2*p,2)}, v[10:11], v[12:13]")
            for p in range(4): a(f"v_pk_mul_f32 {vr(T+2*p,2)}, {vr(T+2*p,2)}, {vr(G+2*p,2)}")
            if n == 1: one_lane(a, "ds_add_u32 v14, v15")
            for p in range(8): a(f"v_exp_f32 v{T+p}, v{T+p}")
            for p in range(4): a(f"v_pk_mul_f32 {vr(U+2*p,2)}, {vr(U+2*p,2)}, {vr(G+2*p,2)}")
            for p in range(4): a(f"v_pk_add_f32 {vr(T+2*p,2)}, {vr(T+2*p,2)}, 1.0 op_sel_hi:[1,0]")
            for p in range(8): a(f"v_rcp_f32 v{T+p}, v{T+p}")
            for p in range(4): a(f"v_pk_mul_f32 {vr(U+2*p,2)}, {vr(U+2*p,2)}, {vr(T+2*p,2)}")
            o = HP + (t*2 + hh) * 4
            for p in range(4): a(f"v_cvt_pk_bf16_f32 v{o+p}, v{U+2*p}, v{U+2*p+1}")
    stamp(a, 7, VS)

PUBC = int(ENV("PUBC", "22"))
PUBS = int(ENV("PUBS", "22"))

def p1_loader(a):
    a.label("L_loader")
    if ENV("LPRIO", "1") == "1": a("s_setprio 3")
    a(f"s_sub_u32 s65, s{sWAVE}, 4")
    a("s_lshl_b32 s66, s65, 3")
    a("v_add_u32 v8, s66, v8")
    a("v_lshrrev_b32 v5, 4, v2")
    a("s_and_b32 s66, s65, 1")
    a("s_lshl_b32 s66, s66, 2")
    a("v_add_u32 v5, s66, v5")
    a("v_xor_b32 v5, v5, v4")
    a("v_lshlrev_b32 v5, 4, v5")
    a("v_lshl_add_u32 v12, v8, 10, v5")
    a(f"s_lshl_b32 s74, s{sMB}, 17")
    a("s_lshl_b32 s75, s65, 10")
    a(f"s_lshl_b32 s90, s{sNB}, 1")
    a(f"s_add_u32 s90, s90, s{sMB}")
    if ENV("ROT", "7") == "2":
        a(f"s_lshr_b32 s91, s{sNB}, 2")
        a("s_add_u32 s90, s90, s91")
    if ENV("ROT", "7") == "0": a("s_mov_b32 s90, 0")
    if ENV("ROT", "7") == "5": a(f"s_mov_b32 s90, s{sMB}")
    if ENV("ROT", "7") == "6": a(f"s_lshl_b32 s90, s{sNB}, 1")
    if ENV("ROT", "7") in ("8", "9"):
        a(f"s_and_b32 s90, s{sMB}, 14")
        if ENV("ROT") == "8":
            a(f"s_lshl_b32 s91, s{sNB}, 2")
            a("s_add_u32 s90, s90, s91")
    if ENV("ROT", "7") == "7":
        a(f"s_lshl_b32 s90, s{sNB}, 2")
        a(f"s_add_u32 s90, s90, s{sMB}")
    if ENV("ROT", "7") in ("3", "4"):
        a(f"s_add_u32 s90, s{sNB}, s{sMB}")
        a(f"s_lshl_b32 s90, s90, {1 if ENV('ROT') == '3' else 2}")
    a("s_lshl_b32 s91, s90, 1")
    issued = []
    DNT = " nt" if ENV("DNT") else ""
    PNT = " nt" if ENV("PNT") else ""
    def dma(voff, srdn, soff, m0val, pre):
        a(f"s_add_u32 m0, s75, {m0val}")
        a(pre)
        if "D" in ENV("X2", "") and voff == 10: a("s_nop 0")
        else: a(f"buffer_load_dwordx4 v{voff}, {SR(srdn)}, s{soff} offen{DNT} lds")
    def itemsW(s):
        base, size = wslot(s)
        free = max([-1] + [p + (p >= 16) for p in range(s) if wslot(p)[0] < base + size and base < wslot(p)[0] + wslot(p)[1]])
        def f(u):
            def g():
                if u == 0:
                    a(f"s_add_u32 s92, s91, {s if s < 16 else s + 2*KROT}")
                    a("s_and_b32 s92, s92, 15")
                    if s < 16:
                        a(f"s_mul_i32 s93, s92, {32*3072}")
                        a("s_mul_i32 s92, s92, s73")
                    else: a(f"s_mul_i32 s92, s92, {32*3584}")
                if s < 16:
                    if u == 0: dma(13, S_WA, 76, base, "s_add_u32 s76, s71, s92")
                    if u == 1: dma(13, S_WB, 76, base + 4096, "s_add_u32 s76, s69, s92")
                    if u == 2: dma(11, S_WC, 76, base + 8192, "s_add_u32 s76, s70, s93")
                else:
                    dma(10, (S_G, S_U)[u], 76, base + 4096*u, "s_add_u32 s76, s70, s92")
                issued.append(("W", s))
            return g
        return [(free, f(u)) for u in range(3 if s < 16 else 2)]
    def itemsX(j):
        base = LX + (j % NXS) * XSLOT
        def f(m):
            def g():
                if m == 0:
                    a(f"s_add_u32 s99, s90, {j if j < 8 else j + KROT}")
                    a("s_and_b32 s99, s99, 7")
                    a("s_lshl_b32 s99, s99, 7")
                    a("s_add_u32 s99, s99, s74")
                dma(12, S_X, 76, base + m*4096, f"s_add_u32 s76, s99, {m*32768}")
                issued.append(("X", j))
            return g
        if 8 <= j < 8 + NXS: return []
        return [(2*(j-NXS) + 1 + (j - NXS >= 8), f(m)) for m in range(4)]
    queue = []
    for j in range(16): queue += itemsX(j) + itemsW(2*j) + itemsW(2*j+1)
    def issue(nmax, bar):
        n = 0
        while queue and n < nmax and queue[0][0] <= bar:
            queue.pop(0)[1](); n += 1
    def wait_stage(s):
        assert sum(e == ("W", s) for e in issued) == (3 if s < 16 else 2) and sum(e == ("X", s // 2) for e in issued) == (0 if 8 <= s // 2 < 8 + NXS else 4), s
        last = max(k for k, e in enumerate(issued) if e == ("W", s) or e == ("X", s // 2))
        n = len(issued) - 1 - last
        assert n <= 63
        a(f"s_waitcnt vmcnt({n})")
    def wait_tag(tag):
        n = len(issued) - 1 - max(k for k, e in enumerate(issued) if e == tag)
        assert n <= 63
        a(f"s_waitcnt vmcnt({n})")
    stamp(a, 22, VS)
    issue(4, -1)
    a("s_lshl_b32 s66, s65, 8")
    a("s_or_b32 s66, s66, s2")
    a(f"s_cselect_b32 s83, {OOB:#x}, 0")
    a(f"s_add_u32 s84, s83, {WS_TAG}")
    a("v_mov_b32 v5, 0")
    a(f"buffer_load_dword v14, v5, {WSR}, s84 offen{ST}")
    issued.append(("T", 0))
    srd(a, S_G, 12, 13, 512 * 3584)
    srd(a, S_U, 14, 15, 512 * 3584)
    srd(a, S_WC, 6, 7, 512 * 3072)
    a(f"s_cmp_eq_u32 s{sVC}, 1")
    a(f"s_cselect_b32 s{S_WA}, s6, s12")
    a(f"s_cselect_b32 s{S_WA+1}, s7, s13")
    a(f"s_cselect_b32 s{S_WA+2}, s{S_WC+2}, s{S_G+2}")
    a(f"s_mov_b32 s{S_WA+3}, 0x00020000")
    a(f"s_cselect_b32 s{S_WB}, s6, s14")
    a(f"s_cselect_b32 s{S_WB+1}, s7, s15")
    a(f"s_mov_b32 s{S_WB+2}, s{S_WA+2}")
    a(f"s_mov_b32 s{S_WB+3}, 0x00020000")
    a("s_movk_i32 s66, 3072")
    a("s_cselect_b32 s66, s66, 3584")
    a("v_mul_u32_u24 v6, 3584, v8")
    a("v_add_u32 v10, v6, v9")
    a("v_mul_u32_u24 v6, 3072, v8")
    a("v_add_u32 v11, v6, v9")
    a("v_mul_u32_u24 v6, s66, v8")
    a("v_add_u32 v13, v6, v9")
    a("s_lshl_b32 s73, s66, 5")
    a("s_lshl_b32 s67, s81, 7")
    a(f"s_lshr_b32 s68, s{sNB}, 2")
    a("s_lshl_b32 s68, s68, 8")
    a("s_add_u32 s68, s68, 2048")
    a("s_add_u32 s69, s68, 128")
    a(f"s_cmp_eq_u32 s{sVC}, 1")
    a("s_cselect_b32 s71, s68, s67")
    a("s_cselect_b32 s69, s69, s67")
    a("s_mov_b32 s94, s71")
    a("s_mov_b32 s95, s69")
    a(f"s_lshl_b32 s70, s{sNB}, 7")
    PFK = ENV("PF", "0") == "4"
    if PFK:
        issue(3, -1)
        a("s_lshr_b32 s66, s2, 1")
        a("s_and_b32 s67, s2, 1")
        a("s_mul_i32 s68, s66, 3072")
        a("s_mul_i32 s76, s67, 1536")
        a("s_add_u32 s68, s68, s76")
        a("s_mul_i32 s66, s66, 3584")
        a("s_mul_i32 s67, s67, 768")
        a("s_add_u32 s66, s66, s67")
        a("s_add_u32 s66, s66, 2048")
        a("s_lshl_b32 s67, s2, 13")
        a("s_cmp_eq_u32 s65, 1")
        a("s_cselect_b32 s66, s68, s66")
        a("s_cselect_b32 s76, 11, 5")
        a(f"s_mov_b32 s77, {128*3584}")
        a(f"s_cselect_b32 s77, {128*3072}, s77")
        a("s_cselect_b32 s94, s6, s12")
        a("s_cselect_b32 s95, s7, s13")
        a("s_cmp_eq_u32 s65, 3")
        a("s_cselect_b32 s94, s14, s94")
        a("s_cselect_b32 s95, s15, s95")
        a("v_min_u32 v28, s76, v2")
        a("v_lshl_add_u32 v28, v28, 7, s66")
        a("v_bfe_u32 v29, v2, 1, 3")
        a("v_lshl_add_u32 v29, v29, 10, s67")
        a("v_and_b32 v27, 1, v2")
        a("v_lshl_add_u32 v29, v27, 7, v29")
        a("s_cmp_eq_u32 s65, 0")
        a("s_cselect_b32 s94, s4, s94")
        a("s_cselect_b32 s95, s5, s95")
        a("s_cselect_b32 s77, 256, s77")
        a("s_cselect_b64 vcc, -1, 0")
        a("v_cndmask_b32 v28, v28, v29, vcc")
        for n in [int(x) for x in ENV("PFPOS", "0,3,7,3").split(",")]:
            issue(n, -1)
            a("s_mov_b64 exec, 0xffff")
            a("global_load_dword v30, v28, s[94:95]")
            a("s_mov_b64 exec, -1")
            a("v_add_u32 v28, s77, v28")
            issued.append(("P", 0))
    else:
        issue(int(ENV("FIRST", "6")), -1)
    def prefetch(kinds):
        a("s_mov_b32 s94, s4"); a("s_mov_b32 s95, s5")
        for r in (66, 67, 68, 76): a(f"s_mov_b32 s{r}, 0")
        a("s_mov_b32 s77, 0")
        for lw, k in enumerate(kinds):
            if k is None: continue
            p, per, first, n, T, J = k
            a(f"s_cmp_eq_u32 s65, {lw}")
            a(f"s_cselect_b32 s94, s{p}, s94")
            a(f"s_cselect_b32 s95, s{p+1}, s95")
            a(f"s_cselect_b32 s66, {per}, s66")
            a(f"s_cselect_b32 s67, {first}, s67")
            a(f"s_cselect_b32 s68, {n-1}, s68")
            a(f"s_cselect_b32 s76, {T}, s76")
            a(f"s_cselect_b32 s77, {J}, s77")
        a("s_mul_i32 s66, s66, s2")
        a("s_add_u32 s66, s66, s67")
        a("v_min_u32 v28, s68, v2")
        a("v_mov_b32 v29, s77")
        a("v_cmp_le_u32 vcc, s76, v28")
        a("v_lshl_add_u32 v28, v28, 7, s66")
        a("v_cndmask_b32 v29, 0, v29, vcc")
        a("v_add_u32 v28, v28, v29")
        a("global_load_dword v30, v28, s[94:95]")
        issued.append(("P", 0))
    PF = ENV("PF", "0") in ("1", "3")
    PFX = ENV("PF", "0") in ("2", "3")
    def prefetch_x1():
        a("s_lshr_b32 s66, s2, 3")
        a("s_and_b32 s67, s2, 1")
        a("s_lshl_b32 s67, s67, 20")
        a("s_lshl_b32 s68, s66, 15")
        a("s_add_u32 s67, s67, s68")
        a("s_lshl_b32 s68, s65, 13")
        a("s_add_u32 s67, s67, s68")
        a("v_lshlrev_b32 v28, 7, v2")
        a("s_and_b32 s66, s66, 7")
        a("s_lshl_b32 s66, s66, 6")
        a("v_add_u32 v27, s66, v2")
        a("s_lshr_b32 s68, s73, 5")
        a("v_mul_u32_u24 v29, s68, v27")
        a("v_mul_u32_u24 v26, 3072, v27")
        a("s_cmp_eq_u32 s65, 0")
        a(f"s_cselect_b32 s66, s94, {OOB:#x}")
        a(f"buffer_load_dword v30, v29, {SR(S_WA)}, s66 offen{PNT}")
        a("s_cmp_eq_u32 s65, 1")
        a(f"s_cselect_b32 s66, s95, {OOB:#x}")
        a(f"buffer_load_dword v30, v29, {SR(S_WB)}, s66 offen{PNT}")
        a(f"s_lshl_b32 s66, s{sNB}, 7")
        a("s_cmp_eq_u32 s65, 2")
        a(f"s_cselect_b32 s66, s66, {OOB:#x}")
        a(f"buffer_load_dword v30, v26, {SR(S_WC)}, s66 offen{PNT}")
        a(f"buffer_load_dword v30, v28, {SR(S_X)}, s67 offen{PNT}")
        issued.extend([("P", 0)] * 4)
    def prefetch_x2():
        a("v_mul_u32_u24 v29, 3584, v27")
        a(f"s_lshl_b32 s67, s{sNB}, 7")
        a("s_cmp_eq_u32 s65, 1")
        a(f"s_cselect_b32 s66, s67, {OOB:#x}")
        a(f"buffer_load_dword v30, v29, {SR(S_G)}, s66 offen{PNT}")
        a("s_cmp_eq_u32 s65, 2")
        a(f"s_cselect_b32 s66, s67, {OOB:#x}")
        a(f"buffer_load_dword v30, v29, {SR(S_U)}, s66 offen{PNT}")
        issued.extend([("P", 0)] * 2)
    if PFX and not PF: prefetch_x1()
    if PF: prefetch([(4, 8192, 0, 64, 0, 0), (6, 6144, 0, 48, 0, 0), (12, 7168, 2048, 24, 12, 2048), (14, 7168, 2048, 24, 12, 2048)])
    srd(a, S_RO, 8, 9, 512 * 1024)
    a("v_and_b32 v15, 7, v8")
    a("v_lshl_add_u32 v15, v15, 10, v9")
    a("s_lshl_b32 s78, s65, 11")
    a(f"s_add_u32 s78, s78, {LRD}")
    a("s_lshr_b32 s66, s2, 3")
    a("s_and_b32 s67, s2, 7")
    a("s_lshl_b32 s66, s66, 14")
    a("s_lshl_b32 s67, s67, 7")
    a("s_add_u32 s66, s66, s67")
    a("s_and_b32 s67, s65, 1")
    a("s_lshl_b32 s68, s67, 13")
    a("s_lshl_b32 s67, s67, 10")
    a(f"s_add_u32 m0, s67, {LRO}")
    a("s_add_u32 s66, s66, s68")
    a(f"buffer_load_dwordx4 v15, {SR(S_RO)}, s66 offen{PNT} lds")
    issued.append(("P", 1))
    issue(int(ENV("BURST", "0")), -1)
    a("v_bfe_u32 v18, v2, 2, 2")
    a("v_and_b32 v31, 3, v2")
    a("v_bfe_u32 v19, v2, 4, 1")
    a("v_lshlrev_b32 v31, 3, v31")
    a("v_lshl_or_b32 v31, v19, 5, v31")
    a("v_lshrrev_b32 v19, 1, v18")
    a("v_lshl_or_b32 v31, v19, 6, v31")
    a("v_lshl_or_b32 v31, v18, 7, v31")
    a("v_lshrrev_b32 v19, 5, v2")
    a("v_lshl_or_b32 v31, v19, 9, v31")
    a("v_add_u32 v18, s78, v31")
    a("v_xor_b32 v19, 64, v18")
    a("s_cmp_eq_u32 s65, 0")
    a(f"s_cselect_b32 s82, s82, {OOB:#x}")
    a(f"s_cselect_b32 s85, 0, {OOB:#x}")
    a("v_mov_b32 v6, 1")
    a("v_lshlrev_b32 v4, 7, v2")
    for i in range(4): a(f"s_add_u32 s{86+i}, s85, {WS_F1 + i*8192}")
    stamp(a, 2, VS)
    wait_stage(0)
    stamp(a, 3, VS)
    a("s_barrier")
    a("v_add_u32 v14, 1, v14")
    a("v_max_u32 v14, 1, v14")
    one_lane(a, f"buffer_store_dword v14, v5, {WSR}, s84 offen{ST}")
    issued.append(("T", 1))
    def ld1():
        for i in range(4): a(f"buffer_load_dwordx2 {vr(20+2*i,2)}, v4, {WSR}, s{86+i} offen{ST}")
    PER1, PER2, PSW = [int(x) for x in ENV("PER", "7,4,10").split(",")]
    issue(int(ENV("PER0", "7")), -1)
    def cmp1():
        for i in range(4):
            a(f"v_xor_b32 v{20+2*i}, v{20+2*i}, v16")
            a(f"v_xor_b32 v{21+2*i}, v{21+2*i}, v17")
        a("v_or3_b32 v20, v20, v21, v22")
        a("v_or3_b32 v23, v23, v24, v25")
        a("v_or3_b32 v20, v20, v26, v27")
        a("v_or_b32 v20, v20, v23")
        a("v_cmp_ne_u32 vcc, 0, v20")
    def ltable(t, regs):
        for i in range(8): a(f"v_mov_b32 v{HP+8+i}, -1")
        r = regs[2]
        a(f"s_lshl_b32 s{r}, s{sQB}, 3")
        a(f"s_lshl_b32 s{t}, s65, 1")
        a(f"s_add_u32 s{r}, s{r}, s{t}")
        a(f"s_mul_i32 s{r}, s{r}, {144*1024}")
        a(f"s_lshl_b32 s{t}, s{sHEAD}, 10")
        a(f"s_add_u32 s{r}, s{r}, s{t}")
        a(f"s_add_u32 s{r}, s{r}, {WS_AF}")
        a(f"s_add_u32 s{regs[3]}, s{r}, {144*1024}")
    a(f"s_lshr_b32 s66, s{sHEAD}, 2")
    a("s_lshl_b32 s67, s66, 11")
    a(f"s_lshl_b32 s68, s{sQB}, 8")
    a("s_add_u32 s68, s68, s67")
    a(f"s_add_u32 s67, s67, {8*2048}")
    a(f"s_lshr_b32 s66, s{sHEAD}, 3")
    a("s_lshl_b32 s66, s66, 13")
    a(f"s_add_u32 s66, s66, {2*2048}")
    a(f"v_add_u32 v{WO+3}, s67, v4")
    a("v_add_u32 v71, s66, v4")
    a("v_and_b32 v72, 1, v2")
    a("v_lshl_add_u32 v72, v72, 7, s68")
    a("v_cmp_gt_u32 vcc, 32, v2")
    a("v_cndmask_b32 v71, v72, v71, vcc")
    a("v_cmp_gt_u32 vcc, 16, v2")
    a(f"v_cndmask_b32 v{WO+3}, v71, v{WO+3}, vcc")
    a(f"v_mov_b32 v7, {LCNT}")
    SIDE1, SIDE2 = [int(x) for x in ENV("SIDE", "23,26").split(",")]
    LATE_SIDE = ENV("LATE_SIDE", "1") == "1"
    def side_out():
        wait_tag(("S", 0))
        for nl in range(2):
            for j in range(2): a(f"ds_read_b64_tr_b16 {vr(HP+4*nl+2*j,2)}, v{18+nl} offset:{j*1024}")
        a("v_mov_b32 v64, 0")
        a("v_mov_b32 v65, 0")
        for i in range(4):
            a(f"v_dot2_f32_bf16 v64, v{48+i}, v{56+i}, v64")
            a(f"v_dot2_f32_bf16 v65, v{52+i}, v{56+i}, v65")
        a("v_cmp_eq_u32 vcc, 0, v2")
        a("s_waitcnt lgkmcnt(0)")
        for mod in ("quad_perm:[1,0,3,2]", "quad_perm:[2,3,0,1]", "row_half_mirror", "row_mirror"):
            for r in (64, 65): a(f"v_add_f32_dpp v{r}, v{r}, v{r} {mod} row_mask:0xf bank_mask:0xf")
        for r, sb in ((64, 66), (65, 52)):
            for q in range(4): a(f"v_readlane_b32 s{sb+q}, v{r}, {16*q}")
        a("v_mov_b32 v66, s66")
        a("v_mov_b32 v67, s52")
        for q in range(1, 4):
            a(f"v_add_f32 v66, s{66+q}, v66")
            a(f"v_add_f32 v67, s{52+q}, v67")
        a("v_cndmask_b32 v66, v67, v66, vcc")
        a(f"v_mul_f32 v66, {f32(-LOG2E)}, v66")
        a("v_exp_f32 v66, v66")
        a("v_lshlrev_b32 v68, 2, v2")
        a("v_add_f32 v66, 1.0, v66")
        a("v_rcp_f32 v66, v66")
        a("s_lshl_b32 s71, s71, 2")
        a(f"s_add_u32 s71, s71, {WS_G}")
        one_lane(a, f"buffer_store_dword v66, v68, {WSR}, s71 offen{ST}", 3)
        issued.append(("S", 1))
    for s in range(LASTB + 1):
        E0 = int(ENV("EARLY", "-100"))
        if s in (4, 10, 16, 24) and E0 < 0: stamp(a, {4: 4, 10: 5, 16: 6, 24: 7}[s], VS)
        if 0 <= s - E0 < 6: stamp(a, [4, 7, 24, 27, 21, 30][s - E0], VS)
        if s == LASTB:
            assert not queue
            wait_stage(31)
        else: wait_stage(s + 1)
        if 0 <= s - E0 < 6: stamp(a, [5, 8, 25, 28, 22, 31][s - E0], VS)
        if s < 16 or "B" not in ENV("X2", ""): a("s_barrier")
        if 0 <= s - E0 < 5: stamp(a, [6, 9, 26, 29, 23][s - E0], VS)
        issue(PER1 if s < PSW else PER2, s)
        if s == 3:
            wait_tag(("T", 1))
            if ENV("FIX0"):
                a("v_mov_b32 v80, s96")
                one_lane(a, f"buffer_store_dword v80, v5, {SR(S_DBG)}, s83 offen offset:8{ST}")
                issued.append(("T", 2))
            one_lane(a, f"buffer_store_dword v14, v5, {SR(S_DBG)}, s83 offen{ST}")
            issued.append(("T", 2))
        if s == int(ENV("PFB", "5")) and (PF or PFK):
            prefetch([(16, 7168, 0, 56, 0, 0), None, (12, 7168, 0, 32, 16, 1536), (14, 7168, 0, 32, 16, 1536)])
        if s == int(ENV("PFB", "5")) and PFX: prefetch_x2()
        if s == int(ENV("PF2", "-1")):
            a("s_lshr_b32 s66, s2, 3")
            a("s_and_b32 s66, s66, 7")
            a("s_lshl_b32 s66, s66, 6")
            a("s_lshr_b32 s67, s65, 1")
            a("s_lshl_b32 s67, s67, 5")
            a("s_add_u32 s66, s66, s67")
            a("v_and_b32 v27, 31, v2")
            a("v_add_u32 v27, s66, v27")
            a("v_mul_u32_u24 v29, 3584, v27")
            a("v_add_u32 v29, s70, v29")
            a("s_bitcmp1_b32 s65, 0")
            a("s_cselect_b32 s94, s14, s12")
            a("s_cselect_b32 s95, s15, s13")
            a("s_mov_b64 exec, 0xffffffff")
            a("global_load_dword v30, v29, s[94:95]")
            a("s_mov_b64 exec, -1")
            a(f"s_mul_i32 s66, s{sHEAD}, 3")
            a("s_add_u32 s66, s66, s65")
            a(f"s_add_u32 s67, s{sHEAD}, 96")
            a("s_cmp_eq_u32 s65, 3")
            a("s_cselect_b32 s66, s67, s66")
            a("s_min_u32 s66, s66, 111")
            a("s_lshl_b32 s66, s66, 14")
            a(f"s_lshl_b32 s67, s{sQB}, 7")
            a("s_add_u32 s66, s66, s67")
            a("v_lshl_add_u32 v29, v2, 10, s66")
            a("s_mov_b64 exec, 0xffff")
            a("global_load_dword v30, v29, s[16:17]")
            a("s_mov_b64 exec, -1")
            issued.extend([("P", 0)] * 2)
        if s == 9:
            a("s_cmp_lg_u32 s65, 0")
            a("s_cbranch_scc1 L_nowo2")
            for nl in range(2):
                for j in range(2): a(f"ds_read_b64_tr_b16 {vr(36+4*nl+2*j,2)}, v{18+nl} offset:{LRO - LRD + j*1024}")
            a("s_lshr_b32 s66, s2, 3")
            a("s_and_b32 s67, s2, 7")
            a(f"s_mul_i32 s67, s67, {2*144*1024}")
            a("s_lshl_b32 s66, s66, 10")
            a("s_add_u32 s66, s66, s67")
            a(f"s_add_u32 s66, s66, {WS_WF}")
            a(f"s_add_u32 s67, s66, {144*1024}")
            a(f"s_lshl_b32 s68, s{sMB}, 11")
            a(f"s_lshl_b32 s76, s{sNB}, 7")
            a("s_add_u32 s68, s68, s76")
            a(f"s_add_u32 s68, s68, {WS_F2}")
            a(f"s_lshl_b32 s76, s{sQB}, 12")
            a(f"s_lshl_b32 s77, s{sHEAD}, 7")
            a("s_add_u32 s76, s76, s77")
            a(f"s_add_u32 s76, s76, {WS_F3}")
            zero(a, 44, 4)
            a("s_waitcnt lgkmcnt(0)")
            a(f"buffer_store_dwordx4 v[36:39], v3, {WSR}, s66 offen{STS}")
            a(f"buffer_store_dwordx4 v[40:43], v3, {WSR}, s67 offen{STS}")
            a("s_mov_b64 exec, 1")
            a(f"buffer_store_dwordx4 v[44:47], v3, {WSR}, s68 offen{STS}")
            a(f"buffer_store_dword v44, v3, {WSR}, s76 offen{ST}")
            a("s_mov_b64 exec, -1")
            a.label("L_nowo2")
        if s == SIDE1:
            srd(a, S_RD, 16, 17, 1792 * 1024)
            srd(a, S_GW, 18, 19, 1024)
            a(f"s_mul_i32 s66, s{sHEAD}, 3")
            a("s_add_u32 s66, s66, s65")
            a(f"s_add_u32 s67, s{sHEAD}, 96")
            a("s_cmp_eq_u32 s65, 3")
            a("s_cselect_b32 s66, s67, s66")
            a("s_lshl_b32 s69, s66, 14")
            a(f"s_lshl_b32 s68, s{sQB}, 7")
            a("s_mov_b32 m0, s78")
            a("s_add_u32 s69, s69, s68")
            a(f"buffer_load_dwordx4 v15, {SR(S_RD)}, s69 offen{PNT} lds")
            a("s_add_u32 m0, s78, 1024")
            a("s_add_u32 s69, s69, 8192")
            a(f"buffer_load_dwordx4 v15, {SR(S_RD)}, s69 offen{PNT} lds")
            a(f"s_mul_i32 s79, s{sQB}, {2*144*1024}")
            a("s_lshl_b32 s67, s66, 10")
            a("s_add_u32 s79, s79, s67")
            a(f"s_add_u32 s79, s79, {WS_WF + 32*1024}")
            a("s_cmp_lt_u32 s66, 112")
            a(f"s_cselect_b32 s79, s79, {OOB:#x}")
            a(f"s_add_u32 s80, s79, {144*1024}")
            a(f"s_lshl_b32 s71, s{sMB}, 7")
            a(f"s_lshl_b32 s67, s{sNB}, 3")
            a("s_add_u32 s71, s71, s67")
            a("s_lshl_b32 s67, s65, 1")
            a("s_add_u32 s71, s71, s67")
            a("s_lshl_b32 s67, s71, 10")
            a(f"buffer_load_dwordx4 v[48:51], v3, {SR(S_X)}, s67 offen")
            a(f"buffer_load_dwordx4 v[52:55], v3, {SR(S_X)}, s67 offen offset:1024")
            a(f"buffer_load_dwordx4 v[56:59], v3, {SR(S_GW)}, 0 offen")
            issued.extend([("S", 0)] * 5)
        if False:
            pass
            if LEARLY:
                ltable(68, (79, 80, 66, 67))
                for n, r in enumerate((79, 80, 66, 67)): a(f"buffer_store_dwordx4 {vr(HP+4*n)}, v3, {WSR}, s{r} offen{STS}")
                issued.extend([("S", 1)] * 4)
        if s == 14:
            a(f"buffer_load_dword v16, v5, {SR(S_DBG)}, s85 offen{ST}")
            issued.append(("T", 3))
        if s == min(PUBS, PUBC) - 1:
            a("s_cmp_lg_u32 s65, 0")
            a("s_cbranch_scc1 L_tagdone")
            wait_tag(("T", 3))
            a("v_cmp_eq_u32 vcc, 0, v16")
            a("s_cbranch_vccz L_pt_ok")
            poll(a, "L_pt", lambda: a(f"buffer_load_dword v16, v5, {SR(S_DBG)}, 0 offen{ST}"), lambda: a("v_cmp_eq_u32 vcc, 0, v16"))
            a("v_not_b32 v17, v16")
            a.label("L_tagdone")
        for typ, at in ((0, PUBS), (1, PUBC)):
            if s == at:
                a(f"s_lshl_b32 s66, s65, 1")
                a(f"s_add_u32 s66, s66, s{sVC}")
                a(f"s_cmp_lg_u32 s66, {typ}")
                a(f"s_cbranch_scc1 L_f1done{typ}")
                one_lane(a, f"buffer_store_dwordx2 v[16:17], v5, {WSR}, s82 offen{ST}")
                a.label(f"L_f1done{typ}")
        if s == LASTB - 1:
            lda(a, 86); issued.append(("F", 0))
    a("s_cmp_ge_u32 s65, 2")
    a("s_cbranch_scc1 L_nocs")
    const_setup(a, 9, 32, 8)
    const_write(a, 9, 32)
    a.label("L_nocs")
    if E0 < 0: stamp(a, 8, VS)
    a(f"s_lshl_b32 s56, s{sHEAD}, 16")
    a(f"s_lshl_b32 s67, s{sQB}, 13")
    a("s_lshl_b32 s57, s65, 11")
    a("s_add_u32 s59, s67, s57")
    a(f"s_mul_i32 s58, s65, {2*VST}")
    a(f"v_mov_b32 v{WO}, v16")
    a(f"v_mov_b32 v{WO+1}, v17")
    a("s_cmp_lg_u32 s65, 0")
    a("s_cbranch_scc1 L_wl")
    a("s_waitcnt vmcnt(0)")
    cmpa(a)
    a("s_cbranch_vccz L_ps1_ok")
    poll(a, "L_ps1", lambda: lda(a, 86), lambda: cmpa(a))
    a("ds_write_b32 v7, v6")
    a("s_branch L_wl_ok")
    a.label("L_wl")
    a(f"s_mov_b32 s98, {SPIN*8}")
    a.label("L_wl2")
    a("ds_read_b32 v8, v7")
    a("s_waitcnt lgkmcnt(0)")
    a("v_cmp_ne_u32 vcc, 1, v8")
    a("s_cbranch_vccz L_wl_ok")
    a("s_sleep 1")
    a("s_sub_u32 s98, s98, 1")
    a("s_cmp_lg_u32 s98, 0")
    a("s_cbranch_scc1 L_wl2")
    a.label("L_wl_ok")
    if E0 < 0: stamp(a, 9, VS)
    a("s_add_u32 s67, s59, s56")
    a(f"s_add_u32 m0, s57, {LQI}")
    a(f"s_add_u32 s67, s67, {WS_QK}")
    for i in range(2): a(f"buffer_load_dwordx4 v3, {WSR}, s67 offen offset:{i*1024}{ST} lds")
    for p0 in KVA: kv8(a, p0)
    issued.extend([("K", 0)] * (2 + 4*len(KVA)))
    stamp(a, 25, VS)
    side_out()
    a(f"s_mov_b32 s{DT}, s79")
    a(f"s_mov_b32 s{DT+1}, s80")
    ltable(68, (DT, DT+1, DT+2, DT+3))
    stamp(a, 26, VS)
    attn_setup(a, 80)
    const_setup(a, GFR+45, GFR+46, 80)
    a("s_branch L_attn")

KVA = (0, 8, 16, 24)[:int(ENV("KVA", "2"))]
def lda(a, sb): a(f"buffer_load_dwordx2 {vr(WO+12,2)}, v{WO+3}, {WSR}, s{sb} offen{ST}")
def cmpa(a):
    a(f"v_xor_b32 v{WO+12}, v{WO+12}, v{WO}")
    a(f"v_xor_b32 v{WO+13}, v{WO+13}, v{WO+1}")
    a(f"v_or_b32 v{WO+12}, v{WO+12}, v{WO+13}")
    a(f"v_cmp_ne_u32 vcc, 0, v{WO+12}")

def kv8(a, p0):
    a(f"s_add_u32 s94, s59, {p0*1024}")
    a("s_and_b32 s94, s94, 0xffff")
    a("s_add_u32 s94, s94, s56")
    a(f"s_add_u32 m0, s57, {LK + p0*1024}")
    a(f"s_add_u32 s67, s94, {WS_QK + 32*65536}")
    for i in range(2): a(f"buffer_load_dwordx4 v3, {WSR}, s67 offen offset:{i*1024}{ST} lds")
    a(f"s_add_u32 s67, s94, {WS_V}")
    for i in range(2):
        a(f"s_add_u32 m0, s58, {LV + (p0+i)*VST - i*1024}")
        a(f"buffer_load_dwordx4 v3, {WSR}, s67 offen offset:{i*1024}{ST} lds")

LEARLY = False
def const_setup(a, va, vd, t):
    a(f"v_and_b32 v{t}, 255, v0")
    a(f"v_lshrrev_b32 v{va}, 2, v{t}")
    a(f"v_mul_u32_u24 v{va}, {VST}, v{va}")
    a(f"v_and_b32 v{t}, 3, v{t}")
    a(f"v_mul_u32_u24 v{t}, v{t}, v{t}")
    a(f"v_min_u32 v{t}, 4, v{t}")
    a(f"v_lshl_add_u32 v{va}, v{t}, 4, v{va}")
    a(f"v_add_u32 v{va}, {LV + 1024}, v{va}")
    a(f"v_mov_b32 v{vd}, 0x3f803f80")
    if ONE_ROW:
        a(f"v_cmp_eq_u32 vcc, 0, v{t}")
        a(f"v_cndmask_b32 v{vd}, 0, v{vd}, vcc")
    a(f"v_mov_b32 v{vd+1}, v{vd}")
def const_write(a, va, vd):
    a(f"ds_write_b64 v{va}, {vr(vd,2)}")
    a(f"ds_write_b64 v{va}, {vr(vd,2)} offset:8")

VQ = 8
def attn_setup(a, t):
    a(f"s_and_b32 s65, s{sWAVE}, 3")
    a(f"s_lshr_b32 s66, s{sWAVE}, 2")
    a("s_lshl_b32 s67, s66, 10")
    a(f"v_add_u32 v{VK}, s67, v3")
    a(f"v_add_u32 v{t+0}, {VROT}, v2")
    a(f"v_and_b32 v{t+0}, 15, v{t+0}")
    a(f"v_lshrrev_b32 v{t+1}, 5, v2")
    a(f"v_lshl_or_b32 v{t+0}, v{t+1}, 4, v{t+0}")
    a(f"v_lshlrev_b32 v{t+0}, 4, v{t+0}")
    a(f"v_add_u32 v{t+1}, 512, v{t+0}")
    a(f"v_and_b32 v{t+2}, 31, v2")
    a(f"v_subrev_u32 v{t+3}, 20, v{t+2}")
    a(f"v_cmp_gt_u32 vcc, 8, v{t+3}")
    a(f"v_mov_b32 v{t+3}, 1040")
    a(f"v_mov_b32 v{t+4}, 1088")
    a(f"v_cndmask_b32 v{t+3}, v{t+3}, v{t+4}, vcc")
    a(f"v_cmp_eq_u32 vcc, 16, v{t+2}")
    a(f"v_mov_b32 v{t+4}, 1024")
    a(f"v_cndmask_b32 v{t+3}, v{t+3}, v{t+4}, vcc")
    a(f"v_cmp_gt_u32 vcc, 16, v{t+2}")
    a(f"v_cndmask_b32 v{t+0}, v{t+3}, v{t+0}, vcc")
    a(f"v_cndmask_b32 v{t+1}, v{t+3}, v{t+1}, vcc")
    a(f"s_mul_i32 s67, s66, {VST}")
    a(f"s_add_u32 s67, s67, {LV}")
    a(f"v_add_u32 v{VV0}, s67, v{t+0}")
    a(f"v_add_u32 v{VV1}, s67, v{t+1}")
    a("s_lshl_b32 s67, s65, 11")
    a(f"s_add_u32 s67, s67, {LQI}")
    a(f"v_add_u32 v{VQ}, s67, v3")
    a(f"s_lshl_b32 s73, s{sMB}, 11")
    a(f"s_lshl_b32 s74, s{sNB}, 7")
    a("s_add_u32 s73, s73, s74")
    a(f"s_add_u32 s73, s73, {WS_F2}")
    a(f"s_lshl_b32 s72, s{sQB}, 12")
    a(f"s_lshl_b32 s75, s{sHEAD}, 7")
    a("s_add_u32 s72, s72, s75")
    a(f"s_add_u32 s72, s72, {WS_F3}")
    a(f"s_lshr_b32 s74, s{sHEAD}, 1")
    a("s_lshl_b32 s74, s74, 11")
    a(f"s_add_u32 s74, s74, {WS_F2}")
    a(f"s_lshl_b32 s95, s{sQB}, 12")
    a(f"s_lshr_b32 s89, s{sHEAD}, 2")
    a("s_lshl_b32 s89, s89, 12")
    a("s_sub_u32 s89, s89, 4096")
    a(f"s_mov_b32 s88, {WS_F3}")
    a(f"s_and_b32 s68, s{sWAVE}, 1")
    a(f"s_lshr_b32 s69, s{sWAVE}, 1")
    a(f"s_lshl_b32 s84, s{sHEAD}, 1")
    a("s_add_u32 s84, s84, s68")
    a(f"s_mul_i32 s85, s84, {144*1024}")
    a(f"s_add_u32 s85, s85, {WS_AF}")
    a(f"s_mul_i32 s86, s{sQB}, {2*144*1024}")
    a(f"s_add_u32 s86, s86, {WS_WF}")
    a(f"s_mul_i32 s75, s69, {28*1024}")
    a(f"s_add_u32 s75, s75, {32*1024}")
    a("s_add_u32 s76, s85, s75")
    a("s_add_u32 s77, s86, s75")
    a(f"s_add_u32 s78, s77, {144*1024}")
    a("s_lshl_b32 s75, s69, 13")
    a("s_add_u32 s85, s85, s75")
    a("s_add_u32 s86, s86, s75")
    a(f"v_mov_b32 v{VG}, v3")
    a(f"s_lshl_b32 s79, s{sQB}, 3")
    a("s_lshl_b32 s80, s65, 1")
    a("s_add_u32 s79, s79, s80")
    a("s_add_u32 s79, s79, s66")
    a(f"s_mul_i32 s81, s79, {144*1024}")
    a(f"s_lshl_b32 s80, s{sHEAD}, 10")
    a("s_add_u32 s81, s81, s80")
    a(f"s_add_u32 s81, s81, {WS_AF}")
    a("s_lshl_b32 s87, s84, 7")
    a(f"s_add_u32 s87, s87, {WS_G}")
    a(f"s_mul_i32 s79, s{sWAVE}, 2304")
    a(f"s_add_u32 s79, s79, {LQ}")
    a(f"s_xor_b32 s80, s{sWAVE}, 4")
    a(f"s_lshl_b32 s82, s{sWAVE}, 2")
    a("s_lshl_b32 s83, s80, 2")
    a("s_mul_i32 s80, s80, 2304")
    a(f"s_add_u32 s80, s80, {LQ}")
    a(f"s_add_u32 s82, s82, {LC3}")
    a(f"s_add_u32 s83, s83, {LC3}")
    a(f"s_lshl_b32 s90, s{sHEAD}, 16")
    a(f"s_lshl_b32 s91, s{sWAVE}, 10")
    a(f"s_mul_i32 s92, s{sWAVE}, {VST}")
    a(f"s_lshl_b32 s93, s{sQB}, 13")
    a("s_add_u32 s93, s93, s91")

def attn(a):
    a.label("L_attn")
    T0 = GFR + 36
    a(f"v_mov_b32 v{T0+2}, s73")
    a(f"v_writelane_b32 v{T0+2}, s72, 1")
    a(f"v_mov_b32 v{T0+3}, 1")
    a(f"v_mov_b32 v{T0+4}, {LCNT+4}")
    g = T0 + 5
    a(f"v_and_b32 v{g+2}, 15, v2")
    a(f"v_lshlrev_b32 v{g+2}, 7, v{g+2}")
    a(f"v_mov_b32 v{g}, s95")
    a(f"v_mov_b32 v{g+1}, s89")
    a("v_cmp_gt_u32 vcc, 32, v2")
    a(f"v_cndmask_b32 v{g}, v{g+1}, v{g}, vcc")
    a(f"v_lshl_add_u32 v{g+3}, v2, 7, v{g}")
    a(f"v_lshlrev_b32 v{WO+2}, 7, v2")
    stamp(a, 27, VS)
    a(f"v_mov_b32 v{T0+1}, {LCNT}")
    def ldswait(name, off, val):
        a(f"s_mov_b32 s98, {SPIN*8}")
        a.label(name)
        a(f"ds_read_b32 v{T0}, v{T0+1} offset:{off}")
        a("s_waitcnt lgkmcnt(0)")
        a(f"v_cmp_ne_u32 vcc, {val}, v{T0}")
        a(f"s_cbranch_vccz {name}_ok")
        a("s_sleep 1")
        a("s_sub_u32 s98, s98, 1")
        a("s_cmp_lg_u32 s98, 0")
        a(f"s_cbranch_scc1 {name}")
        a.label(f"{name}_ok")
    a(f"s_cmp_lt_u32 s{sWAVE}, 4")
    a("s_cbranch_scc1 L_x1")
    for p0 in (0, 8, 16, 24)[len(KVA):]: kv8(a, p0)
    stamp(a, 28, VS)
    a(f"s_waitcnt vmcnt({8 + (1 if len(KVA) >= 2 else 0)}) lgkmcnt(0)")
    stamp(a, 29, VS)
    one_lane(a, f"ds_add_u32 v{T0+1}, v{T0+3} offset:8")
    a.label("L_x1")
    padat(a, "x1")
    a("s_setprio 3")
    ldswait("L_x1w", 8, 4)
    stamp(a, 10, VS)
    a(f"ds_read_b128 {vr(QB)}, v{VQ} offset:1024")
    a(f"ds_read_b128 {vr(QA)}, v{VQ}")
    a(f"ds_read_b128 {vr(V0B)}, v3")
    a(f"ds_read_b128 {vr(KF)}, v{VK}")
    a(f"ds_read_b128 {vr(V0A)}, v{VV0}")
    def kvops(groups):
        ops = []
        for p0 in groups:
            ops.append([f"s_add_u32 s94, s93, {p0*1024}", "s_and_b32 s94, s94, 0xffff", "s_add_u32 s94, s94, s90",
                        f"s_add_u32 m0, s91, {LK + p0*1024}", f"s_add_u32 s67, s94, {WS_QK + 32*65536}",
                        f"buffer_load_dwordx4 v3, {WSR}, s67 offen{ST} lds"])
            ops.append([f"s_add_u32 m0, s92, {LV + p0*VST}", f"s_add_u32 s67, s94, {WS_V}",
                        f"buffer_load_dwordx4 v3, {WSR}, s67 offen{ST} lds"])
        return ops
    def burst(young):
        if "H" in ENV("WI", ""): return
        t = "y" if young else "o"
        a(f"s_cmp_{'lt' if young else 'ge'}_u32 s{sWAVE}, 4")
        a(f"s_cbranch_scc1 L_st4{t}")
        for n in range(4): a(f"buffer_store_dwordx4 {vr(HP+4*n)}, v3, {WSR}, s{DT+n} offen{STS}")
        if not young:
            a(f"s_cmp_lg_u32 s{sVC}, 0")
            a(f"s_cbranch_scc1 L_st4{t}")
            for n in range(4, 8): a(f"buffer_store_dwordx4 {vr(HP+4*n)}, v3, {WSR}, s{DT+n} offen{STS}")
        a.label(f"L_st4{t}")
    BURSTK = int(ENV("BURSTK", "2"))
    burst(False)
    if BURSTK < 0: burst(True)
    stamp(a, 21, VS) if not ENV("EARLY") else None
    a("s_waitcnt lgkmcnt(0)")
    a(f"{MF} {vr(SA,16)}, {vr(V0B)}, {vr(QA)}, 0")
    a(f"{MF} {vr(SB,16)}, {vr(V0B)}, {vr(QB)}, 0")
    m4 = [V1, V1+1, V1+2, V1+3]
    for c, (S, o) in enumerate(((SA, 0), (SA, 8), (SB, 0), (SB, 8))): a(f"v_max3_f32 v{m4[c]}, v{S+o}, v{S+o+1}, v{S+o+2}")
    for r in (3, 5):
        for c, (S, o) in enumerate(((SA, 0), (SA, 8), (SB, 0), (SB, 8))): a(f"v_max3_f32 v{m4[c]}, v{S+o+r}, v{S+o+r+1}, v{m4[c]}")
    a(f"v_max3_f32 v{V1}, v{SA+7}, v{SA+15}, v{V1}")
    a(f"v_max3_f32 v{V1+2}, v{SB+7}, v{SB+15}, v{V1+2}")
    a(f"v_max3_f32 v{V1}, v{V1}, v{V1+1}, v{V1+3}")
    a(f"v_max_f32 v{V1}, v{V1}, v{V1+2}")
    halfmax(a, V1, V1 + 1)
    for i in range(16): a(f"v_sub_f32 v{CC+i}, 0, v{V1}")
    a("s_waitcnt lgkmcnt(0)")
    a(f"{MF} {vr(SA,16)}, {vr(KF)}, {vr(QA)}, {vr(CC,16)}")

    TV = ENV("TV", "0")
    def tile(n, which, extra, extra0=lambda: None, late=lambda: None, k=9):
        S, T, O, OT, QT = (SA, SB, OA, OB, QB) if which == 0 else (SB, SA, OB, OA, QA)
        v0 = V0A if n % 2 == 0 else V0B
        v0n = V0B if n % 2 == 0 else V0A
        e = lambda i: a(f"v_exp_f32 v{S+i}, v{S+i}")
        c = lambda i: a(f"v_cvt_pk_bf16_f32 v{S + (i>>2)*8 + (i&3)}, v{S+2*i}, v{S+2*i+1}")
        pv2 = lambda: a(f"{MF} {vr(OT,16)}, {vr(V1)}, {vr(T+8)}, {vr(OT,16)}") if k > 0 else None
        qk = lambda: a(f"{MF} {vr(T,16)}, {vr(KF)}, {vr(QT)}, {vr(CC,16)}") if k < 63 else None
        pv1 = lambda: a(f"{MF} {vr(O,16)}, {vr(v0)}, {vr(S)}, {vr(O,16) if k > 1 else 0}")
        def rdv():
            if which == 0:
                a(f"ds_read_b128 {vr(V1)}, v{VV1} offset:{2*n*VST}")
                if k < 62: a(f"ds_read_b128 {vr(v0n)}, v{VV0} offset:{2*(n+1)*VST}")
        def rdk():
            if which == 0 and k < 62: a(f"ds_read_b128 {vr(KF)}, v{VK} offset:{2*(n+1)*1024}")
        if TV == "0":
            e(0); e(1)
            if which == 1: a("s_waitcnt lgkmcnt(0)")
            pv2(); rdv()
            e(2); e(3); e(4); e(5)
            qk(); rdk()
            e(6); e(7); e(8)
            extra0()
            for i in range(4): c(i)
            e(9); e(10)
            pv1()
            e(11); e(12); e(13); e(14)
            extra()
            e(15)
            for i in range(4, 8): c(i)
            late()
        elif TV == "1":
            e(0); e(1)
            if which == 1: a("s_waitcnt lgkmcnt(0)")
            pv2(); rdv()
            e(2); e(3); e(4); e(5); e(6)
            qk(); rdk()
            e(7); c(0); c(1); c(2); extra0(); c(3); e(8); e(9)
            pv1()
            e(10); e(11); e(12); e(13); e(14)
            extra()
            e(15)
            for i in range(4, 8): c(i)
            late()
        elif TV == "2":
            e(0); e(1)
            if which == 1: a("s_waitcnt lgkmcnt(0)")
            pv2(); rdv()
            e(2); c(0); e(3); e(4); c(1); e(5)
            qk(); rdk()
            e(6); c(2); e(7); e(8); extra0(); c(3); e(9); e(10)
            pv1()
            c(4); e(11); e(12); c(5); e(13); e(14)
            extra()
            c(6); e(15); late(); a("s_nop 0") if False else None
            c(7)
    def bump(n):
        a(f"v_add_u32 v{VK}, {2*n*1024}, v{VK}")
        a(f"v_add_u32 v{VV0}, {2*n*VST}, v{VV0}")
        a(f"v_add_u32 v{VV1}, {2*n*VST}, v{VV1}")
    PRIO = ENV("PRIO", "1") == "1"
    DPER, DRAIN = int(ENV("DPER", "1")), int(ENV("DRAIN", "10"))
    wo = list(range(16))
    g = T0 + 5
    def ld2():
        a(f"buffer_load_dword v{g}, v{g+2}, {WSR}, s74 offen{ST}")
        a(f"buffer_load_dword v{g+1}, v{g+3}, {WSR}, s88 offen{ST}")
    def cmp2():
        a(f"v_and_b32 v{g}, v{g}, v{g+1}")
        a(f"v_cmp_ne_u32 vcc, 1, v{g}" if "2" not in ENV("WI", "") else f"v_cmp_ne_u32 vcc, v{g}, v{g}")
    S2W = int(ENV('S2WAVE', '0'))
    S2AT = int(ENV('S2AT', '14'))
    def ldwo(i):
        if "W" in ENV("WI", "") and i >= 2: return
        if i % 4 == 0: a(f"s_add_u32 s71, s86, {(i>>3)*144*1024 + (i&7)*1024}")
        a(f"buffer_load_dwordx4 {vr(WO + 4*i)}, v3, {WSR}, s71 offen offset:{(i&3)*1024}{'' if 'O' in ENV('XG', 'Q') else ST}")
    ops = kvops((32, 40, 48, 56))
    ops = [(lambda l=l: [a(x) for x in l]) for l in ops]
    def ldb():
        for i in range(4):
            a(f"s_mov_b32 s70, {WS_F1 + i*8192}")
            a(f"buffer_load_dwordx2 {vr(WO+4+2*i,2)}, v{WO+2}, {WSR}, s70 offen{ST}")
    def cmpb():
        b = WO + 4
        for i in range(4):
            a(f"v_xor_b32 v{b+2*i}, v{b+2*i}, v{WO}")
            a(f"v_xor_b32 v{b+2*i+1}, v{b+2*i+1}, v{WO+1}")
        a(f"v_or3_b32 v{b}, v{b}, v{b+1}, v{b+2}")
        a(f"v_or3_b32 v{b+3}, v{b+3}, v{b+4}, v{b+5}")
        a(f"v_or3_b32 v{b}, v{b}, v{b+6}, v{b+7}")
        a(f"v_or_b32 v{b}, v{b}, v{b+3}")
        a(f"v_cmp_ne_u32 vcc, 0, v{b}")
    DRAIN = int(ENV("DRAIN", "5"))
    KVW = int(ENV("KVW", "12"))
    K0 = int(ENV("K0", "22"))
    assert KVW <= 14 and K0 <= 30 and K0 % 2 == 0
    def gld(buf, q, off): a(f"buffer_load_dwordx4 {vr(GFR + 12*buf + 4*q)}, v{VG}, {WSR}, s{76+q} offen offset:{off}{'' if ('P' in ENV('XG', 'Q') or ('Q' in ENV('XG', 'Q') and q)) else ST}")
    def gm(buf, j, first=False):
        d = vr(GACC + 16*j, 16)
        a(f"{MF} {d}, {vr(GFR + 12*buf + 4 + 4*j)}, {vr(GFR + 12*buf)}, {0 if first else d}")
    vq = []
    def gl(kt, q):
        gld(kt & 3, q, (kt & 3) * 1024); vq.append(("g", kt))
    def vneed(tag):
        n = len(vq) - 1 - max(i for i, e in enumerate(vq) if e == tag)
        a(f"s_waitcnt vmcnt({n})")
    PK = [int(x) for x in ENV("PK", "4,10,17").split(",")]
    PU = [int(x) for x in ENV("PU", "42,54,60").split(",")]
    wo = list(range(16))
    pre = [(kt, q) for kt in range(4) for q in (1, 0, 2)]
    M0 = K0 + 3
    ntile = 64 - M0
    sched = {}
    extra_n = 48 - ntile
    m = 0
    for i in range(ntile):
        if extra_n > 0 and (i + 1) * extra_n // ntile > i * extra_n // ntile:
            sched[(M0 + i, 0)] = m; m += 1
        if m < 48: sched[(M0 + i, 1)] = m; m += 1
    assert m == 48
    def gstep(m):
        kt, j = m >> 1, m & 1
        if j == 0:
            if kt % 4 == 0: a(f"v_add_u32 v{VG}, 4096, v{VG}")
            vneed(("g", kt))
        gm(kt & 3, j, kt == 0)
        if j == 0: gl(kt + 4, 1)
        else: gl(kt + 4, 0); gl(kt + 4, 2)
    def xaddr():
        a(f"v_add_u32 v{KF}, s79, v3")
        a(f"v_add_u32 v{KF+1}, s80, v3")
        a(f"v_lshl_add_u32 v{KF+2}, v2, 2, s79")
        a(f"v_lshl_add_u32 v{KF+3}, v2, 2, s80")
        a(f"v_mov_b32 v{V0A}, s82")
        a(f"v_mov_b32 v{V0A+1}, s83")
        a(f"v_and_b32 v{V0A+2}, 31, v2")
        a(f"v_lshlrev_b32 v{V0A+2}, 2, v{V0A+2}")
    def xsend(O):
        a(f"ds_write_b128 v{KF}, {vr(O)}")
        a(f"ds_write_b128 v{KF}, {vr(O+4)} offset:1024")
        a(f"ds_write_b32 v{KF+2}, v{O+8} offset:2048")
        a(f"ds_write_b32 v{V0A}, v{V0A}")
    base = 0
    KV2 = DRAIN + 11
    assert KV2 < K0
    for k in range(64):
        if k == 32: bump(16); base = 16
        if PRIO and k in PK: a(f"s_setprio {2 - PK.index(k)}")
        if PRIO and k in PU: a(f"s_setprio {2 - PU.index(k)}")
        if k == DRAIN + 1:
            a(f"v_mov_b32 v{T0+1}, {LC2}")
            ldswait("L_free", 0, 4)
            a(f"v_mov_b32 v{T0+1}, {LCNT}")
            a(f"s_cmp_lt_u32 s{sWAVE}, 6")
            a("s_cbranch_scc1 L_nocs2")
            const_write(a, T0+9, T0+10)
            a.label("L_nocs2")
        if k == KVW: ldswait("L_kvw", 4, 8)
        if k == K0 - 4:
            a(f"s_cmp_lg_u32 s{sWAVE}, {S2W}")
            a("s_cbranch_scc1 L_s2a")
            ld2()
            a.label("L_s2a")
            mark = len(vq)
        if k == K0 - 1:
            a(f"s_cmp_lg_u32 s{sWAVE}, {S2W}")
            a("s_cbranch_scc1 L_s2b")
            a(f"s_waitcnt vmcnt({len(vq) - mark})")
            cmp2()
            a("s_cbranch_vccz L_ps2_ok")
            poll(a, "L_ps2", ld2, cmp2)
            one_lane(a, f"ds_add_u32 v{T0+1}, v{T0+3} offset:12")
            a.label("L_s2b")
        if k == K0:
            stamp(a, 11, VS)
            ldswait("L_s2w", 12, 9)
            stamp(a, 16, VS)
            if PRIO: a("s_setprio 3")
        def slot(i):
            if (k, i) in sched: gstep(sched[(k, i)])
            elif k >= K0 and pre:
                for _ in range(3): gl(*pre.pop(0))
            elif k >= max(KVW, DRAIN + 9) and wo and i == 0 and (k < K0 or k % 2 == 0):
                ldwo(wo.pop(0)); vq.append(("wo", 0))
        def extra():
            if k == BURSTK: burst(True)
            if k == DRAIN - 2:
                a(f"s_cmp_lg_u32 s{sWAVE}, 4")
                a("s_cbranch_scc1 L_s1b0")
                ldb()
                a.label("L_s1b0")
            if k == DRAIN:
                stamp(a, 23, VS) if not ENV("EARLY") else None
                a("s_waitcnt vmcnt(0)")
                stamp(a, 24, VS) if not ENV("EARLY") else None
                a(f"s_cmp_lg_u32 s{sWAVE}, 4")
                a("s_cbranch_scc1 L_ps1b_ok")
                cmpb()
                a("s_cbranch_vccz L_ps1b_ok")
                poll(a, "L_ps1b", ldb, cmpb)
                one_lane(a, f"ds_add_rtn_u32 v{T0+4}, v{T0+4}, v{T0+3}")
            if k > DRAIN and ops:
                ops.pop(0)(); vq.append(("kv", 0))
            if k == KV2:
                assert not ops
                vneed(("kv", 0))
                one_lane(a, f"ds_add_u32 v{T0+1}, v{T0+3} offset:12")
            if k == 63:
                a("s_cmp_eq_u32 s66, 0")
                a("s_cbranch_scc1 L_x63")
                xsend(OA)
                a.label("L_x63")
            slot(1)
        def extra0():
            if k == DRAIN + 1:
                a("s_waitcnt lgkmcnt(0)")
                a(f"v_readfirstlane_b32 s70, v{T0+4}")
                a("s_cmp_eq_u32 s70, 7")
                a(f"s_cselect_b32 s70, 0, {OOB:#x}")
                one_lane(a, f"buffer_store_dword v{T0+3}, v{T0+2}, {WSR}, s70 offen{ST}", 3)
            if k == 63: xaddr()
            slot(0)
        tile((k >> 1) - base, k & 1, extra, extra0, k=k)
    assert not wo and not pre and not ops
    a(f"{MF} {vr(OB,16)}, {vr(V1)}, {vr(SB+8)}, {vr(OB,16)}")
    stamp(a, 17, VS)
    VGT = CC + 15
    a(f"buffer_load_dword v{VG}, v{V0A+2}, {WSR}, s87 offen{ST}")
    VGT = VG
    a("s_cmp_lg_u32 s66, 0")
    a("s_cbranch_scc1 L_sent")
    xsend(OB)
    a.label("L_sent")
    a(f"s_mov_b32 s98, {SPIN*8}")
    a.label("L_xw")
    a(f"ds_read_b32 v{V0A+3}, v{V0A+1}")
    a(f"ds_read_b128 {vr(SA)}, v{KF+1}")
    a(f"ds_read_b128 {vr(SA+4)}, v{KF+1} offset:1024")
    a(f"ds_read_b32 v{SA+8}, v{KF+3} offset:2048")
    a("s_waitcnt lgkmcnt(0)")
    a(f"v_cmp_eq_u32 vcc, 0, v{V0A+3}")
    a("s_cbranch_vccz L_xw_ok")
    a("s_sleep 1")
    a("s_sub_u32 s98, s98, 1")
    a("s_cmp_lg_u32 s98, 0")
    a("s_cbranch_scc1 L_xw")
    a.label("L_xw_ok")
    a("s_cmp_lg_u32 s66, 0")
    a("s_cbranch_scc1 L_keepB")
    for i in range(9): a(f"v_add_f32 v{OA+i}, v{OA+i}, v{SA+i}")
    a("s_branch L_kept")
    a.label("L_keepB")
    for i in range(9): a(f"v_add_f32 v{OA+i}, v{OB+i}, v{SA+i}")
    a.label("L_kept")
    def lbcast():
        if ONE_ROW:
            a(f"v_mov_b32 v{OB}, v{OA+8}")
            a(f"v_permlane32_swap_b32 v{OA+8}, v{OB}")
    lbcast()
    a(f"v_cmp_nge_f32 vcc, {f32(2.0**60)}, v{OA+8}")
    a("s_mov_b64 s[82:83], vcc")
    a(f"v_cmp_nle_f32 vcc, {f32(2.0**-60)}, v{OA+8}")
    a("s_or_b64 vcc, vcc, s[82:83]")
    a("s_cbranch_vccnz L_redo")
    a.label("L_aok")
    a(f"v_rcp_f32 v12, v{OA+8}")
    for i in range(8): a(f"v_mul_f32 v{OA+i}, v12, v{OA+i}")
    for i in range(4): a(f"v_cvt_pk_bf16_f32 v{SA+i}, v{OA+2*i}, v{OA+2*i+1}")
    for i in range(4): a(f"v_min_u32 v{SA+i}, -2, v{SA+i}")
    a(f"buffer_store_dwordx4 {vr(SA)}, v3, {WSR}, s81 offen{STS}")
    stamp(a, 18, VS)
    srd(a, S_OUT, 20, 21, 2048 * 1024)
    a("s_lshl_b32 s79, s68, 15")
    a("v_add_u32 v14, s79, v3")
    a("s_lshl_b32 s80, s69, 13")
    a("s_add_u32 s80, s80, s79")
    a("v_add_u32 v15, s80, v3")
    a("v_and_b32 v12, 31, v2")
    a("v_lshlrev_b32 v12, 10, v12")
    a("v_lshrrev_b32 v13, 5, v2")
    a("v_lshl_or_b32 v11, v13, 4, v12")
    a("s_lshl_b32 s79, s84, 15")
    a(f"s_lshl_b32 s80, s{sQB}, 7")
    a("s_add_u32 s79, s79, s80")
    a("s_lshl_b32 s80, s69, 5")
    a("s_add_u32 s79, s79, s80")
    a("s_add_u32 s87, s85, 4096")
    a("s_barrier")
    TE = ENV("TE", "0")
    if TE != "2":
        a("s_waitcnt vmcnt(1)")
        for b in range(4): gm(b, 0); gm(b, 1)
    if TE == "0": a("s_waitcnt vmcnt(0)")
    stamp(a, 19, VS)
    OF, A2 = 16, 64
    def ldO():
        for i in range(8): a(f"buffer_load_dwordx4 {vr(OF+4*i)}, v3, {WSR}, s{85 if i < 4 else 87} offen offset:{(i&3)*1024}{ST}")
    def cmpO():
        for i in range(8):
            a(f"s_waitcnt vmcnt({7-i})")
            for j in range(2):
                d = vr(A2 + 16*j, 16)
                a(f"{MF} {d}, {vr(WO + 32*j + 4*i)}, {vr(OF+4*i)}, {'0' if i == 0 else d}")
            r = OF + 4*i
            if i == 0: a(f"v_max_u32 v12, v{r}, v{r+1}")
            else: a(f"v_max3_u32 v12, v{r}, v{r+1}, v12")
            a(f"v_max3_u32 v12, v{r+2}, v{r+3}, v12")
        a("v_cmp_eq_u32 vcc, -1, v12" if "3" not in ENV("WI", "") else "v_cmp_ne_u32 vcc, v12, v12")
    ldO()
    if TE == "2":
        a("s_waitcnt vmcnt(9)")
        for b in range(4): gm(b, 0); gm(b, 1)
    a(f"v_sub_f32 v10, 1.0, v{VGT}")
    for r in range(32): a(f"v_mul_f32 v{GACC+r}, v10, v{GACC+r}")
    a(f"s_mov_b32 s98, {SPIN}")
    a("s_branch L_ps3c")
    def ldO2():
        ldO(); a.label("L_ps3c")
    poll(a, "L_ps3", ldO2, cmpO, wait=False, slp=int(ENV("SLP3", "4")))
    stamp(a, 20, VS)
    for kq in range(4):
        if kq < 3:
            a(f"s_cmp_lg_u32 s69, {kq}")
            a(f"s_cbranch_scc1 L_red{kq+1}")
        for sl in [x for x in range(4) if x != kq] + [kq]:
            for r in range(8*sl, 8*sl + 8):
                if sl == kq: a(f"v_fma_f32 v{OF + r - 8*sl}, v{VGT}, v{A2+r}, v{GACC+r}")
                else: a(f"v_fmac_f32 v{GACC+r}, v{VGT}, v{A2+r}")
            if sl != kq:
                for k in range(2): a(f"ds_write_b128 v14, {vr(GACC + 8*sl + 4*k)} offset:{sl*8192 + ((kq - sl - 1) & 3)*2048 + k*1024}")
        if kq < 3:
            a("s_branch L_redw")
            a.label(f"L_red{kq+1}")
    a.label("L_redw")
    a("s_waitcnt lgkmcnt(0)")
    a("s_barrier")
    for q in range(3):
        for k in range(2): a(f"ds_read_b128 {vr(OF + 8 + 8*q + 4*k)}, v15 offset:{q*2048 + k*1024}")
    a("s_waitcnt lgkmcnt(4)")
    for r in range(0, 8, 2): a(f"v_pk_add_f32 {vr(OF+r,2)}, {vr(OF+r,2)}, {vr(OF+8+r,2)}")
    a("s_waitcnt lgkmcnt(0)")
    for r in range(0, 8, 2): a(f"v_pk_add_f32 {vr(OF+16+r,2)}, {vr(OF+16+r,2)}, {vr(OF+24+r,2)}")
    for r in range(0, 8, 2): a(f"v_pk_add_f32 {vr(OF+r,2)}, {vr(OF+r,2)}, {vr(OF+16+r,2)}")
    for i in range(4): a(f"v_cvt_pk_bf16_f32 v{48+i}, v{OF+2*i}, v{OF+2*i+1}")
    a("v_permlane32_swap_b32 v48, v50")
    a("v_permlane32_swap_b32 v49, v51")
    a(f"buffer_store_dwordx4 v[48:51], v11, {SR(S_OUT)}, s79 offen{ENV('OUTMOD', '').replace('_', ' ')}")
    if ENV("FIXT"):
        if ENV("FIX0"):
            a("v_mov_b32 v80, 0")
            a(f"buffer_load_dword v81, v80, {SR(S_DBG)}, 0 offen offset:8{ST}")
            a("s_waitcnt vmcnt(0)")
            a("v_readfirstlane_b32 s96, v81")
        a.label("L_fixt")
        a("s_memrealtime s[100:101]")
        a("s_waitcnt lgkmcnt(0)")
        a("s_sub_u32 s100, s100, s96")
        a(f"s_cmp_lt_u32 s100, {int(ENV('FIXT'))}")
        a("s_cbranch_scc1 L_fixt")
    if STAMP: a("s_waitcnt vmcnt(0)")
    stamp_out(a, 0, S_WS, VS, 14)
    if STAMP and ENV("DBGOUT"):
        a(f"s_lshl_b32 s66, s{sWAVE}, 8")
        a("s_or_b32 s66, s66, s2")
        a(f"s_cmp_lg_u32 s66, {int(ENV('DBGOUT'))}")
        a("s_cbranch_scc1 L_exit")
        a(f"v_readlane_b32 s67, v{VS}, 1")
        for k, idx in enumerate((3, 4, 5, 6, 7, 10, 11, 16, 17, 18, 19, 20, 14)):
            a(f"v_readlane_b32 s66, v{VS}, {32+idx}")
            a("s_sub_u32 s66, s66, s67")
            a(f"v_writelane_b32 v14, s66, {k}")
        a(f"v_readlane_b32 s66, v{VS}, 14")
        a(f"v_readlane_b32 s67, v{VS}, 0")
        a("s_sub_u32 s66, s66, s67")
        a("v_writelane_b32 v14, s66, 13")
        a("v_lshlrev_b32 v15, 2, v2")
        one_lane(a, f"buffer_store_dword v14, v15, {SR(S_DBG)}, 0 offen offset:4", "0x3fff")
    a("s_endpgm")
    a.label("L_redo")
    a("s_cmp_eq_u32 s66, 0")
    a("s_cbranch_scc1 L_redoA")
    for i in range(4): a(f"v_mov_b32 v{QA+i}, v{QB+i}")
    a.label("L_redoA")
    a(f"s_mul_i32 s79, s66, {VST}")
    a(f"s_add_u32 s79, s79, {32*VST}")
    a(f"v_subrev_u32 v{VV0}, s79, v{VV0}")
    a(f"v_subrev_u32 v{VV1}, s79, v{VV1}")
    a(f"v_mov_b32 v{VK}, v3")
    a("v_mov_b32 v12, 0xff800000")
    a("s_mov_b32 s80, 0")
    a.label("L_fmax")
    a(f"ds_read_b128 {vr(KF)}, v{VK}")
    a("s_waitcnt lgkmcnt(0)")
    a(f"{MF} {vr(SA,16)}, {vr(KF)}, {vr(QA)}, 0")
    a(f"v_add_u32 v{VK}, 1024, v{VK}")
    rowmax(a, SA, 12, acc=True)
    a("s_add_u32 s80, s80, 1")
    a("s_cmp_lt_u32 s80, 64")
    a("s_cbranch_scc1 L_fmax")
    halfmax(a, 12, 13)
    for i in range(16): a(f"v_sub_f32 v{CC+i}, 0, v12")
    zero(a, OA, 16)
    a(f"v_mov_b32 v{VK}, v3")
    a("s_mov_b32 s80, 0")
    a.label("L_fslow")
    a(f"ds_read_b128 {vr(KF)}, v{VK}")
    a(f"ds_read_b128 {vr(V0A)}, v{VV0}")
    a(f"ds_read_b128 {vr(V1)}, v{VV1}")
    a("s_waitcnt lgkmcnt(0)")
    a(f"{MF} {vr(SA,16)}, {vr(KF)}, {vr(QA)}, {vr(CC,16)}")
    a(f"v_add_u32 v{VK}, 1024, v{VK}")
    a(f"v_add_u32 v{VV0}, {VST}, v{VV0}")
    a(f"v_add_u32 v{VV1}, {VST}, v{VV1}")
    for i in range(16): a(f"v_exp_f32 v{SA+i}, v{SA+i}")
    for i in range(8): a(f"v_cvt_pk_bf16_f32 v{SB+i}, v{SA+2*i}, v{SA+2*i+1}")
    a(f"{MF} {vr(OA,16)}, {vr(V0A)}, {vr(SB)}, {vr(OA,16)}")
    a(f"{MF} {vr(OA,16)}, {vr(V1)}, {vr(SB+4)}, {vr(OA,16)}")
    a("s_add_u32 s80, s80, 1")
    a("s_cmp_lt_u32 s80, 64")
    a("s_cbranch_scc1 L_fslow")
    a("s_nop 9")
    lbcast()
    a("s_branch L_aok")

DOC = """;
"""
def build():
    a = Asm()
    head(a)
    p1_loader(a)
    p1_compute(a)
    attn(a)
    a.label("L_exit")
    a("s_endpgm")
    n = a.fix(verbose="-v" in sys.argv)
    print("instructions:", len(a.lines), "nop states inserted:", n, "lds", LDS_BYTES, file=sys.stderr)
    name = NAME + "_kernel"
    hdr = open("cdna_kernels/" + NAME + ".s.ref").read().split("; Override launch")[0]
    out = hdr + f"; @launch grid=(256,1,1) block=(512,1,1) lds={LDS_BYTES}\n"
    out += DOC
    out += '.amdgcn_target "amdgcn-amd-amdhsa--gfx950"\n.text\n'
    out += f".globl {name}\n.p2align 8\n.type {name},@function\n{name}:\n" + a.text()
    out += '.section .rodata,"a"\n' + kd(name)
    dst = sys.argv[1] if len(sys.argv) > 1 and not sys.argv[1].startswith("-") else "cdna_kernels/" + NAME + ".s"
    open(dst, "w").write(out)
if __name__ == "__main__": build()
```
